```python
import torch

def _softmax(x, axis=-1):
    return torch.softmax(x, dim=axis)

def _gelu(x):
    return torch.nn.functional.gelu(x, approximate='tanh')

def _silu(x):
    return torch.nn.functional.silu(x)

def _sigmoid(x):
    return torch.sigmoid(x)

def _layernorm(x, axis=-1, eps=1e-05):
    m = x.mean(dim=axis, keepdim=True)
    v = x.var(dim=axis, keepdim=True, unbiased=False)
    return (x - m) / torch.sqrt(v + eps)

def _scatter_add(tgt, idx, src, axis=0):
    return tgt.clone().index_add_(axis, idx, src)

def _segment_sum(src, seg, n):
    out = torch.zeros((n,) + src.shape[1:], dtype=src.dtype)
    return out.index_add_(0, seg, src)

def _pad(x, pw):
    flat = tuple((v for pair in reversed(pw) for v in pair))
    return torch.nn.functional.pad(x, flat)
kernel_name = 'parallel_sum__sliding_local_dilated__mixer_gmlp__prompt'

def setup_inputs():

    _w = lambda a: (lambda t: t.to(torch.bfloat16) if t.is_floating_point() else t)(torch.as_tensor(a))

    def _A_setup():
        B, S, D = (1, 2048, 512)
        return {'x': _w((lambda *s: torch.randn(*s, dtype=torch.bfloat16) * 0.05)(B, S, D)), 'wqkv': _w((lambda *s: torch.randn(*s, dtype=torch.bfloat16) * 0.1)(D, 3 * D)), 'wo': _w((lambda *s: torch.randn(*s, dtype=torch.bfloat16) * 0.05)(D, D))}
    _A_in = _A_setup()

    def _B_setup():
        B, S, D, F = (1, 2048, 512, 1792)
        Fh = F // 2
        return {'x': _w((lambda *s: torch.randn(*s, dtype=torch.bfloat16) * 0.05)(B, S, D)), 'w_in': _w((lambda *s: torch.randn(*s, dtype=torch.bfloat16) * 0.4)(D, 2 * Fh)), 'w_sp': _w(0.01 * (lambda *s: torch.randn(*s, dtype=torch.bfloat16) * 0.4)(S, S)), 'b_sp': _w(1.0 + 0.01 * (lambda *s: torch.randn(*s, dtype=torch.bfloat16) * 0.05)(S)), 'w_out': _w((lambda *s: torch.randn(*s, dtype=torch.bfloat16) * 0.05)(Fh, D))}
    _B_in = _B_setup()
    return {'A_x': _A_in['x'], 'A_wqkv': _A_in['wqkv'], 'A_wo': _A_in['wo'], 'B_x': _B_in['x'], 'B_w_in': _B_in['w_in'], 'B_w_sp': _B_in['w_sp'], 'B_b_sp': _B_in['b_sp'], 'B_w_out': _B_in['w_out']}

def reference(A_x, A_wqkv, A_wo, B_x, B_w_in, B_w_sp, B_b_sp, B_w_out):

    def _A_ref(x, wqkv, wo):
        B, S, D = x.shape
        H = 32
        Dh = D // H
        W, dil = (8, 2)
        qkv = (lambda x, *d: x.permute(*d))((x @ wqkv).reshape(B, S, 3, H, Dh), 2, 0, 3, 1, 4)
        q, k, v = (qkv[0], qkv[1], qkv[2])
        scale = Dh ** (-0.5)
        pos = torch.arange(S)
        off = torch.arange(W) * dil
        idx = pos[:, None] - off[None, :]
        mask = idx >= 0
        idx_c = torch.where(mask, idx, 0).reshape(-1)
        kg = k[:, :, idx_c, :].reshape(B, H, S, W, Dh)
        vg = v[:, :, idx_c, :].reshape(B, H, S, W, Dh)
        logits = torch.einsum('bhsd,bhswd->bhsw', q, kg) * scale
        logits = torch.where(mask[None, None, :, :], logits, -1000000000.0)
        attn = _softmax(logits, axis=-1)
        o = torch.einsum('bhsw,bhswd->bhsd', attn, vg)
        return (lambda x, *d: x.permute(*d))(o, 0, 2, 1, 3).reshape(B, S, D) @ wo

    def _B_ref(x, w_in, w_sp, b_sp, w_out):
        B, S, D = x.shape
        F = w_in.shape[-1]
        Fh = F // 2
        z = _gelu(torch.einsum('bsd,df->bsf', x, w_in))
        z1 = z[..., :Fh].clone()
        z2 = _layernorm(z[..., Fh:], axis=-1)
        g = torch.einsum('ts,bsf->btf', w_sp, z2) + b_sp[None, :, None]
        return torch.einsum('bsf,fd->bsd', z1 * g, w_out)
    x = A_x
    xn = _layernorm(x, axis=-1)
    return x + _A_ref(xn, A_wqkv, A_wo) + _B_ref(xn, B_w_in, B_w_sp, B_b_sp, B_w_out)
```

```python
import re

TRANS = ("v_exp_f32", "v_log_f32", "v_rcp_f32", "v_rsq_f32", "v_sqrt_f32", "v_sin_f32", "v_cos_f32", "v_rcp_iflag_f32")

def expand(op):
    op = op.strip()
    op = re.sub(r"^-", "", op)
    m = re.match(r"^abs\((.*)\)$", op)
    if m: op = m.group(1)
    op = op.strip("|")
    m = re.match(r"^([vas])\[(\d+):(\d+)\]$", op)
    if m: return {(m.group(1), i) for i in range(int(m.group(2)), int(m.group(3)) + 1)}
    m = re.match(r"^([vas])(\d+)$", op)
    if m: return {(m.group(1), int(m.group(2)))}
    if op == "vcc": return {("vcc", 0), ("vcc", 1)}
    if op == "vcc_lo": return {("vcc", 0)}
    if op == "vcc_hi": return {("vcc", 1)}
    if op == "exec": return {("exec", 0), ("exec", 1)}
    if op in ("exec_lo",): return {("exec", 0)}
    if op in ("exec_hi",): return {("exec", 1)}
    if op == "m0": return {("m0", 0)}
    return set()

class Ins:
    __slots__ = ("text", "mn", "ops", "cls", "w", "r", "ra", "rb", "rc", "passes", "dpp", "trans", "lds_dma",
                 "wide_store", "sdata", "nop", "target", "perm", "rl", "lanesel", "mask_r", "sr_const", "vmem_s")
    def __init__(self, text):
        self.text = text
        t = text.split(";")[0].strip()
        self.mn = t.split()[0] if t else ""
        rest = t[len(self.mn):].strip()
        ops, cur, depth = [], "", 0
        for ch in rest:
            if ch in "[(": depth += 1
            if ch in "])": depth -= 1
            if ch == "," and depth == 0:
                ops.append(cur.strip()); cur = ""
            else: cur += ch
        if cur.strip(): ops.append(cur.strip())
        mods = ""
        if ops:
            parts = ops[-1].split()
            ops[-1] = parts[0]; mods = " ".join(parts[1:])
        self.ops = ops
        mn = self.mn
        self.w = set(); self.r = set(); self.ra = set(); self.rb = set(); self.rc = set()
        self.passes = 0; self.dpp = False; self.trans = False; self.lds_dma = False
        self.wide_store = False; self.sdata = set(); self.nop = 1; self.target = None
        self.perm = False; self.rl = False; self.lanesel = set(); self.mask_r = set(); self.sr_const = set(); self.vmem_s = set()
        E = expand
        if mn.startswith("v_mfma"):
            self.cls = "mfma"
            self.w = E(ops[0]); self.ra = E(ops[1]); self.rb = E(ops[2]); self.rc = E(ops[3])
            self.r = self.ra | self.rb | self.rc
            self.passes = 8 if "32x32" in mn else 4
        elif mn.startswith("v_"):
            self.cls = "valu"
            base = re.sub(r"_(e32|e64|dpp|sdwa)$", "", mn)
            self.dpp = ("dpp" in mn) or ("row_" in mods) or ("quad_perm" in mods) or ("wave_" in mods)
            self.trans = base in TRANS
            if base in ("v_swap_b32", "v_permlane16_swap_b32", "v_permlane32_swap_b32"):
                self.w = E(ops[0]) | E(ops[1]); self.r = set(self.w); self.perm = "permlane" in base
            elif base.startswith("v_cmp"):
                self.w = E(ops[0]);
                for o in ops[1:]: self.r |= E(o)
                assert not base.startswith("v_cmpx"), "avoid v_cmpx"
            elif base in ("v_readfirstlane_b32", "v_readlane_b32"):
                self.w = E(ops[0]); self.r = E(ops[1]); self.rl = True
                if len(ops) > 2: self.lanesel = E(ops[2]); self.r |= self.lanesel
            elif base in ("v_add_co_u32", "v_sub_co_u32", "v_addc_co_u32", "v_subb_co_u32", "v_mad_u64_u32", "v_div_scale_f32"):
                self.w = E(ops[0]) | E(ops[1])
                for o in ops[2:]: self.r |= E(o)
            else:
                self.w = E(ops[0])
                for o in ops[1:]: self.r |= E(o)
                if base in ("v_fmac_f32", "v_dot2c_f32_bf16", "v_writelane_b32", "v_fmac_f16") or self.dpp:
                    self.r |= E(ops[0])
            self.sr_const = {x for x in self.r if x[0] in ("s", "vcc")} - self.lanesel
        elif mn.startswith("buffer_") or mn.startswith("global_") or mn.startswith("flat_"):
            self.cls = "vmem"
            allm = (mods + " " + " ".join(ops)).split()
            isload = "_load" in mn
            if mn in ("buffer_wbl2", "buffer_inv"):
                pass
            elif mn.startswith("buffer_"):
                if isload and "lds" in allm:
                    self.lds_dma = True
                    for o in ops: self.r |= E(o)
                    self.r |= {("m0", 0)}
                elif isload:
                    self.w = E(ops[0])
                    for o in ops[1:]: self.r |= E(o)
                else:
                    self.sdata = E(ops[0])
                    for o in ops: self.r |= E(o)
                    if "atomic" in mn and "sc0" in allm: self.w = E(ops[0])
            else:
                if isload:
                    self.w = E(ops[0])
                    for o in ops[1:]: self.r |= E(o)
                elif "atomic" in mn and "sc0" in allm:
                    self.w = E(ops[0])
                    for o in ops[1:]: self.r |= E(o)
                else:
                    self.sdata = E(ops[1])
                    for o in ops: self.r |= E(o)
            self.wide_store = ("store" in mn) and (mn.endswith("x3") or mn.endswith("x4"))
            self.vmem_s = {x for x in self.r if x[0] == "s"}
        elif mn.startswith("ds_"):
            self.cls = "ds"
            if mn.startswith("ds_read") or mn.startswith("ds_bpermute") or mn.startswith("ds_permute") or mn.startswith("ds_swizzle") or "_rtn" in mn:
                self.w = E(ops[0])
                for o in ops[1:]: self.r |= E(o)
            else:
                for o in ops: self.r |= E(o)
        elif mn.startswith("s_"):
            self.cls = "salu"
            if mn == "s_nop":
                self.nop = int(ops[0], 0) + 1
            elif mn.startswith("s_cbranch") or mn == "s_branch":
                self.target = ops[0]
            elif mn.startswith("s_cmp") or mn in ("s_waitcnt", "s_barrier", "s_endpgm", "s_setprio", "s_sleep"):
                for o in ops: self.r |= E(o)
            else:
                if ops: self.w = E(ops[0])
                for o in ops[1:]: self.r |= E(o)
                if "saveexec" in mn: self.w |= {("exec", 0), ("exec", 1)}
        else:
            raise ValueError("unknown instruction: " + text)

def required(p, c):
    need = 0
    pv = {x for x in p.w if x[0] in ("v", "a")}
    if p.cls == "valu":
        if c.cls == "mfma" and (pv & c.r): need = max(need, 2)
        if c.cls == "valu":
            if p.trans and not c.trans and (pv & c.r): need = max(need, 1)
            if p.trans and c.trans and (pv & c.r): need = max(need, 1)
            if c.dpp and (pv & c.r): need = max(need, 2)
            if c.perm and (pv & c.r): need = max(need, 2)
            if c.rl and (pv & c.r): need = max(need, 1)
            ps = {x for x in p.w if x[0] in ("s", "vcc")}
            if ps & c.sr_const: need = max(need, 2)
            if ps & c.lanesel: need = max(need, 4)
        if c.cls == "vmem":
            ps = {x for x in p.w if x[0] == "s"}
            if ps & c.vmem_s: need = max(need, 5)
        if c.cls == "salu":
            ps = {x for x in p.w if x[0] in ("s", "vcc")}
            if ps & c.r: need = max(need, 1)
    if p.cls == "mfma":
        t = {4: (6, 8, 8, 3), 8: (10, 12, 12, 7)}[p.passes]
        if c.cls == "mfma":
            if p.w & c.rc:
                if not (p.w == c.rc and p.passes == c.passes): need = max(need, t[0])
            if p.w & (c.ra | c.rb): need = max(need, t[1])
            if (p.w & c.w) and not (p.w == c.rc): need = max(need, t[1])
        elif c.cls in ("valu", "vmem", "ds"):
            if p.w & (c.r | c.w): need = max(need, t[2])
            if c.cls == "valu" and (p.rc & c.w): need = max(need, t[3])
            if c.cls in ("vmem", "ds") and (p.rc & c.w): need = max(need, t[3])
    if p.cls == "salu":
        if ("m0", 0) in p.w and c.lds_dma: need = max(need, 1)
        if (("exec", 0) in p.w or ("exec", 1) in p.w) and c.cls == "valu" and c.dpp: need = max(need, 1)
    if p.cls == "vmem" and p.wide_store:
        if c.cls == "valu" and (p.sdata & c.w): need = max(need, 2)
        elif c.cls in ("vmem", "ds", "mfma") and (p.sdata & c.w): need = max(need, 1)
    return need

MAXD = 12
def fix_hazards(lines, verbose=False):
    total = 0
    while True:
        items = []
        labels = {}
        for ln in lines:
            s = ln.split(";")[0].strip()
            if not s or s.startswith("."):
                items.append(None)
            elif s.endswith(":"):
                labels[s[:-1]] = len(items); items.append(None)
            else:
                items.append(Ins(ln))
        n = len(items)
        preds = [[] for _ in range(n + 1)]
        for i, it in enumerate(items):
            if it is None:
                preds[i + 1].append(i)
            else:
                if it.target is not None:
                    if it.target in labels: preds[labels[it.target]].append(i)
                    if it.mn != "s_branch": preds[i + 1].append(i)
                elif it.mn != "s_endpgm":
                    preds[i + 1].append(i)
        inserted = False
        for ci, c in enumerate(items):
            if c is None or c.mn == "s_nop": continue
            need = 0
            stack = [(p, 0) for p in preds[ci]]
            seen = {}
            while stack:
                pi, d = stack.pop()
                if pi in seen and seen[pi] <= d: continue
                seen[pi] = d
                p = items[pi]
                if p is None:
                    nd = d
                else:
                    r = required(p, c)
                    if r > d: need = max(need, r - d)
                    nd = d + p.nop
                if nd < MAXD:
                    for q in preds[pi]: stack.append((q, nd))
            if need:
                if verbose: print("nop", need, "before", c.text)
                lines = lines[:ci] + [f"s_nop {need - 1}"] + lines[ci:]
                total += need
                inserted = True
                break
        if not inserted: break
    return lines, total

def fix_hazards_fast(lines, verbose=False):
    total = 0
    for _ in range(50):
        items, labels = [], {}
        for ln in lines:
            s = ln.split(";")[0].strip()
            if not s or s.startswith("."): items.append(None)
            elif s.endswith(":"): labels[s[:-1]] = len(items); items.append(None)
            else: items.append(Ins(ln))
        n = len(items)
        preds = [[] for _ in range(n + 1)]
        for i, it in enumerate(items):
            if it is None: preds[i + 1].append(i)
            else:
                if it.target is not None:
                    if it.target in labels: preds[labels[it.target]].append(i)
                    if it.mn != "s_branch": preds[i + 1].append(i)
                elif it.mn != "s_endpgm": preds[i + 1].append(i)
        extra = [0] * (n + 1)
        any_ins = False
        for ci, c in enumerate(items):
            if c is None or c.mn == "s_nop": continue
            need = 0
            stack = [(p, 0) for p in preds[ci]]
            seen = {}
            while stack:
                pi, d = stack.pop()
                if pi in seen and seen[pi] <= d: continue
                seen[pi] = d
                p = items[pi]
                if p is None: nd = d
                else:
                    r = required(p, c)
                    if r > d: need = max(need, r - d)
                    nd = d + p.nop + extra[pi]
                if nd < MAXD:
                    for q in preds[pi]: stack.append((q, nd))
            if need:
                extra[ci] = need; any_ins = True; total += need
                if verbose: print("nop", need, "before", c.text)
        if not any_ins: return lines, total
        out = []
        for i, ln in enumerate(lines):
            if extra[i]: out.append(f"s_nop {extra[i] - 1}")
            out.append(ln)
        lines = out
    raise RuntimeError("hazard fixing did not converge")

class Cnt:
    def __init__(self, name, maxv): self.q = []; self.name = name; self.maxv = maxv
    def issue(self, tag): self.q.append(tag)
    def n_after(self, tags):
        if isinstance(tags, str): tags = [tags]
        last = -1
        for i, t in enumerate(self.q):
            if t in tags: last = i
        return len(self.q) - 1 - last if last >= 0 else None
    def wait(self, tags):
        n = self.n_after(tags)
        if n is None: return None
        n = min(n, self.maxv)
        self.q = self.q[len(self.q) - n:] if n else []
        return n

class K:
    def __init__(self, name):
        self.name = name; self.L = []
        self.vm = Cnt("vmcnt", 63); self.lg = Cnt("lgkmcnt", 15)
    def __call__(self, s):
        for ln in s.split("\n"):
            ln = ln.strip()
            if ln: self.L.append(ln)
    def vmem(self, s, tag): self(s); self.vm.issue(tag)
    def ds(self, s, tag): self(s); self.lg.issue(tag)
    def wait(self, vm=None, lg=None):
        parts = []
        if vm is not None:
            n = self.vm.wait(vm)
            if n is not None: parts.append(f"vmcnt({n})")
        if lg is not None:
            n = self.lg.wait(lg)
            if n is not None: parts.append(f"lgkmcnt({n})")
        if parts: self("s_waitcnt " + " ".join(parts))
    diag = False
    def stamp(self, i):
        if not K.diag: return
        op = "s_memtime" if K.diag == "c" else "s_memrealtime"
        self(f"{op} s[{84+2*i}:{85+2*i}]\ns_waitcnt lgkmcnt(0)"); self.lg.q = []
    def stamp_end(self, kidx, sWS, sW, last):
        if not K.diag: return
        self("s_waitcnt vmcnt(0)")
        self.stamp(last)
        self(f"s_lshl_b32 s82, s2, 3\ns_add_u32 s82, s82, s{sW}\ns_lshl_b32 s82, s82, 6\ns_add_u32 s82, s82, {(15<<20) + kidx*(128<<10)}")
        self("v_mov_b32 v0, s82")
        for i in range(16): self(f"v_mov_b32 v{2+i}, s{84+i}")
        self("s_mov_b64 exec, 1")
        for q in range(4): self(f"global_store_dwordx4 v0, v[{2+4*q}:{5+4*q}], s[{sWS}:{sWS+1}] offset:{16*q}")
        self("s_waitcnt vmcnt(0)")
    def srd(self, s, base, nbytes):
        self(f"s_mov_b32 s{s}, s{base}\ns_mov_b32 s{s+1}, s{base+1}\ns_mov_b32 s{s+2}, {nbytes}\ns_mov_b32 s{s+3}, 0x20000")

def vr(b, n=4, kind="v"):
    if b >= 256 and kind == "v": kind, b = "a", b - 256
    return f"{kind}{b}" if n == 1 else f"{kind}[{b}:{b+n-1}]"

def interleave(main, fill, per=None):
    out = []
    nm, nf = len(main), len(fill)
    j = 0
    for i, m in enumerate(main):
        out.append(m)
        tgt = (i + 1) * nf // nm if per is None else min(nf, (i + 1) * per)
        while j < tgt:
            out.append(fill[j]); j += 1
    out += fill[j:]
    return out

def descriptor(name, vgpr, sgpr=102, accum=None):
    if accum is None: accum = min(256, (vgpr + 3) // 4 * 4)
    return f""".p2align 6
.amdhsa_kernel {name}
  .amdhsa_next_free_vgpr {vgpr}
  .amdhsa_next_free_sgpr {sgpr}
  .amdhsa_accum_offset {accum}
  .amdhsa_group_segment_fixed_size 0
  .amdhsa_kernarg_size 88
  .amdhsa_user_sgpr_count 2
  .amdhsa_user_sgpr_kernarg_segment_ptr 1
  .amdhsa_system_sgpr_workgroup_id_x 1
.end_amdhsa_kernel"""
```

```python
import sys, importlib
sys.path.insert(0, "gen")
from asmlib import *
HDR = open("parallel_sum__sliding_local_dilated__mixer_gmlp__prompt.s.ref").read().split("; Override launch")[0]
def assemble(kernels):
    out = [HDR.rstrip()]
    for k, nv, blk, lds in kernels:
        out.append(f"; @launch kernel={k.name} grid=(256,1,1) block=({blk},1,1) lds={lds}")
    out.append('.amdgcn_target "amdgcn-amd-amdhsa--gfx950"\n.text')
    for k, nv, blk, lds in kernels:
        lines, n = fix_hazards_fast(k.L)
        print(f"{k.name}: {len(lines)} lines, {n} wait states inserted", file=sys.stderr)
        out.append(f".globl {k.name}\n.p2align 8\n.type {k.name},@function\n{k.name}:")
        out += [("" if l.endswith(":") else "    ") + l for l in lines]
    out.append('.section .rodata,"a"')
    for k, nv, blk, lds in kernels:
        out.append(descriptor(k.name, nv))
    return "\n".join(out) + "\n"
```

```python
from asmlib import *
from layout import *
import struct
def f2h(x): return hex(struct.unpack("<I", struct.pack("<f", x))[0])

XW = 18432
STG = XW + 7*4096
LDS1 = 3*STG
TA, TB, TC, PS, OX = 0, 1024, 2048, 4096, 8192
LOG2E = 1.4426950408889634
GC1 = -2*0.7978845608028654*LOG2E
GC2 = GC1*0.044715

def bf16_round(k, dst, src):
    k(f"v_cvt_pk_bf16_f32 v{dst}, v{src}, v{src}\nv_and_b32 v{dst}, 0xffff0000, v{dst}")

sX, sWQ, sWIN, sWSP, sWS = 4, 6, 8, 10, 12
sXr, sWr, sOr, sPr = 16, 20, 24, 28
sW, sRB, sCQ, sSUB = 32, 33, 34, 35
sXo, sHo, sXl, sWl, sHl = 36, 37, 38, 39, 40
sWo = [41, 42, 43, 44]
sSt, sDelta, sI, sA, sB = 45, 46, 47, 48, 49
sH, sE = 50, 51
sM = 52
sT = 64
vXe, vXo, vWd, vH = 4, 5, 6, 7
vXr = [8, 9]; vSr = [10, 11]; vWr = [[12, 13], [14, 15]]
ONES = 16
vL16 = 20
vPF = 21
FR = 28
ACC = 100
T = 188

def gen_k1(name="k1_kernel", st_pol="sc1", ld_pol="", pf_pol="nt", pf=True, code_lines=0):
    k = K(name)
    k(f"""
    s_cmp_ge_u32 s2, 256
    s_cbranch_scc1 L_{name}_end
    s_load_dwordx4 s[{sX}:{sX+3}], s[0:1], {KA_X}
    s_load_dwordx4 s[{sWIN}:{sWIN+3}], s[0:1], {KA_WIN}
    s_load_dwordx2 s[{sWS}:{sWS+1}], s[0:1], {KA_WS}
    v_lshrrev_b32 v1, 6, v0
    v_and_b32 v0, 63, v0
    v_readfirstlane_b32 s{sW}, v1
    s_and_b32 s{sT}, s2, 7
    s_lshr_b32 s{sT+1}, s2, 3
    s_lshr_b32 s{sRB}, s{sT}, 2
    s_lshl_b32 s{sRB}, s{sRB}, 3
    s_lshr_b32 s{sT+2}, s{sT+1}, 2
    s_add_u32 s{sRB}, s{sRB}, s{sT+2}
    s_and_b32 s{sCQ}, s{sT}, 3
    s_and_b32 s{sSUB}, s{sT+1}, 3
    v_lshrrev_b32 v1, 4, v0                 ; g
    v_and_b32 v2, 15, v0                    ; i
    v_and_b32 v3, 7, v0
    v_xor_b32 v{T}, v3, v1
    v_lshlrev_b32 v{T}, 4, v{T}
    v_lshrrev_b32 v{T+1}, 3, v0
    v_lshl_add_u32 v{vXe}, v{T+1}, 10, v{T}
    v_xor_b32 v{vXo}, 64, v{vXe}
    v_add_u32 v{vXo}, 8192, v{vXo}
    v_lshrrev_b32 v{T}, 5, v0
    v_lshlrev_b32 v{T}, 1, v{T}
    v_and_b32 v{T+2}, 3, v0
    v_xor_b32 v{T}, v{T}, v{T+2}
    v_lshlrev_b32 v{T}, 4, v{T}
    v_lshrrev_b32 v{T+2}, 2, v0             ; l>>2
    s_lshl_b32 s{sXo}, s{sRB}, 3
    s_add_u32 s{sXo}, s{sXo}, s{sW}
    s_lshl_b32 s{sXo}, s{sXo}, 14           ; (128rb+16w)*1024
    s_lshl_b32 s{sXl}, s{sW}, 11
    s_add_u32 s{sXl}, s{sXl}, 2048          ; unit w+1
    s_lshr_b32 s{sT+3}, s{sW}, 2            ; w>>2
    s_and_b32 s{sT+4}, s{sW}, 3             ; w&3
    s_lshl_b32 s{sWl}, s{sT+3}, 12
    s_lshl_b32 s{sT+5}, s{sT+4}, 10
    s_add_u32 s{sWl}, s{sWl}, s{sT+5}
    s_add_u32 s{sWl}, s{sWl}, {XW}
    s_mov_b32 s{sSt}, 0
    s_mov_b32 s{sT+15}, {STG}
    s_cmp_ge_u32 s{sSUB}, 2
    s_cbranch_scc1 L_{name}_B
    """)
    k(f"""
    v_mul_u32_u24 v{T+2}, 3072, v{T+2}
    v_add_u32 v{vWd}, v{T+2}, v{T}
    s_lshl_b32 s{sT+6}, s{sCQ}, 1
    s_add_u32 s{sSUB}, s{sSUB}, s{sT+6}
    s_mul_i32 s{sWo[0]}, s{sT+4}, {16*3072}
    s_lshl_b32 s{sT+6}, s{sSUB}, 7
    s_add_u32 s{sWo[0]}, s{sWo[0]}, s{sT+6}
    s_lshl_b32 s{sT+6}, s{sT+3}, 6
    s_add_u32 s{sWo[0]}, s{sWo[0]}, s{sT+6}
    s_add_u32 s{sWo[1]}, s{sWo[0]}, 1024
    s_add_u32 s{sWo[2]}, s{sWo[0]}, 2048
    s_mov_b32 s{sH}, s{sT+3}
    s_waitcnt lgkmcnt(0)
    """)
    k.srd(sXr, sX, 2048*1024); k.srd(sWr, sWQ, 512*3072)
    k(f"s_cmp_ge_u32 s{sW}, 4\ns_cbranch_scc1 L_{name}_A1")
    k(f"""
    s_lshl_b32 s{sT+6}, s{sW}, 1
    v_add_u32 v{T}, s{sT+6}, v1
    v_xor_b32 v{T}, v{T}, v3
    v_lshlrev_b32 v{T}, 4, v{T}
    v_lshl_add_u32 v{vH}, v{T+1}, 10, v{T}
    s_lshl_b32 s{sHo}, s{sRB}, 7
    s_sub_u32 s{sHo}, s{sHo}, 16
    s_max_i32 s{sHo}, s{sHo}, 0
    s_lshl_b32 s{sT+6}, s{sW}, 2
    s_add_u32 s{sHo}, s{sHo}, s{sT+6}
    s_lshl_b32 s{sHo}, s{sHo}, 10
    s_lshl_b32 s{sHl}, s{sW}, 9
    """)
    variant(k, name, "A0", st_pol, ld_pol, pf_pol, pf, code_lines)
    k(f"L_{name}_A1:")
    variant(k, name, "A1", st_pol, ld_pol, pf_pol, pf, code_lines)
    k(f"""
    L_{name}_B:
    v_mul_u32_u24 v{T+2}, 3584, v{T+2}
    v_add_u32 v{vWd}, v{T+2}, v{T}
    s_mul_i32 s{sWo[0]}, s{sT+4}, {16*3584}
    s_mul_i32 s{sT+6}, s{sCQ}, 448
    s_add_u32 s{sWo[0]}, s{sWo[0]}, s{sT+6}
    s_lshl_b32 s{sT+6}, s{sT+3}, 6
    s_add_u32 s{sWo[0]}, s{sWo[0]}, s{sT+6}
    s_cmp_eq_u32 s{sSUB}, 3
    s_cselect_b32 s{sT+6}, 1792, 0
    s_add_u32 s{sWo[0]}, s{sWo[0]}, s{sT+6}
    s_add_u32 s{sWo[1]}, s{sWo[0]}, 128
    s_add_u32 s{sWo[2]}, s{sWo[0]}, 256
    s_add_u32 s{sWo[3]}, s{sWo[0]}, 384
    s_and_b32 s{sH}, s{sW}, 1
    s_bfe_u32 s{sE}, s{sW}, 0x10001
    s_waitcnt lgkmcnt(0)
    """)
    k.srd(sXr, sX, 2048*1024); k.srd(sWr, sWIN, 512*3584)
    k(f"""
    s_cmp_eq_u32 s{sSUB}, 3
    s_cbranch_scc1 L_{name}_Z2
    s_cmp_ge_u32 s{sW}, 4
    s_cbranch_scc1 L_{name}_Z1b
    """)
    variant(k, name, "Z1a", st_pol, ld_pol, pf_pol, pf, code_lines)
    k(f"L_{name}_Z1b:")
    variant(k, name, "Z1b", st_pol, ld_pol, pf_pol, pf, code_lines)
    k(f"L_{name}_Z2:\ns_cmp_ge_u32 s{sW}, 4\ns_cbranch_scc1 L_{name}_Z2b")
    variant(k, name, "Z2a", st_pol, ld_pol, pf_pol, pf, code_lines)
    k(f"L_{name}_Z2b:")
    variant(k, name, "Z2b", st_pol, ld_pol, pf_pol, pf, code_lines)
    k(f"L_{name}_end:\ns_endpgm")
    return k, 256

def variant(k, name, V, st_pol, ld_pol, pf_pol, pf, code_lines):
    isA = V[0] == "A"
    halo = V == "A0"
    nW = 3 if (isA or V[2] == "b") else 4
    nX = 5 if isA else 4
    pitch = 3072 if isA else 3584
    ndma = 2 + nW + (1 if halo else 0)
    lab = f"L_{name}_{V}"
    k.stamp(0)
    def dma():
        k(f"s_add_u32 s{sA}, s{sSt}, s{sXl}\ns_add_u32 s{sB}, s{sSt}, s{sWl}")
        L = [f"s_mov_b32 m0, s{sA}", f"buffer_load_dwordx4 v{vXe}, s[{sXr}:{sXr+3}], s{sXo} offen lds {ld_pol}",
             f"s_add_u32 m0, s{sA}, 1024", f"buffer_load_dwordx4 v{vXo}, s[{sXr}:{sXr+3}], s{sXo} offen lds {ld_pol}",
             f"s_add_u32 s{sXo}, s{sXo}, 128"]
        for t in range(nW):
            L += [f"s_add_u32 m0, s{sB}, {t*8192}", f"buffer_load_dwordx4 v{vWd}, s[{sWr}:{sWr+3}], s{sWo[t]} offen lds {ld_pol}",
                  f"s_add_u32 s{sWo[t]}, s{sWo[t]}, {64*pitch}"]
        if halo:
            L += [f"s_add_u32 m0, s{sSt}, s{sHl}", "s_mov_b64 exec, 0xffffffff",
                  f"buffer_load_dwordx4 v{vH}, s[{sXr}:{sXr+3}], s{sHo} offen lds {ld_pol}", "s_mov_b64 exec, -1",
                  f"s_add_u32 s{sHo}, s{sHo}, 128"]
        for l in L: k(l)
    for sl in range(3):
        dma()
        if sl < 2: k(f"s_add_u32 s{sSt}, s{sSt}, {STG}")
    k(f"s_mov_b32 s{sSt}, 0")
    k(f"""
    v_lshlrev_b32 v{vL16}, 4, v0
    v_lshrrev_b32 v{T}, 1, v2
    v_xor_b32 v{T}, v{T}, v1
    v_lshlrev_b32 v{T}, 4, v{T}
    v_lshl_add_u32 v{T}, v2, 7, v{T}        ; i*128 + (g^(i>>1))*16
    s_lshl_b32 s{sT}, s{sH}, 6
    v_xor_b32 v{T}, s{sT}, v{T}
    s_lshl_b32 s{sT}, s{sH}, 13
    s_add_u32 s{sT}, s{sT}, {0 if isA else 2048}
    v_add_u32 v{vXr[0]}, s{sT}, v{T}
    v_xor_b32 v{vXr[1]}, 64, v{vXr[0]}
    v_add_u32 v{vSr[0]}, s{sXl}, v{T}
    v_xor_b32 v{vSr[1]}, 64, v{vSr[0]}
    v_and_b32 v{T}, 1, v1
    v_lshlrev_b32 v{T}, 1, v{T}             ; 2*(g&1)
    v_bfe_u32 v{T+1}, v0, 1, 1              ; c>>1
    v_xor_b32 v{T}, v{T}, v{T+1}
    v_lshlrev_b32 v{T}, 4, v{T}
    v_bfe_u32 v{T+1}, v0, 2, 2              ; r
    v_lshl_add_u32 v{T+1}, v1, 3, v{T+1}    ; 8g+r
    v_lshl_add_u32 v{T}, v{T+1}, 6, v{T}
    v_and_b32 v{T+1}, 1, v0
    v_lshl_add_u32 v{T}, v{T+1}, 3, v{T}
    """)
    if isA:
        k(f"""
        s_and_b32 s{sT}, s{sW}, 1
        s_lshl_b32 s{sT}, s{sT}, 5
        v_xor_b32 v{T}, s{sT}, v{T}
        s_bfe_u32 s{sT}, s{sW}, 0x10001
        s_lshl_b32 s{sT}, s{sT}, 12
        s_lshl_b32 s{sT+1}, s{sH}, 11
        s_add_u32 s{sT+2}, s{sT}, s{sT+1}
        s_add_u32 s{sT+2}, s{sT+2}, {XW}
        v_add_u32 v{vWr[0][0]}, s{sT+2}, v{T}
        s_sub_u32 s{sT+2}, s{sT}, s{sT+1}
        s_add_u32 s{sT+2}, s{sT+2}, {XW + 2048}
        v_add_u32 v{vWr[1][0]}, s{sT+2}, v{T}
        """)
        def waddr(sg, j, j2): return vWr[sg][0], j*8192 + j2*256
    else:
        j0 = 0 if nW == 4 else 4
        k(f"""
        s_lshl_b32 s{sT}, s{sE}, 5
        v_xor_b32 v{T}, s{sT}, v{T}             ; even j: p = e
        v_xor_b32 v{T+1}, 32, v{T}              ; odd j: p = 1-e
        s_lshl_b32 s{sT+1}, s{sH}, 11
        s_mul_i32 s{sT}, s{sE}, 12288
        s_add_u32 s{sT+2}, s{sT}, s{sT+1}
        s_add_u32 s{sT+2}, s{sT+2}, {XW}
        v_add_u32 v{vWr[0][0]}, s{sT+2}, v{T}
        s_sub_u32 s{sT+2}, s{sT}, s{sT+1}
        s_add_u32 s{sT+2}, s{sT+2}, {XW + 2048}
        v_add_u32 v{vWr[1][0]}, s{sT+2}, v{T}
        s_lshl_b32 s{sT}, s{sE}, 14
        s_add_u32 s{sT+2}, s{sT}, s{sT+1}
        s_add_u32 s{sT+2}, s{sT+2}, {XW}
        v_add_u32 v{vWr[0][1]}, s{sT+2}, v{T+1}
        s_sub_u32 s{sT+2}, s{sT}, s{sT+1}
        s_add_u32 s{sT+2}, s{sT+2}, {XW + 2048}
        v_add_u32 v{vWr[1][1]}, s{sT+2}, v{T+1}
        """)
        def waddr(sg, j, j2):
            jj = j0 + j
            return vWr[sg][jj & 1], (jj >> 1)*4096 + j2*256
    if isA:
        tQ = lambda a: ACC + (a-1)*4
        tK = lambda a: ACC + 16 + a*4
        tV = lambda a: ACC + 36 + a*4
        tG, tS = ACC + 56, ACC + 60
        tC = lambda j: ACC + 64 + j*4
        tHG, tHS = ACC + 76, ACC + 80
        nacc = 84 if halo else 76
    else:
        tZ = lambda a, j: ACC + (j*4 + a)*4
        tG, tS = ACC + 64, ACC + 68
        tC = lambda j: ACC + 72 + j*4
        nacc = 88
    ft = lambda sg: FR + sg*36
    fX = lambda sg, a: ft(sg) + a*4
    fW = lambda sg, j: ft(sg) + nX*4 + j*4
    fS = lambda sg: ft(sg) + 32
    for r in range(4): k(f"v_mov_b32 v{ONES+r}, 0x3f803f80")
    for r in range(nacc):
        if not isA and nW == 3 and (12*4 <= r < 64 or r >= 84): continue
        k(f"v_mov_b32 v{ACC+r}, 0")
    def reads(sg):
        L = []
        for j in range(nW):
            for j2 in range(2):
                b, off = waddr(sg, j, j2)
                L.append(f"ds_read_b64_tr_b16 {vr(fW(sg, j) + 2*j2, 2)}, v{b} offset:{off}")
            if j < nX: L.append(f"ds_read_b128 {vr(fX(sg, j))}, v{vXr[sg]} offset:{j*2048}")
        for a in range(nW, nX): L.append(f"ds_read_b128 {vr(fX(sg, a))}, v{vXr[sg]} offset:{a*2048}")
        L.append(f"ds_read_b128 {vr(fS(sg))}, v{vSr[sg]}")
        return L
    def mf(d, a, b): return f"v_mfma_f32_16x16x32_bf16 {vr(d)}, {vr(a)}, {vr(b)}, {vr(d)}"
    def mfmas(sg):
        L = []
        if isA:
            for a in range(5):
                if a: L.append(mf(tQ(a), fW(sg, 0), fX(sg, a)))
                L.append(mf(tK(a), fW(sg, 1), fX(sg, a)))
                L.append(mf(tV(a), fX(sg, a), fW(sg, 2)))
            if halo: L += [mf(tHG, fX(sg, 0), fX(sg, 0)), mf(tHS, ONES, fX(sg, 0))]
        else:
            for j in range(nW):
                for a in range(4):
                    L.append(mf(tZ(a, j), fX(sg, a), fW(sg, j)) if V[1] == "2" else mf(tZ(a, j), fW(sg, j), fX(sg, a)))
        L += [mf(tG, fS(sg), fS(sg)), mf(tS, ONES, fS(sg))]
        if sg == 0:
            for j in range(nW): L.append(mf(tC(j), ONES, fW(sg, j)))
        return L
    def adv(sg):
        regs = [vXr[sg], vSr[sg], vWr[sg][0]] + ([] if isA else [vWr[sg][1]])
        return [f"v_add_u32 v{r}, s{sDelta}, v{r}" for r in regs]
    k(f"s_mov_b32 s{sI}, 0\ns_waitcnt vmcnt({2*ndma})\ns_barrier")
    k.stamp(1)
    for l in reads(0): k(l)
    k("s_waitcnt lgkmcnt(0)")
    k(f".p2align 6\n{lab}_loop:")
    for l in interleave(mfmas(0), reads(1), per=1): k(l)
    k(f"""
    s_cmp_eq_u32 s{sSt}, {2*STG}
    s_cselect_b32 s{sDelta}, {-2*STG}, s{sT+15}
    """)
    k(f"s_cmp_eq_u32 s{sI}, 7\ns_cbranch_scc1 {lab}_nowait")
    k(f"s_waitcnt vmcnt({ndma})\n{lab}_nowait:\ns_waitcnt lgkmcnt(0)\ns_barrier")
    for l in adv(0): k(l)
    for l in reads(0): k(l)
    k(f"s_cmp_ge_u32 s{sI}, 5\ns_cbranch_scc1 {lab}_nodma")
    dma()
    k(f"{lab}_cont:")
    for l in interleave(mfmas(1), adv(1), per=1): k(l)
    k(f"""
    s_add_u32 s{sSt}, s{sSt}, s{sDelta}
    s_add_u32 s{sI}, s{sI}, 1
    s_cmp_lt_u32 s{sI}, 8
    s_waitcnt lgkmcnt(0)
    s_cbranch_scc1 {lab}_loop
    s_branch {lab}_epi
    {lab}_nodma:
    s_cmp_eq_u32 s{sI}, 5
    s_cbranch_scc0 {lab}_cont
    """)
    k.srd(sPr, sWSP, 2048*4096)
    k(f"""
    s_and_b32 s{sT}, s2, 7
    s_lshr_b32 s{sT}, s{sT}, 1
    s_lshl_b32 s{sT}, s{sT}, 21
    s_lshr_b32 s{sT+1}, s2, 3
    s_lshl_b32 s{sT+1}, s{sT+1}, 3
    s_add_u32 s{sT+1}, s{sT+1}, s{sW}
    s_lshl_b32 s{sT+2}, s{sT+1}, 13
    s_add_u32 s{sT}, s{sT}, s{sT+2}
    v_lshlrev_b32 v{vPF}, 7, v0
    s_mov_b32 s{sT+3}, 0x7fffffff
    """)
    k(f"buffer_load_dword v{vPF+1}, v{vPF}, s[{sPr}:{sPr+3}], s{sT if pf else sT+3} offen {pf_pol}")
    for n in range(1, ndma): k(f"buffer_load_dword v{vPF+1+n}, v{vPF}, s[{sPr}:{sPr+3}], s{sT+3} offen")
    k(f"s_branch {lab}_cont\n{lab}_epi:")
    k.stamp(2)
    cI, cE = T, T+1
    k(f"""
    s_barrier
    v_mov_b32 v{cI}, {f2h(1/512)}
    v_mov_b32 v{cE}, {f2h(1e-5)}
    v_and_b32 v{T+2}, 1, v0
    v_cmp_eq_u32 s[{sM}:{sM+1}], 1, v{T+2}          ; i odd
    v_and_b32 v{T+2}, 2, v0
    v_cmp_eq_u32 s[{sM+2}:{sM+3}], 2, v{T+2}
    v_lshrrev_b32 v{T+2}, 2, v2
    v_cmp_eq_u32 s[{sM+4}:{sM+5}], v1, v{T+2}
    v_lshlrev_b32 v{T+3}, 2, v2                      ; i*4
    """)
    def rowstats(G, S, addr_s, tt):
        k(f"""
        v_cndmask_b32 v{tt}, v{G}, v{G+1}, s[{sM}:{sM+1}]
        v_cndmask_b32 v{tt+1}, v{G+2}, v{G+3}, s[{sM}:{sM+1}]
        v_mul_f32 v{tt+2}, v{S}, v{cI}
        v_cndmask_b32 v{tt}, v{tt}, v{tt+1}, s[{sM+2}:{sM+3}]
        v_mul_f32 v{tt}, v{tt}, v{cI}
        v_fma_f32 v{tt}, -v{tt+2}, v{tt+2}, v{tt}
        v_max_f32 v{tt}, 0, v{tt}
        """)
        bf16_round(k, tt, tt); k(f"v_add_f32 v{tt}, v{tt}, v{cE}"); bf16_round(k, tt, tt)
        k(f"v_sqrt_f32 v{tt}, v{tt}"); bf16_round(k, tt+2, tt+2); bf16_round(k, tt, tt)
        k(f"v_rcp_f32 v{tt}, v{tt}\nv_add_u32 v{tt+1}, {addr_s}, v{T+3}\nv_mul_f32 v{tt+2}, -v{tt+2}, v{tt}")
        k(f"s_mov_b64 exec, s[{sM+4}:{sM+5}]\nds_write_b32 v{tt+1}, v{tt} offset:{TA}\nds_write_b32 v{tt+1}, v{tt+2} offset:{TB}\ns_mov_b64 exec, -1")
    k(f"s_lshr_b32 s{sT}, s{sXl}, 5")
    rowstats(tG, tS, f"s{sT}", T+4)
    if halo: rowstats(tHG, tHS, "0", T+8)
    if isA:
        k(f"s_and_b32 s{sT+1}, s{sW}, 3\ns_mul_i32 s{sT+1}, s{sT+1}, 192")
    else:
        k(f"s_mul_i32 s{sT+1}, s{sE}, 448\ns_add_u32 s{sT+1}, s{sT+1}, {j0*64}")
    k(f"s_lshl_b32 s{sT+2}, s{sH}, 10\ns_add_u32 s{sT+2}, s{sT+2}, s{sT+1}\nv_add_u32 v{T+4}, s{sT+2}, v{T+3}")
    for j in range(nW): k(f"ds_write_b32 v{T+4}, v{tC(j)} offset:{TC + j*64}")
    vLn, vRg, vCl, vCr = T+5, T+6, T+7, T+8
    k(f"""
    s_lshl_b32 s{sT+2}, s{sH}, 8
    s_add_u32 s{sT+2}, s{sT+2}, {0 if isA else 64}
    v_add_u32 v{vLn}, s{sT+2}, v{T+3}
    v_lshlrev_b32 v{T+9}, 4, v1
    v_add_u32 v{vRg}, s{sT+2}, v{T+9}
    v_add_u32 v{vCl}, s{sT+1}, v{T+3}
    v_add_u32 v{vCr}, s{sT+1}, v{T+9}
    s_waitcnt lgkmcnt(0)
    s_barrier
    """)
    k.stamp(3)
    k.lg.q = []
    if isA: epi_attn(k, name, V, st_pol, tQ, tK, tV, vLn, vRg, vCl, vCr)
    else: epi_z(k, name, V, st_pol, tZ, nW, j0, vLn, vRg, vCl, vCr)
    k.stamp_end(0, sWS, sW, 6)
    k("s_endpgm")

def gelu4(k, y, c1, c2, one, t):
    for r in range(4): k(f"v_mul_f32 v{t+r}, v{y+r}, v{y+r}")
    for r in range(4): k(f"v_fma_f32 v{t+r}, v{t+r}, v{c2}, v{c1}")
    for r in range(4): k(f"v_mul_f32 v{t+r}, v{t+r}, v{y+r}")
    for r in range(4): k(f"v_exp_f32 v{t+r}, v{t+r}")
    for r in range(4): k(f"v_add_f32 v{t+r}, 1.0, v{t+r}")
    for r in range(4): k(f"v_rcp_f32 v{t+r}, v{t+r}")
    for r in range(4): k(f"v_mul_f32 v{y+r}, v{y+r}, v{t+r}")

def epi_z(k, name, V, st_pol, tZ, nW, j0, vLn, vRg, vCl, vCr):
    z2 = V[1] == "2"
    AB = FR
    CS = FR + 32
    ST = T + 12
    c1, c2 = T, T+1
    tmp = T + 44; PK = T + 48
    off = Z2F_OFF if z2 else Z1L_OFF
    if z2:
        for a in range(4):
            k.ds(f"ds_read_b128 {vr(AB + a*4)}, v{vRg} offset:{TA + a*64}", "t")
            k.ds(f"ds_read_b128 {vr(AB + 16 + a*4)}, v{vRg} offset:{TB + a*64}", "t")
        for j in range(nW):
            for hh in range(2): k.ds(f"ds_read_b32 v{CS + 2*j + hh}, v{vCl} offset:{TC + hh*1024 + j*64}", "t")
    else:
        for a in range(4):
            k.ds(f"ds_read_b32 v{AB + a}, v{vLn} offset:{TA + a*64}", "t")
            k.ds(f"ds_read_b32 v{AB + 4 + a}, v{vLn} offset:{TB + a*64}", "t")
        for j in range(nW):
            for hh in range(2): k.ds(f"ds_read_b128 {vr(CS + 8*j + 4*hh)}, v{vCr} offset:{TC + hh*1024 + j*64}", "t")
    k(f"""
    v_mov_b32 v{c1}, {f2h(GC1)}
    v_mov_b32 v{c2}, {f2h(GC2)}
    s_add_u32 s{sOr}, s{sWS}, {off}
    s_addc_u32 s{sOr+1}, s{sWS+1}, 0
    s_mov_b32 s{sOr+2}, {Z2F_SZ}
    s_mov_b32 s{sOr+3}, 0x20000
    s_lshl_b32 s{sT}, s{sRB}, 1
    s_add_u32 s{sT}, s{sT}, s{sH}
    s_mul_i32 s{sT}, s{sT}, 112
    s_mul_i32 s{sT+1}, s{sCQ}, 14
    s_add_u32 s{sT}, s{sT}, s{sT+1}
    s_mul_i32 s{sT+1}, s{sE}, 7
    s_add_u32 s{sT}, s{sT}, s{sT+1}
    s_add_u32 s{sT}, s{sT}, {j0}
    s_lshl_b32 s{sT}, s{sT}, 10
    s_add_u32 s{sT+1}, s{sT}, {56*1024}
    """)
    k.wait(lg="t")
    if z2:
        for j in range(nW): k(f"v_add_f32 v{CS+2*j}, v{CS+2*j}, v{CS+2*j+1}")
    else:
        for j in range(nW):
            for r in range(4): k(f"v_add_f32 v{CS+8*j+r}, v{CS+8*j+r}, v{CS+8*j+4+r}")
    nb = 0
    for j in range(nW):
        for p in range(2):
            pk = PK + 4*(nb & 1); nb += 1
            for aa in range(2):
                a = 2*p + aa; y = tZ(a, j)
                for r in range(4):
                    if z2: k(f"v_mul_f32 v{tmp+r}, v{AB+16+a*4+r}, v{CS+2*j}")
                    else:  k(f"v_mul_f32 v{tmp+r}, v{AB+4+a}, v{CS+8*j+r}")
                for r in range(4):
                    k(f"v_fma_f32 v{y+r}, v{AB+a*4+r if z2 else AB+a}, v{y+r}, v{tmp+r}")
                gelu4(k, y, c1, c2, None, tmp)
                if z2:
                    for r in range(4):
                        s_, q_ = ST + a*8 + r*2, ST + a*8 + r*2 + 1
                        if j == 0: k(f"v_mov_b32 v{s_}, v{y+r}\nv_mul_f32 v{q_}, v{y+r}, v{y+r}")
                        else: k(f"v_add_f32 v{s_}, v{s_}, v{y+r}\nv_fmac_f32 v{q_}, v{y+r}, v{y+r}")
                for d in range(2): k(f"v_cvt_pk_bf16_f32 v{pk+2*aa+d}, v{y+2*d}, v{y+2*d+1}")
            k(f"buffer_store_dwordx4 {vr(pk)}, v{vL16}, s[{sOr}:{sOr+3}], s{sT+p} offen offset:{j*1024} {st_pol}")
    k.stamp(4)
    if z2:
        for n in range(16):
            k(f"v_add_f32_dpp v{ST+n}, v{ST+n}, v{ST+n} row_mirror row_mask:0xf bank_mask:0x3")
        for n in range(16):
            k(f"v_add_f32_dpp v{ST+n}, v{ST+16+n}, v{ST+16+n} row_mirror row_mask:0xf bank_mask:0xc")
        for n in range(8):
            k(f"v_add_f32_dpp v{ST+n}, v{ST+n}, v{ST+n} row_half_mirror row_mask:0xf bank_mask:0x5")
        for n in range(8):
            k(f"v_add_f32_dpp v{ST+n}, v{ST+8+n}, v{ST+8+n} row_half_mirror row_mask:0xf bank_mask:0xa")
        for n in range(8): k(f"v_add_f32_dpp v{ST+n}, v{ST+n}, v{ST+n} quad_perm:[1,0,3,2] row_mask:0xf bank_mask:0xf")
        for n in range(8): k(f"v_add_f32_dpp v{ST+n}, v{ST+n}, v{ST+n} quad_perm:[2,3,0,1] row_mask:0xf bank_mask:0xf")
        cg = 0 if nW == 4 else 2
        k(f"""
        v_lshrrev_b32 v{tmp}, 2, v2
        v_lshlrev_b32 v{tmp}, 7, v{tmp}
        v_lshl_add_u32 v{tmp}, v1, 5, v{tmp}
        s_lshl_b32 s{sT}, s{sE}, 10
        s_lshl_b32 s{sT+1}, s{sH}, 9
        s_add_u32 s{sT}, s{sT}, s{sT+1}
        v_add_u32 v{tmp}, s{sT}, v{tmp}
        ds_write_b128 v{tmp}, {vr(ST)} offset:{PS + cg*1024}
        ds_write_b128 v{tmp}, {vr(ST+4)} offset:{PS + cg*1024 + 16}
        s_waitcnt lgkmcnt(0)
        s_barrier
        """)
        if nW == 4:
            k(f"s_cmp_lg_u32 s{sW}, 0\ns_cbranch_scc1 L_{name}_{V}_fin")
            for c in range(4): k(f"ds_read_b128 {vr(FR + 4*c)}, v{vL16} offset:{PS + c*1024}")
            k(f"""
            s_add_u32 s{sOr}, s{sWS}, {ST2_OFF}
            s_addc_u32 s{sOr+1}, s{sWS+1}, 0
            s_mov_b32 s{sOr+2}, {ST2_SZ}
            s_lshl_b32 s{sT}, s{sCQ}, 14
            s_lshl_b32 s{sT+1}, s{sRB}, 10
            s_add_u32 s{sT}, s{sT}, s{sT+1}
            s_waitcnt lgkmcnt(0)
            """)
            for r in range(4): k(f"v_add_f32 v{FR+r}, v{FR+r}, v{FR+4+r}")
            for r in range(4): k(f"v_add_f32 v{FR+8+r}, v{FR+8+r}, v{FR+12+r}")
            for r in range(4): k(f"v_add_f32 v{FR+r}, v{FR+r}, v{FR+8+r}")
            k(f"buffer_store_dwordx4 {vr(FR)}, v{vL16}, s[{sOr}:{sOr+3}], s{sT} offen {st_pol}")
            k(f"L_{name}_{V}_fin:")
    k.stamp(5)

def epi_attn(k, name, V, st_pol, tQ, tK, tV, vLn, vRg, vCl, vCr):
    AL, BL = FR, FR + 5
    AR_, BR_ = FR + 12, FR + 32
    CQ, CK, CV = FR + 52, FR + 60, FR + 68
    for a in range(5):
        k.ds(f"ds_read_b32 v{AL+a}, v{vLn} offset:{TA + a*64}", "t")
        k.ds(f"ds_read_b32 v{BL+a}, v{vLn} offset:{TB + a*64}", "t")
    for hh in range(2):
        k.ds(f"ds_read_b128 {vr(CQ + 4*hh)}, v{vCr} offset:{TC + hh*1024}", "t")
        k.ds(f"ds_read_b128 {vr(CK + 4*hh)}, v{vCr} offset:{TC + hh*1024 + 64}", "t")
    k.wait(lg="t")
    for hh in range(2): k.ds(f"ds_read_b32 v{CV + hh}, v{vCl} offset:{TC + hh*1024 + 128}", "u")
    for a in range(5):
        k.ds(f"ds_read_b128 {vr(AR_ + a*4)}, v{vRg} offset:{TA + a*64}", "u")
        k.ds(f"ds_read_b128 {vr(BR_ + a*4)}, v{vRg} offset:{TB + a*64}", "u")
    QP, KP, VP = T + 10, T + 18, T + 28
    tmp = T + 38
    MC, MP = T + 42, T + 44
    cS, cN = T, T + 1
    for r in range(4): k(f"v_add_f32 v{CQ+r}, v{CQ+r}, v{CQ+4+r}\nv_add_f32 v{CK+r}, v{CK+r}, v{CK+4+r}")
    def foldT(y, a, cs, dst):
        for r in range(4): k(f"v_mul_f32 v{tmp+r}, v{BL+a}, v{cs+r}")
        for r in range(4): k(f"v_fma_f32 v{y+r}, v{AL+a}, v{y+r}, v{tmp+r}")
        for d in range(2): k(f"v_cvt_pk_bf16_f32 v{dst+d}, v{y+2*d}, v{y+2*d+1}")
    for a in range(5):
        foldT(tK(a), a, CK, KP + 2*a)
        if a: foldT(tQ(a), a, CQ, QP + 2*(a-1))
    Sc = lambda a: tQ(a); Sp = lambda a: tK(a)
    for a in range(1, 5):
        k(f"v_mfma_f32_16x16x16_bf16 {vr(Sc(a))}, {vr(KP+2*a, 2)}, {vr(QP+2*(a-1), 2)}, 0")
        k(f"v_mfma_f32_16x16x16_bf16 {vr(Sp(a))}, {vr(KP+2*(a-1), 2)}, {vr(QP+2*(a-1), 2)}, 0")
    k(f"""
    v_and_b32 v{tmp}, 1, v2
    v_lshl_add_u32 v{tmp+1}, v1, 2, v{tmp}          ; 4g + (q&1)
    v_cmp_le_u32 s[{sM+2}:{sM+3}], v{tmp+1}, v2
    v_add_u32 v{tmp+1}, 2, v{tmp+1}
    v_cmp_le_u32 s[{sM+4}:{sM+5}], v{tmp+1}, v2
    v_lshlrev_b32 v{tmp}, 4, v{tmp}
    v_mov_b32 v{tmp+1}, 0xffff
    v_lshlrev_b32 v{tmp}, v{tmp}, v{tmp+1}
    v_cndmask_b32 v{MC}, 0, v{tmp}, s[{sM+2}:{sM+3}]
    v_cndmask_b32 v{MP}, v{tmp}, 0, s[{sM+2}:{sM+3}]
    v_cndmask_b32 v{MC+1}, 0, v{tmp}, s[{sM+4}:{sM+5}]
    v_cndmask_b32 v{MP+1}, v{tmp}, 0, s[{sM+4}:{sM+5}]
    v_mov_b32 v{cS}, {f2h(0.25*LOG2E)}
    v_mov_b32 v{cN}, {f2h(-1e30)}
    s_cmp_eq_u32 s{sRB}, 0
    s_cselect_b64 s[{sM+6}:{sM+7}], -1, 0
    """)
    k.wait(lg="u")
    k(f"v_add_f32 v{CV}, v{CV}, v{CV+1}")
    for a in range(5):
        y = tV(a)
        for r in range(4): k(f"v_mul_f32 v{tmp+r}, v{BR_+a*4+r}, v{CV}")
        for r in range(4): k(f"v_fma_f32 v{y+r}, v{AR_+a*4+r}, v{y+r}, v{tmp+r}")
        for d in range(2): k(f"v_cvt_pk_bf16_f32 v{VP+2*a+d}, v{y+2*d}, v{y+2*d+1}")
    U = range(1, 5)
    X = lambda a: FR + (a-1)*8
    for a in U:
        for v in range(2):
            k(f"v_cndmask_b32 v{X(a)+v}, v{Sc(a)+2*v}, v{Sc(a)+2*v+1}, s[{sM}:{sM+1}]")
            k(f"v_cndmask_b32 v{X(a)+2+v}, v{Sp(a)+2*v}, v{Sp(a)+2*v+1}, s[{sM}:{sM+1}]")
    if V == "A0":
        for v in range(2): k(f"v_cndmask_b32 v{X(1)+2+v}, v{X(1)+2+v}, v{cN}, s[{sM+6}:{sM+7}]")
    for a in U:
        for v in range(2): k(f"v_cndmask_b32 v{X(a)+v}, v{X(a)+2+v}, v{X(a)+v}, s[{sM+2+2*v}:{sM+3+2*v}]")
    def allred(op):
        for sw in ("v_permlane16_swap_b32", "v_permlane32_swap_b32"):
            for a in U: k(f"v_mov_b32 v{X(a)+3}, v{X(a)+2}")
            for a in U: k(f"{sw} v{X(a)+2}, v{X(a)+3}")
            for a in U: k(f"{op} v{X(a)+2}, v{X(a)+2}, v{X(a)+3}")
    for a in U: k(f"v_max_f32 v{X(a)+2}, v{X(a)}, v{X(a)+1}")
    allred("v_max_f32")
    for a in U:
        for v in range(2): k(f"v_sub_f32 v{X(a)+v}, v{X(a)+v}, v{X(a)+2}")
    for a in U:
        for v in range(2): k(f"v_mul_f32 v{X(a)+v}, v{X(a)+v}, v{cS}")
    for a in U:
        for v in range(2): k(f"v_exp_f32 v{X(a)+v}, v{X(a)+v}")
    for a in U: k(f"v_add_f32 v{X(a)+2}, v{X(a)}, v{X(a)+1}")
    allred("v_add_f32")
    for a in U: k(f"v_rcp_f32 v{X(a)+2}, v{X(a)+2}")
    for a in U:
        for v in range(2): k(f"v_mul_f32 v{X(a)+v}, v{X(a)+v}, v{X(a)+2}")
    for a in U:
        for v in range(2): k(f"v_cvt_pk_bf16_f32 v{X(a)+v}, v{X(a)+v}, v{X(a)+v}")
    for a in U:
        for v in range(2):
            k(f"v_and_b32 v{X(a)+4+v}, v{X(a)+v}, v{MP+v}\nv_and_b32 v{X(a)+6+v}, v{X(a)+v}, v{MC+v}")
    for a in U: k(f"v_mfma_f32_16x16x32_bf16 {vr(tV(a))}, {vr(VP+2*(a-1))}, {vr(X(a)+4)}, 0")
    OP = FR + 40
    k(f"""
    s_lshl_b32 s{sT}, s{sW}, 11
    v_add_u32 v{tmp}, s{sT}, v{vL16}
    s_and_b32 s{sT+1}, s{sW}, 6
    s_lshl_b32 s{sT+1}, s{sT+1}, 11
    s_and_b32 s{sT+2}, s{sW}, 1
    s_lshl_b32 s{sT+3}, s{sT+2}, 10
    s_add_u32 s{sT+1}, s{sT+1}, s{sT+3}
    v_add_u32 v{tmp+1}, s{sT+1}, v{vL16}
    s_add_u32 s{sOr}, s{sWS}, {A3_OFF}
    s_addc_u32 s{sOr+1}, s{sWS+1}, 0
    s_mov_b32 s{sOr+2}, {A3_SZ}
    s_mov_b32 s{sOr+3}, 0x20000
    s_lshl_b32 s{sT}, s{sRB}, 2
    s_lshl_b32 s{sT+1}, s{sH}, 1
    s_add_u32 s{sT}, s{sT}, s{sT+1}
    s_add_u32 s{sT}, s{sT}, s{sT+2}
    s_mul_i32 s{sT}, s{sT}, 88
    s_lshl_b32 s{sT+1}, s{sSUB}, 1
    s_add_u32 s{sT}, s{sT}, s{sT+1}
    s_bfe_u32 s{sT+1}, s{sW}, 0x10001
    s_add_u32 s{sT}, s{sT}, s{sT+1}
    s_lshl_b32 s{sT}, s{sT}, 10
    s_add_u32 s{sT+1}, s{sT}, {44*1024}
    """)
    for a in U:
        for d in range(2): k(f"v_cvt_pk_bf16_f32 v{OP+2*(a-1)+d}, v{tV(a)+2*d}, v{tV(a)+2*d+1}")
    k.stamp(4)
    k(f"""
    ds_write_b128 v{tmp}, {vr(OP)} offset:{OX}
    ds_write_b128 v{tmp}, {vr(OP+4)} offset:{OX+1024}
    s_waitcnt lgkmcnt(0)
    s_barrier
    ds_read_b64 {vr(OP+8, 2)}, v{tmp+1} offset:{OX}
    ds_read_b64 {vr(OP+10, 2)}, v{tmp+1} offset:{OX+2048}
    ds_read_b64 {vr(OP+12, 2)}, v{tmp+1} offset:{OX+8}
    ds_read_b64 {vr(OP+14, 2)}, v{tmp+1} offset:{OX+2048+8}
    s_waitcnt lgkmcnt(2)
    buffer_store_dwordx4 {vr(OP+8)}, v{vL16}, s[{sOr}:{sOr+3}], s{sT} offen {st_pol}
    s_waitcnt lgkmcnt(0)
    buffer_store_dwordx4 {vr(OP+12)}, v{vL16}, s[{sOr}:{sOr+3}], s{sT+1} offen {st_pol}
    """)
    k.stamp(5)
```

```python
from asmlib import *
from layout import *

WREG = 36864
LDS2 = 4*WREG
RT, MT, RING = 0, 2048, 4096

def bf16_round(k, dst, src):
    k(f"v_cvt_pk_bf16_f32 v{dst}, v{src}, v{src}\nv_and_b32 v{dst}, 0xffff0000, v{dst}")

def gen_k2(name="k2_kernel", st_pol="sc1", a_pol="", DB=4, pf=None):
    k = K(name)
    NS = 16
    vAd = [4, 5]; vB = [6, 7]; vAr = [8, 9]; vRv = 10; vMo = 11; vRW = 12; vRR = [13, 14, 15]
    MASK = 16
    DD = 24
    RV = 32; BS = 33; vZ = 34; vSt = 35
    MOP = 36
    RAW = 44
    TMP = 76
    SCA = 108
    Z1 = 140
    STA = 156
    T = 220
    ACC = 256; CM = 256 + 112; BR = 256 + 128
    sWSP, sBSP, sWS = 4, 6, 8
    sAr, sZ2, sZ1, sA3, sS2, sBs = 12, 16, 20, 24, 28, 32
    sW, sRB, sCB, sReg = 36, 37, 38, 39
    sAo = [40, 41, 42, 43]; sBo = 44; sT = 46
    k(f"""
    s_cmp_ge_u32 s2, 256
    s_cbranch_scc1 L_{name}_end
    s_load_dwordx4 s[{sWSP}:{sWSP+3}], s[0:1], {KA_WSP}
    s_load_dwordx2 s[{sWS}:{sWS+1}], s[0:1], {KA_WS}
    v_lshrrev_b32 v1, 6, v0
    v_and_b32 v0, 63, v0
    v_readfirstlane_b32 s{sW}, v1
    s_and_b32 s{sT}, s2, 7
    s_lshr_b32 s{sT+1}, s2, 3
    s_lshr_b32 s{sRB}, s{sT}, 1
    s_lshl_b32 s{sRB}, s{sRB}, 3
    s_lshr_b32 s{sT+2}, s{sT+1}, 2
    s_add_u32 s{sRB}, s{sRB}, s{sT+2}
    s_and_b32 s{sCB}, s{sT}, 1
    s_lshl_b32 s{sCB}, s{sCB}, 2
    s_and_b32 s{sT+2}, s{sT+1}, 3
    s_add_u32 s{sCB}, s{sCB}, s{sT+2}
    s_mul_i32 s{sReg}, s{sW}, {WREG}
    v_lshlrev_b32 v{vB[0]}, 4, v0
    v_add_u32 v{vB[1]}, 4096, v{vB[0]}
    v_lshrrev_b32 v1, 4, v0                 ; g
    v_and_b32 v2, 15, v0                    ; i
    v_and_b32 v3, 7, v0
    v_xor_b32 v3, v3, v1
    v_lshlrev_b32 v3, 4, v3
    v_lshrrev_b32 v{T}, 3, v0
    v_lshl_add_u32 v{vAd[0]}, v{T}, 12, v3
    v_xor_b32 v{vAd[1]}, 64, v{vAd[0]}
    v_add_u32 v{vAd[1]}, 0x8000, v{vAd[1]}
    """)
    k.stamp(0)
    for u in range(4):
        k(f"""
        s_xor_b32 s{sT}, s{sW}, {u}
        s_lshl_b32 s{sT+1}, s{sRB}, 2
        s_add_u32 s{sT}, s{sT}, s{sT+1}
        s_lshl_b32 s{sT}, s{sT}, 16
        s_lshl_b32 s{sT+1}, s{sW}, 10
        s_add_u32 s{sAo[u]}, s{sT}, s{sT+1}
        """)
    k(f"""
    s_mul_i32 s{sBo}, s{sW}, {16*56*1024}
    s_mul_i32 s{sT}, s{sCB}, 7168
    s_add_u32 s{sBo}, s{sBo}, s{sT}
    s_lshl_b32 s{sT+4}, s{sW}, 12
    s_add_u32 s{sT+5}, s{sT+4}, 16384
    s_add_u32 s{sT+6}, s{sT+4}, 32768
    s_add_u32 s{sT+7}, s{sT+4}, 49152
    s_waitcnt lgkmcnt(0)
    s_add_u32 s{sS2}, s{sWS}, {ST2_OFF}
    s_addc_u32 s{sS2+1}, s{sWS+1}, 0
    s_mov_b32 s{sS2+2}, {ST2_SZ}
    s_mov_b32 s{sS2+3}, 0x20000
    """)
    for n in range(4):
        for p in range(4):
            k.vmem(f"buffer_load_dwordx4 {vr(STA + (n*4+p)*4)}, v{vB[0]}, s[{sS2}:{sS2+3}], s{sT+4+p} offen offset:{n*1024}", f"st{n}")
    k.srd(sAr, sWSP, 2048*4096)
    k.srd(sZ2, sWS, Z2F_SZ)
    def dmaA(sl, half):
        for m in range(4*half, 4*half + 4):
            k(f"s_add_u32 m0, s{sReg}, {RING + (sl%4)*8192 + m*1024 - 128*sl}")
            k.vmem(f"buffer_load_dwordx4 v{vAd[m&1]}, s[{sAr}:{sAr+3}], s{sAo[m>>1]} offen offset:{128*sl} {a_pol} lds", f"A{sl}")
    def loadB(s):
        L = []
        L.append(("s", f"s_add_u32 s{sT}, s{sBo}, {s*57344}"))
        for j in range(7):
            L.append(("v", f"buffer_load_dwordx4 {vr(BR + (s%DB)*28 + j*4)}, v{vB[j//4]}, s[{sZ2}:{sZ2+3}], s{sT} offen offset:{(j%4)*1024}", f"B{s}"))
        for it in L:
            if it[0] == "s": k(it[1])
            else: k.vmem(it[1], it[2])
    dmaA(0, 0); dmaA(0, 1); loadB(0); dmaA(1, 0); dmaA(1, 1); loadB(1); dmaA(2, 0); dmaA(2, 1)
    for s in range(2, DB - 1): loadB(s)
    k(f"""
    s_add_u32 s{sZ1}, s{sWS}, {Z1L_OFF}
    s_addc_u32 s{sZ1+1}, s{sWS+1}, 0
    s_mov_b32 s{sZ1+2}, {Z1L_SZ}
    s_mov_b32 s{sZ1+3}, 0x20000
    s_add_u32 s{sA3}, s{sWS}, {A3_OFF}
    s_addc_u32 s{sA3+1}, s{sWS+1}, 0
    s_mov_b32 s{sA3+2}, {A3_SZ}
    s_mov_b32 s{sA3+3}, 0x20000
    """)
    k.srd(sBs, sBSP, 4096)
    k(f"""
    v_lshrrev_b32 v3, 1, v2                 ; i>>1
    v_xor_b32 v3, v3, v1
    v_lshlrev_b32 v3, 4, v3
    v_lshl_add_u32 v3, v2, 7, v3
    v_add_u32 v{vAr[0]}, s{sReg}, v3
    v_xor_b32 v{vAr[1]}, 64, v{vAr[0]}
    v_lshrrev_b32 v3, 1, v1                 ; g>>1
    v_lshl_add_u32 v3, v3, 4, v2
    v_lshlrev_b32 v3, 2, v3
    v_add_u32 v{vRv}, s{sReg}, v3
    v_lshlrev_b32 v3, 4, v1
    v_add_u32 v{vMo}, s{sReg}, v3
    v_add_u32 v{vRW}, s{sReg}, v{vB[0]}
    """)
    for u in range(1, 4):
        k(f"""
        s_xor_b32 s{sT}, s{sW}, {u}
        s_mul_i32 s{sT}, s{sT}, {WREG}
        s_add_u32 s{sT}, s{sT}, {(u-1)*7424}
        v_add_u32 v{vRR[u-1]}, s{sT}, v{vB[0]}
        """)
    k(f"""
    v_lshrrev_b32 v3, 3, v2                 ; i>>3
    v_sub_u32 v3, v1, v3
    v_bfe_u32 v{T}, v2, 1, 2                ; (i&7)>>1
    v_lshl_add_u32 v3, v3, 2, v{T}          ; code
    v_and_b32 v{T}, 1, v2
    v_lshlrev_b32 v{T}, 4, v{T}
    v_mov_b32 v{T+1}, 0xffff
    v_lshlrev_b32 v{T}, v{T}, v{T+1}
    """)
    for n in range(8):
        code = n if n < 4 else n + 4
        k(f"v_cmp_eq_u32 s[{sT+2}:{sT+3}], {code}, v3\nv_cndmask_b32 v{MASK+n}, 0, v{T}, s[{sT+2}:{sT+3}]")
    vRtW, vMtW = T+2, T+3
    k(f"""
    v_lshlrev_b32 v3, 3, v0
    v_add_u32 v{vRtW}, s{sReg}, v3
    v_bfe_u32 v3, v0, 1, 2
    v_lshlrev_b32 v3, 4, v3
    v_lshl_add_u32 v3, v1, 6, v3
    v_bfe_u32 v{T}, v0, 3, 1
    v_lshl_add_u32 v3, v{T}, 3, v3
    v_and_b32 v{T}, 1, v0
    v_lshl_add_u32 v3, v{T}, 2, v3
    v_add_u32 v{vMtW}, s{sReg}, v3
    v_mov_b32 v{T+4}, {hex(0x3a924925)}     ; 1/896
    v_mov_b32 v{T+5}, {hex(0x3727c5ac)}     ; 1e-5
    """)
    cI, cE = T+4, T+5
    for n in range(4):
        k.wait(vm=f"st{n}")
        b = STA + n*16
        for e in range(4): k(f"v_add_f32 v{b+e}, v{b+e}, v{b+4+e}")
        for e in range(4): k(f"v_add_f32 v{b+8+e}, v{b+8+e}, v{b+12+e}")
        for e in range(4): k(f"v_add_f32 v{b+e}, v{b+e}, v{b+8+e}")
        for e in range(4): k(f"v_mul_f32 v{b+e}, v{b+e}, v{cI}")
        for rr in range(2): k(f"v_fma_f32 v{b+2*rr+1}, -v{b+2*rr}, v{b+2*rr}, v{b+2*rr+1}")
        for rr in range(2): k(f"v_max_f32 v{b+2*rr+1}, 0, v{b+2*rr+1}")
        for rr in range(2): bf16_round(k, b+2*rr+1, b+2*rr+1)
        for rr in range(2): k(f"v_add_f32 v{b+2*rr+1}, v{b+2*rr+1}, v{cE}")
        for rr in range(2): bf16_round(k, b+2*rr+1, b+2*rr+1)
        for rr in range(2): k(f"v_sqrt_f32 v{b+2*rr+1}, v{b+2*rr+1}")
        for rr in range(2): bf16_round(k, b+2*rr+1, b+2*rr+1)
        for rr in range(2): k(f"v_rcp_f32 v{b+2*rr+1}, v{b+2*rr+1}")
        k(f"v_cvt_pk_bf16_f32 v{b+6}, -v{b}, -v{b+2}")
        for rr in range(2): k(f"v_cvt_pk_bf16_f32 v{b+4+rr}, v{b+2*rr+1}, v{b+2*rr+1}")
        k.ds(f"ds_write_b64 v{vRtW}, v[{b+4}:{b+5}] offset:{RT + n*512}", "tw")
        k.ds(f"ds_write_b32 v{vMtW}, v{b+6} offset:{MT + n*256}", "tw")
    def R(s):
        sl = s >> 1
        k.wait(vm=f"A{sl}")
        for u in range(4):
            k.ds(f"ds_read_b128 {vr(RAW + (s&1)*16 + u*4)}, v{vAr[s&1]} offset:{RING + (sl%4)*8192 + u*2048}", f"R{s}")
        k.ds(f"ds_read_b32 v{RV}, v{vRv} offset:{RT + 128*s}", f"R{s}")
    def Mop(s): k.ds(f"ds_read_b128 {vr(MOP + (s&1)*4)}, v{vMo} offset:{MT + 64*s}", f"O{s}")
    def Dl(): return [f"v_and_b32 v{DD+n}, v{RV}, v{MASK+n}" for n in range(8)]
    def Sl(s): return [f"v_mfma_f32_16x16x32_bf16 {vr(TMP + u*8 + hh*4)}, {vr(DD + hh*4)}, {vr(RAW + (s&1)*16 + u*4)}, 0" for u in range(4) for hh in range(2)]
    def Cl(s): return [f"v_cvt_pk_bf16_f32 v{SCA + (s&1)*16 + u*4 + d}, v{TMP + u*8 + 2*d}, v{TMP + u*8 + 2*d + 1}" for u in range(4) for d in range(4)]
    def Ml(s):
        L = []
        for j in range(7):
            for u in range(4):
                a = ACC + (u*7 + j)*4
                L.append(f"v_mfma_f32_16x16x32_bf16 {vr(a)}, {vr(BR + (s%DB)*28 + j*4)}, {vr(SCA + (s&1)*16 + u*4)}, {vr(a) if s else '0'}")
        for u in range(4):
            a = CM + u*4
            L.append(f"v_mfma_f32_16x16x32_bf16 {vr(a)}, {vr(MOP + (s&1)*4)}, {vr(SCA + (s&1)*16 + u*4)}, {vr(a) if s else '0'}")
        return L
    k("s_waitcnt lgkmcnt(0)"); k.lg.q = []
    k.stamp(1)
    R(0); Mop(0); k.wait(lg="R0")
    for l in Dl(): k(l)
    R(1)
    for l in Sl(0): k(l)
    for l in Cl(0): k(l)
    k.wait(lg="R1")
    for l in Dl(): k(l)
    for s in range(NS):
        if s == 1: k.stamp(2)
        if s + DB - 1 < NS: loadB(s + DB - 1)
        if (s >> 1) + 3 < 8: dmaA((s >> 1) + 3, s & 1)
        if s == 11:
            k(f"""
            s_lshl_b32 s{sT}, s{sRB}, 1
            s_lshr_b32 s{sT+1}, s{sW}, 1
            s_add_u32 s{sT}, s{sT}, s{sT+1}
            s_mul_i32 s{sT}, s{sT}, 56
            s_mul_i32 s{sT+1}, s{sCB}, 7
            s_add_u32 s{sT}, s{sT}, s{sT+1}
            s_lshl_b32 s{sT}, s{sT}, 10
            s_and_b32 s{sT+1}, s{sW}, 1
            s_lshl_b32 s{sT+1}, s{sT+1}, 3
            s_add_u32 s{sT+2}, s{sT}, s{sT+1}
            s_lshl_b32 s{sT+3}, s{sRB}, 2
            s_add_u32 s{sT+3}, s{sT+3}, s{sW}
            s_lshl_b32 s{sT+3}, s{sT+3}, 5
            v_lshlrev_b32 v{vZ}, 1, v2
            """)
            for j in range(7):
                k.vmem(f"buffer_load_dwordx2 {vr(Z1 + 2*j, 2)}, v{vB[j//4]}, s[{sZ1}:{sZ1+3}], s{sT+2} offen offset:{(j%4)*1024}", "z1")
            k.vmem(f"buffer_load_ushort v{BS}, v{vZ}, s[{sBs}:{sBs+3}], s{sT+3} offen", "z1")
        if s == 13 and pf: pf(k, sT)
        if s + 1 < NS: Mop(s + 1)
        if s + 2 < NS: R(s + 2)
        if s + 1 < NS:
            for l in Sl(s + 1): k(l)
        k.wait(vm=f"B{s}", lg=f"O{s}")
        M = Ml(s)
        fill = Cl(s + 1) if s + 1 < NS else []
        for l in interleave(M[:24], fill, per=1): k(l)
        if s + 2 < NS:
            k.wait(lg=f"R{s+2}")
            for l in interleave(M[24:], Dl(), per=1): k(l)
        else:
            for l in M[24:]: k(l)
    k.stamp(3)
    for u in range(1, 4):
        for j in range(7):
            k.ds(f"ds_write_b128 v{vRW}, {vr(ACC + (u*7+j)*4)} offset:{(u-1)*7424 + j*1024}", "rw")
    k(f"v_lshrrev_b32 v3, 2, v{vB[0]}\nv_add_u32 v{T}, s{sReg}, v3")
    for u in range(1, 4):
        k.ds(f"ds_write_b32 v{T}, {vr(CM + u*4, 1)} offset:{(u-1)*7424 + 7168}", "rw")
    G = 44
    for j in range(7):
        for r in range(4): k(f"v_accvgpr_read_b32 v{G + j*4 + r}, {vr(ACC + j*4 + r, 1)}")
    k(f"v_accvgpr_read_b32 v{T+1}, {vr(CM, 1)}")
    for u in range(3): k(f"v_sub_u32 v{T+2+u}, v{vRR[u]}, v{vB[0]}\nv_add_u32 v{T+2+u}, v{T+2+u}, v3")
    k.wait(vm="z1")
    ZU = 160
    for j in range(7):
        for d in range(2):
            k(f"v_lshlrev_b32 v{ZU + j*4 + 2*d}, 16, v{Z1 + 2*j + d}\nv_and_b32 v{ZU + j*4 + 2*d + 1}, 0xffff0000, v{Z1 + 2*j + d}")
    k(f"v_lshlrev_b32 v{BS}, 16, v{BS}\nv_add_f32 v{T+1}, v{T+1}, v{BS}")
    k(f"""
    s_lshl_b32 s{sT}, s{sRB}, 2
    s_add_u32 s{sT}, s{sT}, s{sW}
    s_mul_i32 s{sT}, s{sT}, 44
    s_mul_i32 s{sT+1}, s{sCB}, 7
    s_lshr_b32 s{sT+1}, s{sT+1}, 1
    s_add_u32 s{sT}, s{sT}, s{sT+1}
    s_add_u32 s{sT}, s{sT}, 16
    s_lshl_b32 s{sT}, s{sT}, 10
    """)
    k("s_waitcnt lgkmcnt(0)\ns_barrier"); k.lg.q = []
    k.stamp(4)
    P = 72
    for u in range(3): k.ds(f"ds_read_b32 v{T+5+u}, v{T+2+u} offset:7168", "c")
    for j in range(7):
        for u in range(3):
            k.ds(f"ds_read_b128 {vr(P + j*12 + u*4)}, v{vRR[u]} offset:{j*1024}", f"p{j}")
    k.wait(lg="c")
    k(f"v_add_f32 v{T+5}, v{T+5}, v{T+6}\nv_add_f32 v{T+1}, v{T+1}, v{T+7}\nv_add_f32 v{T+1}, v{T+1}, v{T+5}")
    H = 190
    for j in range(7):
        k.wait(lg=f"p{j}")
        p = P + j*12
        for r in range(4): k(f"v_add_f32 v{G+j*4+r}, v{G+j*4+r}, v{p+r}")
        for r in range(4): k(f"v_add_f32 v{p+4+r}, v{p+4+r}, v{p+8+r}")
        for r in range(4): k(f"v_add_f32 v{G+j*4+r}, v{G+j*4+r}, v{T+1}")
        for r in range(4): k(f"v_add_f32 v{G+j*4+r}, v{G+j*4+r}, v{p+4+r}")
        for r in range(4): k(f"v_mul_f32 v{G+j*4+r}, v{G+j*4+r}, v{ZU+j*4+r}")
        for d in range(2): k(f"v_cvt_pk_bf16_f32 v{H+2*j+d}, v{G+j*4+2*d}, v{G+j*4+2*d+1}")
    k(f"s_bitcmp1_b32 s{sCB}, 0\ns_cbranch_scc1 L_{name}_odd")
    for q in range(3): k(f"buffer_store_dwordx4 {vr(H+4*q)}, v{vB[0]}, s[{sA3}:{sA3+3}], s{sT} offen offset:{q*1024} {st_pol}")
    k(f"buffer_store_dwordx2 {vr(H+12, 2)}, v{vB[0]}, s[{sA3}:{sA3+3}], s{sT} offen offset:3072 {st_pol}")
    k.stamp_end(1, sWS, sW, 5)
    k(f"s_endpgm\nL_{name}_odd:")
    k(f"buffer_store_dwordx2 {vr(H, 2)}, v{vB[0]}, s[{sA3}:{sA3+3}], s{sT} offen offset:8 {st_pol}")
    for q in range(3): k(f"buffer_store_dwordx4 {vr(H+2+4*q)}, v{vB[0]}, s[{sA3}:{sA3+3}], s{sT} offen offset:{(q+1)*1024} {st_pol}")
    k.stamp_end(1, sWS, sW, 5)
    k(f"L_{name}_end:\ns_endpgm")
    return k, 256 + 128 + DB*28
```

```python
from asmlib import *
from layout import *

LDS3_RING = 0
LDS3_RED  = 65536
LDS3 = LDS3_RED + 16*4352

def gen_k3(name="k3_kernel", st_pol="sc1", ld_pol=""):
    k = K(name)
    NST = 11; D = 4
    vA = [4, 5, 6]; vWd = 7; vT = [8, 9]; vRW = 10; vRR = 11; vX = 12
    XD = 16; ACC = 32; AR = 96; BF = 160
    sX, sWO, sWOUT, sOUT, sWS = 4, 6, 8, 10, 12
    sA3, sWw, sXr, sOr = 16, 20, 24, 28
    sW, sRB, sNB = 32, 33, 34
    sAo = [36, 37, 38, 39]; sKap = 40; sSo = [41, 42]; sRing = 43; sT = 44
    k(f"""
    s_cmp_ge_u32 s2, 256
    s_cbranch_scc1 L_{name}_end
    s_load_dwordx2 s[{sX}:{sX+1}], s[0:1], {KA_X}
    s_load_dwordx2 s[{sWO}:{sWO+1}], s[0:1], {KA_WO}
    s_load_dwordx4 s[{sWOUT}:{sWOUT+3}], s[0:1], {KA_WOUT}
    s_load_dwordx2 s[{sWS}:{sWS+1}], s[0:1], {KA_WS}
    v_lshrrev_b32 v1, 6, v0
    v_and_b32 v0, 63, v0
    v_readfirstlane_b32 s{sW}, v1
    s_and_b32 s{sT}, s2, 7
    s_lshr_b32 s{sT+1}, s2, 3
    s_lshr_b32 s{sRB}, s{sT}, 1
    s_lshl_b32 s{sRB}, s{sRB}, 3
    s_lshr_b32 s{sT+2}, s{sT+1}, 2
    s_add_u32 s{sRB}, s{sRB}, s{sT+2}
    s_and_b32 s{sNB}, s{sT}, 1
    s_lshl_b32 s{sNB}, s{sNB}, 2
    s_and_b32 s{sT+2}, s{sT+1}, 3
    s_add_u32 s{sNB}, s{sNB}, s{sT+2}
    """)
    k.stamp(0)
    k(f"""
    v_lshlrev_b32 v{vA[0]}, 4, v0
    v_add_u32 v{vA[1]}, 4096, v{vA[0]}
    v_add_u32 v{vA[2]}, 8192, v{vA[0]}
    v_lshrrev_b32 v1, 4, v0                 ; g
    v_and_b32 v2, 1, v1                     ; g&1
    v_lshlrev_b32 v2, 1, v2                 ; 2*(g&1)
    v_and_b32 v3, 3, v0                     ; c
    v_xor_b32 v13, v3, v2
    v_lshlrev_b32 v13, 4, v13
    v_lshrrev_b32 v14, 2, v0
    v_lshl_add_u32 v{vWd}, v14, 10, v13     ; (l>>2)*1024 + chunk*16
    v_lshrrev_b32 v13, 1, v3                ; c>>1
    v_xor_b32 v13, v13, v2
    v_lshlrev_b32 v13, 4, v13
    v_lshl_add_u32 v13, v14, 6, v13         ; (4g+r)*64 + pos*16
    v_and_b32 v15, 1, v0
    v_lshl_add_u32 v13, v15, 3, v13
    s_lshl_b32 s{sRing}, s{sW}, 14
    v_add_u32 v{vT[0]}, s{sRing}, v13
    v_xor_b32 v{vT[1]}, 32, v{vT[0]}
    v_and_b32 v13, 15, v0
    v_mul_u32_u24 v13, 272, v13
    v_lshl_add_u32 v13, v1, 4, v13
    s_mul_i32 s{sT}, s{sW}, 4352
    s_add_u32 s{sT}, s{sT}, {LDS3_RED}
    v_add_u32 v{vRW}, s{sT}, v13
    v_lshrrev_b32 v13, 3, v0
    v_and_b32 v14, 7, v0
    v_mul_u32_u24 v15, 272, v13
    v_lshl_add_u32 v15, v14, 5, v15
    s_mul_i32 s{sT}, s{sW}, 17408
    s_add_u32 s{sT}, s{sT}, {LDS3_RED}
    v_add_u32 v{vRR}, s{sT}, v15
    v_lshlrev_b32 v14, 4, v14
    v_lshl_add_u32 v{vX}, v13, 10, v14      ; (l>>3)*1024 + (l&7)*16
    s_mul_i32 s{sKap}, s{sW}, 11
    s_lshl_b32 s{sT}, s{sRB}, 2
    s_mul_i32 s{sT}, s{sT}, 44
    s_add_u32 s{sT}, s{sT}, s{sKap}
    s_lshl_b32 s{sAo[0]}, s{sT}, 10
    s_add_u32 s{sAo[1]}, s{sAo[0]}, {44*1024}
    s_add_u32 s{sAo[2]}, s{sAo[0]}, {88*1024}
    s_add_u32 s{sAo[3]}, s{sAo[0]}, {132*1024}
    s_lshl_b32 s{sT+1}, s{sRB}, 2
    s_add_u32 s{sT+1}, s{sT+1}, s{sW}
    s_lshl_b32 s{sT+1}, s{sT+1}, 14        ; (64rb+16w)*1024
    s_lshl_b32 s{sNB}, s{sNB}, 7
    s_add_u32 s{sT+3}, s{sT+1}, s{sNB}
    s_add_u32 s{sT+4}, s{sT+3}, 8192
    s_waitcnt lgkmcnt(0)
    s_add_u32 s{sA3}, s{sWS}, {A3_OFF}
    s_addc_u32 s{sA3+1}, s{sWS+1}, 0
    s_mov_b32 s{sA3+2}, {A3_SZ}
    s_mov_b32 s{sA3+3}, 0x20000
    s_mov_b32 s{sWw+3}, 0x20000
    s_mov_b32 s50, {512*1024}
    """)
    k.srd(sXr, sX, 2048*1024)
    k.srd(sOr, sOUT, 2048*1024)
    sXo = [sT+3, sT+4]
    def issue(s):
        st = s % D
        k(f"""
        s_add_u32 s{sT}, s{sKap}, {s}
        s_sub_u32 s{sT+1}, s{sT}, 16
        s_cmp_lt_u32 s{sT}, 16
        s_cselect_b32 s{sWw}, s{sWO}, s{sWOUT}
        s_cselect_b32 s{sWw+1}, s{sWO+1}, s{sWOUT+1}
        s_cselect_b32 s{sWw+2}, s50, {896*1024}
        s_cselect_b32 s{sT}, s{sT}, s{sT+1}
        s_lshl_b32 s{sT}, s{sT}, 15
        s_add_u32 s{sSo[0]}, s{sT}, s{sNB}
        s_add_u32 s{sSo[1]}, s{sSo[0]}, 16384
        """)
        for q in range(2):
            for m2 in range(2):
                k(f"s_add_u32 m0, s{sRing}, {LDS3_RING + st*4096 + q*2048 + m2*1024 - 64*q}")
                k.vmem(f"buffer_load_dwordx4 v{vWd}, s[{sWw}:{sWw+3}], s{sSo[m2]} offen offset:{64*q} {ld_pol} lds", f"s{s}")
        for u in range(4):
            k.vmem(f"buffer_load_dwordx4 {vr(AR + st*16 + u*4)}, v{vA[s//4]}, s[{sA3}:{sA3+3}], s{sAo[u]} offen offset:{(s%4)*1024}", f"s{s}")
    for s in range(D-1): issue(s)
    for i2 in range(2):
        k.vmem(f"buffer_load_dwordx4 {vr(XD + 4*i2)}, v{vX}, s[{sXr}:{sXr+3}], s{sXo[i2]} offen {ld_pol}", "x")
    for s in range(NST):
        st = s % D
        if s == 1: k.stamp(1)
        if s + D - 1 < NST: issue(s + D - 1)
        k.wait(vm=f"s{s}")
        for j in range(4):
            for j2 in range(2):
                k.ds(f"ds_read_b64_tr_b16 {vr(BF + j*4 + j2*2, 2)}, v{vT[j&1]} offset:{LDS3_RING + st*4096 + (j>>1)*2048 + j2*1024}", f"b{j}")
        for j in range(4):
            k.wait(lg=f"b{j}")
            for u in range(4):
                a = ACC + (u*4 + j)*4
                c = vr(a) if s else "0"
                k(f"v_mfma_f32_16x16x32_bf16 {vr(a)}, {vr(BF + j*4)}, {vr(AR + st*16 + u*4)}, {c}")
    k.stamp(2)
    for j in range(4):
        for u in range(4):
            k.ds(f"ds_write_b128 v{vRW}, {vr(ACC + (u*4+j)*4)} offset:{u*17408 + j*64}", "rw")
    k("s_waitcnt lgkmcnt(0)\ns_barrier"); k.lg.q = []
    k.stamp(3)
    R = 96
    for i2 in range(2):
        for src in range(4):
            for hf in range(2):
                k.ds(f"ds_read_b128 {vr(R + i2*32 + src*8 + hf*4)}, v{vRR} offset:{src*4352 + i2*8*272 + hf*16}", f"r{i2}")
    k.wait(vm="x")
    XU = 160
    for i2 in range(2):
        for d in range(4):
            k(f"v_lshlrev_b32 v{XU + i2*8 + 2*d}, 16, v{XD + i2*4 + d}")
            k(f"v_and_b32 v{XU + i2*8 + 2*d + 1}, 0xffff0000, v{XD + i2*4 + d}")
    for i2 in range(2):
        k.wait(lg=f"r{i2}")
        b = R + i2*32
        for e in range(8): k(f"v_add_f32 v{b+e}, v{b+e}, v{b+8+e}")
        for e in range(8): k(f"v_add_f32 v{b+16+e}, v{b+16+e}, v{b+24+e}")
        for e in range(8): k(f"v_add_f32 v{b+e}, v{b+e}, v{XU + i2*8 + e}")
        for e in range(8): k(f"v_add_f32 v{b+e}, v{b+e}, v{b+16+e}")
        for d in range(4): k(f"v_cvt_pk_bf16_f32 v{XD + i2*4 + d}, v{b+2*d}, v{b+2*d+1}")
        k(f"buffer_store_dwordx4 {vr(XD + i2*4)}, v{vX}, s[{sOr}:{sOr+3}], s{sXo[i2]} offen {st_pol}")
    k.stamp_end(2, sWS, sW, 4)
    k(f"L_{name}_end:\ns_endpgm")
    return k, 176
```

```python
Z2F_OFF = 0
Z2F_SZ  = 64*56*1024
A3_OFF  = 4 << 20
A3_SZ   = 128*44*1024
Z1L_OFF = 10 << 20
Z1L_SZ  = 64*56*1024
ST2_OFF = 14 << 20
ST2_SZ  = 4*2048*8
KA_X, KA_WQKV, KA_WO, KA_BX, KA_WIN, KA_WSP, KA_BSP, KA_WOUT, KA_OUT, KA_DBG, KA_WS = [8*i for i in range(11)]
```

```python
import sys
sys.path.insert(0, "gen")
from build import *
import k1, k2, k3
K.diag = "d" in sys.argv[2:]
a = k1.gen_k1(); b = k2.gen_k2(); c = k3.gen_k3()
open(sys.argv[1], "w").write(assemble([(a[0], a[1], 512, k1.LDS1), (b[0], b[1], 256, k2.LDS2), (c[0], c[1], 256, k3.LDS3)]))
```

```python
from asmlib import *
from layout import *
import struct
def f2h(x): return hex(struct.unpack("<I", struct.pack("<f", x))[0])

XW = 18432
STG = XW + 7*4096
LDS1 = 3*STG
TA, TB, TC, PS, OX = 0, 1024, 2048, 4096, 8192
LOG2E = 1.4426950408889634
GC1 = -2*0.7978845608028654*LOG2E
GC2 = GC1*0.044715

def bf16_round(k, dst, src):
    k(f"v_cvt_pk_bf16_f32 v{dst}, v{src}, v{src}\nv_and_b32 v{dst}, 0xffff0000, v{dst}")

sX, sWQ, sWIN, sWSP, sWS = 4, 6, 8, 10, 12
sXr, sWr, sOr, sPr = 16, 20, 24, 28
sW, sRB, sCQ, sSUB = 32, 33, 34, 35
sXo, sHo, sXl, sWl, sHl = 36, 37, 38, 39, 40
sWo = [41, 42, 43, 44]
sSt, sDelta, sI, sA, sB = 45, 46, 47, 48, 49
sH, sE = 50, 51
sM = 52
sT = 64
vXe, vXo, vWd, vH = 4, 5, 6, 7
vXr = [8, 9]; vSr = [10, 11]; vWr = [[12, 13], [14, 15]]
ONES = 16
vL16 = 20
vPF = 21
FR = 28
ACC = 100
T = 188

OPT = {}
def gen_k1(name="k1_kernel", st_pol="sc1", ld_pol="", pf_pol="nt", pf=True, code_lines=0):
    k = K(name)
    k(f"""
    s_cmp_ge_u32 s2, 256
    s_cbranch_scc1 L_{name}_end
    s_load_dwordx4 s[{sX}:{sX+3}], s[0:1], {KA_X}
    s_load_dwordx4 s[{sWIN}:{sWIN+3}], s[0:1], {KA_WIN}
    s_load_dwordx2 s[{sWS}:{sWS+1}], s[0:1], {KA_WS}
    v_lshrrev_b32 v1, 6, v0
    v_and_b32 v0, 63, v0
    v_readfirstlane_b32 s{sW}, v1
    s_and_b32 s{sT}, s2, 7
    s_lshr_b32 s{sT+1}, s2, 3
    s_lshr_b32 s{sRB}, s{sT}, 2
    s_lshl_b32 s{sRB}, s{sRB}, 3
    s_lshr_b32 s{sT+2}, s{sT+1}, 2
    s_add_u32 s{sRB}, s{sRB}, s{sT+2}
    s_and_b32 s{sCQ}, s{sT}, 3
    s_and_b32 s{sSUB}, s{sT+1}, 3
    v_lshrrev_b32 v1, 4, v0                 ; g
    v_and_b32 v2, 15, v0                    ; i
    v_and_b32 v3, 7, v0
    v_xor_b32 v{T}, v3, v1
    v_lshlrev_b32 v{T}, 4, v{T}
    v_lshrrev_b32 v{T+1}, 3, v0
    v_lshl_add_u32 v{vXe}, v{T+1}, 10, v{T}
    v_xor_b32 v{vXo}, 64, v{vXe}
    v_add_u32 v{vXo}, 8192, v{vXo}
    v_lshrrev_b32 v{T}, 5, v0
    v_lshlrev_b32 v{T}, 1, v{T}
    v_and_b32 v{T+2}, 3, v0
    v_xor_b32 v{T}, v{T}, v{T+2}
    v_lshlrev_b32 v{T}, 4, v{T}
    v_lshrrev_b32 v{T+2}, 2, v0             ; l>>2
    s_lshl_b32 s{sXo}, s{sRB}, 3
    s_add_u32 s{sXo}, s{sXo}, s{sW}
    s_lshl_b32 s{sXo}, s{sXo}, 14           ; (128rb+16w)*1024
    s_lshl_b32 s{sXl}, s{sW}, 11
    s_add_u32 s{sXl}, s{sXl}, 2048          ; unit w+1
    s_lshr_b32 s{sT+3}, s{sW}, 2            ; w>>2
    s_and_b32 s{sT+4}, s{sW}, 3             ; w&3
    s_lshl_b32 s{sWl}, s{sT+3}, 12
    s_lshl_b32 s{sT+5}, s{sT+4}, 10
    s_add_u32 s{sWl}, s{sWl}, s{sT+5}
    s_add_u32 s{sWl}, s{sWl}, {XW}
    s_mov_b32 s{sSt}, 0
    s_mov_b32 s{sT+15}, {STG}
    s_cmp_ge_u32 s{sSUB}, 2
    s_cbranch_scc1 L_{name}_B
    """)
    k(f"""
    v_mul_u32_u24 v{T+2}, 3072, v{T+2}
    v_add_u32 v{vWd}, v{T+2}, v{T}
    s_lshl_b32 s{sT+6}, s{sCQ}, 1
    s_add_u32 s{sSUB}, s{sSUB}, s{sT+6}
    s_mul_i32 s{sWo[0]}, s{sT+4}, {16*3072}
    s_lshl_b32 s{sT+6}, s{sSUB}, 7
    s_add_u32 s{sWo[0]}, s{sWo[0]}, s{sT+6}
    s_lshl_b32 s{sT+6}, s{sT+3}, 6
    s_add_u32 s{sWo[0]}, s{sWo[0]}, s{sT+6}
    s_add_u32 s{sWo[1]}, s{sWo[0]}, 1024
    s_add_u32 s{sWo[2]}, s{sWo[0]}, 2048
    s_mov_b32 s{sH}, s{sT+3}
    s_waitcnt lgkmcnt(0)
    """)
    k.srd(sXr, sX, 2048*1024); k.srd(sWr, sWQ, 512*3072)
    k(f"s_cmp_ge_u32 s{sW}, 4\ns_cbranch_scc1 L_{name}_A1")
    k(f"""
    s_lshl_b32 s{sT+6}, s{sW}, 1
    v_add_u32 v{T}, s{sT+6}, v1
    v_xor_b32 v{T}, v{T}, v3
    v_lshlrev_b32 v{T}, 4, v{T}
    v_lshl_add_u32 v{vH}, v{T+1}, 10, v{T}
    s_lshl_b32 s{sHo}, s{sRB}, 7
    s_sub_u32 s{sHo}, s{sHo}, 16
    s_max_i32 s{sHo}, s{sHo}, 0
    s_lshl_b32 s{sT+6}, s{sW}, 2
    s_add_u32 s{sHo}, s{sHo}, s{sT+6}
    s_lshl_b32 s{sHo}, s{sHo}, 10
    s_lshl_b32 s{sHl}, s{sW}, 9
    """)
    variant(k, name, "A0", st_pol, ld_pol, pf_pol, pf, code_lines)
    k(f"L_{name}_A1:")
    variant(k, name, "A1", st_pol, ld_pol, pf_pol, pf, code_lines)
    k(f"""
    L_{name}_B:
    v_mul_u32_u24 v{T+2}, 3584, v{T+2}
    v_add_u32 v{vWd}, v{T+2}, v{T}
    s_mul_i32 s{sWo[0]}, s{sT+4}, {16*3584}
    s_mul_i32 s{sT+6}, s{sCQ}, 448
    s_add_u32 s{sWo[0]}, s{sWo[0]}, s{sT+6}
    s_lshl_b32 s{sT+6}, s{sT+3}, 6
    s_add_u32 s{sWo[0]}, s{sWo[0]}, s{sT+6}
    s_cmp_eq_u32 s{sSUB}, 3
    s_cselect_b32 s{sT+6}, 1792, 0
    s_add_u32 s{sWo[0]}, s{sWo[0]}, s{sT+6}
    s_add_u32 s{sWo[1]}, s{sWo[0]}, 128
    s_add_u32 s{sWo[2]}, s{sWo[0]}, 256
    s_add_u32 s{sWo[3]}, s{sWo[0]}, 384
    s_and_b32 s{sH}, s{sW}, 1
    s_bfe_u32 s{sE}, s{sW}, 0x10001
    s_waitcnt lgkmcnt(0)
    """)
    k.srd(sXr, sX, 2048*1024); k.srd(sWr, sWIN, 512*3584)
    k(f"""
    s_cmp_eq_u32 s{sSUB}, 3
    s_cbranch_scc1 L_{name}_Z2
    s_cmp_ge_u32 s{sW}, 4
    s_cbranch_scc1 L_{name}_Z1b
    """)
    variant(k, name, "Z1a", st_pol, ld_pol, pf_pol, pf, code_lines)
    k(f"L_{name}_Z1b:")
    variant(k, name, "Z1b", st_pol, ld_pol, pf_pol, pf, code_lines)
    k(f"L_{name}_Z2:\ns_cmp_ge_u32 s{sW}, 4\ns_cbranch_scc1 L_{name}_Z2b")
    variant(k, name, "Z2a", st_pol, ld_pol, pf_pol, pf, code_lines)
    k(f"L_{name}_Z2b:")
    variant(k, name, "Z2b", st_pol, ld_pol, pf_pol, pf, code_lines)
    k(f"L_{name}_end:\ns_endpgm")
    return k, 256

def variant(k, name, V, st_pol, ld_pol, pf_pol, pf, code_lines):
    isA = V[0] == "A"
    halo = V == "A0"
    nW = 3 if (isA or V[2] == "b") else 4
    nX = 5 if isA else 4
    pitch = 3072 if isA else 3584
    ndma = 2 + nW + (1 if halo else 0)
    lab = f"L_{name}_{V}"
    k.stamp(0)
    def dma():
        k(f"s_add_u32 s{sA}, s{sSt}, s{sXl}\ns_add_u32 s{sB}, s{sSt}, s{sWl}")
        L = [f"s_mov_b32 m0, s{sA}", f"buffer_load_dwordx4 v{vXe}, s[{sXr}:{sXr+3}], s{sXo} offen lds {ld_pol}",
             f"s_add_u32 m0, s{sA}, 1024", f"buffer_load_dwordx4 v{vXo}, s[{sXr}:{sXr+3}], s{sXo} offen lds {ld_pol}",
             f"s_add_u32 s{sXo}, s{sXo}, 128"]
        for t in range(nW):
            L += [f"s_add_u32 m0, s{sB}, {t*8192}", f"buffer_load_dwordx4 v{vWd}, s[{sWr}:{sWr+3}], s{sWo[t]} offen lds {ld_pol}",
                  f"s_add_u32 s{sWo[t]}, s{sWo[t]}, {64*pitch}"]
        if halo:
            L += [f"s_add_u32 m0, s{sSt}, s{sHl}", "s_mov_b64 exec, 0xffffffff",
                  f"buffer_load_dwordx4 v{vH}, s[{sXr}:{sXr+3}], s{sHo} offen lds {ld_pol}", "s_mov_b64 exec, -1",
                  f"s_add_u32 s{sHo}, s{sHo}, 128"]
        for l in L: k(l)
    for sl in range(3):
        dma()
        if sl < 2: k(f"s_add_u32 s{sSt}, s{sSt}, {STG}")
    k(f"s_mov_b32 s{sSt}, 0")
    k(f"""
    v_lshlrev_b32 v{vL16}, 4, v0
    v_lshrrev_b32 v{T}, 1, v2
    v_xor_b32 v{T}, v{T}, v1
    v_lshlrev_b32 v{T}, 4, v{T}
    v_lshl_add_u32 v{T}, v2, 7, v{T}        ; i*128 + (g^(i>>1))*16
    s_lshl_b32 s{sT}, s{sH}, 6
    v_xor_b32 v{T}, s{sT}, v{T}
    s_lshl_b32 s{sT}, s{sH}, 13
    s_add_u32 s{sT}, s{sT}, {0 if isA else 2048}
    v_add_u32 v{vXr[0]}, s{sT}, v{T}
    v_xor_b32 v{vXr[1]}, 64, v{vXr[0]}
    v_add_u32 v{vSr[0]}, s{sXl}, v{T}
    v_xor_b32 v{vSr[1]}, 64, v{vSr[0]}
    v_and_b32 v{T}, 1, v1
    v_lshlrev_b32 v{T}, 1, v{T}             ; 2*(g&1)
    v_bfe_u32 v{T+1}, v0, 1, 1              ; c>>1
    v_xor_b32 v{T}, v{T}, v{T+1}
    v_lshlrev_b32 v{T}, 4, v{T}
    v_bfe_u32 v{T+1}, v0, 2, 2              ; r
    v_lshl_add_u32 v{T+1}, v1, 3, v{T+1}    ; 8g+r
    v_lshl_add_u32 v{T}, v{T+1}, 6, v{T}
    v_and_b32 v{T+1}, 1, v0
    v_lshl_add_u32 v{T}, v{T+1}, 3, v{T}
    """)
    if isA:
        k(f"""
        s_and_b32 s{sT}, s{sW}, 1
        s_lshl_b32 s{sT}, s{sT}, 5
        v_xor_b32 v{T}, s{sT}, v{T}
        s_bfe_u32 s{sT}, s{sW}, 0x10001
        s_lshl_b32 s{sT}, s{sT}, 12
        s_lshl_b32 s{sT+1}, s{sH}, 11
        s_add_u32 s{sT+2}, s{sT}, s{sT+1}
        s_add_u32 s{sT+2}, s{sT+2}, {XW}
        v_add_u32 v{vWr[0][0]}, s{sT+2}, v{T}
        s_sub_u32 s{sT+2}, s{sT}, s{sT+1}
        s_add_u32 s{sT+2}, s{sT+2}, {XW + 2048}
        v_add_u32 v{vWr[1][0]}, s{sT+2}, v{T}
        """)
        def waddr(sg, j, j2): return vWr[sg][0], j*8192 + j2*256
    else:
        j0 = 0 if nW == 4 else 4
        k(f"""
        s_lshl_b32 s{sT}, s{sE}, 5
        v_xor_b32 v{T}, s{sT}, v{T}             ; even j: p = e
        v_xor_b32 v{T+1}, 32, v{T}              ; odd j: p = 1-e
        s_lshl_b32 s{sT+1}, s{sH}, 11
        s_mul_i32 s{sT}, s{sE}, 12288
        s_add_u32 s{sT+2}, s{sT}, s{sT+1}
        s_add_u32 s{sT+2}, s{sT+2}, {XW}
        v_add_u32 v{vWr[0][0]}, s{sT+2}, v{T}
        s_sub_u32 s{sT+2}, s{sT}, s{sT+1}
        s_add_u32 s{sT+2}, s{sT+2}, {XW + 2048}
        v_add_u32 v{vWr[1][0]}, s{sT+2}, v{T}
        s_lshl_b32 s{sT}, s{sE}, 14
        s_add_u32 s{sT+2}, s{sT}, s{sT+1}
        s_add_u32 s{sT+2}, s{sT+2}, {XW}
        v_add_u32 v{vWr[0][1]}, s{sT+2}, v{T+1}
        s_sub_u32 s{sT+2}, s{sT}, s{sT+1}
        s_add_u32 s{sT+2}, s{sT+2}, {XW + 2048}
        v_add_u32 v{vWr[1][1]}, s{sT+2}, v{T+1}
        """)
        def waddr(sg, j, j2):
            jj = j0 + j
            return vWr[sg][jj & 1], (jj >> 1)*4096 + j2*256
    if isA:
        tQ = lambda a: ACC + (a-1)*4
        tK = lambda a: ACC + 16 + a*4
        tV = lambda a: ACC + 36 + a*4
        tG, tS = ACC + 56, ACC + 60
        tC = lambda j: ACC + 64 + j*4
        tHG, tHS = ACC + 76, ACC + 80
        nacc = 84 if halo else 76
    else:
        tZ = lambda a, j: ACC + (j*4 + a)*4
        tG, tS = ACC + 64, ACC + 68
        tC = lambda j: ACC + 72 + j*4
        nacc = 88
    ft = lambda sg: FR + sg*36
    fX = lambda sg, a: ft(sg) + a*4
    fW = lambda sg, j: ft(sg) + nX*4 + j*4
    fS = lambda sg: ft(sg) + 32
    for r in range(4): k(f"v_mov_b32 v{ONES+r}, 0x3f803f80")
    for r in range(nacc):
        if not isA and nW == 3 and (12*4 <= r < 64 or r >= 84): continue
        k(f"v_mov_b32 v{ACC+r}, 0")
    def reads(sg):
        L = []
        for j in range(nW):
            for j2 in range(2):
                b, off = waddr(sg, j, j2)
                L.append(f"ds_read_b64_tr_b16 {vr(fW(sg, j) + 2*j2, 2)}, v{b} offset:{off}")
            if j < nX: L.append(f"ds_read_b128 {vr(fX(sg, j))}, v{vXr[sg]} offset:{j*2048}")
        for a in range(nW, nX): L.append(f"ds_read_b128 {vr(fX(sg, a))}, v{vXr[sg]} offset:{a*2048}")
        L.append(f"ds_read_b128 {vr(fS(sg))}, v{vSr[sg]}")
        if OPT.get("noread"): return []
        if OPT.get("notr"): return [l for l in L if "_tr_" not in l]
        if OPT.get("nob128"): return [l for l in L if "_tr_" in l]
        return L
    def mf(d, a, b): return f"v_mfma_f32_16x16x32_bf16 {vr(d)}, {vr(a)}, {vr(b)}, {vr(d)}"
    def mfmas(sg):
        L = []
        if isA:
            for a in range(5):
                if a: L.append(mf(tQ(a), fW(sg, 0), fX(sg, a)))
                L.append(mf(tK(a), fW(sg, 1), fX(sg, a)))
                L.append(mf(tV(a), fX(sg, a), fW(sg, 2)))
            if halo: L += [mf(tHG, fX(sg, 0), fX(sg, 0)), mf(tHS, ONES, fX(sg, 0))]
        else:
            for j in range(nW):
                for a in range(4):
                    L.append(mf(tZ(a, j), fX(sg, a), fW(sg, j)) if V[1] == "2" else mf(tZ(a, j), fW(sg, j), fX(sg, a)))
        L += [mf(tG, fS(sg), fS(sg)), mf(tS, ONES, fS(sg))]
        if sg == 0:
            for j in range(nW): L.append(mf(tC(j), ONES, fW(sg, j)))
        if OPT.get("nomfma"): return L[:1]
        return L
    def adv(sg):
        regs = [vXr[sg], vSr[sg], vWr[sg][0]] + ([] if isA else [vWr[sg][1]])
        return [f"v_add_u32 v{r}, s{sDelta}, v{r}" for r in regs]
    k(f"s_mov_b32 s{sI}, 0\ns_waitcnt vmcnt({2*ndma})\ns_barrier")
    k.stamp(1)
    for l in reads(0): k(l)
    k("s_waitcnt lgkmcnt(0)")
    k(f".p2align 6\n{lab}_loop:")
    for l in interleave(mfmas(0), reads(1), per=1): k(l)
    k(f"""
    s_cmp_eq_u32 s{sSt}, {2*STG}
    s_cselect_b32 s{sDelta}, {-2*STG}, s{sT+15}
    """)
    k(f"s_cmp_eq_u32 s{sI}, 7\ns_cbranch_scc1 {lab}_nowait")
    k(f"s_waitcnt vmcnt({ndma})\n{lab}_nowait:\ns_waitcnt lgkmcnt(0)\ns_barrier")
    for l in adv(0): k(l)
    for l in reads(0): k(l)
    k(f"s_cmp_ge_u32 s{sI}, 5\ns_cbranch_scc1 {lab}_nodma")
    if not OPT.get("nodma"): dma()
    k(f"{lab}_cont:")
    for l in interleave(mfmas(1), adv(1), per=1): k(l)
    k(f"""
    s_add_u32 s{sSt}, s{sSt}, s{sDelta}
    s_add_u32 s{sI}, s{sI}, 1
    s_cmp_lt_u32 s{sI}, 8
    s_waitcnt lgkmcnt(0)
    s_cbranch_scc1 {lab}_loop
    s_branch {lab}_epi
    {lab}_nodma:
    s_cmp_eq_u32 s{sI}, 5
    s_cbranch_scc0 {lab}_cont
    """)
    k.srd(sPr, sWSP, 2048*4096)
    k(f"""
    s_and_b32 s{sT}, s2, 7
    s_lshr_b32 s{sT}, s{sT}, 1
    s_lshl_b32 s{sT}, s{sT}, 21
    s_lshr_b32 s{sT+1}, s2, 3
    s_lshl_b32 s{sT+1}, s{sT+1}, 3
    s_add_u32 s{sT+1}, s{sT+1}, s{sW}
    s_lshl_b32 s{sT+2}, s{sT+1}, 13
    s_add_u32 s{sT}, s{sT}, s{sT+2}
    v_lshlrev_b32 v{vPF}, 7, v0
    s_mov_b32 s{sT+3}, 0x7fffffff
    """)
    k(f"buffer_load_dword v{vPF+1}, v{vPF}, s[{sPr}:{sPr+3}], s{sT if pf else sT+3} offen {pf_pol}")
    for n in range(1, ndma): k(f"buffer_load_dword v{vPF+1+n}, v{vPF}, s[{sPr}:{sPr+3}], s{sT+3} offen")
    k(f"s_branch {lab}_cont\n{lab}_epi:")
    k.stamp(2)
    cI, cE = T, T+1
    k(f"""
    s_barrier
    v_mov_b32 v{cI}, {f2h(1/512)}
    v_mov_b32 v{cE}, {f2h(1e-5)}
    v_and_b32 v{T+2}, 1, v0
    v_cmp_eq_u32 s[{sM}:{sM+1}], 1, v{T+2}          ; i odd
    v_and_b32 v{T+2}, 2, v0
    v_cmp_eq_u32 s[{sM+2}:{sM+3}], 2, v{T+2}
    v_lshrrev_b32 v{T+2}, 2, v2
    v_cmp_eq_u32 s[{sM+4}:{sM+5}], v1, v{T+2}
    v_lshlrev_b32 v{T+3}, 2, v2                      ; i*4
    """)
    def rowstats(G, S, addr_s, tt):
        k(f"""
        v_cndmask_b32 v{tt}, v{G}, v{G+1}, s[{sM}:{sM+1}]
        v_cndmask_b32 v{tt+1}, v{G+2}, v{G+3}, s[{sM}:{sM+1}]
        v_mul_f32 v{tt+2}, v{S}, v{cI}
        v_cndmask_b32 v{tt}, v{tt}, v{tt+1}, s[{sM+2}:{sM+3}]
        v_mul_f32 v{tt}, v{tt}, v{cI}
        v_fma_f32 v{tt}, -v{tt+2}, v{tt+2}, v{tt}
        v_max_f32 v{tt}, 0, v{tt}
        """)
        bf16_round(k, tt, tt); k(f"v_add_f32 v{tt}, v{tt}, v{cE}"); bf16_round(k, tt, tt)
        k(f"v_sqrt_f32 v{tt}, v{tt}"); bf16_round(k, tt+2, tt+2); bf16_round(k, tt, tt)
        k(f"v_rcp_f32 v{tt}, v{tt}\nv_add_u32 v{tt+1}, {addr_s}, v{T+3}\nv_mul_f32 v{tt+2}, -v{tt+2}, v{tt}")
        k(f"s_mov_b64 exec, s[{sM+4}:{sM+5}]\nds_write_b32 v{tt+1}, v{tt} offset:{TA}\nds_write_b32 v{tt+1}, v{tt+2} offset:{TB}\ns_mov_b64 exec, -1")
    k(f"s_lshr_b32 s{sT}, s{sXl}, 5")
    rowstats(tG, tS, f"s{sT}", T+4)
    if halo: rowstats(tHG, tHS, "0", T+8)
    if isA:
        k(f"s_and_b32 s{sT+1}, s{sW}, 3\ns_mul_i32 s{sT+1}, s{sT+1}, 192")
    else:
        k(f"s_mul_i32 s{sT+1}, s{sE}, 448\ns_add_u32 s{sT+1}, s{sT+1}, {j0*64}")
    k(f"s_lshl_b32 s{sT+2}, s{sH}, 10\ns_add_u32 s{sT+2}, s{sT+2}, s{sT+1}\nv_add_u32 v{T+4}, s{sT+2}, v{T+3}")
    for j in range(nW): k(f"ds_write_b32 v{T+4}, v{tC(j)} offset:{TC + j*64}")
    vLn, vRg, vCl, vCr = T+5, T+6, T+7, T+8
    k(f"""
    s_lshl_b32 s{sT+2}, s{sH}, 8
    s_add_u32 s{sT+2}, s{sT+2}, {0 if isA else 64}
    v_add_u32 v{vLn}, s{sT+2}, v{T+3}
    v_lshlrev_b32 v{T+9}, 4, v1
    v_add_u32 v{vRg}, s{sT+2}, v{T+9}
    v_add_u32 v{vCl}, s{sT+1}, v{T+3}
    v_add_u32 v{vCr}, s{sT+1}, v{T+9}
    s_waitcnt lgkmcnt(0)
    s_barrier
    """)
    k.stamp(3)
    k.lg.q = []
    if isA: epi_attn(k, name, V, st_pol, tQ, tK, tV, vLn, vRg, vCl, vCr)
    else: epi_z(k, name, V, st_pol, tZ, nW, j0, vLn, vRg, vCl, vCr)
    k.stamp_end(0, sWS, sW, 6)
    k("s_endpgm")

def gelu4(k, y, c1, c2, one, t):
    for r in range(4): k(f"v_mul_f32 v{t+r}, v{y+r}, v{y+r}")
    for r in range(4): k(f"v_fma_f32 v{t+r}, v{t+r}, v{c2}, v{c1}")
    for r in range(4): k(f"v_mul_f32 v{t+r}, v{t+r}, v{y+r}")
    for r in range(4): k(f"v_exp_f32 v{t+r}, v{t+r}")
    for r in range(4): k(f"v_add_f32 v{t+r}, 1.0, v{t+r}")
    for r in range(4): k(f"v_rcp_f32 v{t+r}, v{t+r}")
    for r in range(4): k(f"v_mul_f32 v{y+r}, v{y+r}, v{t+r}")

def epi_z(k, name, V, st_pol, tZ, nW, j0, vLn, vRg, vCl, vCr):
    z2 = V[1] == "2"
    AB = FR
    CS = FR + 32
    ST = T + 12
    c1, c2 = T, T+1
    tmp = T + 44; PK = T + 48
    off = Z2F_OFF if z2 else Z1L_OFF
    if z2:
        for a in range(4):
            k.ds(f"ds_read_b128 {vr(AB + a*4)}, v{vRg} offset:{TA + a*64}", "t")
            k.ds(f"ds_read_b128 {vr(AB + 16 + a*4)}, v{vRg} offset:{TB + a*64}", "t")
        for j in range(nW):
            for hh in range(2): k.ds(f"ds_read_b32 v{CS + 2*j + hh}, v{vCl} offset:{TC + hh*1024 + j*64}", "t")
    else:
        for a in range(4):
            k.ds(f"ds_read_b32 v{AB + a}, v{vLn} offset:{TA + a*64}", "t")
            k.ds(f"ds_read_b32 v{AB + 4 + a}, v{vLn} offset:{TB + a*64}", "t")
        for j in range(nW):
            for hh in range(2): k.ds(f"ds_read_b128 {vr(CS + 8*j + 4*hh)}, v{vCr} offset:{TC + hh*1024 + j*64}", "t")
    k(f"""
    v_mov_b32 v{c1}, {f2h(GC1)}
    v_mov_b32 v{c2}, {f2h(GC2)}
    s_add_u32 s{sOr}, s{sWS}, {off}
    s_addc_u32 s{sOr+1}, s{sWS+1}, 0
    s_mov_b32 s{sOr+2}, {Z2F_SZ}
    s_mov_b32 s{sOr+3}, 0x20000
    s_lshl_b32 s{sT}, s{sRB}, 1
    s_add_u32 s{sT}, s{sT}, s{sH}
    s_mul_i32 s{sT}, s{sT}, 112
    s_mul_i32 s{sT+1}, s{sCQ}, 14
    s_add_u32 s{sT}, s{sT}, s{sT+1}
    s_mul_i32 s{sT+1}, s{sE}, 7
    s_add_u32 s{sT}, s{sT}, s{sT+1}
    s_add_u32 s{sT}, s{sT}, {j0}
    s_lshl_b32 s{sT}, s{sT}, 10
    s_add_u32 s{sT+1}, s{sT}, {56*1024}
    """)
    k.wait(lg="t")
    if z2:
        for j in range(nW): k(f"v_add_f32 v{CS+2*j}, v{CS+2*j}, v{CS+2*j+1}")
    else:
        for j in range(nW):
            for r in range(4): k(f"v_add_f32 v{CS+8*j+r}, v{CS+8*j+r}, v{CS+8*j+4+r}")
    nb = 0
    for j in range(nW):
        for p in range(2):
            pk = PK + 4*(nb & 1); nb += 1
            for aa in range(2):
                a = 2*p + aa; y = tZ(a, j)
                for r in range(4):
                    if z2: k(f"v_mul_f32 v{tmp+r}, v{AB+16+a*4+r}, v{CS+2*j}")
                    else:  k(f"v_mul_f32 v{tmp+r}, v{AB+4+a}, v{CS+8*j+r}")
                for r in range(4):
                    k(f"v_fma_f32 v{y+r}, v{AB+a*4+r if z2 else AB+a}, v{y+r}, v{tmp+r}")
                gelu4(k, y, c1, c2, None, tmp)
                if z2:
                    for r in range(4):
                        s_, q_ = ST + a*8 + r*2, ST + a*8 + r*2 + 1
                        if j == 0: k(f"v_mov_b32 v{s_}, v{y+r}\nv_mul_f32 v{q_}, v{y+r}, v{y+r}")
                        else: k(f"v_add_f32 v{s_}, v{s_}, v{y+r}\nv_fmac_f32 v{q_}, v{y+r}, v{y+r}")
                for d in range(2): k(f"v_cvt_pk_bf16_f32 v{pk+2*aa+d}, v{y+2*d}, v{y+2*d+1}")
            k(f"buffer_store_dwordx4 {vr(pk)}, v{vL16}, s[{sOr}:{sOr+3}], s{sT+p} offen offset:{j*1024} {st_pol}")
    k.stamp(4)
    if z2:
        for n in range(16):
            k(f"v_add_f32_dpp v{ST+n}, v{ST+n}, v{ST+n} row_mirror row_mask:0xf bank_mask:0x3")
        for n in range(16):
            k(f"v_add_f32_dpp v{ST+n}, v{ST+16+n}, v{ST+16+n} row_mirror row_mask:0xf bank_mask:0xc")
        for n in range(8):
            k(f"v_add_f32_dpp v{ST+n}, v{ST+n}, v{ST+n} row_half_mirror row_mask:0xf bank_mask:0x5")
        for n in range(8):
            k(f"v_add_f32_dpp v{ST+n}, v{ST+8+n}, v{ST+8+n} row_half_mirror row_mask:0xf bank_mask:0xa")
        for n in range(8): k(f"v_add_f32_dpp v{ST+n}, v{ST+n}, v{ST+n} quad_perm:[1,0,3,2] row_mask:0xf bank_mask:0xf")
        for n in range(8): k(f"v_add_f32_dpp v{ST+n}, v{ST+n}, v{ST+n} quad_perm:[2,3,0,1] row_mask:0xf bank_mask:0xf")
        cg = 0 if nW == 4 else 2
        k(f"""
        v_lshrrev_b32 v{tmp}, 2, v2
        v_lshlrev_b32 v{tmp}, 7, v{tmp}
        v_lshl_add_u32 v{tmp}, v1, 5, v{tmp}
        s_lshl_b32 s{sT}, s{sE}, 10
        s_lshl_b32 s{sT+1}, s{sH}, 9
        s_add_u32 s{sT}, s{sT}, s{sT+1}
        v_add_u32 v{tmp}, s{sT}, v{tmp}
        ds_write_b128 v{tmp}, {vr(ST)} offset:{PS + cg*1024}
        ds_write_b128 v{tmp}, {vr(ST+4)} offset:{PS + cg*1024 + 16}
        s_waitcnt lgkmcnt(0)
        s_barrier
        """)
        if nW == 4:
            k(f"s_cmp_lg_u32 s{sW}, 0\ns_cbranch_scc1 L_{name}_{V}_fin")
            for c in range(4): k(f"ds_read_b128 {vr(FR + 4*c)}, v{vL16} offset:{PS + c*1024}")
            k(f"""
            s_add_u32 s{sOr}, s{sWS}, {ST2_OFF}
            s_addc_u32 s{sOr+1}, s{sWS+1}, 0
            s_mov_b32 s{sOr+2}, {ST2_SZ}
            s_lshl_b32 s{sT}, s{sCQ}, 14
            s_lshl_b32 s{sT+1}, s{sRB}, 10
            s_add_u32 s{sT}, s{sT}, s{sT+1}
            s_waitcnt lgkmcnt(0)
            """)
            for r in range(4): k(f"v_add_f32 v{FR+r}, v{FR+r}, v{FR+4+r}")
            for r in range(4): k(f"v_add_f32 v{FR+8+r}, v{FR+8+r}, v{FR+12+r}")
            for r in range(4): k(f"v_add_f32 v{FR+r}, v{FR+r}, v{FR+8+r}")
            k(f"buffer_store_dwordx4 {vr(FR)}, v{vL16}, s[{sOr}:{sOr+3}], s{sT} offen {st_pol}")
            k(f"L_{name}_{V}_fin:")
    k.stamp(5)

def epi_attn(k, name, V, st_pol, tQ, tK, tV, vLn, vRg, vCl, vCr):
    AL, BL = FR, FR + 5
    AR_, BR_ = FR + 12, FR + 32
    CQ, CK, CV = FR + 52, FR + 60, FR + 68
    for a in range(5):
        k.ds(f"ds_read_b32 v{AL+a}, v{vLn} offset:{TA + a*64}", "t")
        k.ds(f"ds_read_b32 v{BL+a}, v{vLn} offset:{TB + a*64}", "t")
    for hh in range(2):
        k.ds(f"ds_read_b128 {vr(CQ + 4*hh)}, v{vCr} offset:{TC + hh*1024}", "t")
        k.ds(f"ds_read_b128 {vr(CK + 4*hh)}, v{vCr} offset:{TC + hh*1024 + 64}", "t")
    k.wait(lg="t")
    for hh in range(2): k.ds(f"ds_read_b32 v{CV + hh}, v{vCl} offset:{TC + hh*1024 + 128}", "u")
    for a in range(5):
        k.ds(f"ds_read_b128 {vr(AR_ + a*4)}, v{vRg} offset:{TA + a*64}", "u")
        k.ds(f"ds_read_b128 {vr(BR_ + a*4)}, v{vRg} offset:{TB + a*64}", "u")
    QP, KP, VP = T + 10, T + 18, T + 28
    tmp = T + 38
    MC, MP = T + 42, T + 44
    cS, cN = T, T + 1
    for r in range(4): k(f"v_add_f32 v{CQ+r}, v{CQ+r}, v{CQ+4+r}\nv_add_f32 v{CK+r}, v{CK+r}, v{CK+4+r}")
    def foldT(y, a, cs, dst):
        for r in range(4): k(f"v_mul_f32 v{tmp+r}, v{BL+a}, v{cs+r}")
        for r in range(4): k(f"v_fma_f32 v{y+r}, v{AL+a}, v{y+r}, v{tmp+r}")
        for d in range(2): k(f"v_cvt_pk_bf16_f32 v{dst+d}, v{y+2*d}, v{y+2*d+1}")
    for a in range(5):
        foldT(tK(a), a, CK, KP + 2*a)
        if a: foldT(tQ(a), a, CQ, QP + 2*(a-1))
    Sc = lambda a: tQ(a); Sp = lambda a: tK(a)
    for a in range(1, 5):
        k(f"v_mfma_f32_16x16x16_bf16 {vr(Sc(a))}, {vr(KP+2*a, 2)}, {vr(QP+2*(a-1), 2)}, 0")
        k(f"v_mfma_f32_16x16x16_bf16 {vr(Sp(a))}, {vr(KP+2*(a-1), 2)}, {vr(QP+2*(a-1), 2)}, 0")
    k(f"""
    v_and_b32 v{tmp}, 1, v2
    v_lshl_add_u32 v{tmp+1}, v1, 2, v{tmp}          ; 4g + (q&1)
    v_cmp_le_u32 s[{sM+2}:{sM+3}], v{tmp+1}, v2
    v_add_u32 v{tmp+1}, 2, v{tmp+1}
    v_cmp_le_u32 s[{sM+4}:{sM+5}], v{tmp+1}, v2
    v_lshlrev_b32 v{tmp}, 4, v{tmp}
    v_mov_b32 v{tmp+1}, 0xffff
    v_lshlrev_b32 v{tmp}, v{tmp}, v{tmp+1}
    v_cndmask_b32 v{MC}, 0, v{tmp}, s[{sM+2}:{sM+3}]
    v_cndmask_b32 v{MP}, v{tmp}, 0, s[{sM+2}:{sM+3}]
    v_cndmask_b32 v{MC+1}, 0, v{tmp}, s[{sM+4}:{sM+5}]
    v_cndmask_b32 v{MP+1}, v{tmp}, 0, s[{sM+4}:{sM+5}]
    v_mov_b32 v{cS}, {f2h(0.25*LOG2E)}
    v_mov_b32 v{cN}, {f2h(-1e30)}
    s_cmp_eq_u32 s{sRB}, 0
    s_cselect_b64 s[{sM+6}:{sM+7}], -1, 0
    """)
    k.wait(lg="u")
    k(f"v_add_f32 v{CV}, v{CV}, v{CV+1}")
    for a in range(5):
        y = tV(a)
        for r in range(4): k(f"v_mul_f32 v{tmp+r}, v{BR_+a*4+r}, v{CV}")
        for r in range(4): k(f"v_fma_f32 v{y+r}, v{AR_+a*4+r}, v{y+r}, v{tmp+r}")
        for d in range(2): k(f"v_cvt_pk_bf16_f32 v{VP+2*a+d}, v{y+2*d}, v{y+2*d+1}")
    U = range(1, 5)
    X = lambda a: FR + (a-1)*8
    for a in U:
        for v in range(2):
            k(f"v_cndmask_b32 v{X(a)+v}, v{Sc(a)+2*v}, v{Sc(a)+2*v+1}, s[{sM}:{sM+1}]")
            k(f"v_cndmask_b32 v{X(a)+2+v}, v{Sp(a)+2*v}, v{Sp(a)+2*v+1}, s[{sM}:{sM+1}]")
    if V == "A0":
        for v in range(2): k(f"v_cndmask_b32 v{X(1)+2+v}, v{X(1)+2+v}, v{cN}, s[{sM+6}:{sM+7}]")
    for a in U:
        for v in range(2): k(f"v_cndmask_b32 v{X(a)+v}, v{X(a)+2+v}, v{X(a)+v}, s[{sM+2+2*v}:{sM+3+2*v}]")
    def allred(op):
        for sw in ("v_permlane16_swap_b32", "v_permlane32_swap_b32"):
            for a in U: k(f"v_mov_b32 v{X(a)+3}, v{X(a)+2}")
            for a in U: k(f"{sw} v{X(a)+2}, v{X(a)+3}")
            for a in U: k(f"{op} v{X(a)+2}, v{X(a)+2}, v{X(a)+3}")
    for a in U: k(f"v_max_f32 v{X(a)+2}, v{X(a)}, v{X(a)+1}")
    allred("v_max_f32")
    for a in U:
        for v in range(2): k(f"v_sub_f32 v{X(a)+v}, v{X(a)+v}, v{X(a)+2}")
    for a in U:
        for v in range(2): k(f"v_mul_f32 v{X(a)+v}, v{X(a)+v}, v{cS}")
    for a in U:
        for v in range(2): k(f"v_exp_f32 v{X(a)+v}, v{X(a)+v}")
    for a in U: k(f"v_add_f32 v{X(a)+2}, v{X(a)}, v{X(a)+1}")
    allred("v_add_f32")
    for a in U: k(f"v_rcp_f32 v{X(a)+2}, v{X(a)+2}")
    for a in U:
        for v in range(2): k(f"v_mul_f32 v{X(a)+v}, v{X(a)+v}, v{X(a)+2}")
    for a in U:
        for v in range(2): k(f"v_cvt_pk_bf16_f32 v{X(a)+v}, v{X(a)+v}, v{X(a)+v}")
    for a in U:
        for v in range(2):
            k(f"v_and_b32 v{X(a)+4+v}, v{X(a)+v}, v{MP+v}\nv_and_b32 v{X(a)+6+v}, v{X(a)+v}, v{MC+v}")
    for a in U: k(f"v_mfma_f32_16x16x32_bf16 {vr(tV(a))}, {vr(VP+2*(a-1))}, {vr(X(a)+4)}, 0")
    OP = FR + 40
    k(f"""
    s_lshl_b32 s{sT}, s{sW}, 11
    v_add_u32 v{tmp}, s{sT}, v{vL16}
    s_and_b32 s{sT+1}, s{sW}, 6
    s_lshl_b32 s{sT+1}, s{sT+1}, 11
    s_and_b32 s{sT+2}, s{sW}, 1
    s_lshl_b32 s{sT+3}, s{sT+2}, 10
    s_add_u32 s{sT+1}, s{sT+1}, s{sT+3}
    v_add_u32 v{tmp+1}, s{sT+1}, v{vL16}
    s_add_u32 s{sOr}, s{sWS}, {A3_OFF}
    s_addc_u32 s{sOr+1}, s{sWS+1}, 0
    s_mov_b32 s{sOr+2}, {A3_SZ}
    s_mov_b32 s{sOr+3}, 0x20000
    s_lshl_b32 s{sT}, s{sRB}, 2
    s_lshl_b32 s{sT+1}, s{sH}, 1
    s_add_u32 s{sT}, s{sT}, s{sT+1}
    s_add_u32 s{sT}, s{sT}, s{sT+2}
    s_mul_i32 s{sT}, s{sT}, 88
    s_lshl_b32 s{sT+1}, s{sSUB}, 1
    s_add_u32 s{sT}, s{sT}, s{sT+1}
    s_bfe_u32 s{sT+1}, s{sW}, 0x10001
    s_add_u32 s{sT}, s{sT}, s{sT+1}
    s_lshl_b32 s{sT}, s{sT}, 10
    s_add_u32 s{sT+1}, s{sT}, {44*1024}
    """)
    for a in U:
        for d in range(2): k(f"v_cvt_pk_bf16_f32 v{OP+2*(a-1)+d}, v{tV(a)+2*d}, v{tV(a)+2*d+1}")
    k.stamp(4)
    k(f"""
    ds_write_b128 v{tmp}, {vr(OP)} offset:{OX}
    ds_write_b128 v{tmp}, {vr(OP+4)} offset:{OX+1024}
    s_waitcnt lgkmcnt(0)
    s_barrier
    ds_read_b64 {vr(OP+8, 2)}, v{tmp+1} offset:{OX}
    ds_read_b64 {vr(OP+10, 2)}, v{tmp+1} offset:{OX+2048}
    ds_read_b64 {vr(OP+12, 2)}, v{tmp+1} offset:{OX+8}
    ds_read_b64 {vr(OP+14, 2)}, v{tmp+1} offset:{OX+2048+8}
    s_waitcnt lgkmcnt(2)
    buffer_store_dwordx4 {vr(OP+8)}, v{vL16}, s[{sOr}:{sOr+3}], s{sT} offen {st_pol}
    s_waitcnt lgkmcnt(0)
    buffer_store_dwordx4 {vr(OP+12)}, v{vL16}, s[{sOr}:{sOr+3}], s{sT+1} offen {st_pol}
    """)
    k.stamp(5)
```

```python
import sys
sys.path.insert(0, "gen")
from build import *
import k1, k2, k3
args = sys.argv[2:]
K.diag = "c" if "c" in args else ("d" in args)
kv = dict(a.split("=") for a in args if "=" in a)
for o in args:
    if o not in ("d", "c") and "=" not in o: k1.OPT[o] = 1
pol = lambda n, d: kv.get(n, d).replace("_", " ").replace("-", "")
a = k1.gen_k1(st_pol=pol("st1", "sc1"), ld_pol=pol("ld1", "-"), pf_pol=pol("pf1", "nt"), pf=int(kv.get("pf", 1)))
b = k2.gen_k2(st_pol=pol("st2", "sc1"), a_pol=pol("ld2", "-"))
c = k3.gen_k3(st_pol=pol("st3", "sc1"), ld_pol=pol("ld3", "-"))
ks = [(a[0], a[1], 512, k1.LDS1), (b[0], b[1], 256, k2.LDS2), (c[0], c[1], 256, k3.LDS3)]
for i in range(int(kv.get("extra", 0))):
    e = K(f"x{i}_kernel"); e("s_endpgm"); ks.append((e, 8, 64, 0))
open(sys.argv[1], "w").write(assemble(ks))
```

```python
from asmlib import *
from layout import *
import struct
def f2h(x): return hex(struct.unpack("<I", struct.pack("<f", x))[0])

XW = 18432
STG = XW + 7*4096
LDS1 = 3*STG
TA, TB, TC, PS, OX = 0, 1024, 2048, 4096, 8192
LOG2E = 1.4426950408889634
GC1 = -2*0.7978845608028654*LOG2E
GC2 = GC1*0.044715

def bf16_round(k, dst, src):
    k(f"v_cvt_pk_bf16_f32 v{dst}, v{src}, v{src}\nv_and_b32 v{dst}, 0xffff0000, v{dst}")

sX, sWQ, sWIN, sWSP, sWS = 4, 6, 8, 10, 12
sXr, sWr, sOr, sPr = 16, 20, 24, 28
sW, sRB, sCQ, sSUB = 32, 33, 34, 35
sXo, sHo, sXl, sWl, sHl = 36, 37, 38, 39, 40
sWo = [41, 42, 43, 44]
sSt, sDelta, sI, sA, sB = 45, 46, 47, 48, 49
sH, sE = 50, 51
sM = 52
sT = 64
vXe, vXo, vWd, vH = 4, 5, 6, 7
vXr = [8, 9]; vSr = [10, 11]; vWr = [[12, 13], [14, 15]]
ONES = 16
vL16 = 20
vPF = 21
FR = 28
ACC = 100
T = 188

OPT = {}
def gen_k1(name="k1_kernel", st_pol="sc1", ld_pol="", pf_pol="nt", pf=True, code_lines=0):
    k = K(name)
    k(f"""
    s_cmp_ge_u32 s2, 256
    s_cbranch_scc1 L_{name}_end
    s_load_dwordx4 s[{sX}:{sX+3}], s[0:1], {KA_X}
    s_load_dwordx4 s[{sWIN}:{sWIN+3}], s[0:1], {KA_WIN}
    s_load_dwordx2 s[{sWS}:{sWS+1}], s[0:1], {KA_WS}
    v_lshrrev_b32 v1, 6, v0
    v_and_b32 v0, 63, v0
    v_readfirstlane_b32 s{sW}, v1
    s_and_b32 s{sT}, s2, 7
    s_lshr_b32 s{sT+1}, s2, 3
    s_lshr_b32 s{sRB}, s{sT}, 2
    s_lshl_b32 s{sRB}, s{sRB}, 3
    s_lshr_b32 s{sT+2}, s{sT+1}, 2
    s_add_u32 s{sRB}, s{sRB}, s{sT+2}
    s_and_b32 s{sCQ}, s{sT}, 3
    s_and_b32 s{sSUB}, s{sT+1}, 3
    v_lshrrev_b32 v1, 4, v0                 ; g
    v_and_b32 v2, 15, v0                    ; i
    v_and_b32 v3, 7, v0
    v_xor_b32 v{T}, v3, v1
    v_lshlrev_b32 v{T}, 4, v{T}
    v_lshrrev_b32 v{T+1}, 3, v0
    v_lshl_add_u32 v{vXe}, v{T+1}, 10, v{T}
    v_xor_b32 v{vXo}, 64, v{vXe}
    v_add_u32 v{vXo}, 8192, v{vXo}
    v_lshrrev_b32 v{T}, 5, v0
    v_lshlrev_b32 v{T}, 1, v{T}
    v_and_b32 v{T+2}, 3, v0
    v_xor_b32 v{T}, v{T}, v{T+2}
    v_lshlrev_b32 v{T}, 4, v{T}
    v_lshrrev_b32 v{T+2}, 2, v0             ; l>>2
    s_lshl_b32 s{sXo}, s{sRB}, 3
    s_add_u32 s{sXo}, s{sXo}, s{sW}
    s_lshl_b32 s{sXo}, s{sXo}, 14           ; (128rb+16w)*1024
    s_lshl_b32 s{sXl}, s{sW}, 11
    s_add_u32 s{sXl}, s{sXl}, 2048          ; unit w+1
    s_lshr_b32 s{sT+3}, s{sW}, 2            ; w>>2
    s_and_b32 s{sT+4}, s{sW}, 3             ; w&3
    s_lshl_b32 s{sWl}, s{sT+3}, 12
    s_lshl_b32 s{sT+5}, s{sT+4}, 10
    s_add_u32 s{sWl}, s{sWl}, s{sT+5}
    s_add_u32 s{sWl}, s{sWl}, {XW}
    s_mov_b32 s{sSt}, 0
    s_mov_b32 s{sT+15}, {STG}
    s_cmp_ge_u32 s{sSUB}, 2
    s_cbranch_scc1 L_{name}_B
    """)
    k(f"""
    v_mul_u32_u24 v{T+2}, 3072, v{T+2}
    v_add_u32 v{vWd}, v{T+2}, v{T}
    s_lshl_b32 s{sT+6}, s{sCQ}, 1
    s_add_u32 s{sSUB}, s{sSUB}, s{sT+6}
    s_mul_i32 s{sWo[0]}, s{sT+4}, {16*3072}
    s_lshl_b32 s{sT+6}, s{sSUB}, 7
    s_add_u32 s{sWo[0]}, s{sWo[0]}, s{sT+6}
    s_lshl_b32 s{sT+6}, s{sT+3}, 6
    s_add_u32 s{sWo[0]}, s{sWo[0]}, s{sT+6}
    s_add_u32 s{sWo[1]}, s{sWo[0]}, 1024
    s_add_u32 s{sWo[2]}, s{sWo[0]}, 2048
    s_mov_b32 s{sH}, s{sT+3}
    s_waitcnt lgkmcnt(0)
    """)
    k.srd(sXr, sX, 2048*1024); k.srd(sWr, sWQ, 512*3072)
    k(f"s_cmp_ge_u32 s{sW}, 4\ns_cbranch_scc1 L_{name}_A1")
    k(f"""
    s_lshl_b32 s{sT+6}, s{sW}, 1
    v_add_u32 v{T}, s{sT+6}, v1
    v_xor_b32 v{T}, v{T}, v3
    v_lshlrev_b32 v{T}, 4, v{T}
    v_lshl_add_u32 v{vH}, v{T+1}, 10, v{T}
    s_lshl_b32 s{sHo}, s{sRB}, 7
    s_sub_u32 s{sHo}, s{sHo}, 16
    s_max_i32 s{sHo}, s{sHo}, 0
    s_lshl_b32 s{sT+6}, s{sW}, 2
    s_add_u32 s{sHo}, s{sHo}, s{sT+6}
    s_lshl_b32 s{sHo}, s{sHo}, 10
    s_lshl_b32 s{sHl}, s{sW}, 9
    """)
    variant(k, name, "A0", st_pol, ld_pol, pf_pol, pf, code_lines)
    k(f"L_{name}_A1:")
    variant(k, name, "A1", st_pol, ld_pol, pf_pol, pf, code_lines)
    k(f"""
    L_{name}_B:
    v_mul_u32_u24 v{T+2}, 3584, v{T+2}
    v_add_u32 v{vWd}, v{T+2}, v{T}
    s_mul_i32 s{sWo[0]}, s{sT+4}, {16*3584}
    s_mul_i32 s{sT+6}, s{sCQ}, 448
    s_add_u32 s{sWo[0]}, s{sWo[0]}, s{sT+6}
    s_lshl_b32 s{sT+6}, s{sT+3}, 6
    s_add_u32 s{sWo[0]}, s{sWo[0]}, s{sT+6}
    s_cmp_eq_u32 s{sSUB}, 3
    s_cselect_b32 s{sT+6}, 1792, 0
    s_add_u32 s{sWo[0]}, s{sWo[0]}, s{sT+6}
    s_add_u32 s{sWo[1]}, s{sWo[0]}, 128
    s_add_u32 s{sWo[2]}, s{sWo[0]}, 256
    s_add_u32 s{sWo[3]}, s{sWo[0]}, 384
    s_and_b32 s{sH}, s{sW}, 1
    s_bfe_u32 s{sE}, s{sW}, 0x10001
    s_waitcnt lgkmcnt(0)
    """)
    k.srd(sXr, sX, 2048*1024); k.srd(sWr, sWIN, 512*3584)
    k(f"""
    s_cmp_eq_u32 s{sSUB}, 3
    s_cbranch_scc1 L_{name}_Z2
    s_cmp_ge_u32 s{sW}, 4
    s_cbranch_scc1 L_{name}_Z1b
    """)
    variant(k, name, "Z1a", st_pol, ld_pol, pf_pol, pf, code_lines)
    k(f"L_{name}_Z1b:")
    variant(k, name, "Z1b", st_pol, ld_pol, pf_pol, pf, code_lines)
    k(f"L_{name}_Z2:\ns_cmp_ge_u32 s{sW}, 4\ns_cbranch_scc1 L_{name}_Z2b")
    variant(k, name, "Z2a", st_pol, ld_pol, pf_pol, pf, code_lines)
    k(f"L_{name}_Z2b:")
    variant(k, name, "Z2b", st_pol, ld_pol, pf_pol, pf, code_lines)
    k(f"L_{name}_end:\ns_endpgm")
    return k, 256

def variant(k, name, V, st_pol, ld_pol, pf_pol, pf, code_lines):
    isA = V[0] == "A"
    halo = V == "A0"
    nW = 3 if (isA or V[2] == "b") else 4
    nX = 5 if isA else 4
    pitch = 3072 if isA else 3584
    ndma = 2 + nW + (1 if halo else 0)
    lab = f"L_{name}_{V}"
    k.stamp(0)
    def dma():
        k(f"s_add_u32 s{sA}, s{sSt}, s{sXl}\ns_add_u32 s{sB}, s{sSt}, s{sWl}")
        L = [f"s_mov_b32 m0, s{sA}", f"buffer_load_dwordx4 v{vXe}, s[{sXr}:{sXr+3}], s{sXo} offen {ld_pol} lds",
             f"s_add_u32 m0, s{sA}, 1024", f"buffer_load_dwordx4 v{vXo}, s[{sXr}:{sXr+3}], s{sXo} offen {ld_pol} lds",
             f"s_add_u32 s{sXo}, s{sXo}, 128"]
        for t in range(nW):
            L += [f"s_add_u32 m0, s{sB}, {t*8192}", f"buffer_load_dwordx4 v{vWd}, s[{sWr}:{sWr+3}], s{sWo[t]} offen {ld_pol} lds",
                  f"s_add_u32 s{sWo[t]}, s{sWo[t]}, {64*pitch}"]
        if halo:
            L += [f"s_add_u32 m0, s{sSt}, s{sHl}", "s_mov_b64 exec, 0xffffffff",
                  f"buffer_load_dwordx4 v{vH}, s[{sXr}:{sXr+3}], s{sHo} offen {ld_pol} lds", "s_mov_b64 exec, -1",
                  f"s_add_u32 s{sHo}, s{sHo}, 128"]
        for l in L: k(l)
    for sl in range(3):
        dma()
        if sl < 2: k(f"s_add_u32 s{sSt}, s{sSt}, {STG}")
    k(f"s_mov_b32 s{sSt}, 0")
    k(f"""
    v_lshlrev_b32 v{vL16}, 4, v0
    v_lshrrev_b32 v{T}, 1, v2
    v_xor_b32 v{T}, v{T}, v1
    v_lshlrev_b32 v{T}, 4, v{T}
    v_lshl_add_u32 v{T}, v2, 7, v{T}        ; i*128 + (g^(i>>1))*16
    s_lshl_b32 s{sT}, s{sH}, 6
    v_xor_b32 v{T}, s{sT}, v{T}
    s_lshl_b32 s{sT}, s{sH}, 13
    s_add_u32 s{sT}, s{sT}, {0 if isA else 2048}
    v_add_u32 v{vXr[0]}, s{sT}, v{T}
    v_xor_b32 v{vXr[1]}, 64, v{vXr[0]}
    v_add_u32 v{vSr[0]}, s{sXl}, v{T}
    v_xor_b32 v{vSr[1]}, 64, v{vSr[0]}
    v_and_b32 v{T}, 1, v1
    v_lshlrev_b32 v{T}, 1, v{T}             ; 2*(g&1)
    v_bfe_u32 v{T+1}, v0, 1, 1              ; c>>1
    v_xor_b32 v{T}, v{T}, v{T+1}
    v_lshlrev_b32 v{T}, 4, v{T}
    v_bfe_u32 v{T+1}, v0, 2, 2              ; r
    v_lshl_add_u32 v{T+1}, v1, 3, v{T+1}    ; 8g+r
    v_lshl_add_u32 v{T}, v{T+1}, 6, v{T}
    v_and_b32 v{T+1}, 1, v0
    v_lshl_add_u32 v{T}, v{T+1}, 3, v{T}
    """)
    if isA:
        k(f"""
        s_and_b32 s{sT}, s{sW}, 1
        s_lshl_b32 s{sT}, s{sT}, 5
        v_xor_b32 v{T}, s{sT}, v{T}
        s_bfe_u32 s{sT}, s{sW}, 0x10001
        s_lshl_b32 s{sT}, s{sT}, 12
        s_lshl_b32 s{sT+1}, s{sH}, 11
        s_add_u32 s{sT+2}, s{sT}, s{sT+1}
        s_add_u32 s{sT+2}, s{sT+2}, {XW}
        v_add_u32 v{vWr[0][0]}, s{sT+2}, v{T}
        s_sub_u32 s{sT+2}, s{sT}, s{sT+1}
        s_add_u32 s{sT+2}, s{sT+2}, {XW + 2048}
        v_add_u32 v{vWr[1][0]}, s{sT+2}, v{T}
        """)
        def waddr(sg, j, j2): return vWr[sg][0], j*8192 + j2*256
    else:
        j0 = 0 if nW == 4 else 4
        k(f"""
        s_lshl_b32 s{sT}, s{sE}, 5
        v_xor_b32 v{T}, s{sT}, v{T}             ; even j: p = e
        v_xor_b32 v{T+1}, 32, v{T}              ; odd j: p = 1-e
        s_lshl_b32 s{sT+1}, s{sH}, 11
        s_mul_i32 s{sT}, s{sE}, 12288
        s_add_u32 s{sT+2}, s{sT}, s{sT+1}
        s_add_u32 s{sT+2}, s{sT+2}, {XW}
        v_add_u32 v{vWr[0][0]}, s{sT+2}, v{T}
        s_sub_u32 s{sT+2}, s{sT}, s{sT+1}
        s_add_u32 s{sT+2}, s{sT+2}, {XW + 2048}
        v_add_u32 v{vWr[1][0]}, s{sT+2}, v{T}
        s_lshl_b32 s{sT}, s{sE}, 14
        s_add_u32 s{sT+2}, s{sT}, s{sT+1}
        s_add_u32 s{sT+2}, s{sT+2}, {XW}
        v_add_u32 v{vWr[0][1]}, s{sT+2}, v{T+1}
        s_sub_u32 s{sT+2}, s{sT}, s{sT+1}
        s_add_u32 s{sT+2}, s{sT+2}, {XW + 2048}
        v_add_u32 v{vWr[1][1]}, s{sT+2}, v{T+1}
        """)
        def waddr(sg, j, j2):
            jj = j0 + j
            return vWr[sg][jj & 1], (jj >> 1)*4096 + j2*256
    if isA:
        tQ = lambda a: ACC + (a-1)*4
        tK = lambda a: ACC + 16 + a*4
        tV = lambda a: ACC + 36 + a*4
        tG, tS = ACC + 56, ACC + 60
        tC = lambda j: ACC + 64 + j*4
        tHG, tHS = ACC + 76, ACC + 80
        nacc = 84 if halo else 76
    else:
        tZ = lambda a, j: ACC + (j*4 + a)*4
        tG, tS = ACC + 64, ACC + 68
        tC = lambda j: ACC + 72 + j*4
        nacc = 88
    ft = lambda sg: FR + sg*36
    fX = lambda sg, a: ft(sg) + a*4
    fW = lambda sg, j: ft(sg) + nX*4 + j*4
    fS = lambda sg: ft(sg) + 32
    for r in range(4): k(f"v_mov_b32 v{ONES+r}, 0x3f803f80")
    for r in range(nacc):
        if not isA and nW == 3 and (12*4 <= r < 64 or r >= 84): continue
        k(f"v_mov_b32 v{ACC+r}, 0")
    def reads(sg):
        L = []
        for j in range(nW):
            for j2 in range(2):
                b, off = waddr(sg, j, j2)
                L.append(f"ds_read_b64_tr_b16 {vr(fW(sg, j) + 2*j2, 2)}, v{b} offset:{off}")
            if j < nX: L.append(f"ds_read_b128 {vr(fX(sg, j))}, v{vXr[sg]} offset:{j*2048}")
        for a in range(nW, nX): L.append(f"ds_read_b128 {vr(fX(sg, a))}, v{vXr[sg]} offset:{a*2048}")
        L.append(f"ds_read_b128 {vr(fS(sg))}, v{vSr[sg]}")
        if OPT.get("noread"): return []
        if OPT.get("notr"): return [l for l in L if "_tr_" not in l]
        if OPT.get("nob128"): return [l for l in L if "_tr_" in l]
        return L
    def mf(d, a, b): return f"v_mfma_f32_16x16x32_bf16 {vr(d)}, {vr(a)}, {vr(b)}, {vr(d)}"
    def mfmas(sg):
        L = []
        if isA:
            for a in range(5):
                if a: L.append(mf(tQ(a), fW(sg, 0), fX(sg, a)))
                L.append(mf(tK(a), fW(sg, 1), fX(sg, a)))
                L.append(mf(tV(a), fX(sg, a), fW(sg, 2)))
            if halo: L += [mf(tHG, fX(sg, 0), fX(sg, 0)), mf(tHS, ONES, fX(sg, 0))]
        else:
            for j in range(nW):
                for a in range(4):
                    L.append(mf(tZ(a, j), fX(sg, a), fW(sg, j)) if V[1] == "2" else mf(tZ(a, j), fW(sg, j), fX(sg, a)))
        L += [mf(tG, fS(sg), fS(sg)), mf(tS, ONES, fS(sg))]
        if sg == 0:
            for j in range(nW): L.append(mf(tC(j), ONES, fW(sg, j)))
        if OPT.get("nomfma"): return L[:1]
        return L
    def adv(sg):
        regs = [vXr[sg], vSr[sg], vWr[sg][0]] + ([] if isA else [vWr[sg][1]])
        return [f"v_add_u32 v{r}, s{sDelta}, v{r}" for r in regs]
    k(f"s_mov_b32 s{sI}, 0\ns_waitcnt vmcnt({2*ndma})\ns_barrier")
    k.stamp(1)
    for l in reads(0): k(l)
    k("s_waitcnt lgkmcnt(0)")
    k(f".p2align 6\n{lab}_loop:")
    for l in interleave(mfmas(0), reads(1), per=1): k(l)
    k(f"""
    s_cmp_eq_u32 s{sSt}, {2*STG}
    s_cselect_b32 s{sDelta}, {-2*STG}, s{sT+15}
    """)
    k(f"s_cmp_eq_u32 s{sI}, 7\ns_cbranch_scc1 {lab}_nowait")
    k(f"s_waitcnt vmcnt({ndma})\n{lab}_nowait:\ns_waitcnt lgkmcnt(0)\ns_barrier")
    for l in adv(0): k(l)
    for l in reads(0): k(l)
    k(f"s_cmp_ge_u32 s{sI}, 5\ns_cbranch_scc1 {lab}_nodma")
    if not OPT.get("nodma"): dma()
    k(f"{lab}_cont:")
    for l in interleave(mfmas(1), adv(1), per=1): k(l)
    k(f"""
    s_add_u32 s{sSt}, s{sSt}, s{sDelta}
    s_add_u32 s{sI}, s{sI}, 1
    s_cmp_lt_u32 s{sI}, 8
    s_waitcnt lgkmcnt(0)
    s_cbranch_scc1 {lab}_loop
    s_branch {lab}_epi
    {lab}_nodma:
    s_cmp_eq_u32 s{sI}, 5
    s_cbranch_scc0 {lab}_cont
    """)
    k.srd(sPr, sWSP, 2048*4096)
    k(f"""
    s_and_b32 s{sT}, s2, 7
    s_lshr_b32 s{sT}, s{sT}, 1
    s_lshl_b32 s{sT}, s{sT}, 21
    s_lshr_b32 s{sT+1}, s2, 3
    s_lshl_b32 s{sT+1}, s{sT+1}, 3
    s_add_u32 s{sT+1}, s{sT+1}, s{sW}
    s_lshl_b32 s{sT+2}, s{sT+1}, 13
    s_add_u32 s{sT}, s{sT}, s{sT+2}
    v_lshlrev_b32 v{vPF}, 7, v0
    s_mov_b32 s{sT+3}, 0x7fffffff
    """)
    k(f"buffer_load_dword v{vPF+1}, v{vPF}, s[{sPr}:{sPr+3}], s{sT if pf else sT+3} offen {pf_pol}")
    for n in range(1, ndma): k(f"buffer_load_dword v{vPF+1+n}, v{vPF}, s[{sPr}:{sPr+3}], s{sT+3} offen")
    k(f"s_branch {lab}_cont\n{lab}_epi:")
    k.stamp(2)
    cI, cE = T, T+1
    k(f"""
    s_barrier
    v_mov_b32 v{cI}, {f2h(1/512)}
    v_mov_b32 v{cE}, {f2h(1e-5)}
    v_and_b32 v{T+2}, 1, v0
    v_cmp_eq_u32 s[{sM}:{sM+1}], 1, v{T+2}          ; i odd
    v_and_b32 v{T+2}, 2, v0
    v_cmp_eq_u32 s[{sM+2}:{sM+3}], 2, v{T+2}
    v_lshrrev_b32 v{T+2}, 2, v2
    v_cmp_eq_u32 s[{sM+4}:{sM+5}], v1, v{T+2}
    v_lshlrev_b32 v{T+3}, 2, v2                      ; i*4
    """)
    def rowstats(G, S, addr_s, tt):
        k(f"""
        v_cndmask_b32 v{tt}, v{G}, v{G+1}, s[{sM}:{sM+1}]
        v_cndmask_b32 v{tt+1}, v{G+2}, v{G+3}, s[{sM}:{sM+1}]
        v_mul_f32 v{tt+2}, v{S}, v{cI}
        v_cndmask_b32 v{tt}, v{tt}, v{tt+1}, s[{sM+2}:{sM+3}]
        v_mul_f32 v{tt}, v{tt}, v{cI}
        v_fma_f32 v{tt}, -v{tt+2}, v{tt+2}, v{tt}
        v_max_f32 v{tt}, 0, v{tt}
        """)
        bf16_round(k, tt, tt); k(f"v_add_f32 v{tt}, v{tt}, v{cE}"); bf16_round(k, tt, tt)
        k(f"v_sqrt_f32 v{tt}, v{tt}"); bf16_round(k, tt+2, tt+2); bf16_round(k, tt, tt)
        k(f"v_rcp_f32 v{tt}, v{tt}\nv_add_u32 v{tt+1}, {addr_s}, v{T+3}\nv_mul_f32 v{tt+2}, -v{tt+2}, v{tt}")
        k(f"s_mov_b64 exec, s[{sM+4}:{sM+5}]\nds_write_b32 v{tt+1}, v{tt} offset:{TA}\nds_write_b32 v{tt+1}, v{tt+2} offset:{TB}\ns_mov_b64 exec, -1")
    k(f"s_lshr_b32 s{sT}, s{sXl}, 5")
    rowstats(tG, tS, f"s{sT}", T+4)
    if halo: rowstats(tHG, tHS, "0", T+8)
    if isA:
        k(f"s_and_b32 s{sT+1}, s{sW}, 3\ns_mul_i32 s{sT+1}, s{sT+1}, 192")
    else:
        k(f"s_mul_i32 s{sT+1}, s{sE}, 448\ns_add_u32 s{sT+1}, s{sT+1}, {j0*64}")
    k(f"s_lshl_b32 s{sT+2}, s{sH}, 10\ns_add_u32 s{sT+2}, s{sT+2}, s{sT+1}\nv_add_u32 v{T+4}, s{sT+2}, v{T+3}")
    for j in range(nW): k(f"ds_write_b32 v{T+4}, v{tC(j)} offset:{TC + j*64}")
    vLn, vRg, vCl, vCr = T+5, T+6, T+7, T+8
    k(f"""
    s_lshl_b32 s{sT+2}, s{sH}, 8
    s_add_u32 s{sT+2}, s{sT+2}, {0 if isA else 64}
    v_add_u32 v{vLn}, s{sT+2}, v{T+3}
    v_lshlrev_b32 v{T+9}, 4, v1
    v_add_u32 v{vRg}, s{sT+2}, v{T+9}
    v_add_u32 v{vCl}, s{sT+1}, v{T+3}
    v_add_u32 v{vCr}, s{sT+1}, v{T+9}
    s_waitcnt lgkmcnt(0)
    s_barrier
    """)
    k.stamp(3)
    k.lg.q = []
    if isA: epi_attn(k, name, V, st_pol, tQ, tK, tV, vLn, vRg, vCl, vCr)
    else: epi_z(k, name, V, st_pol, tZ, nW, j0, vLn, vRg, vCl, vCr)
    k.stamp_end(0, sWS, sW, 6)
    k("s_endpgm")

def gelu4(k, y, c1, c2, one, t):
    for r in range(4): k(f"v_mul_f32 v{t+r}, v{y+r}, v{y+r}")
    for r in range(4): k(f"v_fma_f32 v{t+r}, v{t+r}, v{c2}, v{c1}")
    for r in range(4): k(f"v_mul_f32 v{t+r}, v{t+r}, v{y+r}")
    for r in range(4): k(f"v_exp_f32 v{t+r}, v{t+r}")
    for r in range(4): k(f"v_add_f32 v{t+r}, 1.0, v{t+r}")
    for r in range(4): k(f"v_rcp_f32 v{t+r}, v{t+r}")
    for r in range(4): k(f"v_mul_f32 v{y+r}, v{y+r}, v{t+r}")

def epi_z(k, name, V, st_pol, tZ, nW, j0, vLn, vRg, vCl, vCr):
    z2 = V[1] == "2"
    AB = FR
    CS = FR + 32
    ST = T + 12
    c1, c2 = T, T+1
    tmp = T + 44; PK = T + 48
    off = Z2F_OFF if z2 else Z1L_OFF
    if z2:
        for a in range(4):
            k.ds(f"ds_read_b128 {vr(AB + a*4)}, v{vRg} offset:{TA + a*64}", "t")
            k.ds(f"ds_read_b128 {vr(AB + 16 + a*4)}, v{vRg} offset:{TB + a*64}", "t")
        for j in range(nW):
            for hh in range(2): k.ds(f"ds_read_b32 v{CS + 2*j + hh}, v{vCl} offset:{TC + hh*1024 + j*64}", "t")
    else:
        for a in range(4):
            k.ds(f"ds_read_b32 v{AB + a}, v{vLn} offset:{TA + a*64}", "t")
            k.ds(f"ds_read_b32 v{AB + 4 + a}, v{vLn} offset:{TB + a*64}", "t")
        for j in range(nW):
            for hh in range(2): k.ds(f"ds_read_b128 {vr(CS + 8*j + 4*hh)}, v{vCr} offset:{TC + hh*1024 + j*64}", "t")
    k(f"""
    v_mov_b32 v{c1}, {f2h(GC1)}
    v_mov_b32 v{c2}, {f2h(GC2)}
    s_add_u32 s{sOr}, s{sWS}, {off}
    s_addc_u32 s{sOr+1}, s{sWS+1}, 0
    s_mov_b32 s{sOr+2}, {Z2F_SZ}
    s_mov_b32 s{sOr+3}, 0x20000
    s_lshl_b32 s{sT}, s{sRB}, 1
    s_add_u32 s{sT}, s{sT}, s{sH}
    s_mul_i32 s{sT}, s{sT}, 112
    s_mul_i32 s{sT+1}, s{sCQ}, 14
    s_add_u32 s{sT}, s{sT}, s{sT+1}
    s_mul_i32 s{sT+1}, s{sE}, 7
    s_add_u32 s{sT}, s{sT}, s{sT+1}
    s_add_u32 s{sT}, s{sT}, {j0}
    s_lshl_b32 s{sT}, s{sT}, 10
    s_add_u32 s{sT+1}, s{sT}, {56*1024}
    """)
    k.wait(lg="t")
    if z2:
        for j in range(nW): k(f"v_add_f32 v{CS+2*j}, v{CS+2*j}, v{CS+2*j+1}")
    else:
        for j in range(nW):
            for r in range(4): k(f"v_add_f32 v{CS+8*j+r}, v{CS+8*j+r}, v{CS+8*j+4+r}")
    nb = 0
    for j in range(nW):
        for p in range(2):
            pk = PK + 4*(nb & 1); nb += 1
            for aa in range(2):
                a = 2*p + aa; y = tZ(a, j)
                for r in range(4):
                    if z2: k(f"v_mul_f32 v{tmp+r}, v{AB+16+a*4+r}, v{CS+2*j}")
                    else:  k(f"v_mul_f32 v{tmp+r}, v{AB+4+a}, v{CS+8*j+r}")
                for r in range(4):
                    k(f"v_fma_f32 v{y+r}, v{AB+a*4+r if z2 else AB+a}, v{y+r}, v{tmp+r}")
                gelu4(k, y, c1, c2, None, tmp)
                if z2:
                    for r in range(4):
                        s_, q_ = ST + a*8 + r*2, ST + a*8 + r*2 + 1
                        if j == 0: k(f"v_mov_b32 v{s_}, v{y+r}\nv_mul_f32 v{q_}, v{y+r}, v{y+r}")
                        else: k(f"v_add_f32 v{s_}, v{s_}, v{y+r}\nv_fmac_f32 v{q_}, v{y+r}, v{y+r}")
                for d in range(2): k(f"v_cvt_pk_bf16_f32 v{pk+2*aa+d}, v{y+2*d}, v{y+2*d+1}")
            k(f"buffer_store_dwordx4 {vr(pk)}, v{vL16}, s[{sOr}:{sOr+3}], s{sT+p} offen offset:{j*1024} {st_pol}")
    k.stamp(4)
    if z2:
        for n in range(16):
            k(f"v_add_f32_dpp v{ST+n}, v{ST+n}, v{ST+n} row_mirror row_mask:0xf bank_mask:0x3")
        for n in range(16):
            k(f"v_add_f32_dpp v{ST+n}, v{ST+16+n}, v{ST+16+n} row_mirror row_mask:0xf bank_mask:0xc")
        for n in range(8):
            k(f"v_add_f32_dpp v{ST+n}, v{ST+n}, v{ST+n} row_half_mirror row_mask:0xf bank_mask:0x5")
        for n in range(8):
            k(f"v_add_f32_dpp v{ST+n}, v{ST+8+n}, v{ST+8+n} row_half_mirror row_mask:0xf bank_mask:0xa")
        for n in range(8): k(f"v_add_f32_dpp v{ST+n}, v{ST+n}, v{ST+n} quad_perm:[1,0,3,2] row_mask:0xf bank_mask:0xf")
        for n in range(8): k(f"v_add_f32_dpp v{ST+n}, v{ST+n}, v{ST+n} quad_perm:[2,3,0,1] row_mask:0xf bank_mask:0xf")
        cg = 0 if nW == 4 else 2
        k(f"""
        v_lshrrev_b32 v{tmp}, 2, v2
        v_lshlrev_b32 v{tmp}, 7, v{tmp}
        v_lshl_add_u32 v{tmp}, v1, 5, v{tmp}
        s_lshl_b32 s{sT}, s{sE}, 10
        s_lshl_b32 s{sT+1}, s{sH}, 9
        s_add_u32 s{sT}, s{sT}, s{sT+1}
        v_add_u32 v{tmp}, s{sT}, v{tmp}
        ds_write_b128 v{tmp}, {vr(ST)} offset:{PS + cg*1024}
        ds_write_b128 v{tmp}, {vr(ST+4)} offset:{PS + cg*1024 + 16}
        s_waitcnt lgkmcnt(0)
        s_barrier
        """)
        if nW == 4:
            k(f"s_cmp_lg_u32 s{sW}, 0\ns_cbranch_scc1 L_{name}_{V}_fin")
            for c in range(4): k(f"ds_read_b128 {vr(FR + 4*c)}, v{vL16} offset:{PS + c*1024}")
            k(f"""
            s_add_u32 s{sOr}, s{sWS}, {ST2_OFF}
            s_addc_u32 s{sOr+1}, s{sWS+1}, 0
            s_mov_b32 s{sOr+2}, {ST2_SZ}
            s_lshl_b32 s{sT}, s{sCQ}, 14
            s_lshl_b32 s{sT+1}, s{sRB}, 10
            s_add_u32 s{sT}, s{sT}, s{sT+1}
            s_waitcnt lgkmcnt(0)
            """)
            for r in range(4): k(f"v_add_f32 v{FR+r}, v{FR+r}, v{FR+4+r}")
            for r in range(4): k(f"v_add_f32 v{FR+8+r}, v{FR+8+r}, v{FR+12+r}")
            for r in range(4): k(f"v_add_f32 v{FR+r}, v{FR+r}, v{FR+8+r}")
            k(f"buffer_store_dwordx4 {vr(FR)}, v{vL16}, s[{sOr}:{sOr+3}], s{sT} offen {st_pol}")
            k(f"L_{name}_{V}_fin:")
    k.stamp(5)

def epi_attn(k, name, V, st_pol, tQ, tK, tV, vLn, vRg, vCl, vCr):
    AL, BL = FR, FR + 5
    AR_, BR_ = FR + 12, FR + 32
    CQ, CK, CV = FR + 52, FR + 60, FR + 68
    for a in range(5):
        k.ds(f"ds_read_b32 v{AL+a}, v{vLn} offset:{TA + a*64}", "t")
        k.ds(f"ds_read_b32 v{BL+a}, v{vLn} offset:{TB + a*64}", "t")
    for hh in range(2):
        k.ds(f"ds_read_b128 {vr(CQ + 4*hh)}, v{vCr} offset:{TC + hh*1024}", "t")
        k.ds(f"ds_read_b128 {vr(CK + 4*hh)}, v{vCr} offset:{TC + hh*1024 + 64}", "t")
    k.wait(lg="t")
    for hh in range(2): k.ds(f"ds_read_b32 v{CV + hh}, v{vCl} offset:{TC + hh*1024 + 128}", "u")
    for a in range(5):
        k.ds(f"ds_read_b128 {vr(AR_ + a*4)}, v{vRg} offset:{TA + a*64}", "u")
        k.ds(f"ds_read_b128 {vr(BR_ + a*4)}, v{vRg} offset:{TB + a*64}", "u")
    QP, KP, VP = T + 10, T + 18, T + 28
    tmp = T + 38
    MC, MP = T + 42, T + 44
    cS, cN = T, T + 1
    for r in range(4): k(f"v_add_f32 v{CQ+r}, v{CQ+r}, v{CQ+4+r}\nv_add_f32 v{CK+r}, v{CK+r}, v{CK+4+r}")
    def foldT(y, a, cs, dst):
        for r in range(4): k(f"v_mul_f32 v{tmp+r}, v{BL+a}, v{cs+r}")
        for r in range(4): k(f"v_fma_f32 v{y+r}, v{AL+a}, v{y+r}, v{tmp+r}")
        for d in range(2): k(f"v_cvt_pk_bf16_f32 v{dst+d}, v{y+2*d}, v{y+2*d+1}")
    for a in range(5):
        foldT(tK(a), a, CK, KP + 2*a)
        if a: foldT(tQ(a), a, CQ, QP + 2*(a-1))
    Sc = lambda a: tQ(a); Sp = lambda a: tK(a)
    for a in range(1, 5):
        k(f"v_mfma_f32_16x16x16_bf16 {vr(Sc(a))}, {vr(KP+2*a, 2)}, {vr(QP+2*(a-1), 2)}, 0")
        k(f"v_mfma_f32_16x16x16_bf16 {vr(Sp(a))}, {vr(KP+2*(a-1), 2)}, {vr(QP+2*(a-1), 2)}, 0")
    k(f"""
    v_and_b32 v{tmp}, 1, v2
    v_lshl_add_u32 v{tmp+1}, v1, 2, v{tmp}          ; 4g + (q&1)
    v_cmp_le_u32 s[{sM+2}:{sM+3}], v{tmp+1}, v2
    v_add_u32 v{tmp+1}, 2, v{tmp+1}
    v_cmp_le_u32 s[{sM+4}:{sM+5}], v{tmp+1}, v2
    v_lshlrev_b32 v{tmp}, 4, v{tmp}
    v_mov_b32 v{tmp+1}, 0xffff
    v_lshlrev_b32 v{tmp}, v{tmp}, v{tmp+1}
    v_cndmask_b32 v{MC}, 0, v{tmp}, s[{sM+2}:{sM+3}]
    v_cndmask_b32 v{MP}, v{tmp}, 0, s[{sM+2}:{sM+3}]
    v_cndmask_b32 v{MC+1}, 0, v{tmp}, s[{sM+4}:{sM+5}]
    v_cndmask_b32 v{MP+1}, v{tmp}, 0, s[{sM+4}:{sM+5}]
    v_mov_b32 v{cS}, {f2h(0.25*LOG2E)}
    v_mov_b32 v{cN}, {f2h(-1e30)}
    s_cmp_eq_u32 s{sRB}, 0
    s_cselect_b64 s[{sM+6}:{sM+7}], -1, 0
    """)
    k.wait(lg="u")
    k(f"v_add_f32 v{CV}, v{CV}, v{CV+1}")
    for a in range(5):
        y = tV(a)
        for r in range(4): k(f"v_mul_f32 v{tmp+r}, v{BR_+a*4+r}, v{CV}")
        for r in range(4): k(f"v_fma_f32 v{y+r}, v{AR_+a*4+r}, v{y+r}, v{tmp+r}")
        for d in range(2): k(f"v_cvt_pk_bf16_f32 v{VP+2*a+d}, v{y+2*d}, v{y+2*d+1}")
    U = range(1, 5)
    X = lambda a: FR + (a-1)*8
    for a in U:
        for v in range(2):
            k(f"v_cndmask_b32 v{X(a)+v}, v{Sc(a)+2*v}, v{Sc(a)+2*v+1}, s[{sM}:{sM+1}]")
            k(f"v_cndmask_b32 v{X(a)+2+v}, v{Sp(a)+2*v}, v{Sp(a)+2*v+1}, s[{sM}:{sM+1}]")
    if V == "A0":
        for v in range(2): k(f"v_cndmask_b32 v{X(1)+2+v}, v{X(1)+2+v}, v{cN}, s[{sM+6}:{sM+7}]")
    for a in U:
        for v in range(2): k(f"v_cndmask_b32 v{X(a)+v}, v{X(a)+2+v}, v{X(a)+v}, s[{sM+2+2*v}:{sM+3+2*v}]")
    def allred(op):
        for sw in ("v_permlane16_swap_b32", "v_permlane32_swap_b32"):
            for a in U: k(f"v_mov_b32 v{X(a)+3}, v{X(a)+2}")
            for a in U: k(f"{sw} v{X(a)+2}, v{X(a)+3}")
            for a in U: k(f"{op} v{X(a)+2}, v{X(a)+2}, v{X(a)+3}")
    for a in U: k(f"v_max_f32 v{X(a)+2}, v{X(a)}, v{X(a)+1}")
    allred("v_max_f32")
    for a in U:
        for v in range(2): k(f"v_sub_f32 v{X(a)+v}, v{X(a)+v}, v{X(a)+2}")
    for a in U:
        for v in range(2): k(f"v_mul_f32 v{X(a)+v}, v{X(a)+v}, v{cS}")
    for a in U:
        for v in range(2): k(f"v_exp_f32 v{X(a)+v}, v{X(a)+v}")
    for a in U: k(f"v_add_f32 v{X(a)+2}, v{X(a)}, v{X(a)+1}")
    allred("v_add_f32")
    for a in U: k(f"v_rcp_f32 v{X(a)+2}, v{X(a)+2}")
    for a in U:
        for v in range(2): k(f"v_mul_f32 v{X(a)+v}, v{X(a)+v}, v{X(a)+2}")
    for a in U:
        for v in range(2): k(f"v_cvt_pk_bf16_f32 v{X(a)+v}, v{X(a)+v}, v{X(a)+v}")
    for a in U:
        for v in range(2):
            k(f"v_and_b32 v{X(a)+4+v}, v{X(a)+v}, v{MP+v}\nv_and_b32 v{X(a)+6+v}, v{X(a)+v}, v{MC+v}")
    for a in U: k(f"v_mfma_f32_16x16x32_bf16 {vr(tV(a))}, {vr(VP+2*(a-1))}, {vr(X(a)+4)}, 0")
    OP = FR + 40
    k(f"""
    s_lshl_b32 s{sT}, s{sW}, 11
    v_add_u32 v{tmp}, s{sT}, v{vL16}
    s_and_b32 s{sT+1}, s{sW}, 6
    s_lshl_b32 s{sT+1}, s{sT+1}, 11
    s_and_b32 s{sT+2}, s{sW}, 1
    s_lshl_b32 s{sT+3}, s{sT+2}, 10
    s_add_u32 s{sT+1}, s{sT+1}, s{sT+3}
    v_add_u32 v{tmp+1}, s{sT+1}, v{vL16}
    s_add_u32 s{sOr}, s{sWS}, {A3_OFF}
    s_addc_u32 s{sOr+1}, s{sWS+1}, 0
    s_mov_b32 s{sOr+2}, {A3_SZ}
    s_mov_b32 s{sOr+3}, 0x20000
    s_lshl_b32 s{sT}, s{sRB}, 2
    s_lshl_b32 s{sT+1}, s{sH}, 1
    s_add_u32 s{sT}, s{sT}, s{sT+1}
    s_add_u32 s{sT}, s{sT}, s{sT+2}
    s_mul_i32 s{sT}, s{sT}, 88
    s_lshl_b32 s{sT+1}, s{sSUB}, 1
    s_add_u32 s{sT}, s{sT}, s{sT+1}
    s_bfe_u32 s{sT+1}, s{sW}, 0x10001
    s_add_u32 s{sT}, s{sT}, s{sT+1}
    s_lshl_b32 s{sT}, s{sT}, 10
    s_add_u32 s{sT+1}, s{sT}, {44*1024}
    """)
    for a in U:
        for d in range(2): k(f"v_cvt_pk_bf16_f32 v{OP+2*(a-1)+d}, v{tV(a)+2*d}, v{tV(a)+2*d+1}")
    k.stamp(4)
    k(f"""
    ds_write_b128 v{tmp}, {vr(OP)} offset:{OX}
    ds_write_b128 v{tmp}, {vr(OP+4)} offset:{OX+1024}
    s_waitcnt lgkmcnt(0)
    s_barrier
    ds_read_b64 {vr(OP+8, 2)}, v{tmp+1} offset:{OX}
    ds_read_b64 {vr(OP+10, 2)}, v{tmp+1} offset:{OX+2048}
    ds_read_b64 {vr(OP+12, 2)}, v{tmp+1} offset:{OX+8}
    ds_read_b64 {vr(OP+14, 2)}, v{tmp+1} offset:{OX+2048+8}
    s_waitcnt lgkmcnt(2)
    buffer_store_dwordx4 {vr(OP+8)}, v{vL16}, s[{sOr}:{sOr+3}], s{sT} offen {st_pol}
    s_waitcnt lgkmcnt(0)
    buffer_store_dwordx4 {vr(OP+12)}, v{vL16}, s[{sOr}:{sOr+3}], s{sT+1} offen {st_pol}
    """)
    k.stamp(5)
```

```python
import re

TRANS = ("v_exp_f32", "v_log_f32", "v_rcp_f32", "v_rsq_f32", "v_sqrt_f32", "v_sin_f32", "v_cos_f32", "v_rcp_iflag_f32")

def expand(op):
    op = op.strip()
    op = re.sub(r"^-", "", op)
    m = re.match(r"^abs\((.*)\)$", op)
    if m: op = m.group(1)
    op = op.strip("|")
    m = re.match(r"^([vas])\[(\d+):(\d+)\]$", op)
    if m: return {(m.group(1), i) for i in range(int(m.group(2)), int(m.group(3)) + 1)}
    m = re.match(r"^([vas])(\d+)$", op)
    if m: return {(m.group(1), int(m.group(2)))}
    if op == "vcc": return {("vcc", 0), ("vcc", 1)}
    if op == "vcc_lo": return {("vcc", 0)}
    if op == "vcc_hi": return {("vcc", 1)}
    if op == "exec": return {("exec", 0), ("exec", 1)}
    if op in ("exec_lo",): return {("exec", 0)}
    if op in ("exec_hi",): return {("exec", 1)}
    if op == "m0": return {("m0", 0)}
    return set()

class Ins:
    __slots__ = ("text", "mn", "ops", "cls", "w", "r", "ra", "rb", "rc", "passes", "dpp", "trans", "lds_dma",
                 "wide_store", "sdata", "nop", "target", "perm", "rl", "lanesel", "mask_r", "sr_const", "vmem_s")
    def __init__(self, text):
        self.text = text
        t = text.split(";")[0].strip()
        self.mn = t.split()[0] if t else ""
        rest = t[len(self.mn):].strip()
        ops, cur, depth = [], "", 0
        for ch in rest:
            if ch in "[(": depth += 1
            if ch in "])": depth -= 1
            if ch == "," and depth == 0:
                ops.append(cur.strip()); cur = ""
            else: cur += ch
        if cur.strip(): ops.append(cur.strip())
        mods = ""
        if ops:
            parts = ops[-1].split()
            ops[-1] = parts[0]; mods = " ".join(parts[1:])
        self.ops = ops
        mn = self.mn
        self.w = set(); self.r = set(); self.ra = set(); self.rb = set(); self.rc = set()
        self.passes = 0; self.dpp = False; self.trans = False; self.lds_dma = False
        self.wide_store = False; self.sdata = set(); self.nop = 1; self.target = None
        self.perm = False; self.rl = False; self.lanesel = set(); self.mask_r = set(); self.sr_const = set(); self.vmem_s = set()
        E = expand
        if mn.startswith("v_mfma"):
            self.cls = "mfma"
            self.w = E(ops[0]); self.ra = E(ops[1]); self.rb = E(ops[2]); self.rc = E(ops[3])
            self.r = self.ra | self.rb | self.rc
            self.passes = 8 if "32x32" in mn else 4
        elif mn.startswith("v_"):
            self.cls = "valu"
            base = re.sub(r"_(e32|e64|dpp|sdwa)$", "", mn)
            self.dpp = ("dpp" in mn) or ("row_" in mods) or ("quad_perm" in mods) or ("wave_" in mods)
            self.trans = base in TRANS
            if base in ("v_swap_b32", "v_permlane16_swap_b32", "v_permlane32_swap_b32"):
                self.w = E(ops[0]) | E(ops[1]); self.r = set(self.w); self.perm = "permlane" in base
            elif base.startswith("v_cmp"):
                self.w = E(ops[0]);
                for o in ops[1:]: self.r |= E(o)
                assert not base.startswith("v_cmpx"), "avoid v_cmpx"
            elif base in ("v_readfirstlane_b32", "v_readlane_b32"):
                self.w = E(ops[0]); self.r = E(ops[1]); self.rl = True
                if len(ops) > 2: self.lanesel = E(ops[2]); self.r |= self.lanesel
            elif base in ("v_add_co_u32", "v_sub_co_u32", "v_addc_co_u32", "v_subb_co_u32", "v_mad_u64_u32", "v_div_scale_f32"):
                self.w = E(ops[0]) | E(ops[1])
                for o in ops[2:]: self.r |= E(o)
            else:
                self.w = E(ops[0])
                for o in ops[1:]: self.r |= E(o)
                if base in ("v_fmac_f32", "v_dot2c_f32_bf16", "v_writelane_b32", "v_fmac_f16") or self.dpp:
                    self.r |= E(ops[0])
            self.sr_const = {x for x in self.r if x[0] in ("s", "vcc")} - self.lanesel
        elif mn.startswith("buffer_") or mn.startswith("global_") or mn.startswith("flat_"):
            self.cls = "vmem"
            allm = (mods + " " + " ".join(ops)).split()
            isload = "_load" in mn
            if mn in ("buffer_wbl2", "buffer_inv"):
                pass
            elif mn.startswith("buffer_"):
                if isload and "lds" in allm:
                    self.lds_dma = True
                    for o in ops: self.r |= E(o)
                    self.r |= {("m0", 0)}
                elif isload:
                    self.w = E(ops[0])
                    for o in ops[1:]: self.r |= E(o)
                else:
                    self.sdata = E(ops[0])
                    for o in ops: self.r |= E(o)
                    if "atomic" in mn and "sc0" in allm: self.w = E(ops[0])
            else:
                if isload:
                    self.w = E(ops[0])
                    for o in ops[1:]: self.r |= E(o)
                elif "atomic" in mn and "sc0" in allm:
                    self.w = E(ops[0])
                    for o in ops[1:]: self.r |= E(o)
                else:
                    self.sdata = E(ops[1])
                    for o in ops: self.r |= E(o)
            self.wide_store = ("store" in mn) and (mn.endswith("x3") or mn.endswith("x4"))
            self.vmem_s = {x for x in self.r if x[0] == "s"}
        elif mn.startswith("ds_"):
            self.cls = "ds"
            if mn.startswith("ds_read") or mn.startswith("ds_bpermute") or mn.startswith("ds_permute") or mn.startswith("ds_swizzle") or "_rtn" in mn:
                self.w = E(ops[0])
                for o in ops[1:]: self.r |= E(o)
            else:
                for o in ops: self.r |= E(o)
        elif mn.startswith("s_"):
            self.cls = "salu"
            if mn == "s_nop":
                self.nop = int(ops[0], 0) + 1
            elif mn.startswith("s_cbranch") or mn == "s_branch":
                self.target = ops[0]
            elif mn.startswith("s_cmp") or mn in ("s_waitcnt", "s_barrier", "s_endpgm", "s_setprio", "s_sleep"):
                for o in ops: self.r |= E(o)
            else:
                if ops: self.w = E(ops[0])
                for o in ops[1:]: self.r |= E(o)
                if "saveexec" in mn: self.w |= {("exec", 0), ("exec", 1)}
        else:
            raise ValueError("unknown instruction: " + text)

def required(p, c):
    need = 0
    pv = {x for x in p.w if x[0] in ("v", "a")}
    if p.cls == "valu":
        if c.cls == "mfma" and (pv & c.r): need = max(need, 2)
        if c.cls == "valu":
            if p.trans and not c.trans and (pv & c.r): need = max(need, 1)
            if p.trans and c.trans and (pv & c.r): need = max(need, 1)
            if c.dpp and (pv & c.r): need = max(need, 2)
            if c.perm and (pv & c.r): need = max(need, 2)
            if c.rl and (pv & c.r): need = max(need, 1)
            ps = {x for x in p.w if x[0] in ("s", "vcc")}
            if ps & c.sr_const: need = max(need, 2)
            if ps & c.lanesel: need = max(need, 4)
        if c.cls == "vmem":
            ps = {x for x in p.w if x[0] == "s"}
            if ps & c.vmem_s: need = max(need, 5)
        if c.cls == "salu":
            ps = {x for x in p.w if x[0] in ("s", "vcc")}
            if ps & c.r: need = max(need, 1)
    if p.cls == "mfma":
        t = {4: (6, 8, 8, 3), 8: (10, 12, 12, 7)}[p.passes]
        if c.cls == "mfma":
            if p.w & c.rc:
                if not (p.w == c.rc and p.passes == c.passes): need = max(need, t[0])
            if p.w & (c.ra | c.rb): need = max(need, t[1])
            if (p.w & c.w) and not (p.w == c.rc): need = max(need, t[1])
        elif c.cls in ("valu", "vmem", "ds"):
            if p.w & (c.r | c.w): need = max(need, t[2])
            if c.cls == "valu" and (p.rc & c.w): need = max(need, t[3])
            if c.cls in ("vmem", "ds") and (p.rc & c.w): need = max(need, t[3])
    if p.cls == "salu":
        if ("m0", 0) in p.w and c.lds_dma: need = max(need, 1)
        if (("exec", 0) in p.w or ("exec", 1) in p.w) and c.cls == "valu" and c.dpp: need = max(need, 1)
    if p.cls == "vmem" and p.wide_store:
        if c.cls == "valu" and (p.sdata & c.w): need = max(need, 2)
        elif c.cls in ("vmem", "ds", "mfma") and (p.sdata & c.w): need = max(need, 1)
    return need

MAXD = 12
def fix_hazards(lines, verbose=False):
    total = 0
    while True:
        items = []
        labels = {}
        for ln in lines:
            s = ln.split(";")[0].strip()
            if not s or s.startswith("."):
                items.append(None)
            elif s.endswith(":"):
                labels[s[:-1]] = len(items); items.append(None)
            else:
                items.append(Ins(ln))
        n = len(items)
        preds = [[] for _ in range(n + 1)]
        for i, it in enumerate(items):
            if it is None:
                preds[i + 1].append(i)
            else:
                if it.target is not None:
                    if it.target in labels: preds[labels[it.target]].append(i)
                    if it.mn != "s_branch": preds[i + 1].append(i)
                elif it.mn != "s_endpgm":
                    preds[i + 1].append(i)
        inserted = False
        for ci, c in enumerate(items):
            if c is None or c.mn == "s_nop": continue
            need = 0
            stack = [(p, 0) for p in preds[ci]]
            seen = {}
            while stack:
                pi, d = stack.pop()
                if pi in seen and seen[pi] <= d: continue
                seen[pi] = d
                p = items[pi]
                if p is None:
                    nd = d
                else:
                    r = required(p, c)
                    if r > d: need = max(need, r - d)
                    nd = d + p.nop
                if nd < MAXD:
                    for q in preds[pi]: stack.append((q, nd))
            if need:
                if verbose: print("nop", need, "before", c.text)
                lines = lines[:ci] + [f"s_nop {need - 1}"] + lines[ci:]
                total += need
                inserted = True
                break
        if not inserted: break
    return lines, total

def fix_hazards_fast(lines, verbose=False):
    total = 0
    for _ in range(50):
        items, labels = [], {}
        for ln in lines:
            s = ln.split(";")[0].strip()
            if not s or s.startswith("."): items.append(None)
            elif s.endswith(":"): labels[s[:-1]] = len(items); items.append(None)
            else: items.append(Ins(ln))
        n = len(items)
        preds = [[] for _ in range(n + 1)]
        for i, it in enumerate(items):
            if it is None: preds[i + 1].append(i)
            else:
                if it.target is not None:
                    if it.target in labels: preds[labels[it.target]].append(i)
                    if it.mn != "s_branch": preds[i + 1].append(i)
                elif it.mn != "s_endpgm": preds[i + 1].append(i)
        extra = [0] * (n + 1)
        any_ins = False
        for ci, c in enumerate(items):
            if c is None or c.mn == "s_nop": continue
            need = 0
            stack = [(p, 0) for p in preds[ci]]
            seen = {}
            while stack:
                pi, d = stack.pop()
                if pi in seen and seen[pi] <= d: continue
                seen[pi] = d
                p = items[pi]
                if p is None: nd = d
                else:
                    r = required(p, c)
                    if r > d: need = max(need, r - d)
                    nd = d + p.nop + extra[pi]
                if nd < MAXD:
                    for q in preds[pi]: stack.append((q, nd))
            if need:
                extra[ci] = need; any_ins = True; total += need
                if verbose: print("nop", need, "before", c.text)
        if not any_ins: return lines, total
        out = []
        for i, ln in enumerate(lines):
            if extra[i]: out.append(f"s_nop {extra[i] - 1}")
            out.append(ln)
        lines = out
    raise RuntimeError("hazard fixing did not converge")

class Cnt:
    def __init__(self, name, maxv): self.q = []; self.name = name; self.maxv = maxv
    def issue(self, tag): self.q.append(tag)
    def n_after(self, tags):
        if isinstance(tags, str): tags = [tags]
        last = -1
        for i, t in enumerate(self.q):
            if t in tags: last = i
        return len(self.q) - 1 - last if last >= 0 else None
    def wait(self, tags):
        n = self.n_after(tags)
        if n is None: return None
        n = min(n, self.maxv)
        self.q = self.q[len(self.q) - n:] if n else []
        return n

class K:
    def __init__(self, name):
        self.name = name; self.L = []
        self.vm = Cnt("vmcnt", 63); self.lg = Cnt("lgkmcnt", 15)
    def __call__(self, s):
        for ln in s.split("\n"):
            ln = ln.strip()
            if ln: self.L.append(ln)
    def vmem(self, s, tag): self(s); self.vm.issue(tag)
    def ds(self, s, tag): self(s); self.lg.issue(tag)
    def wait(self, vm=None, lg=None):
        parts = []
        if vm is not None:
            n = self.vm.wait(vm)
            if n is not None: parts.append(f"vmcnt({n})")
        if lg is not None:
            n = self.lg.wait(lg)
            if n is not None: parts.append(f"lgkmcnt({n})")
        if parts: self("s_waitcnt " + " ".join(parts))
    diag = False
    def stamp(self, i):
        if not K.diag: return
        op = "s_memtime" if K.diag == "c" else "s_memrealtime"
        self(f"{op} s[{84+2*i}:{85+2*i}]\ns_waitcnt lgkmcnt(0)"); self.lg.q = []
    def stamp_end(self, kidx, sWS, sW, last):
        if not K.diag: return
        self("s_waitcnt vmcnt(0)")
        self.stamp(last)
        if K.diag == "h":
            self(f"s_load_dwordx2 s[80:81], s[0:1], 72\ns_waitcnt lgkmcnt(0)\ns_sub_u32 s80, s80, {512*kidx}\ns_subb_u32 s81, s81, 0")
            self("s_mov_b64 exec, 1\nv_mov_b32 v0, 0")
            sel = {0: [0, 1, 2, 4, last], 1: [0, 1, 3, 4, last], 2: [0, 1, 2, 3, last]}[kidx]
            for n, i in enumerate(sel):
                if n == 0: self(f"s_not_b32 s82, s{84+2*i}\nv_mov_b32 v1, s82")
                else: self(f"v_mov_b32 v1, s{84+2*i}")
                self(f"global_atomic_umax v0, v1, s[80:81] offset:{(kidx*5+n)*4}")
            self("s_waitcnt vmcnt(0)")
            return
        self(f"s_lshl_b32 s82, s2, 3\ns_add_u32 s82, s82, s{sW}\ns_lshl_b32 s82, s82, 6\ns_add_u32 s82, s82, {(15<<20) + kidx*(128<<10)}")
        self("v_mov_b32 v0, s82")
        for i in range(16): self(f"v_mov_b32 v{2+i}, s{84+i}")
        self("s_mov_b64 exec, 1")
        for q in range(4): self(f"global_store_dwordx4 v0, v[{2+4*q}:{5+4*q}], s[{sWS}:{sWS+1}] offset:{16*q}")
        self("s_waitcnt vmcnt(0)")
    def srd(self, s, base, nbytes):
        self(f"s_mov_b32 s{s}, s{base}\ns_mov_b32 s{s+1}, s{base+1}\ns_mov_b32 s{s+2}, {nbytes}\ns_mov_b32 s{s+3}, 0x20000")

def vr(b, n=4, kind="v"):
    if b >= 256 and kind == "v": kind, b = "a", b - 256
    return f"{kind}{b}" if n == 1 else f"{kind}[{b}:{b+n-1}]"

def interleave(main, fill, per=None):
    out = []
    nm, nf = len(main), len(fill)
    j = 0
    for i, m in enumerate(main):
        out.append(m)
        tgt = (i + 1) * nf // nm if per is None else min(nf, (i + 1) * per)
        while j < tgt:
            out.append(fill[j]); j += 1
    out += fill[j:]
    return out

def descriptor(name, vgpr, sgpr=102, accum=None):
    if accum is None: accum = min(256, (vgpr + 3) // 4 * 4)
    return f""".p2align 6
.amdhsa_kernel {name}
  .amdhsa_next_free_vgpr {vgpr}
  .amdhsa_next_free_sgpr {sgpr}
  .amdhsa_accum_offset {accum}
  .amdhsa_group_segment_fixed_size 0
  .amdhsa_kernarg_size 88
  .amdhsa_user_sgpr_count 2
  .amdhsa_user_sgpr_kernarg_segment_ptr 1
  .amdhsa_system_sgpr_workgroup_id_x 1
.end_amdhsa_kernel"""
```

```python
import re

TRANS = ("v_exp_f32", "v_log_f32", "v_rcp_f32", "v_rsq_f32", "v_sqrt_f32", "v_sin_f32", "v_cos_f32", "v_rcp_iflag_f32")

def expand(op):
    op = op.strip()
    op = re.sub(r"^-", "", op)
    m = re.match(r"^abs\((.*)\)$", op)
    if m: op = m.group(1)
    op = op.strip("|")
    m = re.match(r"^([vas])\[(\d+):(\d+)\]$", op)
    if m: return {(m.group(1), i) for i in range(int(m.group(2)), int(m.group(3)) + 1)}
    m = re.match(r"^([vas])(\d+)$", op)
    if m: return {(m.group(1), int(m.group(2)))}
    if op == "vcc": return {("vcc", 0), ("vcc", 1)}
    if op == "vcc_lo": return {("vcc", 0)}
    if op == "vcc_hi": return {("vcc", 1)}
    if op == "exec": return {("exec", 0), ("exec", 1)}
    if op in ("exec_lo",): return {("exec", 0)}
    if op in ("exec_hi",): return {("exec", 1)}
    if op == "m0": return {("m0", 0)}
    return set()

class Ins:
    __slots__ = ("text", "mn", "ops", "cls", "w", "r", "ra", "rb", "rc", "passes", "dpp", "trans", "lds_dma",
                 "wide_store", "sdata", "nop", "target", "perm", "rl", "lanesel", "mask_r", "sr_const", "vmem_s")
    def __init__(self, text):
        self.text = text
        t = text.split(";")[0].strip()
        self.mn = t.split()[0] if t else ""
        rest = t[len(self.mn):].strip()
        ops, cur, depth = [], "", 0
        for ch in rest:
            if ch in "[(": depth += 1
            if ch in "])": depth -= 1
            if ch == "," and depth == 0:
                ops.append(cur.strip()); cur = ""
            else: cur += ch
        if cur.strip(): ops.append(cur.strip())
        mods = ""
        if ops:
            parts = ops[-1].split()
            ops[-1] = parts[0]; mods = " ".join(parts[1:])
        self.ops = ops
        mn = self.mn
        self.w = set(); self.r = set(); self.ra = set(); self.rb = set(); self.rc = set()
        self.passes = 0; self.dpp = False; self.trans = False; self.lds_dma = False
        self.wide_store = False; self.sdata = set(); self.nop = 1; self.target = None
        self.perm = False; self.rl = False; self.lanesel = set(); self.mask_r = set(); self.sr_const = set(); self.vmem_s = set()
        E = expand
        if mn.startswith("v_mfma"):
            self.cls = "mfma"
            self.w = E(ops[0]); self.ra = E(ops[1]); self.rb = E(ops[2]); self.rc = E(ops[3])
            self.r = self.ra | self.rb | self.rc
            self.passes = 8 if "32x32" in mn else 4
        elif mn.startswith("v_"):
            self.cls = "valu"
            base = re.sub(r"_(e32|e64|dpp|sdwa)$", "", mn)
            self.dpp = ("dpp" in mn) or ("row_" in mods) or ("quad_perm" in mods) or ("wave_" in mods)
            self.trans = base in TRANS
            if base in ("v_swap_b32", "v_permlane16_swap_b32", "v_permlane32_swap_b32"):
                self.w = E(ops[0]) | E(ops[1]); self.r = set(self.w); self.perm = "permlane" in base
            elif base.startswith("v_cmp"):
                self.w = E(ops[0]);
                for o in ops[1:]: self.r |= E(o)
                assert not base.startswith("v_cmpx"), "avoid v_cmpx"
            elif base in ("v_readfirstlane_b32", "v_readlane_b32"):
                self.w = E(ops[0]); self.r = E(ops[1]); self.rl = True
                if len(ops) > 2: self.lanesel = E(ops[2]); self.r |= self.lanesel
            elif base in ("v_add_co_u32", "v_sub_co_u32", "v_addc_co_u32", "v_subb_co_u32", "v_mad_u64_u32", "v_div_scale_f32"):
                self.w = E(ops[0]) | E(ops[1])
                for o in ops[2:]: self.r |= E(o)
            else:
                self.w = E(ops[0])
                for o in ops[1:]: self.r |= E(o)
                if base in ("v_fmac_f32", "v_dot2c_f32_bf16", "v_writelane_b32", "v_fmac_f16") or self.dpp:
                    self.r |= E(ops[0])
            self.sr_const = {x for x in self.r if x[0] in ("s", "vcc")} - self.lanesel
        elif mn.startswith("buffer_") or mn.startswith("global_") or mn.startswith("flat_"):
            self.cls = "vmem"
            allm = (mods + " " + " ".join(ops)).split()
            isload = "_load" in mn
            if mn in ("buffer_wbl2", "buffer_inv"):
                pass
            elif mn.startswith("buffer_"):
                if isload and "lds" in allm:
                    self.lds_dma = True
                    for o in ops: self.r |= E(o)
                    self.r |= {("m0", 0)}
                elif isload:
                    self.w = E(ops[0])
                    for o in ops[1:]: self.r |= E(o)
                else:
                    self.sdata = E(ops[0])
                    for o in ops: self.r |= E(o)
                    if "atomic" in mn and "sc0" in allm: self.w = E(ops[0])
            else:
                if isload:
                    self.w = E(ops[0])
                    for o in ops[1:]: self.r |= E(o)
                elif "atomic" in mn and "sc0" in allm:
                    self.w = E(ops[0])
                    for o in ops[1:]: self.r |= E(o)
                else:
                    self.sdata = E(ops[1])
                    for o in ops: self.r |= E(o)
            self.wide_store = ("store" in mn) and (mn.endswith("x3") or mn.endswith("x4"))
            self.vmem_s = {x for x in self.r if x[0] == "s"}
        elif mn.startswith("ds_"):
            self.cls = "ds"
            if mn.startswith("ds_read") or mn.startswith("ds_bpermute") or mn.startswith("ds_permute") or mn.startswith("ds_swizzle") or "_rtn" in mn:
                self.w = E(ops[0])
                for o in ops[1:]: self.r |= E(o)
            else:
                for o in ops: self.r |= E(o)
        elif mn.startswith("s_"):
            self.cls = "salu"
            if mn == "s_nop":
                self.nop = int(ops[0], 0) + 1
            elif mn.startswith("s_cbranch") or mn == "s_branch":
                self.target = ops[0]
            elif mn.startswith("s_cmp") or mn in ("s_waitcnt", "s_barrier", "s_endpgm", "s_setprio", "s_sleep"):
                for o in ops: self.r |= E(o)
            else:
                if ops: self.w = E(ops[0])
                for o in ops[1:]: self.r |= E(o)
                if "saveexec" in mn: self.w |= {("exec", 0), ("exec", 1)}
        else:
            raise ValueError("unknown instruction: " + text)

def required(p, c):
    need = 0
    pv = {x for x in p.w if x[0] in ("v", "a")}
    if p.cls == "valu":
        if c.cls == "mfma" and (pv & c.r): need = max(need, 2)
        if c.cls == "valu":
            if p.trans and not c.trans and (pv & c.r): need = max(need, 1)
            if p.trans and c.trans and (pv & c.r): need = max(need, 1)
            if c.dpp and (pv & c.r): need = max(need, 2)
            if c.perm and (pv & c.r): need = max(need, 2)
            if c.rl and (pv & c.r): need = max(need, 1)
            ps = {x for x in p.w if x[0] in ("s", "vcc")}
            if ps & c.sr_const: need = max(need, 2)
            if ps & c.lanesel: need = max(need, 4)
        if c.cls == "vmem":
            ps = {x for x in p.w if x[0] == "s"}
            if ps & c.vmem_s: need = max(need, 5)
        if c.cls == "salu":
            ps = {x for x in p.w if x[0] in ("s", "vcc")}
            if ps & c.r: need = max(need, 1)
    if p.cls == "mfma":
        t = {4: (6, 8, 8, 3), 8: (10, 12, 12, 7)}[p.passes]
        if c.cls == "mfma":
            if p.w & c.rc:
                if not (p.w == c.rc and p.passes == c.passes): need = max(need, t[0])
            if p.w & (c.ra | c.rb): need = max(need, t[1])
            if (p.w & c.w) and not (p.w == c.rc): need = max(need, t[1])
        elif c.cls in ("valu", "vmem", "ds"):
            if p.w & (c.r | c.w): need = max(need, t[2])
            if c.cls == "valu" and (p.rc & c.w): need = max(need, t[3])
            if c.cls in ("vmem", "ds") and (p.rc & c.w): need = max(need, t[3])
    if p.cls == "salu":
        if ("m0", 0) in p.w and c.lds_dma: need = max(need, 1)
        if (("exec", 0) in p.w or ("exec", 1) in p.w) and c.cls == "valu" and c.dpp: need = max(need, 1)
    if p.cls == "vmem" and p.wide_store:
        if c.cls == "valu" and (p.sdata & c.w): need = max(need, 2)
        elif c.cls in ("vmem", "ds", "mfma") and (p.sdata & c.w): need = max(need, 1)
    return need

MAXD = 12
def fix_hazards(lines, verbose=False):
    total = 0
    while True:
        items = []
        labels = {}
        for ln in lines:
            s = ln.split(";")[0].strip()
            if not s or s.startswith("."):
                items.append(None)
            elif s.endswith(":"):
                labels[s[:-1]] = len(items); items.append(None)
            else:
                items.append(Ins(ln))
        n = len(items)
        preds = [[] for _ in range(n + 1)]
        for i, it in enumerate(items):
            if it is None:
                preds[i + 1].append(i)
            else:
                if it.target is not None:
                    if it.target in labels: preds[labels[it.target]].append(i)
                    if it.mn != "s_branch": preds[i + 1].append(i)
                elif it.mn != "s_endpgm":
                    preds[i + 1].append(i)
        inserted = False
        for ci, c in enumerate(items):
            if c is None or c.mn == "s_nop": continue
            need = 0
            stack = [(p, 0) for p in preds[ci]]
            seen = {}
            while stack:
                pi, d = stack.pop()
                if pi in seen and seen[pi] <= d: continue
                seen[pi] = d
                p = items[pi]
                if p is None:
                    nd = d
                else:
                    r = required(p, c)
                    if r > d: need = max(need, r - d)
                    nd = d + p.nop
                if nd < MAXD:
                    for q in preds[pi]: stack.append((q, nd))
            if need:
                if verbose: print("nop", need, "before", c.text)
                lines = lines[:ci] + [f"s_nop {need - 1}"] + lines[ci:]
                total += need
                inserted = True
                break
        if not inserted: break
    return lines, total

def fix_hazards_fast(lines, verbose=False):
    total = 0
    for _ in range(50):
        items, labels = [], {}
        for ln in lines:
            s = ln.split(";")[0].strip()
            if not s or s.startswith("."): items.append(None)
            elif s.endswith(":"): labels[s[:-1]] = len(items); items.append(None)
            else: items.append(Ins(ln))
        n = len(items)
        preds = [[] for _ in range(n + 1)]
        for i, it in enumerate(items):
            if it is None: preds[i + 1].append(i)
            else:
                if it.target is not None:
                    if it.target in labels: preds[labels[it.target]].append(i)
                    if it.mn != "s_branch": preds[i + 1].append(i)
                elif it.mn != "s_endpgm": preds[i + 1].append(i)
        extra = [0] * (n + 1)
        any_ins = False
        for ci, c in enumerate(items):
            if c is None or c.mn == "s_nop": continue
            need = 0
            stack = [(p, 0) for p in preds[ci]]
            seen = {}
            while stack:
                pi, d = stack.pop()
                if pi in seen and seen[pi] <= d: continue
                seen[pi] = d
                p = items[pi]
                if p is None: nd = d
                else:
                    r = required(p, c)
                    if r > d: need = max(need, r - d)
                    nd = d + p.nop + extra[pi]
                if nd < MAXD:
                    for q in preds[pi]: stack.append((q, nd))
            if need:
                extra[ci] = need; any_ins = True; total += need
                if verbose: print("nop", need, "before", c.text)
        if not any_ins: return lines, total
        out = []
        for i, ln in enumerate(lines):
            if extra[i]: out.append(f"s_nop {extra[i] - 1}")
            out.append(ln)
        lines = out
    raise RuntimeError("hazard fixing did not converge")

class Cnt:
    def __init__(self, name, maxv): self.q = []; self.name = name; self.maxv = maxv
    def issue(self, tag): self.q.append(tag)
    def n_after(self, tags):
        if isinstance(tags, str): tags = [tags]
        last = -1
        for i, t in enumerate(self.q):
            if t in tags: last = i
        return len(self.q) - 1 - last if last >= 0 else None
    def wait(self, tags):
        n = self.n_after(tags)
        if n is None: return None
        n = min(n, self.maxv)
        self.q = self.q[len(self.q) - n:] if n else []
        return n

class K:
    def __init__(self, name):
        self.name = name; self.L = []
        self.vm = Cnt("vmcnt", 63); self.lg = Cnt("lgkmcnt", 15)
    def __call__(self, s):
        for ln in s.split("\n"):
            ln = ln.strip()
            if ln: self.L.append(ln)
    def vmem(self, s, tag): self(s); self.vm.issue(tag)
    def ds(self, s, tag): self(s); self.lg.issue(tag)
    def wait(self, vm=None, lg=None):
        parts = []
        if vm is not None:
            n = self.vm.wait(vm)
            if n is not None: parts.append(f"vmcnt({n})")
        if lg is not None:
            n = self.lg.wait(lg)
            if n is not None: parts.append(f"lgkmcnt({n})")
        if parts: self("s_waitcnt " + " ".join(parts))
    diag = False
    def stamp(self, i):
        if not K.diag: return
        op = "s_memtime" if K.diag == "c" else "s_memrealtime"
        self(f"{op} s[{84+2*i}:{85+2*i}]\ns_waitcnt lgkmcnt(0)"); self.lg.q = []
    def stamp_end(self, kidx, sWS, sW, last):
        if not K.diag: return
        self("s_waitcnt vmcnt(0)")
        self.stamp(last)
        if K.diag == "h":
            K.uid = getattr(K, "uid", 0) + 1
            self(f"s_and_b32 s82, s2, 0xe7\ns_cmp_lg_u32 s82, {0}\ns_cbranch_scc1 L_skip{K.uid}\ns_cmp_lg_u32 s{sW}, 0\ns_cbranch_scc1 L_skip{K.uid}")
            self(f"s_load_dwordx2 s[80:81], s[0:1], 72\ns_waitcnt lgkmcnt(0)\ns_add_u32 s80, s80, {512*(K.dbgslot-kidx)}\ns_addc_u32 s81, s81, {0 if K.dbgslot >= kidx else -1}")
            self("s_mov_b64 exec, 1\nv_mov_b32 v0, 0")
            sel = {0: [0, 1, 2, 4, last], 1: [0, 1, 3, 4, last], 2: [0, 1, 2, 3, last]}[kidx]
            for n, i in enumerate(sel):
                if n == 0: self(f"s_not_b32 s82, s{84+2*i}\nv_mov_b32 v1, s82")
                else: self(f"v_mov_b32 v1, s{84+2*i}")
                self(f"global_atomic_umax v0, v1, s[80:81] offset:{(kidx*5+n)*4}")
            self(f"s_waitcnt vmcnt(0)\nL_skip{K.uid}:")
            return
        self(f"s_lshl_b32 s82, s2, 3\ns_add_u32 s82, s82, s{sW}\ns_lshl_b32 s82, s82, 6\ns_add_u32 s82, s82, {(15<<20) + kidx*(128<<10)}")
        self("v_mov_b32 v0, s82")
        for i in range(16): self(f"v_mov_b32 v{2+i}, s{84+i}")
        self("s_mov_b64 exec, 1")
        for q in range(4): self(f"global_store_dwordx4 v0, v[{2+4*q}:{5+4*q}], s[{sWS}:{sWS+1}] offset:{16*q}")
        self("s_waitcnt vmcnt(0)")
    def srd(self, s, base, nbytes):
        self(f"s_mov_b32 s{s}, s{base}\ns_mov_b32 s{s+1}, s{base+1}\ns_mov_b32 s{s+2}, {nbytes}\ns_mov_b32 s{s+3}, 0x20000")

def vr(b, n=4, kind="v"):
    if b >= 256 and kind == "v": kind, b = "a", b - 256
    return f"{kind}{b}" if n == 1 else f"{kind}[{b}:{b+n-1}]"

def interleave(main, fill, per=None):
    out = []
    nm, nf = len(main), len(fill)
    j = 0
    for i, m in enumerate(main):
        out.append(m)
        tgt = (i + 1) * nf // nm if per is None else min(nf, (i + 1) * per)
        while j < tgt:
            out.append(fill[j]); j += 1
    out += fill[j:]
    return out

def descriptor(name, vgpr, sgpr=102, accum=None):
    if accum is None: accum = min(256, (vgpr + 3) // 4 * 4)
    return f""".p2align 6
.amdhsa_kernel {name}
  .amdhsa_next_free_vgpr {vgpr}
  .amdhsa_next_free_sgpr {sgpr}
  .amdhsa_accum_offset {accum}
  .amdhsa_group_segment_fixed_size 0
  .amdhsa_kernarg_size 88
  .amdhsa_user_sgpr_count 2
  .amdhsa_user_sgpr_kernarg_segment_ptr 1
  .amdhsa_system_sgpr_workgroup_id_x 1
.end_amdhsa_kernel"""
```

```python
from asmlib import *
from layout import *
import struct
def f2h(x): return hex(struct.unpack("<I", struct.pack("<f", x))[0])
OPT = {}
XW = 18432
STG = XW + 7*4096
LDS1 = 3*STG
TA, TB, TC, PS, OX, NT = 0, 1024, 2048, 4096, 8192, 6144
LOG2E = 1.4426950408889634
GC1 = -2*0.7978845608028654*LOG2E
GC2 = GC1*0.044715
sXr, sWr, sOr, sPr, sXs = sR0, sR1, sR2, sR3, sR4
sRB, sCQ, sSUB, sH, sE = 76, 77, 78, 79, 80
sXo = [81, 82]; sWo = [83, 26]; sHo, sXl, sWl = 27, 3, 10
sSt, sDelta, sI, sA, sB, sSTG = 100, 101, 11, 74, 75, 73
vXe, vXo, vWd, vH = 4, 5, 6, 7
vL16, vNon, vZero = 20, 21, 22
ONES = 24
ACC = 32
T = 144
FR = 256
XA = 256 + 112

def bf16_round(k, dst, src):
    k(f"v_cvt_pk_bf16_f32 v{dst}, v{src}, v{src}\nv_and_b32 v{dst}, 0xffff0000, v{dst}")
def P(r): return f"v[{r}:{r+1}]"
def pk(op, d, srcs):
    ops, lo, hi = [], [], []
    for r, bc in srcs:
        if isinstance(r, str): ops.append(r); lo.append(0); hi.append(0)
        elif bc: ops.append(P(r & ~1)); lo.append(r & 1); hi.append(r & 1)
        else: ops.append(P(r)); lo.append(0); hi.append(1)
    m = ""
    if any(lo): m += " op_sel:[" + ",".join(map(str, lo)) + "]"
    if not all(hi): m += " op_sel_hi:[" + ",".join(map(str, hi)) + "]"
    return f"v_pk_{op}_f32 {P(d)}, " + ", ".join(ops) + m

def prologue(k, name):
    k(f"""
    s_cmp_ge_u32 s2, 256
    s_cbranch_scc1 L_{name}_end
    s_load_dwordx16 s[4:19], s[0:1], 0
    s_load_dwordx4 s[20:23], s[0:1], {KA_OUT}
    s_load_dwordx2 s[24:25], s[0:1], {KA_WS}
    v_lshrrev_b32 v1, 6, v0
    v_and_b32 v0, 63, v0
    v_readfirstlane_b32 s{sW}, v1
    v_lshrrev_b32 v1, 4, v0                 ; g
    v_and_b32 v2, 15, v0                    ; i
    v_lshlrev_b32 v{vL16}, 4, v0
    """)

def gen_p1(k, name, after, st_pol="sc1", ld_pol="", pf_pol="", pf=True):
    k(f"""
    s_and_b32 s{sT}, s2, 7
    s_lshr_b32 s{sT+1}, s2, 3
    s_lshr_b32 s{sRB}, s{sT}, 2
    s_lshl_b32 s{sRB}, s{sRB}, 3
    s_lshr_b32 s{sT+2}, s{sT+1}, 2
    s_add_u32 s{sRB}, s{sRB}, s{sT+2}
    s_and_b32 s{sCQ}, s{sT}, 3
    s_and_b32 s{sSUB}, s{sT+1}, 3
    v_and_b32 v3, 7, v0
    v_xor_b32 v{T}, v3, v1
    v_lshlrev_b32 v{T}, 4, v{T}
    v_lshrrev_b32 v{T+1}, 3, v0
    v_lshl_add_u32 v{vXe}, v{T+1}, 10, v{T}
    v_xor_b32 v{vXo}, 64, v{vXe}
    v_add_u32 v{vXo}, 8192, v{vXo}
    v_lshrrev_b32 v{T}, 5, v0
    v_lshlrev_b32 v{T}, 1, v{T}
    v_and_b32 v{T+2}, 3, v0
    v_xor_b32 v{T}, v{T}, v{T+2}
    v_lshlrev_b32 v{T}, 4, v{T}
    v_lshrrev_b32 v{T+2}, 2, v0             ; l>>2
    s_lshl_b32 s{sXo[0]}, s{sRB}, 2
    s_add_u32 s{sXo[0]}, s{sXo[0]}, s{sW}
    s_lshl_b32 s{sXo[0]}, s{sXo[0]}, 15     ; (128rb+32w)*1024
    s_add_u32 s{sXo[1]}, s{sXo[0]}, 16384
    s_lshl_b32 s{sXl}, s{sW}, 12
    s_mov_b32 s{sSt}, 0
    s_mov_b32 s{sSTG}, {STG}
    s_cmp_ge_u32 s{sSUB}, 2
    s_cbranch_scc1 L_{name}_B
    v_mul_u32_u24 v{T+2}, 3072, v{T+2}
    v_add_u32 v{vWd}, v{T+2}, v{T}
    s_lshl_b32 s{sT+6}, s{sCQ}, 1
    s_add_u32 s{sSUB}, s{sSUB}, s{sT+6}
    s_mul_i32 s{sWo[0]}, s{sW}, {16*3072}
    s_lshl_b32 s{sT+6}, s{sSUB}, 7
    s_add_u32 s{sWo[0]}, s{sWo[0]}, s{sT+6}
    s_lshl_b32 s{sT+6}, s{sW}, 1
    v_add_u32 v{T}, s{sT+6}, v1
    v_xor_b32 v{T}, v{T}, v3
    v_lshlrev_b32 v{T}, 4, v{T}
    v_lshl_add_u32 v{vH}, v{T+1}, 10, v{T}
    s_lshl_b32 s{sHo}, s{sRB}, 7
    s_sub_u32 s{sHo}, s{sHo}, 16
    s_max_i32 s{sHo}, s{sHo}, 0
    s_lshl_b32 s{sT+6}, s{sW}, 2
    s_add_u32 s{sHo}, s{sHo}, s{sT+6}
    s_lshl_b32 s{sHo}, s{sHo}, 10
    s_waitcnt lgkmcnt(0)
    """)
    k.srd(sXr, sX, 2048*1024); k.srd(sWr, sWQ, 512*3072)
    variant(k, name, "A", after, st_pol, ld_pol, pf_pol, pf)
    k(f"""
    L_{name}_B:
    v_mul_u32_u24 v{T+2}, 3584, v{T+2}
    v_add_u32 v{vWd}, v{T+2}, v{T}
    s_mul_i32 s{sT+5}, s{sW}, {16*3584}
    s_mul_i32 s{sT+6}, s{sCQ}, 448
    s_add_u32 s{sT+5}, s{sT+5}, s{sT+6}
    s_add_u32 s{sT+6}, s{sT+5}, 1792
    s_and_b32 s{sH}, s{sW}, 1
    s_lshr_b32 s{sE}, s{sW}, 1
    s_cmp_eq_u32 s{sSUB}, 2
    s_cselect_b32 s{sT+7}, s{sT+6}, s{sT+5}
    s_cselect_b32 s{sT+8}, s{sT+5}, s{sT+6}
    s_waitcnt lgkmcnt(0)
    s_mov_b32 s{sWo[0]}, s{sT+7}
    s_mov_b32 s{sWo[1]}, s{sT+8}
    """)
    k.srd(sXr, sX, 2048*1024); k.srd(sWr, sWIN, 512*3584)
    k(f"s_cmp_eq_u32 s{sSUB}, 3\ns_cbranch_scc1 L_{name}_B34")
    variant(k, name, "B43", after, st_pol, ld_pol, pf_pol, pf)
    k(f"L_{name}_B34:")
    variant(k, name, "B34", after, st_pol, ld_pol, pf_pol, pf)

def variant(k, name, V, after, st_pol, ld_pol, pf_pol, pf):
    isA = V == "A"
    pitch = 3072 if isA else 3584
    ndma = 11
    lab = f"L_{name}_{V}"
    k(f"s_lshl_b32 s{sWl}, s{sW}, 10")
    k.stamp(0)
    def dma():
        G = []
        pre = [f"s_add_u32 s{sA}, s{sSt}, s{sXl}", f"s_add_u32 s{sB}, s{sSt}, s{sWl}"]
        for m in range(4):
            g = [f"s_add_u32 m0, s{sA}, {2048 + m*1024}", f"buffer_load_dwordx4 v{vXo if m & 1 else vXe}, s[{sXr}:{sXr+3}], s{sXo[m>>1]} offen {ld_pol} lds"]
            if m & 1: g.append(f"s_add_u32 s{sXo[m>>1]}, s{sXo[m>>1]}, 128")
            G.append(g)
        W = []
        for q in range(6 if isA else 7):
            imm = 64*(q & 1) + 1024*(q >> 1) if isA else 64*q
            so = sWo[0] if (isA or q < 4) else sWo[1]
            g = [f"s_add_u32 m0, s{sB}, {XW + q*4096 - imm}", f"buffer_load_dwordx4 v{vWd}, s[{sWr}:{sWr+3}], s{so} offen offset:{imm} {ld_pol} lds"]
            if q == (5 if isA else 3): g.append(f"s_add_u32 s{sWo[0]}, s{sWo[0]}, {64*pitch}")
            if q == 6: g.append(f"s_add_u32 s{sWo[1]}, s{sWo[1]}, {64*pitch}")
            W.append(g)
        if isA:
            W.append([f"s_lshr_b32 s{sT}, s{sWl}, 1", f"s_add_u32 m0, s{sSt}, s{sT}", "s_mov_b64 exec, 0xffffffff",
                      f"buffer_load_dwordx4 v{vH}, s[{sXr}:{sXr+3}], s{sHo} offen {ld_pol} lds", "s_mov_b64 exec, -1", f"s_add_u32 s{sHo}, s{sHo}, 128"])
        G = interleave(W, G)
        G[0] = pre + G[0]
        return G
    def dma_now():
        for g in dma():
            for l in g: k(l)
    dma_now(); k(f"s_add_u32 s{sSt}, s{sSt}, {STG}")
    if isA:
        k(f"""
        s_or_b32 s{sT}, s2, s{sW}
        s_cmp_lg_u32 s{sT}, 0
        s_cbranch_scc1 {lab}_nn
        s_memrealtime s[{sT}:{sT+1}]
        v_mov_b32 v{T}, 0
        s_waitcnt lgkmcnt(0)
        s_or_b32 s{sT}, s{sT}, 1
        v_mov_b32 v{T+1}, s{sT}
        s_mov_b64 exec, 1
        global_store_dword v{T}, v{T+1}, s[{sDBG}:{sDBG+1}] sc1
        s_mov_b64 exec, -1
        {lab}_nn:
        """)
    k(f"""
    v_lshrrev_b32 v{T}, 1, v2
    v_xor_b32 v{T}, v{T}, v1
    v_lshlrev_b32 v{T}, 4, v{T}
    v_lshl_add_u32 v{T}, v2, 7, v{T}        ; i*128 + (g^(i>>1))*16
    v_and_b32 v{T+2}, 1, v1
    v_lshlrev_b32 v{T+2}, 1, v{T+2}
    v_bfe_u32 v{T+1}, v0, 1, 1
    v_xor_b32 v{T+2}, v{T+2}, v{T+1}
    v_lshlrev_b32 v{T+2}, 4, v{T+2}
    v_bfe_u32 v{T+1}, v0, 2, 2
    v_lshl_add_u32 v{T+1}, v1, 3, v{T+1}
    v_lshl_add_u32 v{T+2}, v{T+1}, 6, v{T+2}
    v_and_b32 v{T+1}, 1, v0
    v_lshl_add_u32 v{T+2}, v{T+1}, 3, v{T+2}
    v_mov_b32 v{vZero}, 0
    """)
    if isA:
        vX = [[8], [11]]; vS = [9, 12]; vW = [[10], [13]]
        k(f"""
        v_mov_b32 v{vX[0][0]}, v{T}
        v_xor_b32 v{vX[1][0]}, 64, v{T}
        v_add_u32 v{vS[0]}, s{sXl}, v{vX[0][0]}
        v_add_u32 v{vS[1]}, s{sXl}, v{vX[1][0]}
        s_and_b32 s{sT}, s{sW}, 1
        s_lshl_b32 s{sT}, s{sT}, 5
        v_xor_b32 v{T+2}, s{sT}, v{T+2}
        s_lshr_b32 s{sT}, s{sW}, 1
        s_lshl_b32 s{sT}, s{sT}, 12
        s_add_u32 s{sT}, s{sT}, {XW}
        v_add_u32 v{vW[0][0]}, s{sT}, v{T+2}
        v_add_u32 v{vW[1][0]}, 2048, v{vW[0][0]}
        """)
        bases = [[8, 9, 10], [11, 12, 13]]
        nX, nW = 9, 3
        xaddr = lambda sg, a: (vX[sg][0], a*2048)
        waddr = lambda sg, j, j2: (vW[sg][0], j*8192 + j2*256)
    else:
        vX = [[8, 9], [14, 15]]; vW = [[10, 11, 12, 13], [16, 17, 18, 19]]
        k(f"""
        s_lshl_b32 s{sT}, s{sH}, 6
        v_xor_b32 v{T}, s{sT}, v{T}
        s_lshl_b32 s{sT}, s{sH}, 13
        s_add_u32 s{sT}, s{sT}, 2048
        s_lshl_b32 s{sT+1}, s{sE}, 12
        s_add_u32 s{sT+2}, s{sT}, s{sT+1}
        v_add_u32 v{vX[0][0]}, s{sT+2}, v{T}
        s_sub_u32 s{sT+2}, s{sT}, s{sT+1}
        v_add_u32 v{vX[0][1]}, s{sT+2}, v{T}
        v_xor_b32 v{vX[1][0]}, 64, v{vX[0][0]}
        v_xor_b32 v{vX[1][1]}, 64, v{vX[0][1]}
        s_lshl_b32 s{sT}, s{sH}, 11
        s_add_u32 s{sT}, s{sT}, {XW}
        s_lshl_b32 s{sT+2}, s{sE}, 13
        s_add_u32 s{sT+3}, s{sT}, s{sT+2}
        v_add_u32 v{vW[0][0]}, s{sT+3}, v{T+2}
        v_xor_b32 v{vW[0][1]}, 32, v{vW[0][0]}
        s_lshl_b32 s{sT+4}, s{sE}, 5
        v_xor_b32 v{T+1}, s{sT+4}, v{T+2}
        s_add_u32 s{sT+5}, s{sT}, s{sT+1}
        v_add_u32 v{vW[0][2]}, s{sT+5}, v{T+1}
        v_xor_b32 v{T+1}, 32, v{T+1}
        v_add_u32 v{vW[0][3]}, s{sT+3}, v{T+1}
        s_lshl_b32 s{sT}, s{sH}, 12
        s_sub_u32 s{sT}, 2048, s{sT}
        """)
        for n in range(4): k(f"v_add_u32 v{vW[1][n]}, s{sT}, v{vW[0][n]}")
        bases = [[8, 9, 10, 11, 12, 13], [14, 15, 16, 17, 18, 19]]
        nX, nW = 4, 7
        xaddr = lambda sg, a: (vX[sg][a >> 1], a*2048)
        def waddr(sg, j, j2):
            if j < 4: return vW[sg][j & 1], (j >> 1)*4096 + j2*256
            return vW[sg][2 + (j & 1)], 4*4096 + ((j - 4) >> 1)*4096 + j2*256
    dma_now(); k(f"s_add_u32 s{sSt}, s{sSt}, {STG}")
    fX = lambda sg, a: FR + sg*56 + a*4
    fW = lambda sg, j: FR + sg*56 + nX*4 + j*4
    fS = (lambda sg, a: FR + sg*56 + 48 + a*4) if isA else fX
    tG = lambda a: XA + a*8
    tS = lambda a: XA + a*8 + 4
    if isA:
        tQ = lambda a: ACC + (a-1)*4; tK = lambda a: ACC + 32 + a*4; tV = lambda a: ACC + 68 + a*4
        tC = lambda j: XA + 24 + j*4
        nacc, nxa = 104, 36
    else:
        tZ = lambda a, j: ACC + (j*4 + a)*4
        tC = lambda j: XA + 16 + j*4
        nacc, nxa = 112, 44
        isz2 = (lambda j: j < 4) if V == "B43" else (lambda j: j >= 4)
    for r in range(4): k(f"v_mov_b32 v{ONES+r}, 0x3f803f80")
    for r in range(nacc): k(f"v_mov_b32 v{ACC+r}, 0")
    for r in range(nxa): k(f"v_accvgpr_write_b32 {vr(XA+r, 1)}, 0")
    dma_now(); k(f"s_mov_b32 s{sSt}, 0")
    def reads(sg):
        X = [f"ds_read_b128 {vr(fX(sg, a))}, v{xaddr(sg, a)[0]} offset:{xaddr(sg, a)[1]}" for a in range(nX)]
        Wl = [f"ds_read_b64_tr_b16 {vr(fW(sg, j) + 2*j2, 2)}, v{waddr(sg, j, j2)[0]} offset:{waddr(sg, j, j2)[1]}" for j in range(nW) for j2 in range(2)]
        if isA:
            if OPT.get("noread"): return []
            return Wl + X + [f"ds_read_b128 {vr(fS(sg, a))}, v{vS[sg]} offset:{2048 + a*2048}" for a in range(2)]
        if OPT.get("noread"): return []
        return X + Wl
    def mf(d, a, b): return f"v_mfma_f32_16x16x32_bf16 {vr(d)}, {vr(a)}, {vr(b)}, {vr(d)}"
    def mfmas(sg):
        L = []
        if isA:
            for a in range(9):
                if a: L.append(mf(tQ(a), fW(sg, 0), fX(sg, a)))
                L.append(mf(tK(a), fW(sg, 1), fX(sg, a)))
                L.append(mf(tV(a), fX(sg, a), fW(sg, 2)))
            L += [mf(tG(2), fX(sg, 0), fX(sg, 0)), mf(tS(2), ONES, fX(sg, 0))]
        else:
            for j in range(7):
                for a in range(4):
                    L.append(mf(tZ(a, j), fX(sg, a), fW(sg, j)) if isz2(j) else mf(tZ(a, j), fW(sg, j), fX(sg, a)))
        for a in range(2): L += [mf(tG(a), fS(sg, a), fS(sg, a)), mf(tS(a), ONES, fS(sg, a))]
        if sg == 0 or isA:
            for j in range(nW): L.append(mf(tC(j), ONES, fW(sg, j)))
        if OPT.get("noextra"): return L[:26 if isA else 28]
        return L
    adv = lambda sg: [f"v_add_u32 v{r}, s{sDelta}, v{r}" for r in bases[sg]]
    k(f"s_mov_b32 s{sI}, 0\ns_waitcnt vmcnt({2*ndma})\ns_barrier")
    k.stamp(1)
    for l in reads(0): k(l)
    k("s_waitcnt lgkmcnt(0)")
    k(f".p2align 6\n{lab}_loop:")
    for l in interleave(mfmas(0), reads(1) + [f"s_cmp_eq_u32 s{sSt}, {2*STG}\ns_cselect_b32 s{sDelta}, {-2*STG}, s{sSTG}"] + adv(0), per=1): k(l)
    npf = 3 if pf else 1
    k(f"s_cmp_ge_u32 s{sI}, 5\ns_cbranch_scc1 {lab}_nodma")
    k(f"s_waitcnt vmcnt({ndma}) lgkmcnt(0)\ns_barrier")
    def half2(with_dma):
        M = mfmas(1)
        slots = [[] for _ in range(len(M) + 1)]
        R = reads(0)
        for n, l in enumerate(R): slots[n + 1].append(l)
        for n, l in enumerate(adv(1)): slots[len(R) + 1 + n].append(l)
        if with_dma and not OPT.get("nodma"):
            G = dma()
            for n, g in enumerate(G):
                pos = 1 + n*(len(M) - 2)//len(G)
                cut = max(i for i, l in enumerate(g) if " m0," in l) + 1
                slots[pos] += g[:cut]; slots[pos + 1] = g[cut:] + slots[pos + 1]
        for i, m in enumerate(M):
            for l in slots[i]: k(l)
            k(m)
        for l in slots[len(M)]: k(l)
        k(f"""
        s_add_u32 s{sSt}, s{sSt}, s{sDelta}
        s_add_u32 s{sI}, s{sI}, 1
        s_cmp_lt_u32 s{sI}, 8
        s_waitcnt lgkmcnt(0)
        s_cbranch_scc1 {lab}_loop
        """)
    half2(True)
    k(f"{lab}_nodma:\ns_cmp_eq_u32 s{sI}, 5\ns_cbranch_scc1 {lab}_five\ns_waitcnt vmcnt({npf}) lgkmcnt(0)\ns_barrier\ns_branch {lab}_cont")
    k(f"{lab}_five:\ns_waitcnt vmcnt({ndma}) lgkmcnt(0)\ns_barrier")
    k.srd(sPr, sWSP, 2048*4096)
    k(f"""
    s_and_b32 s{sT}, s2, 7
    s_lshr_b32 s{sT}, s{sT}, 1
    s_lshl_b32 s{sT}, s{sT}, 21
    s_lshr_b32 s{sT+1}, s2, 3
    s_lshl_b32 s{sT+1}, s{sT+1}, 2
    s_add_u32 s{sT+1}, s{sT+1}, s{sW}
    s_lshl_b32 s{sT+2}, s{sT+1}, 14
    s_add_u32 s{sT}, s{sT}, s{sT+2}
    s_add_u32 s{sT+1}, s{sT}, 8192
    v_lshlrev_b32 v23, 7, v0
    s_mov_b32 s{sT+3}, 0x7fffffff
    global_load_dword v{vNon}, v{vZero}, s[{sDBG}:{sDBG+1}] sc1
    """)
    for n in range(1, npf): k(f"buffer_load_dword v28, v23, s[{sPr}:{sPr+3}], s{sT+n-1} offen {pf_pol}")
    k(f"{lab}_cont:")
    half2(False)
    k.stamp(2)
    cI, cE = T, T+1
    X = T + 16
    k(f"""
    s_barrier
    v_mov_b32 v{cI}, {f2h(1/512)}
    v_mov_b32 v{cE}, {f2h(1e-5)}
    v_and_b32 v{T+2}, 1, v0
    v_cmp_eq_u32 s[{sM}:{sM+1}], 1, v{T+2}
    v_and_b32 v{T+2}, 2, v0
    v_cmp_eq_u32 s[{sM+2}:{sM+3}], 2, v{T+2}
    v_lshrrev_b32 v{T+2}, 2, v2
    v_cmp_eq_u32 s[{sM+4}:{sM+5}], v1, v{T+2}
    v_lshlrev_b32 v{T+3}, 2, v2
    """)
    ns = 3 if isA else 2
    for a in range(ns):
        for r in range(4): k(f"v_accvgpr_read_b32 v{X+a*8+r}, {vr(tG(a)+r, 1)}")
        k(f"v_accvgpr_read_b32 v{X+a*8+4}, {vr(tS(a), 1)}")
    A_ = range(ns)
    for a in A_: k(f"v_cndmask_b32 v{X+a*8}, v{X+a*8}, v{X+a*8+1}, s[{sM}:{sM+1}]\nv_cndmask_b32 v{X+a*8+2}, v{X+a*8+2}, v{X+a*8+3}, s[{sM}:{sM+1}]")
    for a in A_: k(f"v_mul_f32 v{X+a*8+4}, v{X+a*8+4}, v{cI}\nv_cndmask_b32 v{X+a*8}, v{X+a*8}, v{X+a*8+2}, s[{sM+2}:{sM+3}]")
    for a in A_: k(f"v_mul_f32 v{X+a*8}, v{X+a*8}, v{cI}")
    for a in A_: k(f"v_fma_f32 v{X+a*8}, -v{X+a*8+4}, v{X+a*8+4}, v{X+a*8}")
    for a in A_: k(f"v_max_f32 v{X+a*8}, 0, v{X+a*8}")
    for a in A_: bf16_round(k, X+a*8, X+a*8)
    for a in A_: k(f"v_add_f32 v{X+a*8}, v{X+a*8}, v{cE}")
    for a in A_: bf16_round(k, X+a*8, X+a*8)
    for a in A_: k(f"v_sqrt_f32 v{X+a*8}, v{X+a*8}")
    for a in A_: bf16_round(k, X+a*8+4, X+a*8+4)
    for a in A_: bf16_round(k, X+a*8, X+a*8)
    for a in A_: k(f"v_rcp_f32 v{X+a*8}, v{X+a*8}")
    if isA: k(f"s_lshl_b32 s{sT}, s{sW}, 7\ns_add_u32 s{sT}, s{sT}, 64\ns_mul_i32 s{sT+1}, s{sW}, 192\ns_mov_b32 s{sT+2}, s{sT+1}")
    else:
        k(f"""
        s_lshl_b32 s{sT}, s{sH}, 8
        s_lshl_b32 s{sT+3}, s{sE}, 7
        s_add_u32 s{sT}, s{sT}, s{sT+3}
        s_add_u32 s{sT}, s{sT}, 64
        s_lshl_b32 s{sT+1}, s{sE}, 8
        s_mul_i32 s{sT+4}, s{sE}, 192
        s_lshl_b32 s{sT+5}, s{sH}, 10
        s_add_u32 s{sT+2}, s{sT+1}, s{sT+5}
        s_add_u32 s{sT+5}, s{sT+4}, s{sT+5}
        """)
    k(f"v_add_u32 v{T+4}, s{sT}, v{T+3}\nv_add_u32 v{T+5}, s{sT+2}, v{T+3}")
    if not isA: k(f"v_add_u32 v{T+6}, s{sT+5}, v{T+3}")
    for a in A_: k(f"v_mul_f32 v{X+a*8+4}, -v{X+a*8+4}, v{X+a*8}")
    for j in range(nW):
        k(f"ds_write_b32 v{T+5 if j < 4 else T+6}, {vr(tC(j), 1)} offset:{TC + (j*64 if j < 4 else 512 + (j-4)*64)}")
    k(f"s_mov_b64 exec, s[{sM+4}:{sM+5}]")
    for a in A_:
        ad, o = (T+4, a*64) if a < 2 else (T+3, 0)
        k(f"ds_write_b32 v{ad}, v{X+a*8} offset:{TA + o}\nds_write_b32 v{ad}, v{X+a*8+4} offset:{TB + o}")
    k("s_mov_b64 exec, -1")
    k(f"""
    s_waitcnt vmcnt({npf-1})
    v_readfirstlane_b32 s{sNON}, v{vNon}
    s_cmp_lg_u32 s{sNON}, 0
    s_cbranch_scc1 {lab}_non
    s_mov_b32 s{sT+6}, 0
    {lab}_nspin:
    s_sleep 4
    global_load_dword v{vNon}, v{vZero}, s[{sDBG}:{sDBG+1}] sc1
    s_add_u32 s{sT+6}, s{sT+6}, 1
    s_waitcnt vmcnt(0)
    v_readfirstlane_b32 s{sNON}, v{vNon}
    s_cmp_gt_u32 s{sT+6}, 100000
    s_cbranch_scc1 {lab}_non
    s_cmp_eq_u32 s{sNON}, 0
    s_cbranch_scc1 {lab}_nspin
    {lab}_non:
    v_lshlrev_b32 v{T+7}, 4, v1
    s_waitcnt lgkmcnt(0)
    s_barrier
    """)
    k.stamp(3)
    k.lg.q = []; k.vm.q = []
    if isA: epi_attn(k, lab, st_pol, tQ, tK, tV)
    else: epi_B(k, lab, V, st_pol, tZ, isz2)
    after(k, V)

def gelu_pk(k, ys, c, t):
    n = range(len(ys))
    for i in n: k(pk("mul", t+2*i, [(ys[i], 0), (ys[i], 0)]))
    for i in n: k(pk("fma", t+2*i, [(t+2*i, 0), (c+1, 1), (c, 1)]))
    for i in n: k(pk("mul", t+2*i, [(t+2*i, 0), (ys[i], 0)]))
    for i in range(2*len(ys)): k(f"v_exp_f32 v{t+i}, v{t+i}")
    for i in n: k(pk("add", t+2*i, [(t+2*i, 0), ("1.0", 1)]))
    for i in range(2*len(ys)): k(f"v_rcp_f32 v{t+i}, v{t+i}")
    for i in n: k(pk("mul", ys[i], [(ys[i], 0), (t+2*i, 0)]))

def epi_B(k, lab, V, st_pol, tZ, isz2):
    J2 = [j for j in range(7) if isz2(j)]; J1 = [j for j in range(7) if not isz2(j)]
    vI4, vG16 = T+3, T+7
    c = T
    AR, BR = T+8, T+24
    C2 = T+40
    ST = T+48
    tmp = T+80
    AL = T+88
    ad = T+96
    coff = lambda j: (j*64 if j < 4 else 512 + (j-4)*64)
    k(f"""
    s_lshl_b32 s{sT}, s{sH}, 8
    s_add_u32 s{sT}, s{sT}, 64
    s_add_u32 s{sT+2}, s{sT}, s{sT+3}
    s_sub_u32 s{sT+5}, s{sT}, s{sT+3}
    v_add_u32 v{ad}, s{sT+2}, v{vG16}
    v_add_u32 v{ad+1}, s{sT+5}, v{vG16}
    v_add_u32 v{ad+2}, s{sT+2}, v{vI4}
    v_add_u32 v{ad+3}, s{sT+5}, v{vI4}
    v_add_u32 v{ad+4}, s{sT+1 if V == "B43" else sT+4}, v{vI4}
    v_add_u32 v{ad+5}, s{sT+4 if V == "B43" else sT+1}, v{vG16}
    """)
    for a in range(4):
        k.ds(f"ds_read_b128 {vr(AR + a*4)}, v{ad + (a>>1)} offset:{TA + a*64}", "t")
        k.ds(f"ds_read_b128 {vr(BR + a*4)}, v{ad + (a>>1)} offset:{TB + a*64}", "t")
    for n, j in enumerate(J2):
        for hh in range(2): k.ds(f"ds_read_b32 v{C2 + 2*n + hh}, v{ad+4} offset:{TC + hh*1024 + coff(j)}", "t")
    k(f"v_mov_b32 v{c}, {f2h(GC1)}\nv_mov_b32 v{c+1}, {f2h(GC2)}")
    k.wait(lg="t")
    for a in range(4):
        k.ds(f"ds_read_b32 v{AL + a}, v{ad + 2 + (a>>1)} offset:{TA + a*64}", "u")
        k.ds(f"ds_read_b32 v{AL + 4 + a}, v{ad + 2 + (a>>1)} offset:{TB + a*64}", "u")
    for n in range(len(J2)): k(f"v_add_f32 v{C2+2*n}, v{C2+2*n}, v{C2+2*n+1}")
    for n, j in enumerate(J2):
        for p in range(2):
            ys = [tZ(2*p + (i >> 1), j) + 2*(i & 1) for i in range(4)]
            ab = [(2*p + (i >> 1))*4 + 2*(i & 1) for i in range(4)]
            for i in range(4): k(pk("mul", tmp+2*i, [(BR+ab[i], 0), (C2+2*n, 1)]))
            for i in range(4): k(pk("fma", ys[i], [(AR+ab[i], 0), (ys[i], 0), (tmp+2*i, 0)]))
            gelu_pk(k, ys, c, tmp)
            for i in range(4):
                s_ = ST + (2*p + (i >> 1))*8 + 2*(i & 1); q_ = s_ + 4
                if n == 0: k(f"v_mov_b32 v{s_}, v{ys[i]}\nv_mov_b32 v{s_+1}, v{ys[i]+1}\n" + pk("mul", q_, [(ys[i], 0), (ys[i], 0)]))
                else: k(pk("add", s_, [(s_, 0), (ys[i], 0)]) + "\n" + pk("fma", q_, [(ys[i], 0), (ys[i], 0), (q_, 0)]))
    k.stamp(4)
    C1 = T+8
    for n, j in enumerate(J1):
        for hh in range(2): k.ds(f"ds_read_b128 {vr(C1 + 8*n + 4*hh)}, v{ad+5} offset:{TC + hh*1024 + coff(j)}", "u")
    for n in range(16): k(f"v_add_f32_dpp v{ST+n}, v{ST+n}, v{ST+n} row_mirror row_mask:0xf bank_mask:0x3")
    for n in range(16): k(f"v_add_f32_dpp v{ST+n}, v{ST+16+n}, v{ST+16+n} row_mirror row_mask:0xf bank_mask:0xc")
    for n in range(8): k(f"v_add_f32_dpp v{ST+n}, v{ST+n}, v{ST+n} row_half_mirror row_mask:0xf bank_mask:0x5")
    for n in range(8): k(f"v_add_f32_dpp v{ST+n}, v{ST+8+n}, v{ST+8+n} row_half_mirror row_mask:0xf bank_mask:0xa")
    for n in range(8): k(f"v_add_f32_dpp v{ST+n}, v{ST+n}, v{ST+n} quad_perm:[1,0,3,2] row_mask:0xf bank_mask:0xf")
    for n in range(8): k(f"v_add_f32_dpp v{ST+n}, v{ST+n}, v{ST+n} quad_perm:[2,3,0,1] row_mask:0xf bank_mask:0xf")
    k(f"""
    v_lshrrev_b32 v{tmp}, 2, v2
    s_lshl_b32 s{sT+6}, s{sE}, 1
    v_xor_b32 v{tmp}, s{sT+6}, v{tmp}
    v_lshl_add_u32 v{tmp}, v{tmp}, 6, v{vG16}
    s_lshl_b32 s{sT+6}, s{sE}, 10
    s_lshl_b32 s{sT+7}, s{sH}, 8
    s_add_u32 s{sT+6}, s{sT+6}, s{sT+7}
    v_add_u32 v{tmp}, s{sT+6}, v{tmp}
    ds_write_b128 v{tmp}, {vr(ST)} offset:{PS}
    ds_write_b128 v{tmp}, {vr(ST+4)} offset:{PS + 512}
    v_and_b32 v{tmp+1}, 31, v0
    s_lshl_b32 s{sT+6}, s{sW}, 7
    v_lshl_add_u32 v{tmp+1}, v{tmp+1}, 2, s{sT+6}
    s_add_u32 s{sXs}, s{sWS}, {XS_OFF}
    s_addc_u32 s{sXs+1}, s{sWS+1}, 0
    s_mov_b32 s{sXs+2}, {XS_SZ}
    s_mov_b32 s{sXs+3}, 0x20000
    s_lshl_b32 s{sT+8}, s{sRB}, 14                 ; rb*16384
    s_lshl_b32 s{sT+6}, s{sCQ}, 12
    s_add_u32 s{sT+6}, s{sT+6}, {0 if V == "B43" else 2048}
    s_add_u32 s{sT+6}, s{sT+6}, s{sT+8}
    s_lshl_b32 s{sT+7}, s{sW}, 9
    s_add_u32 s{sT+6}, s{sT+6}, s{sT+7}
    v_mov_b32 v{ST+10}, s{sNON}
    v_mov_b32 v{ST+11}, s{sNON}
    s_waitcnt lgkmcnt(0)
    s_barrier
    ds_read_b32 v{ST+8}, v{tmp+1} offset:{PS}
    ds_read_b32 v{ST+9}, v{tmp+1} offset:{PS + 512}
    ds_read_b32 v{ST+12}, v{tmp+1} offset:{PS + 1024}
    ds_read_b32 v{ST+13}, v{tmp+1} offset:{PS + 1536}
    """)
    k.lg.q = []
    for n in range(len(J1)):
        for i in range(2): k(pk("add", C1+8*n+2*i, [(C1+8*n+2*i, 0), (C1+8*n+4+2*i, 0)]))
    k(f"""
    s_waitcnt lgkmcnt(0)
    {pk("add", ST+8, [(ST+8, 0), (ST+12, 0)])}
    s_mov_b64 exec, 0xffffffff
    buffer_store_dwordx4 {vr(ST+8)}, v{vL16}, s[{sXs}:{sXs+3}], s{sT+6} offen sc1
    s_mov_b64 exec, -1
    """)
    for n, j in enumerate(J1):
        for p in range(2):
            ys = [tZ(2*p + (i >> 1), j) + 2*(i & 1) for i in range(4)]
            for i in range(4): k(pk("mul", tmp+2*i, [(C1+8*n+2*(i & 1), 0), (AL+4+2*p+(i >> 1), 1)]))
            for i in range(4): k(pk("fma", ys[i], [(ys[i], 0), (AL+2*p+(i >> 1), 1), (tmp+2*i, 0)]))
            gelu_pk(k, ys, c, tmp)
            for i in range(4): k(f"v_cvt_pk_bf16_f32 v{tZ(2*p, j)+i}, v{ys[i]}, v{ys[i]+1}")
    k.stamp(5)
    G = T+8
    k(f"""
    s_lshl_b32 s{sT+6}, s{sH}, 10
    s_add_u32 s{sT+6}, s{sT+6}, s{sT+8}
    s_add_u32 s{sT+7}, s{sT+6}, 4096
    s_add_u32 s{sT+8}, s{sT+6}, 8192
    s_add_u32 s{sT+9}, s{sT+6}, 12288
    s_mov_b32 s{sT+10}, 0
    {lab}_poll:
    """)
    for cidx in range(8): k(f"buffer_load_dwordx4 {vr(G+4*cidx)}, v{vL16}, s[{sXs}:{sXs+3}], s{sT+6+(cidx>>1)} offen offset:{(cidx&1)*2048} sc1")
    k(f"s_add_u32 s{sT+10}, s{sT+10}, 1\ns_waitcnt vmcnt(0)")
    for cidx in range(8): k(f"v_xor_b32 v{G+4*cidx+3}, s{sNON}, v{G+4*cidx+2}")
    k(f"""
    v_or3_b32 v{G+3}, v{G+3}, v{G+7}, v{G+11}
    v_or3_b32 v{G+15}, v{G+15}, v{G+19}, v{G+23}
    v_or3_b32 v{G+3}, v{G+3}, v{G+27}, v{G+31}
    v_or_b32 v{G+3}, v{G+3}, v{G+15}
    v_cmp_ne_u32 vcc, 0, v{G+3}
    s_nop 3
    s_cmp_gt_u32 s{sT+10}, 100000
    s_cbranch_scc1 {lab}_got
    s_cbranch_vccnz {lab}_poll
    {lab}_got:
    """)
    k(f"""
    s_add_u32 s{sOr}, s{sWS}, {Z1L_OFF}
    s_addc_u32 s{sOr+1}, s{sWS+1}, 0
    s_mov_b32 s{sOr+2}, {Z1L_SZ}
    s_mov_b32 s{sOr+3}, 0x20000
    s_mov_b32 s{sPr}, s{sWS}
    s_mov_b32 s{sPr+1}, s{sWS+1}
    s_mov_b32 s{sPr+2}, {Z2F_SZ}
    s_mov_b32 s{sPr+3}, 0x20000
    s_lshl_b32 s{sT}, s{sRB}, 1
    s_add_u32 s{sT}, s{sT}, s{sH}
    s_mul_i32 s{sT}, s{sT}, 112
    s_mul_i32 s{sT+2}, s{sCQ}, 14
    s_add_u32 s{sT}, s{sT}, s{sT+2}
    s_mul_i32 s{sT+2}, s{sE}, 56
    s_add_u32 s{sT+5}, s{sT}, s{sT+2}
    s_sub_u32 s{sT+6}, s{sT}, s{sT+2}
    s_add_u32 s{sT+6}, s{sT+6}, 56
    s_lshl_b32 s{sT+5}, s{sT+5}, 10
    s_lshl_b32 s{sT+6}, s{sT+6}, 10
    s_lshl_b32 s{sT+1}, s{sT+1}, 4                 ; 4e*1024
    s_lshl_b32 s{sT+4}, s{sT+4}, 4
    s_add_u32 s{sT+4}, s{sT+4}, 8192               ; (8+3e)*1024
    s_add_u32 s{sT+7}, s{sT+5}, s{sT+1}
    s_add_u32 s{sT+8}, s{sT+6}, s{sT+1}
    s_add_u32 s{sT+9}, s{sT+5}, s{sT+4}
    s_add_u32 s{sT+10}, s{sT+6}, s{sT+4}
    """)
    so = lambda j, p: (sT+7+p if j < 4 else sT+9+p, (j if j < 4 else j-4)*1024)
    for i in range(4): k(pk("add", G+8*i, [(G+8*i, 0), (G+8*i+4, 0)]))
    for i in range(2): k(pk("add", G+16*i, [(G+16*i, 0), (G+16*i+8, 0)]))
    k(pk("add", G, [(G, 0), (G+16, 0)]))
    k(f"""
    v_mov_b32 v{G+2}, {f2h(1/896)}
    v_mul_f32 v{G}, v{G}, v{G+2}
    v_mul_f32 v{G+1}, v{G+1}, v{G+2}
    v_fma_f32 v{G+1}, -v{G}, v{G}, v{G+1}
    v_max_f32 v{G+1}, 0, v{G+1}
    """)
    bf16_round(k, G+1, G+1); k(f"v_add_f32 v{G+1}, {f2h(1e-5)}, v{G+1}"); bf16_round(k, G+1, G+1)
    k(f"v_sqrt_f32 v{G+1}, v{G+1}"); bf16_round(k, G, G); bf16_round(k, G+1, G+1)
    k(f"""
    v_rcp_f32 v{G+1}, v{G+1}
    s_lshl_b32 s{sT}, s{sW}, 9
    v_lshl_add_u32 v{G+2}, v0, 2, s{sT}
    v_mul_f32 v{G}, -v{G}, v{G+1}
    ds_write_b32 v{G+2}, v{G+1} offset:{NT}
    ds_write_b32 v{G+2}, v{G} offset:{NT + 256}
    s_add_u32 s{sT+2}, s{sT}, s{sT+3}
    s_sub_u32 s{sT}, s{sT}, s{sT+3}
    v_add_u32 v{ad}, s{sT+2}, v{vG16}
    v_add_u32 v{ad+1}, s{sT}, v{vG16}
    """)
    for j in J1:
        for p in range(2): k(f"buffer_store_dwordx4 {vr(tZ(2*p, j))}, v{vL16}, s[{sOr}:{sOr+3}], s{so(j,p)[0]} offen offset:{so(j,p)[1]} {st_pol}")
    k("s_waitcnt lgkmcnt(0)")
    NR, NM = T+48, T+64
    for a in range(4):
        k.ds(f"ds_read_b128 {vr(NR + a*4)}, v{ad + (a>>1)} offset:{NT + a*64}", f"n{a>>1}")
        k.ds(f"ds_read_b128 {vr(NM + a*4)}, v{ad + (a>>1)} offset:{NT + 256 + a*64}", f"n{a>>1}")
    for p in range(2):
        k.wait(lg=f"n{p}")
        for j in J2:
            ys = [tZ(2*p + (i >> 1), j) + 2*(i & 1) for i in range(4)]
            ab = [(2*p + (i >> 1))*4 + 2*(i & 1) for i in range(4)]
            for i in range(4): k(pk("fma", ys[i], [(ys[i], 0), (NR+ab[i], 0), (NM+ab[i], 0)]))
            for i in range(4): k(f"v_cvt_pk_bf16_f32 v{tZ(2*p, j)+i}, v{ys[i]}, v{ys[i]+1}")
            k(f"buffer_store_dwordx4 {vr(tZ(2*p, j))}, v{vL16}, s[{sPr}:{sPr+3}], s{so(j,p)[0]} offen offset:{so(j,p)[1]} {st_pol}")

def epi_attn(k, lab, st_pol, tQ, tK, tV):
    vI4, vG16 = T+3, T+7
    AL, BL = T+8, T+18
    CQ, CK, CV = T+28, T+32, T+27
    QP, KP, VP = T+36, T+52, T+70
    tmp = T+88
    MC, MP = T+96, T+98
    cS, cN = T, T+1
    RA = T+100
    k(f"v_add_u32 v{T+4}, s{sT+1}, v{vG16}\nv_add_u32 v{T+5}, s{sT+1}, v{vI4}")
    k.ds(f"ds_read_b128 {vr(CQ)}, v{T+4} offset:{TC}", "t")
    k.ds(f"ds_read_b128 {vr(CK)}, v{T+4} offset:{TC + 64}", "t")
    k.ds(f"ds_read_b32 v{CV}, v{T+5} offset:{TC + 128}", "t")
    for a in range(9):
        k.ds(f"ds_read_b32 v{AL+a}, v{vI4} offset:{TA + a*64}", f"l{a}")
        k.ds(f"ds_read_b32 v{BL+a}, v{vI4} offset:{TB + a*64}", f"l{a}")
    k(f"""
    v_and_b32 v{tmp}, 1, v2
    v_lshl_add_u32 v{tmp+1}, v1, 2, v{tmp}
    v_cmp_le_u32 s[{sM+2}:{sM+3}], v{tmp+1}, v2
    v_add_u32 v{tmp+1}, 2, v{tmp+1}
    v_cmp_le_u32 s[{sM+4}:{sM+5}], v{tmp+1}, v2
    v_lshlrev_b32 v{tmp}, 4, v{tmp}
    v_mov_b32 v{tmp+1}, 0xffff
    v_lshlrev_b32 v{tmp}, v{tmp}, v{tmp+1}
    v_cndmask_b32 v{MC}, 0, v{tmp}, s[{sM+2}:{sM+3}]
    v_cndmask_b32 v{MP}, v{tmp}, 0, s[{sM+2}:{sM+3}]
    v_cndmask_b32 v{MC+1}, 0, v{tmp}, s[{sM+4}:{sM+5}]
    v_cndmask_b32 v{MP+1}, v{tmp}, 0, s[{sM+4}:{sM+5}]
    v_mov_b32 v{cS}, {f2h(0.25*LOG2E)}
    v_mov_b32 v{cN}, {f2h(-1e30)}
    s_cmp_eq_u32 s{sRB}, 0
    s_cselect_b64 s[{sM+6}:{sM+7}], -1, 0
    """)
    for a in range(9):
        k.wait(lg=f"l{a}")
        tiles = [(tK(a), CK, KP+2*a)] + ([(tQ(a), CQ, QP+2*(a-1))] if a else [])
        for n, (y, cs, d) in enumerate(tiles):
            for i in range(2): k(pk("mul", tmp+4*n+2*i, [(cs+2*i, 0), (BL+a, 1)]))
        for n, (y, cs, d) in enumerate(tiles):
            for i in range(2): k(pk("fma", y+2*i, [(y+2*i, 0), (AL+a, 1), (tmp+4*n+2*i, 0)]))
        for n, (y, cs, d) in enumerate(tiles):
            for i in range(2): k(f"v_cvt_pk_bf16_f32 v{d+i}, v{y+2*i}, v{y+2*i+1}")
    Sc = lambda a: tQ(a); Sp = lambda a: tK(a)
    RV = 256
    buf = [T+8, T+16, T+100]
    def rd(a):
        b = buf[a % 3]
        k.ds(f"ds_read_b128 {vr(b)}, v{vG16} offset:{TA + a*64}", f"v{a}")
        k.ds(f"ds_read_b128 {vr(b+4)}, v{vG16} offset:{TB + a*64}", f"v{a}")
    rd(0); rd(1)
    for a in range(1, 9):
        k(f"v_mfma_f32_16x16x16_bf16 {vr(Sc(a))}, {vr(KP+2*a, 2)}, {vr(QP+2*(a-1), 2)}, 0")
        k(f"v_mfma_f32_16x16x16_bf16 {vr(Sp(a))}, {vr(KP+2*(a-1), 2)}, {vr(QP+2*(a-1), 2)}, 0")
    for a in range(9):
        if a + 2 < 9: rd(a + 2)
        k.wait(lg=f"v{a}")
        b = buf[a % 3]; y = tV(a)
        for i in range(2): k(pk("mul", tmp+2*i, [(b+4+2*i, 0), (CV, 1)]))
        for i in range(2): k(pk("fma", y+2*i, [(b+2*i, 0), (y+2*i, 0), (tmp+2*i, 0)]))
        for i in range(2): k(f"v_cvt_pk_bf16_f32 v{VP+2*a+i}, v{y+2*i}, v{y+2*i+1}")
    U = range(1, 9)
    X = lambda a: tV(a)
    for a in U:
        for v in range(2):
            k(f"v_cndmask_b32 v{X(a)+v}, v{Sc(a)+2*v}, v{Sc(a)+2*v+1}, s[{sM}:{sM+1}]")
            k(f"v_cndmask_b32 v{X(a)+2+v}, v{Sp(a)+2*v}, v{Sp(a)+2*v+1}, s[{sM}:{sM+1}]")
    for v in range(2): k(f"v_cndmask_b32 v{X(1)+2+v}, v{X(1)+2+v}, v{cN}, s[{sM+6}:{sM+7}]")
    for a in U:
        for v in range(2): k(f"v_cndmask_b32 v{X(a)+v}, v{X(a)+2+v}, v{X(a)+v}, s[{sM+2+2*v}:{sM+3+2*v}]")
    def allred(op):
        for sw in ("v_permlane16_swap_b32", "v_permlane32_swap_b32"):
            for a in U: k(f"v_mov_b32 v{X(a)+3}, v{X(a)+2}")
            for a in U: k(f"{sw} v{X(a)+2}, v{X(a)+3}")
            for a in U: k(f"{op} v{X(a)+2}, v{X(a)+2}, v{X(a)+3}")
    for a in U: k(f"v_max_f32 v{X(a)+2}, v{X(a)}, v{X(a)+1}")
    allred("v_max_f32")
    for a in U: k(f"v_pk_add_f32 {P(X(a))}, {P(X(a))}, {P(X(a)+2)} op_sel_hi:[1,0] neg_lo:[0,1] neg_hi:[0,1]")
    for a in U: k(pk("mul", X(a), [(X(a), 0), (cS, 1)]))
    for a in U:
        for v in range(2): k(f"v_exp_f32 v{X(a)+v}, v{X(a)+v}")
    for a in U: k(f"v_add_f32 v{X(a)+2}, v{X(a)}, v{X(a)+1}")
    allred("v_add_f32")
    for a in U: k(f"v_rcp_f32 v{X(a)+2}, v{X(a)+2}")
    for a in U: k(pk("mul", X(a), [(X(a), 0), (X(a)+2, 1)]))
    for a in U:
        for v in range(2): k(f"v_cvt_pk_bf16_f32 v{X(a)+v}, v{X(a)+v}, v{X(a)+v}")
    for a in U:
        for v in range(2): k(f"v_and_b32 v{Sc(a)+v}, v{X(a)+v}, v{MP+v}\nv_and_b32 v{Sc(a)+2+v}, v{X(a)+v}, v{MC+v}")
    for a in U: k(f"v_mfma_f32_16x16x32_bf16 {vr(Sp(a))}, {vr(VP+2*(a-1))}, {vr(Sc(a))}, 0")
    OP = T+8
    k(f"""
    s_lshl_b32 s{sT}, s{sW}, 12
    v_add_u32 v{tmp}, s{sT}, v{vL16}
    s_and_b32 s{sT+1}, s{sW}, 2
    s_lshl_b32 s{sT+1}, s{sT+1}, 12
    s_and_b32 s{sT+2}, s{sW}, 1
    s_lshl_b32 s{sT+3}, s{sT+2}, 11
    s_add_u32 s{sT+1}, s{sT+1}, s{sT+3}
    v_add_u32 v{tmp+1}, s{sT+1}, v{vL16}
    s_add_u32 s{sOr}, s{sWS}, {A3_OFF}
    s_addc_u32 s{sOr+1}, s{sWS+1}, 0
    s_mov_b32 s{sOr+2}, {A3_SZ}
    s_mov_b32 s{sOr+3}, 0x20000
    s_lshl_b32 s{sT}, s{sRB}, 1
    s_add_u32 s{sT}, s{sT}, s{sT+2}
    s_mul_i32 s{sT}, s{sT}, 176
    s_lshl_b32 s{sT+1}, s{sSUB}, 1
    s_add_u32 s{sT}, s{sT}, s{sT+1}
    s_lshr_b32 s{sT+1}, s{sW}, 1
    s_add_u32 s{sT}, s{sT}, s{sT+1}
    s_lshl_b32 s{sT}, s{sT}, 10
    s_add_u32 s{sT+1}, s{sT}, {44*1024}
    s_add_u32 s{sT+2}, s{sT}, {88*1024}
    s_add_u32 s{sT+3}, s{sT}, {132*1024}
    """)
    for a in U:
        for d in range(2): k(f"v_cvt_pk_bf16_f32 v{OP+2*(a-1)+d}, v{Sp(a)+2*d}, v{Sp(a)+2*d+1}")
    k.stamp(4)
    for n in range(4): k(f"ds_write_b128 v{tmp}, {vr(OP+4*n)} offset:{OX + n*1024}")
    k("s_waitcnt lgkmcnt(0)\ns_barrier"); k.lg.q = []
    for n in range(4):
        o = OX + (n >> 1)*1024 + (n & 1)*8
        k.ds(f"ds_read_b64 {vr(OP+16+4*n, 2)}, v{tmp+1} offset:{o}", f"o{n}")
        k.ds(f"ds_read_b64 {vr(OP+18+4*n, 2)}, v{tmp+1} offset:{o + 4096}", f"o{n}")
    for n in range(4):
        k.wait(lg=f"o{n}")
        k(f"buffer_store_dwordx4 {vr(OP+16+4*n)}, v{vL16}, s[{sOr}:{sOr+3}], s{sT+n} offen {st_pol}")
    k.stamp(5)
```

```python
from asmlib import *
from layout import *
from f1 import pk, P, vL16
WREG = 36864
LDS2 = 4*WREG
RING = 4096
sAr, sZ2, sZ1, sA3, sBs = sR0, sR1, sR2, sR3, sR4
sRB2, sCB, sReg, sBo = 76, 77, 78, 79
sAo = [80, 81, 82, 83]
vAd = [4, 5]; vB1 = 6; vAr = [8, 9, 10, 11]; vRW = 12; vRR = [13, 14, 15]; BS = 16; vZ = 17
Z1 = 18
ACC = 32
RAW = 144
Z1 = 176
T = 192
BR = 256

def setup(k):
    k(f"""
    s_and_b32 s{sT}, s2, 7
    s_lshr_b32 s{sT+1}, s2, 3
    s_lshr_b32 s{sRB2}, s{sT}, 1
    s_lshl_b32 s{sRB2}, s{sRB2}, 3
    s_lshr_b32 s{sT+2}, s{sT+1}, 2
    s_add_u32 s{sRB2}, s{sRB2}, s{sT+2}
    s_and_b32 s{sCB}, s{sT}, 1
    s_lshl_b32 s{sCB}, s{sCB}, 2
    s_and_b32 s{sT+2}, s{sT+1}, 3
    s_add_u32 s{sCB}, s{sCB}, s{sT+2}
    s_mul_i32 s{sReg}, s{sW}, {WREG}
    v_add_u32 v{vB1}, 4096, v{vL16}
    v_and_b32 v3, 7, v0
    v_xor_b32 v3, v3, v1
    v_lshlrev_b32 v3, 4, v3
    v_lshrrev_b32 v7, 3, v0
    v_lshl_add_u32 v{vAd[0]}, v7, 12, v3
    v_xor_b32 v{vAd[1]}, 64, v{vAd[0]}
    v_add_u32 v{vAd[1]}, 0x8000, v{vAd[1]}
    """)
    for u in range(4):
        k(f"""
        s_xor_b32 s{sT}, s{sW}, {u}
        s_lshl_b32 s{sT+1}, s{sRB2}, 2
        s_add_u32 s{sT}, s{sT}, s{sT+1}
        s_lshl_b32 s{sT}, s{sT}, 16
        s_lshl_b32 s{sT+1}, s{sW}, 10
        s_add_u32 s{sAo[u]}, s{sT}, s{sT+1}
        """)
    k(f"""
    s_mul_i32 s{sBo}, s{sW}, {16*56*1024}
    s_mul_i32 s{sT}, s{sCB}, 7168
    s_add_u32 s{sBo}, s{sBo}, s{sT}
    """)

def gen_p2(k, name, wait_z2, done, st_pol="sc1", a_pol="", h_pol="", DB=4):
    NS = 16
    vB = [vL16, vB1]
    k.srd(sAr, sWSP, 2048*4096)
    k.srd(sZ2, sWS, Z2F_SZ)
    def gA(sl, m):
        return [("i", f"s_add_u32 m0, s{sReg}, {RING + (sl%4)*8192 + m*1024 - 128*sl}"), ("i", "s_nop 0"),
                ("v", f"buffer_load_dwordx4 v{vAd[m&1]}, s[{sAr}:{sAr+3}], s{sAo[m>>1]} offen offset:{128*sl} {a_pol} lds", f"A{sl}")]
    def gB(s, j):
        g = [("i", f"s_add_u32 s{sT}, s{sBo}, {s*57344}")] if j == 0 else []
        return g + [("v", f"buffer_load_dwordx4 {vr(BR + (s%DB)*28 + j*4)}, v{vB[j//4]}, s[{sZ2}:{sZ2+3}], s{sT} offen offset:{(j%4)*1024} {h_pol}", f"B{s}")]
    def emit(item):
        if item[0] == "i": k(item[1])
        elif item[0] == "v": k.vmem(item[1], item[2])
        elif item[0] == "d": k.ds(item[1], item[2])
        elif item[0] == "w": k.wait(vm=item[1], lg=item[2])
    def em(gs):
        for g in gs:
            for it in g: emit(it)
    npre = 4 if wait_z2 else 1
    em([gA(sl, m) for sl in range(npre) for m in range(8)])
    if not wait_z2: em([gB(0, j) for j in range(7)])
    k(f"""
    s_add_u32 s{sZ1}, s{sWS}, {Z1L_OFF}
    s_addc_u32 s{sZ1+1}, s{sWS+1}, 0
    s_mov_b32 s{sZ1+2}, {Z1L_SZ}
    s_mov_b32 s{sZ1+3}, 0x20000
    s_add_u32 s{sA3}, s{sWS}, {A3_OFF}
    s_addc_u32 s{sA3+1}, s{sWS+1}, 0
    s_mov_b32 s{sA3+2}, {A3_SZ}
    s_mov_b32 s{sA3+3}, 0x20000
    """)
    k.srd(sBs, sBSP, 4096)
    k(f"""
    v_xor_b32 v3, v2, v1
    v_lshrrev_b32 v3, 1, v3                 ; (i>>1) ^ (g>>1)
    v_lshlrev_b32 v3, 4, v3
    v_lshl_add_u32 v3, v2, 7, v3
    v_and_b32 v7, 1, v1
    v_lshl_add_u32 v3, v7, 3, v3
    v_add_u32 v{vAr[0]}, s{sReg}, v3
    v_xor_b32 v{vAr[1]}, 32, v{vAr[0]}
    v_xor_b32 v{vAr[2]}, 64, v{vAr[0]}
    v_xor_b32 v{vAr[3]}, 96, v{vAr[0]}
    v_add_u32 v{vRW}, s{sReg}, v{vL16}
    """)
    for u in range(1, 4):
        k(f"""
        s_xor_b32 s{sT+1}, s{sW}, {u}
        s_mul_i32 s{sT+1}, s{sT+1}, {WREG}
        s_add_u32 s{sT+1}, s{sT+1}, {(u-1)*7168}
        v_add_u32 v{vRR[u-1]}, s{sT+1}, v{vL16}
        """)
    k(f"""
    s_lshl_b32 s{sT+4}, s{sRB2}, 1
    s_lshr_b32 s{sT+1}, s{sW}, 1
    s_add_u32 s{sT+4}, s{sT+4}, s{sT+1}
    s_mul_i32 s{sT+4}, s{sT+4}, 56
    s_mul_i32 s{sT+1}, s{sCB}, 7
    s_add_u32 s{sT+4}, s{sT+4}, s{sT+1}
    s_lshl_b32 s{sT+4}, s{sT+4}, 10
    s_and_b32 s{sT+1}, s{sW}, 1
    s_lshl_b32 s{sT+1}, s{sT+1}, 3
    s_add_u32 s{sT+2}, s{sT+4}, s{sT+1}
    s_lshl_b32 s{sT+3}, s{sRB2}, 2
    s_add_u32 s{sT+3}, s{sT+3}, s{sW}
    s_mul_i32 s{sT+4}, s{sT+3}, 44
    s_lshl_b32 s{sT+3}, s{sT+3}, 5
    s_mul_i32 s{sT+1}, s{sCB}, 7
    s_lshr_b32 s{sT+1}, s{sT+1}, 1
    s_add_u32 s{sT+4}, s{sT+4}, s{sT+1}
    s_add_u32 s{sT+4}, s{sT+4}, 16
    s_lshl_b32 s{sT+4}, s{sT+4}, 10
    v_lshlrev_b32 v{vZ}, 1, v2
    """)
    k.vmem(f"buffer_load_ushort v{BS}, v{vZ}, s[{sBs}:{sBs+3}], s{sT+3} offen", "bs")
    if wait_z2:
        wait_z2(k)
        em([gB(s, j) for s in range(DB - 1) for j in range(7)])
        pend = []
    else:
        pend = [gB(1, j) for j in range(7)] + [gA(1, m) for m in range(8)] + [gB(2, j) for j in range(7)] + [gA(2, m) for m in range(8)]
        em(pend[:15]); pend = pend[15:]
    k.stamp(1)
    def R(s): return [("d", f"ds_read_b64 {vr(RAW + (s&1)*16 + u*4 + 2*j2, 2)}, v{vAr[2*(s&1) + j2]} offset:{RING + ((s>>1)%4)*8192 + u*2048}", f"R{s}") for u in range(4) for j2 in range(2)]
    k.wait(vm="A0")
    for it in R(0): emit(it)
    for s in range(NS):
        if s == 1: k.stamp(2)
        MF = []
        for j in range(7):
            for u in range(4):
                a = ACC + (u*7 + j)*4
                MF.append(f"v_mfma_f32_16x16x32_bf16 {vr(a)}, {vr(BR + (s%DB)*28 + j*4)}, {vr(RAW + (s&1)*16 + u*4)}, {vr(a) if s else '0'}")
        slots = [[] for _ in range(29)]
        slots[0].append(("w", f"B{s}", f"R{s}"))
        if s + 1 < NS:
            slots[1].append(("w", f"A{(s+1)>>1}", None))
            for u, it in enumerate(R(s + 1)): slots[1 + u].append(it)
        G = list(pend); pend = []
        if s + DB - 1 < NS: G += [gB(s + DB - 1, j) for j in range(7)]
        sl = (s + 1 >> 1) + 3 if wait_z2 else (s >> 1) + 3
        hf = (s + 1) & 1 if wait_z2 else s & 1
        if sl < 8 and not (wait_z2 and s == 0):
            for m in range(4*hf, 4*hf + 4): G.insert(min(len(G), len(G) - 7 + 2*(m % 4) + 1) if len(G) >= 7 else len(G), gA(sl, m))
        if s == 13:
            G += [[("v", f"buffer_load_dwordx2 {vr(Z1 + 2*j, 2)}, v{vB[j//4]}, s[{sZ1}:{sZ1+3}], s{sT+2} offen offset:{(j%4)*1024} {h_pol}", "z1")] for j in range(7)]
        for n, g in enumerate(G): slots[1 + n*27//max(1, len(G))] += g
        for i, m in enumerate(MF):
            for it in slots[i]: emit(it)
            k(m)
        for it in slots[28]: emit(it)
    k.stamp(3)
    for u in range(1, 4):
        for j in range(7):
            k.ds(f"ds_write_b128 v{vRW}, {vr(ACC + (u*7+j)*4)} offset:{(u-1)*7168 + j*1024}", "rw")
    k.wait(vm="z1")
    ZU = 192
    for j in range(7):
        for d in range(2):
            k(f"v_lshlrev_b32 v{ZU + j*4 + 2*d}, 16, v{Z1 + 2*j + d}\nv_and_b32 v{ZU + j*4 + 2*d + 1}, 0xffff0000, v{Z1 + 2*j + d}")
    k(f"v_lshlrev_b32 v{BS}, 16, v{BS}")
    for j in range(7):
        for d in range(2): k(pk("add", ACC + j*4 + 2*d, [(ACC + j*4 + 2*d, 0), (BS, 1)]))
    k("s_waitcnt lgkmcnt(0)\ns_barrier"); k.lg.q = []
    k.stamp(4)
    Pp = ACC + 28
    for j in range(7):
        for u in range(3):
            k.ds(f"ds_read_b128 {vr(Pp + j*12 + u*4)}, v{vRR[u]} offset:{j*1024}", f"p{j}")
    H = 224
    for j in range(7):
        k.wait(lg=f"p{j}")
        p = Pp + j*12; g = ACC + j*4
        for d in range(2): k(pk("add", g+2*d, [(g+2*d, 0), (p+2*d, 0)]))
        for d in range(2): k(pk("add", p+4+2*d, [(p+4+2*d, 0), (p+8+2*d, 0)]))
        for d in range(2): k(pk("add", g+2*d, [(g+2*d, 0), (p+4+2*d, 0)]))
        for d in range(2): k(pk("mul", g+2*d, [(g+2*d, 0), (ZU+j*4+2*d, 0)]))
        for d in range(2): k(f"v_cvt_pk_bf16_f32 v{H+2*j+d}, v{g+2*d}, v{g+2*d+1}")
    k(f"s_bitcmp1_b32 s{sCB}, 0\ns_cbranch_scc1 L_{name}_odd")
    for q in range(3): k(f"buffer_store_dwordx4 {vr(H+4*q)}, v{vL16}, s[{sA3}:{sA3+3}], s{sT+4} offen offset:{q*1024} {st_pol}")
    k(f"buffer_store_dwordx2 {vr(H+12, 2)}, v{vL16}, s[{sA3}:{sA3+3}], s{sT+4} offen offset:3072 {st_pol}")
    k(f"s_branch L_{name}_hdone\nL_{name}_odd:")
    k(f"buffer_store_dwordx2 {vr(H, 2)}, v{vL16}, s[{sA3}:{sA3+3}], s{sT+4} offen offset:8 {st_pol}")
    for q in range(3): k(f"buffer_store_dwordx4 {vr(H+2+4*q)}, v{vL16}, s[{sA3}:{sA3+3}], s{sT+4} offen offset:{(q+1)*1024} {st_pol}")
    k(f"L_{name}_hdone:")
    done(k)
```

```python
Z2F_OFF = 0
Z2F_SZ  = 64*56*1024
A3_OFF  = 4 << 20
A3_SZ   = 128*44*1024
Z1L_OFF = 10 << 20
Z1L_SZ  = 64*56*1024
ST2_OFF = 14 << 20
ST2_SZ  = 4*2048*8
KA_X, KA_WQKV, KA_WO, KA_BX, KA_WIN, KA_WSP, KA_BSP, KA_WOUT, KA_OUT, KA_DBG, KA_WS = [8*i for i in range(11)]
XS_OFF  = (14 << 20) + (256 << 10)
XS_SZ   = 16*8*2048
FL_OFF  = (14 << 20) + (768 << 10)
FL_SZ   = 192 << 10
FZ2, FD, FH = 0, 65536, 131072
sX, sWQ, sWO, sWIN, sWSP, sBSP, sWOUT, sOUT, sDBG, sWS = 4, 6, 8, 12, 14, 16, 18, 20, 22, 24
sR0, sR1, sR2, sR3, sR4 = 28, 32, 36, 40, 44
sW, sNON = 48, 49
sM = 50
sT = 60
W3F_OFF = 16 << 20
W3F_SZ  = 44*32*1024
```

```python
from asmlib import *
from layout import *
import struct
def f2h(x): return hex(struct.unpack("<I", struct.pack("<f", x))[0])
OPT = {}
XW = 18432
STG = XW + 7*4096
LDS1 = 3*STG
TOP = 135168
TA, TB, TC, PS, OX, NT = 0, 1024, 2048, 4096, 8192, 6144
LDSF = 163840
LOG2E = 1.4426950408889634
GC1 = -2*0.7978845608028654*LOG2E
GC2 = GC1*0.044715
sXr, sWr, sOr, sPr, sXs = sR0, sR1, sR2, sR3, sR4
sRB, sCQ, sSUB, sH, sE = 76, 77, 78, 79, 80
sXo = [81, 82]; sWo = [83, 26]; sHo, sXl, sWl = 27, 3, 10
sSt, sDelta, sI, sA, sB, sSTG = 100, 101, 11, 74, 75, 73
vXe, vXo, vWd, vH = 4, 5, 6, 7
vL16, vNon, vZero = 20, 21, 22
ONES = 24
ACC = 32
T = 144
FR = 256
XA = 256 + 112

def bf16_round(k, dst, src):
    k(f"v_cvt_pk_bf16_f32 v{dst}, v{src}, v{src}\nv_and_b32 v{dst}, 0xffff0000, v{dst}")
def P(r): return f"v[{r}:{r+1}]"
def pk(op, d, srcs):
    ops, lo, hi = [], [], []
    for r, bc in srcs:
        if isinstance(r, str): ops.append(r); lo.append(0); hi.append(0)
        elif bc: ops.append(P(r & ~1)); lo.append(r & 1); hi.append(r & 1)
        else: ops.append(P(r)); lo.append(0); hi.append(1)
    m = ""
    if any(lo): m += " op_sel:[" + ",".join(map(str, lo)) + "]"
    if not all(hi): m += " op_sel_hi:[" + ",".join(map(str, hi)) + "]"
    return f"v_pk_{op}_f32 {P(d)}, " + ", ".join(ops) + m

def prologue(k, name):
    k(f"""
    L_{name}_code:
    s_cmp_ge_u32 s2, 256
    s_cbranch_scc1 L_{name}_end
    s_load_dwordx16 s[4:19], s[0:1], 0
    s_load_dwordx4 s[20:23], s[0:1], {KA_OUT}
    s_load_dwordx2 s[24:25], s[0:1], {KA_WS}
    v_lshrrev_b32 v1, 6, v0
    v_and_b32 v0, 63, v0
    v_readfirstlane_b32 s{sW}, v1
    v_lshrrev_b32 v1, 4, v0                 ; g
    v_and_b32 v2, 15, v0                    ; i
    v_lshlrev_b32 v{vL16}, 4, v0
    """)

class Fill:
    def __init__(self, mk=None): self.mk = mk; self.q = []
    def start(self, k):
        self.q = self.mk(k) if self.mk else []
    def __call__(self, k, n):
        for _ in range(n):
            if self.q:
                for l in self.q.pop(0): k(l)
    def flush(self, k): self(k, len(self.q))
FILL = Fill()

def gen_p1(k, name, after, st_pol="sc1", ld_pol="", pf_pol="", pf=True):
    k(f"""
    s_and_b32 s{sT}, s2, 7
    s_lshr_b32 s{sT+1}, s2, 3
    s_lshr_b32 s{sRB}, s{sT}, 2
    s_lshl_b32 s{sRB}, s{sRB}, 3
    s_lshr_b32 s{sT+2}, s{sT+1}, 2
    s_add_u32 s{sRB}, s{sRB}, s{sT+2}
    s_and_b32 s{sCQ}, s{sT}, 3
    s_and_b32 s{sSUB}, s{sT+1}, 3
    v_and_b32 v3, 7, v0
    v_xor_b32 v{T}, v3, v1
    v_lshlrev_b32 v{T}, 4, v{T}
    v_lshrrev_b32 v{T+1}, 3, v0
    v_lshl_add_u32 v{vXe}, v{T+1}, 10, v{T}
    v_xor_b32 v{vXo}, 64, v{vXe}
    v_add_u32 v{vXo}, 8192, v{vXo}
    v_lshrrev_b32 v{T}, 5, v0
    v_lshlrev_b32 v{T}, 1, v{T}
    v_and_b32 v{T+2}, 3, v0
    v_xor_b32 v{T}, v{T}, v{T+2}
    v_lshlrev_b32 v{T}, 4, v{T}
    v_lshrrev_b32 v{T+2}, 2, v0             ; l>>2
    s_lshl_b32 s{sXo[0]}, s{sRB}, 2
    s_add_u32 s{sXo[0]}, s{sXo[0]}, s{sW}
    s_lshl_b32 s{sXo[0]}, s{sXo[0]}, 15     ; (128rb+32w)*1024
    s_add_u32 s{sXo[1]}, s{sXo[0]}, 16384
    s_lshl_b32 s{sXl}, s{sW}, 12
    s_mov_b32 s{sSt}, 0
    s_mov_b32 s{sSTG}, {STG}
    s_cmp_ge_u32 s{sSUB}, 2
    s_cbranch_scc1 L_{name}_B
    v_mul_u32_u24 v{T+2}, 3072, v{T+2}
    v_add_u32 v{vWd}, v{T+2}, v{T}
    s_lshl_b32 s{sT+6}, s{sCQ}, 1
    s_add_u32 s{sSUB}, s{sSUB}, s{sT+6}
    s_mul_i32 s{sWo[0]}, s{sW}, {16*3072}
    s_lshl_b32 s{sT+6}, s{sSUB}, 7
    s_add_u32 s{sWo[0]}, s{sWo[0]}, s{sT+6}
    s_lshl_b32 s{sT+6}, s{sW}, 1
    v_add_u32 v{T}, s{sT+6}, v1
    v_xor_b32 v{T}, v{T}, v3
    v_lshlrev_b32 v{T}, 4, v{T}
    v_lshl_add_u32 v{vH}, v{T+1}, 10, v{T}
    s_lshl_b32 s{sHo}, s{sRB}, 7
    s_sub_u32 s{sHo}, s{sHo}, 16
    s_max_i32 s{sHo}, s{sHo}, 0
    s_lshl_b32 s{sT+6}, s{sW}, 2
    s_add_u32 s{sHo}, s{sHo}, s{sT+6}
    s_lshl_b32 s{sHo}, s{sHo}, 10
    s_waitcnt lgkmcnt(0)
    """)
    k.srd(sXr, sX, 2048*1024); k.srd(sWr, sWQ, 512*3072)
    variant(k, name, "A", after, st_pol, ld_pol, pf_pol, pf)
    k(f"""
    L_{name}_B:
    v_mul_u32_u24 v{T+2}, 3584, v{T+2}
    v_add_u32 v{vWd}, v{T+2}, v{T}
    s_mul_i32 s{sT+5}, s{sW}, {16*3584}
    s_mul_i32 s{sT+6}, s{sCQ}, 448
    s_add_u32 s{sT+5}, s{sT+5}, s{sT+6}
    s_add_u32 s{sT+6}, s{sT+5}, 1792
    s_and_b32 s{sH}, s{sW}, 1
    s_lshr_b32 s{sE}, s{sW}, 1
    s_cmp_eq_u32 s{sSUB}, 2
    s_cselect_b32 s{sT+7}, s{sT+6}, s{sT+5}
    s_cselect_b32 s{sT+8}, s{sT+5}, s{sT+6}
    s_waitcnt lgkmcnt(0)
    s_mov_b32 s{sWo[0]}, s{sT+7}
    s_mov_b32 s{sWo[1]}, s{sT+8}
    """)
    k.srd(sXr, sX, 2048*1024); k.srd(sWr, sWIN, 512*3584)
    k(f"s_cmp_eq_u32 s{sSUB}, 3\ns_cbranch_scc1 L_{name}_B34")
    variant(k, name, "B43", after, st_pol, ld_pol, pf_pol, pf)
    k(f"L_{name}_B34:")
    variant(k, name, "B34", after, st_pol, ld_pol, pf_pol, pf)

def variant(k, name, V, after, st_pol, ld_pol, pf_pol, pf):
    isA = V == "A"
    pitch = 3072 if isA else 3584
    ndma = 11
    lab = f"L_{name}_{V}"
    k(f"s_lshl_b32 s{sWl}, s{sW}, 10")
    k.stamp(0)
    def dma():
        G = []
        pre = [f"s_add_u32 s{sA}, s{sSt}, s{sXl}", f"s_add_u32 s{sB}, s{sSt}, s{sWl}"]
        for m in range(4):
            g = [f"s_add_u32 m0, s{sA}, {2048 + m*1024}", f"buffer_load_dwordx4 v{vXo if m & 1 else vXe}, s[{sXr}:{sXr+3}], s{sXo[m>>1]} offen {ld_pol} lds"]
            if m & 1: g.append(f"s_add_u32 s{sXo[m>>1]}, s{sXo[m>>1]}, 128")
            G.append(g)
        W = []
        for q in range(6 if isA else 7):
            imm = 64*(q & 1) + 1024*(q >> 1) if isA else 64*q
            so = sWo[0] if (isA or q < 4) else sWo[1]
            g = [f"s_add_u32 m0, s{sB}, {XW + q*4096 - imm}", f"buffer_load_dwordx4 v{vWd}, s[{sWr}:{sWr+3}], s{so} offen offset:{imm} {ld_pol} lds"]
            if q == (5 if isA else 3): g.append(f"s_add_u32 s{sWo[0]}, s{sWo[0]}, {64*pitch}")
            if q == 6: g.append(f"s_add_u32 s{sWo[1]}, s{sWo[1]}, {64*pitch}")
            W.append(g)
        if isA:
            W.append([f"s_lshr_b32 s{sT}, s{sWl}, 1", f"s_add_u32 m0, s{sSt}, s{sT}", "s_mov_b64 exec, 0xffffffff",
                      f"buffer_load_dwordx4 v{vH}, s[{sXr}:{sXr+3}], s{sHo} offen {ld_pol} lds", "s_mov_b64 exec, -1", f"s_add_u32 s{sHo}, s{sHo}, 128"])
        G = interleave(W, G)
        G[0] = pre + G[0]
        return G
    def dma_now():
        for g in dma():
            for l in g: k(l)
    dma_now(); k(f"s_add_u32 s{sSt}, s{sSt}, {STG}")
    if isA:
        k(f"""
        s_or_b32 s{sT}, s2, s{sW}
        s_cmp_lg_u32 s{sT}, 0
        s_cbranch_scc1 {lab}_nn
        s_memrealtime s[{sT}:{sT+1}]
        v_mov_b32 v{T}, 0
        s_waitcnt lgkmcnt(0)
        s_or_b32 s{sT}, s{sT}, 1
        v_mov_b32 v{T+1}, s{sT}
        s_mov_b64 exec, 1
        global_store_dword v{T}, v{T+1}, s[{sDBG}:{sDBG+1}] sc1
        s_mov_b64 exec, -1
        {lab}_nn:
        """)
    k(f"""
    v_lshrrev_b32 v{T}, 1, v2
    v_xor_b32 v{T}, v{T}, v1
    v_lshlrev_b32 v{T}, 4, v{T}
    v_lshl_add_u32 v{T}, v2, 7, v{T}        ; i*128 + (g^(i>>1))*16
    v_and_b32 v{T+2}, 1, v1
    v_lshlrev_b32 v{T+2}, 1, v{T+2}
    v_bfe_u32 v{T+1}, v0, 1, 1
    v_xor_b32 v{T+2}, v{T+2}, v{T+1}
    v_lshlrev_b32 v{T+2}, 4, v{T+2}
    v_bfe_u32 v{T+1}, v0, 2, 2
    v_lshl_add_u32 v{T+1}, v1, 3, v{T+1}
    v_lshl_add_u32 v{T+2}, v{T+1}, 6, v{T+2}
    v_and_b32 v{T+1}, 1, v0
    v_lshl_add_u32 v{T+2}, v{T+1}, 3, v{T+2}
    v_mov_b32 v{vZero}, 0
    """)
    if isA:
        vX = [[8], [11]]; vS = [9, 12]; vW = [[10], [13]]
        k(f"""
        v_mov_b32 v{vX[0][0]}, v{T}
        v_xor_b32 v{vX[1][0]}, 64, v{T}
        v_add_u32 v{vS[0]}, s{sXl}, v{vX[0][0]}
        v_add_u32 v{vS[1]}, s{sXl}, v{vX[1][0]}
        s_and_b32 s{sT}, s{sW}, 1
        s_lshl_b32 s{sT}, s{sT}, 5
        v_xor_b32 v{T+2}, s{sT}, v{T+2}
        s_lshr_b32 s{sT}, s{sW}, 1
        s_lshl_b32 s{sT}, s{sT}, 12
        s_add_u32 s{sT}, s{sT}, {XW}
        v_add_u32 v{vW[0][0]}, s{sT}, v{T+2}
        v_add_u32 v{vW[1][0]}, 2048, v{vW[0][0]}
        """)
        bases = [[8, 9, 10], [11, 12, 13]]
        nX, nW = 9, 3
        xaddr = lambda sg, a: (vX[sg][0], a*2048)
        waddr = lambda sg, j, j2: (vW[sg][0], j*8192 + j2*256)
    else:
        vX = [[8, 9], [14, 15]]; vW = [[10, 11, 12, 13], [16, 17, 18, 19]]
        k(f"""
        s_lshl_b32 s{sT}, s{sH}, 6
        v_xor_b32 v{T}, s{sT}, v{T}
        s_lshl_b32 s{sT}, s{sH}, 13
        s_add_u32 s{sT}, s{sT}, 2048
        s_lshl_b32 s{sT+1}, s{sE}, 12
        s_add_u32 s{sT+2}, s{sT}, s{sT+1}
        v_add_u32 v{vX[0][0]}, s{sT+2}, v{T}
        s_sub_u32 s{sT+2}, s{sT}, s{sT+1}
        v_add_u32 v{vX[0][1]}, s{sT+2}, v{T}
        v_xor_b32 v{vX[1][0]}, 64, v{vX[0][0]}
        v_xor_b32 v{vX[1][1]}, 64, v{vX[0][1]}
        s_lshl_b32 s{sT}, s{sH}, 11
        s_add_u32 s{sT}, s{sT}, {XW}
        s_lshl_b32 s{sT+2}, s{sE}, 13
        s_add_u32 s{sT+3}, s{sT}, s{sT+2}
        v_add_u32 v{vW[0][0]}, s{sT+3}, v{T+2}
        v_xor_b32 v{vW[0][1]}, 32, v{vW[0][0]}
        s_lshl_b32 s{sT+4}, s{sE}, 5
        v_xor_b32 v{T+1}, s{sT+4}, v{T+2}
        s_add_u32 s{sT+5}, s{sT}, s{sT+1}
        v_add_u32 v{vW[0][2]}, s{sT+5}, v{T+1}
        v_xor_b32 v{T+1}, 32, v{T+1}
        v_add_u32 v{vW[0][3]}, s{sT+3}, v{T+1}
        s_lshl_b32 s{sT}, s{sH}, 12
        s_sub_u32 s{sT}, 2048, s{sT}
        """)
        for n in range(4): k(f"v_add_u32 v{vW[1][n]}, s{sT}, v{vW[0][n]}")
        bases = [[8, 9, 10, 11, 12, 13], [14, 15, 16, 17, 18, 19]]
        nX, nW = 4, 7
        xaddr = lambda sg, a: (vX[sg][a >> 1], a*2048)
        def waddr(sg, j, j2):
            if j < 4: return vW[sg][j & 1], (j >> 1)*4096 + j2*256
            return vW[sg][2 + (j & 1)], 4*4096 + ((j - 4) >> 1)*4096 + j2*256
    dma_now(); k(f"s_add_u32 s{sSt}, s{sSt}, {STG}")
    fX = lambda sg, a: FR + sg*56 + a*4
    fW = lambda sg, j: FR + sg*56 + nX*4 + j*4
    fS = (lambda sg, a: FR + sg*56 + 48 + a*4) if isA else fX
    tG = lambda a: XA + a*8
    tS = lambda a: XA + a*8 + 4
    if isA:
        tQ = lambda a: ACC + (a-1)*4; tK = lambda a: ACC + 32 + a*4; tV = lambda a: ACC + 68 + a*4
        tC = lambda j: XA + 24 + j*4
        nacc, nxa = 104, 36
    else:
        tZ = lambda a, j: ACC + (j*4 + a)*4
        tC = lambda j: XA + 16 + j*4
        nacc, nxa = 112, 44
        isz2 = (lambda j: j < 4) if V == "B43" else (lambda j: j >= 4)
    for r in range(4): k(f"v_mov_b32 v{ONES+r}, 0x3f803f80")
    for r in range(nacc): k(f"v_mov_b32 v{ACC+r}, 0")
    for r in range(nxa): k(f"v_accvgpr_write_b32 {vr(XA+r, 1)}, 0")
    dma_now(); k(f"s_mov_b32 s{sSt}, 0")
    nbulk = 0
    if OPT.get("bulk"):
        bp = OPT["bulk"] if isinstance(OPT["bulk"], str) else ""
        nbulk = 3
        k(f"""
        s_getpc_b64 s[{sPr}:{sPr+1}]
        {lab}_pc:
        s_sub_u32 s{sPr}, s{sPr}, {lab}_pc - L_{name}_code
        s_subb_u32 s{sPr+1}, s{sPr+1}, 0
        s_mov_b32 s{sPr+2}, L_{name}_end - L_{name}_code
        s_mov_b32 s{sPr+3}, 0x20000
        s_lshr_b32 s{sT}, s2, 3
        s_lshl_b32 s{sT+1}, s{sT}, 2
        s_add_u32 s{sT+1}, s{sT+1}, s{sW}
        s_lshl_b32 s{sT+1}, s{sT+1}, 9
        v_lshlrev_b32 v{T}, 7, v0
        s_mov_b64 exec, 15
        buffer_load_dword v28, v{T}, s[{sPr}:{sPr+3}], s{sT+1} offen
        s_mov_b64 exec, -1
        s_and_b32 s{sT+1}, s{sT}, 3
        s_lshl_b32 s{sT+1}, s{sT+1}, 2
        s_add_u32 s{sT+1}, s{sT+1}, s{sW}
        s_lshl_b32 s{sT+1}, s{sT+1}, 13
        s_lshl_b32 s{sT+2}, s{sRB}, 17
        s_add_u32 s{sT+1}, s{sT+1}, s{sT+2}
        s_mov_b32 exec_lo, 0xf8f8f8f8
        s_mov_b32 exec_hi, 0xf8f8f8f8
        buffer_load_dword v28, v{T}, s[{sXr}:{sXr+3}], s{sT+1} offen {bp}
        s_mov_b64 exec, -1
        v_mul_u32_u24 v{T+1}, 52, v0
        v_lshrrev_b32 v{T+1}, 8, v{T+1}
        v_mul_u32_u24 v{T+2}, 5, v{T+1}
        v_sub_u32 v{T+2}, v0, v{T+2}
        v_mul_u32_u24 v{T+1}, {pitch}, v{T+1}
        s_and_b32 s{sT+1}, s{sRB}, 7
        s_mul_i32 s{sT+1}, s{sT+1}, 40
        s_mul_i32 s{sT+2}, s{sW}, -6
        s_add_u32 s{sT+1}, s{sT+1}, s{sT+2}
        s_mul_i32 s{sT+1}, s{sT+1}, {pitch}
        s_add_u32 s{sT+2}, s{sT+1}, s{sWo[0]}
        """)
        if isA:
            k(f"""
            v_lshl_add_u32 v{T+1}, v{T+2}, 10, v{T+1}
            v_cmp_gt_u32 vcc, 3, v{T+2}
            s_and_b64 exec, vcc, 0x3ffffffffffff
            """.replace("s_and_b64 exec, vcc, 0x3ffffffffffff", f"s_mov_b32 s{sT+5}, 0x3ffff\ns_and_b32 exec_hi, vcc_hi, s{sT+5}\ns_mov_b32 exec_lo, vcc_lo"))
        else:
            k(f"""
            s_sub_u32 s{sT+3}, s{sWo[1]}, s{sWo[0]}
            s_sub_u32 s{sT+3}, s{sT+3}, 128
            v_lshlrev_b32 v{T+3}, 7, v{T+2}
            v_min_u32 v{T+4}, 192, v{T+3}
            v_add_u32 v{T+3}, s{sT+3}, v{T+3}
            v_cmp_gt_u32 vcc, 3, v{T+2}
            v_cndmask_b32 v{T+3}, v{T+3}, v{T+4}, vcc
            v_add_u32 v{T+1}, v{T+1}, v{T+3}
            v_add_u32 v{T+1}, s{sT+2}, v{T+1}
            s_mov_b32 s{sT+2}, 0
            s_mov_b32 exec_hi, 0x3ffff
            """)
        k(f"buffer_load_dword v28, v{T+1}, s[{sWr}:{sWr+3}], s{sT+2} offen {bp}\ns_mov_b64 exec, -1")
    def reads(sg):
        X = [f"ds_read_b128 {vr(fX(sg, a))}, v{xaddr(sg, a)[0]} offset:{xaddr(sg, a)[1]}" for a in range(nX)]
        Wl = [f"ds_read_b64_tr_b16 {vr(fW(sg, j) + 2*j2, 2)}, v{waddr(sg, j, j2)[0]} offset:{waddr(sg, j, j2)[1]}" for j in range(nW) for j2 in range(2)]
        if isA:
            if OPT.get("noread"): return []
            return Wl + X + [f"ds_read_b128 {vr(fS(sg, a))}, v{vS[sg]} offset:{2048 + a*2048}" for a in range(2)]
        if OPT.get("noread"): return []
        return X + Wl
    def mf(d, a, b): return f"v_mfma_f32_16x16x32_bf16 {vr(d)}, {vr(a)}, {vr(b)}, {vr(d)}"
    def mfmas(sg):
        L = []
        if isA:
            for a in range(9):
                if a: L.append(mf(tQ(a), fW(sg, 0), fX(sg, a)))
                L.append(mf(tK(a), fW(sg, 1), fX(sg, a)))
                L.append(mf(tV(a), fX(sg, a), fW(sg, 2)))
            L += [mf(tG(2), fX(sg, 0), fX(sg, 0)), mf(tS(2), ONES, fX(sg, 0))]
        else:
            for j in range(7):
                for a in range(4):
                    L.append(mf(tZ(a, j), fX(sg, a), fW(sg, j)) if isz2(j) else mf(tZ(a, j), fW(sg, j), fX(sg, a)))
        for a in range(2): L += [mf(tG(a), fS(sg, a), fS(sg, a)), mf(tS(a), ONES, fS(sg, a))]
        if sg == 0 or isA:
            for j in range(nW): L.append(mf(tC(j), ONES, fW(sg, j)))
        if OPT.get("noextra"): return L[:26 if isA else 28]
        return L
    adv = lambda sg: [f"v_add_u32 v{r}, s{sDelta}, v{r}" for r in bases[sg]]
    k(f"s_mov_b32 s{sI}, 0\ns_waitcnt vmcnt({2*ndma + nbulk})\ns_barrier")
    k.stamp(1)
    for l in reads(0): k(l)
    k("s_waitcnt lgkmcnt(0)")
    k(f".p2align 6\n{lab}_loop:")
    for l in interleave(mfmas(0), reads(1) + [f"s_cmp_eq_u32 s{sSt}, {2*STG}\ns_cselect_b32 s{sDelta}, {-2*STG}, s{sSTG}"] + adv(0), per=1): k(l)
    npf = 3 if pf else 1
    k(f"s_cmp_ge_u32 s{sI}, 5\ns_cbranch_scc1 {lab}_nodma")
    k(f"s_waitcnt vmcnt({ndma}) lgkmcnt(0)\ns_barrier")
    def half2(with_dma):
        M = mfmas(1)
        slots = [[] for _ in range(len(M) + 1)]
        R = reads(0)
        for n, l in enumerate(R): slots[n + 1].append(l)
        for n, l in enumerate(adv(1)): slots[len(R) + 1 + n].append(l)
        if with_dma and not OPT.get("nodma"):
            G = dma()
            for n, g in enumerate(G):
                pos = 1 + n*(len(M) - 2)//len(G)
                cut = max(i for i, l in enumerate(g) if " m0," in l) + 1
                slots[pos] += g[:cut]; slots[pos + 1] = g[cut:] + slots[pos + 1]
        for i, m in enumerate(M):
            for l in slots[i]: k(l)
            k(m)
        for l in slots[len(M)]: k(l)
        k(f"""
        s_add_u32 s{sSt}, s{sSt}, s{sDelta}
        s_add_u32 s{sI}, s{sI}, 1
        s_cmp_lt_u32 s{sI}, 8
        s_waitcnt lgkmcnt(0)
        s_cbranch_scc1 {lab}_loop
        """)
    half2(True)
    k(f"{lab}_nodma:\ns_cmp_eq_u32 s{sI}, 5\ns_cbranch_scc1 {lab}_five\ns_waitcnt vmcnt({npf}) lgkmcnt(0)\ns_barrier\ns_branch {lab}_cont")
    k(f"{lab}_five:\ns_waitcnt vmcnt({ndma}) lgkmcnt(0)\ns_barrier")
    k.srd(sPr, sWSP, 2048*4096)
    k(f"""
    s_and_b32 s{sT}, s2, 7
    s_lshr_b32 s{sT}, s{sT}, 1
    s_lshl_b32 s{sT}, s{sT}, 21
    s_lshr_b32 s{sT+1}, s2, 3
    s_lshl_b32 s{sT+1}, s{sT+1}, 2
    s_add_u32 s{sT+1}, s{sT+1}, s{sW}
    s_lshl_b32 s{sT+2}, s{sT+1}, 14
    s_add_u32 s{sT}, s{sT}, s{sT+2}
    s_add_u32 s{sT+1}, s{sT}, 8192
    v_lshlrev_b32 v23, 7, v0
    s_mov_b32 s{sT+3}, 0x7fffffff
    global_load_dword v{vNon}, v{vZero}, s[{sDBG}:{sDBG+1}] sc1
    """)
    for n in range(1, npf): k(f"buffer_load_dword v28, v23, s[{sPr}:{sPr+3}], s{sT+n-1} offen {pf_pol}")
    k(f"{lab}_cont:")
    half2(False)
    k.stamp(2)
    cI, cE = T, T+1
    X = T + 16
    k(f"""
    s_barrier
    v_mov_b32 v{cI}, {f2h(1/512)}
    v_mov_b32 v{cE}, {f2h(1e-5)}
    v_and_b32 v{T+2}, 1, v0
    v_cmp_eq_u32 s[{sM}:{sM+1}], 1, v{T+2}
    v_and_b32 v{T+2}, 2, v0
    v_cmp_eq_u32 s[{sM+2}:{sM+3}], 2, v{T+2}
    v_lshrrev_b32 v{T+2}, 2, v2
    v_cmp_eq_u32 s[{sM+4}:{sM+5}], v1, v{T+2}
    v_lshlrev_b32 v{T+3}, 2, v2
    v_add_u32 v{T+3}, {TOP}, v{T+3}
    """)
    ns = 3 if isA else 2
    for a in range(ns):
        for r in range(4): k(f"v_accvgpr_read_b32 v{X+a*8+r}, {vr(tG(a)+r, 1)}")
        k(f"v_accvgpr_read_b32 v{X+a*8+4}, {vr(tS(a), 1)}")
    A_ = range(ns)
    for a in A_: k(f"v_cndmask_b32 v{X+a*8}, v{X+a*8}, v{X+a*8+1}, s[{sM}:{sM+1}]\nv_cndmask_b32 v{X+a*8+2}, v{X+a*8+2}, v{X+a*8+3}, s[{sM}:{sM+1}]")
    for a in A_: k(f"v_mul_f32 v{X+a*8+4}, v{X+a*8+4}, v{cI}\nv_cndmask_b32 v{X+a*8}, v{X+a*8}, v{X+a*8+2}, s[{sM+2}:{sM+3}]")
    for a in A_: k(f"v_mul_f32 v{X+a*8}, v{X+a*8}, v{cI}")
    for a in A_: k(f"v_fma_f32 v{X+a*8}, -v{X+a*8+4}, v{X+a*8+4}, v{X+a*8}")
    for a in A_: k(f"v_max_f32 v{X+a*8}, 0, v{X+a*8}")
    for a in A_: bf16_round(k, X+a*8, X+a*8)
    for a in A_: k(f"v_add_f32 v{X+a*8}, v{X+a*8}, v{cE}")
    for a in A_: bf16_round(k, X+a*8, X+a*8)
    for a in A_: k(f"v_sqrt_f32 v{X+a*8}, v{X+a*8}")
    for a in A_: bf16_round(k, X+a*8+4, X+a*8+4)
    for a in A_: bf16_round(k, X+a*8, X+a*8)
    for a in A_: k(f"v_rcp_f32 v{X+a*8}, v{X+a*8}")
    if isA: k(f"s_lshl_b32 s{sT}, s{sW}, 7\ns_add_u32 s{sT}, s{sT}, 64\ns_mul_i32 s{sT+1}, s{sW}, 192\ns_mov_b32 s{sT+2}, s{sT+1}")
    else:
        k(f"""
        s_lshl_b32 s{sT}, s{sH}, 8
        s_lshl_b32 s{sT+3}, s{sE}, 7
        s_add_u32 s{sT}, s{sT}, s{sT+3}
        s_add_u32 s{sT}, s{sT}, 64
        s_lshl_b32 s{sT+1}, s{sE}, 8
        s_mul_i32 s{sT+4}, s{sE}, 192
        s_lshl_b32 s{sT+5}, s{sH}, 10
        s_add_u32 s{sT+2}, s{sT+1}, s{sT+5}
        s_add_u32 s{sT+5}, s{sT+4}, s{sT+5}
        """)
    k(f"v_add_u32 v{T+4}, s{sT}, v{T+3}\nv_add_u32 v{T+5}, s{sT+2}, v{T+3}")
    if not isA: k(f"v_add_u32 v{T+6}, s{sT+5}, v{T+3}")
    for a in A_: k(f"v_mul_f32 v{X+a*8+4}, -v{X+a*8+4}, v{X+a*8}")
    for j in range(nW):
        k(f"ds_write_b32 v{T+5 if j < 4 else T+6}, {vr(tC(j), 1)} offset:{TC + (j*64 if j < 4 else 512 + (j-4)*64)}")
    k(f"s_mov_b64 exec, s[{sM+4}:{sM+5}]")
    for a in A_:
        ad, o = (T+4, a*64) if a < 2 else (T+3, 0)
        k(f"ds_write_b32 v{ad}, v{X+a*8} offset:{TA + o}\nds_write_b32 v{ad}, v{X+a*8+4} offset:{TB + o}")
    k("s_mov_b64 exec, -1")
    k(f"""
    s_waitcnt vmcnt({npf-1})
    v_readfirstlane_b32 s{sNON}, v{vNon}
    s_cmp_lg_u32 s{sNON}, 0
    s_cbranch_scc1 {lab}_non
    s_mov_b32 s{sT+6}, 0
    {lab}_nspin:
    s_sleep 4
    global_load_dword v{vNon}, v{vZero}, s[{sDBG}:{sDBG+1}] sc1
    s_add_u32 s{sT+6}, s{sT+6}, 1
    s_waitcnt vmcnt(0)
    v_readfirstlane_b32 s{sNON}, v{vNon}
    s_cmp_gt_u32 s{sT+6}, 100000
    s_cbranch_scc1 {lab}_non
    s_cmp_eq_u32 s{sNON}, 0
    s_cbranch_scc1 {lab}_nspin
    {lab}_non:
    v_lshlrev_b32 v{T+7}, 4, v1
    v_add_u32 v{T+7}, {TOP}, v{T+7}
    s_waitcnt lgkmcnt(0)
    s_barrier
    """)
    k.stamp(3)
    k.lg.q = []; k.vm.q = []
    FILL.start(k)
    if isA: epi_attn(k, lab, st_pol, tQ, tK, tV)
    else: epi_B(k, lab, V, st_pol, tZ, isz2)
    after(k, V)

def gelu_pk(k, ys, c, t):
    n = range(len(ys))
    for i in n: k(pk("mul", t+2*i, [(ys[i], 0), (ys[i], 0)]))
    for i in n: k(pk("fma", t+2*i, [(t+2*i, 0), (c+1, 1), (c, 1)]))
    for i in n: k(pk("mul", t+2*i, [(t+2*i, 0), (ys[i], 0)]))
    for i in range(2*len(ys)): k(f"v_exp_f32 v{t+i}, v{t+i}")
    for i in n: k(pk("add", t+2*i, [(t+2*i, 0), ("1.0", 1)]))
    for i in range(2*len(ys)): k(f"v_rcp_f32 v{t+i}, v{t+i}")
    for i in n: k(pk("mul", ys[i], [(ys[i], 0), (t+2*i, 0)]))

def epi_B(k, lab, V, st_pol, tZ, isz2):
    J2 = [j for j in range(7) if isz2(j)]; J1 = [j for j in range(7) if not isz2(j)]
    vI4, vG16 = T+3, T+7
    c = T
    AR, BR = T+8, T+24
    C2 = T+40
    ST = T+48
    tmp = T+80
    AL = T+88
    ad = T+96
    coff = lambda j: (j*64 if j < 4 else 512 + (j-4)*64)
    k(f"""
    s_lshl_b32 s{sT}, s{sH}, 8
    s_add_u32 s{sT}, s{sT}, 64
    s_add_u32 s{sT+2}, s{sT}, s{sT+3}
    s_sub_u32 s{sT+5}, s{sT}, s{sT+3}
    v_add_u32 v{ad}, s{sT+2}, v{vG16}
    v_add_u32 v{ad+1}, s{sT+5}, v{vG16}
    v_add_u32 v{ad+2}, s{sT+2}, v{vI4}
    v_add_u32 v{ad+3}, s{sT+5}, v{vI4}
    v_add_u32 v{ad+4}, s{sT+1 if V == "B43" else sT+4}, v{vI4}
    v_add_u32 v{ad+5}, s{sT+4 if V == "B43" else sT+1}, v{vG16}
    """)
    for a in range(4):
        k.ds(f"ds_read_b128 {vr(AR + a*4)}, v{ad + (a>>1)} offset:{TA + a*64}", "t")
        k.ds(f"ds_read_b128 {vr(BR + a*4)}, v{ad + (a>>1)} offset:{TB + a*64}", "t")
    for n, j in enumerate(J2):
        for hh in range(2): k.ds(f"ds_read_b32 v{C2 + 2*n + hh}, v{ad+4} offset:{TC + hh*1024 + coff(j)}", "t")
    k(f"v_mov_b32 v{c}, {f2h(GC1)}\nv_mov_b32 v{c+1}, {f2h(GC2)}")
    k.wait(lg="t")
    for a in range(4):
        k.ds(f"ds_read_b32 v{AL + a}, v{ad + 2 + (a>>1)} offset:{TA + a*64}", "u")
        k.ds(f"ds_read_b32 v{AL + 4 + a}, v{ad + 2 + (a>>1)} offset:{TB + a*64}", "u")
    for n in range(len(J2)): k(f"v_add_f32 v{C2+2*n}, v{C2+2*n}, v{C2+2*n+1}")
    for n, j in enumerate(J2):
        for p in range(2):
            ys = [tZ(2*p + (i >> 1), j) + 2*(i & 1) for i in range(4)]
            ab = [(2*p + (i >> 1))*4 + 2*(i & 1) for i in range(4)]
            for i in range(4): k(pk("mul", tmp+2*i, [(BR+ab[i], 0), (C2+2*n, 1)]))
            for i in range(4): k(pk("fma", ys[i], [(AR+ab[i], 0), (ys[i], 0), (tmp+2*i, 0)]))
            gelu_pk(k, ys, c, tmp)
            for i in range(4):
                s_ = ST + (2*p + (i >> 1))*8 + 2*(i & 1); q_ = s_ + 4
                if n == 0: k(f"v_mov_b32 v{s_}, v{ys[i]}\nv_mov_b32 v{s_+1}, v{ys[i]+1}\n" + pk("mul", q_, [(ys[i], 0), (ys[i], 0)]))
                else: k(pk("add", s_, [(s_, 0), (ys[i], 0)]) + "\n" + pk("fma", q_, [(ys[i], 0), (ys[i], 0), (q_, 0)]))
            FILL(k, 3)
    k.stamp(4)
    C1 = T+8
    for n, j in enumerate(J1):
        for hh in range(2): k.ds(f"ds_read_b128 {vr(C1 + 8*n + 4*hh)}, v{ad+5} offset:{TC + hh*1024 + coff(j)}", "u")
    for n in range(16): k(f"v_add_f32_dpp v{ST+n}, v{ST+n}, v{ST+n} row_mirror row_mask:0xf bank_mask:0x3")
    for n in range(16): k(f"v_add_f32_dpp v{ST+n}, v{ST+16+n}, v{ST+16+n} row_mirror row_mask:0xf bank_mask:0xc")
    for n in range(8): k(f"v_add_f32_dpp v{ST+n}, v{ST+n}, v{ST+n} row_half_mirror row_mask:0xf bank_mask:0x5")
    for n in range(8): k(f"v_add_f32_dpp v{ST+n}, v{ST+8+n}, v{ST+8+n} row_half_mirror row_mask:0xf bank_mask:0xa")
    for n in range(8): k(f"v_add_f32_dpp v{ST+n}, v{ST+n}, v{ST+n} quad_perm:[1,0,3,2] row_mask:0xf bank_mask:0xf")
    for n in range(8): k(f"v_add_f32_dpp v{ST+n}, v{ST+n}, v{ST+n} quad_perm:[2,3,0,1] row_mask:0xf bank_mask:0xf")
    k(f"""
    v_lshrrev_b32 v{tmp}, 2, v2
    s_lshl_b32 s{sT+6}, s{sE}, 1
    v_xor_b32 v{tmp}, s{sT+6}, v{tmp}
    v_lshl_add_u32 v{tmp}, v{tmp}, 6, v{vG16}
    s_lshl_b32 s{sT+6}, s{sE}, 10
    s_lshl_b32 s{sT+7}, s{sH}, 8
    s_add_u32 s{sT+6}, s{sT+6}, s{sT+7}
    v_add_u32 v{tmp}, s{sT+6}, v{tmp}
    ds_write_b128 v{tmp}, {vr(ST)} offset:{PS}
    ds_write_b128 v{tmp}, {vr(ST+4)} offset:{PS + 512}
    v_and_b32 v{tmp+1}, 31, v0
    s_lshl_b32 s{sT+6}, s{sW}, 7
    s_add_u32 s{sT+6}, s{sT+6}, {TOP}
    v_lshl_add_u32 v{tmp+1}, v{tmp+1}, 2, s{sT+6}
    s_add_u32 s{sXs}, s{sWS}, {XS_OFF}
    s_addc_u32 s{sXs+1}, s{sWS+1}, 0
    s_mov_b32 s{sXs+2}, {XS_SZ}
    s_mov_b32 s{sXs+3}, 0x20000
    s_lshl_b32 s{sT+8}, s{sRB}, 14                 ; rb*16384
    s_lshl_b32 s{sT+6}, s{sCQ}, 12
    s_add_u32 s{sT+6}, s{sT+6}, {0 if V == "B43" else 2048}
    s_add_u32 s{sT+6}, s{sT+6}, s{sT+8}
    s_lshl_b32 s{sT+7}, s{sW}, 9
    s_add_u32 s{sT+6}, s{sT+6}, s{sT+7}
    v_mov_b32 v{ST+10}, s{sNON}
    v_mov_b32 v{ST+11}, s{sNON}
    s_waitcnt lgkmcnt(0)
    s_barrier
    ds_read_b32 v{ST+8}, v{tmp+1} offset:{PS}
    ds_read_b32 v{ST+9}, v{tmp+1} offset:{PS + 512}
    ds_read_b32 v{ST+12}, v{tmp+1} offset:{PS + 1024}
    ds_read_b32 v{ST+13}, v{tmp+1} offset:{PS + 1536}
    """)
    k.lg.q = []
    for n in range(len(J1)):
        for i in range(2): k(pk("add", C1+8*n+2*i, [(C1+8*n+2*i, 0), (C1+8*n+4+2*i, 0)]))
    k(f"""
    s_waitcnt lgkmcnt(0)
    {pk("add", ST+8, [(ST+8, 0), (ST+12, 0)])}
    s_mov_b64 exec, 0xffffffff
    buffer_store_dwordx4 {vr(ST+8)}, v{vL16}, s[{sXs}:{sXs+3}], s{sT+6} offen sc1
    s_mov_b64 exec, -1
    """)
    for n, j in enumerate(J1):
        for p in range(2):
            ys = [tZ(2*p + (i >> 1), j) + 2*(i & 1) for i in range(4)]
            for i in range(4): k(pk("mul", tmp+2*i, [(C1+8*n+2*(i & 1), 0), (AL+4+2*p+(i >> 1), 1)]))
            for i in range(4): k(pk("fma", ys[i], [(ys[i], 0), (AL+2*p+(i >> 1), 1), (tmp+2*i, 0)]))
            gelu_pk(k, ys, c, tmp)
            for i in range(4): k(f"v_cvt_pk_bf16_f32 v{tZ(2*p, j)+i}, v{ys[i]}, v{ys[i]+1}")
            FILL(k, 3)
    FILL.flush(k)
    k.stamp(5)
    G = T+8
    k(f"""
    s_lshl_b32 s{sT+6}, s{sH}, 10
    s_add_u32 s{sT+6}, s{sT+6}, s{sT+8}
    s_add_u32 s{sT+7}, s{sT+6}, 4096
    s_add_u32 s{sT+8}, s{sT+6}, 8192
    s_add_u32 s{sT+9}, s{sT+6}, 12288
    s_mov_b32 s{sT+10}, 0
    {lab}_poll:
    """)
    for cidx in range(8): k(f"buffer_load_dwordx4 {vr(G+4*cidx)}, v{vL16}, s[{sXs}:{sXs+3}], s{sT+6+(cidx>>1)} offen offset:{(cidx&1)*2048} sc1")
    k(f"s_add_u32 s{sT+10}, s{sT+10}, 1\ns_waitcnt vmcnt(0)")
    for cidx in range(8): k(f"v_xor_b32 v{G+4*cidx+3}, s{sNON}, v{G+4*cidx+2}")
    k(f"""
    v_or3_b32 v{G+3}, v{G+3}, v{G+7}, v{G+11}
    v_or3_b32 v{G+15}, v{G+15}, v{G+19}, v{G+23}
    v_or3_b32 v{G+3}, v{G+3}, v{G+27}, v{G+31}
    v_or_b32 v{G+3}, v{G+3}, v{G+15}
    v_cmp_ne_u32 vcc, 0, v{G+3}
    s_nop 3
    s_cmp_gt_u32 s{sT+10}, 100000
    s_cbranch_scc1 {lab}_got
    s_cbranch_vccnz {lab}_poll
    {lab}_got:
    """)
    k(f"""
    s_add_u32 s{sOr}, s{sWS}, {Z1L_OFF}
    s_addc_u32 s{sOr+1}, s{sWS+1}, 0
    s_mov_b32 s{sOr+2}, {Z1L_SZ}
    s_mov_b32 s{sOr+3}, 0x20000
    s_mov_b32 s{sPr}, s{sWS}
    s_mov_b32 s{sPr+1}, s{sWS+1}
    s_mov_b32 s{sPr+2}, {Z2F_SZ}
    s_mov_b32 s{sPr+3}, 0x20000
    s_lshl_b32 s{sT}, s{sRB}, 1
    s_add_u32 s{sT}, s{sT}, s{sH}
    s_mul_i32 s{sT}, s{sT}, 112
    s_mul_i32 s{sT+2}, s{sCQ}, 14
    s_add_u32 s{sT}, s{sT}, s{sT+2}
    s_mul_i32 s{sT+2}, s{sE}, 56
    s_add_u32 s{sT+5}, s{sT}, s{sT+2}
    s_sub_u32 s{sT+6}, s{sT}, s{sT+2}
    s_add_u32 s{sT+6}, s{sT+6}, 56
    s_lshl_b32 s{sT+5}, s{sT+5}, 10
    s_lshl_b32 s{sT+6}, s{sT+6}, 10
    s_lshl_b32 s{sT+1}, s{sT+1}, 4                 ; 4e*1024
    s_lshl_b32 s{sT+4}, s{sT+4}, 4
    s_add_u32 s{sT+4}, s{sT+4}, 8192               ; (8+3e)*1024
    s_add_u32 s{sT+7}, s{sT+5}, s{sT+1}
    s_add_u32 s{sT+8}, s{sT+6}, s{sT+1}
    s_add_u32 s{sT+9}, s{sT+5}, s{sT+4}
    s_add_u32 s{sT+10}, s{sT+6}, s{sT+4}
    """)
    so = lambda j, p: (sT+7+p if j < 4 else sT+9+p, (j if j < 4 else j-4)*1024)
    for i in range(4): k(pk("add", G+8*i, [(G+8*i, 0), (G+8*i+4, 0)]))
    for i in range(2): k(pk("add", G+16*i, [(G+16*i, 0), (G+16*i+8, 0)]))
    k(pk("add", G, [(G, 0), (G+16, 0)]))
    k(f"""
    v_mov_b32 v{G+2}, {f2h(1/896)}
    v_mul_f32 v{G}, v{G}, v{G+2}
    v_mul_f32 v{G+1}, v{G+1}, v{G+2}
    v_fma_f32 v{G+1}, -v{G}, v{G}, v{G+1}
    v_max_f32 v{G+1}, 0, v{G+1}
    """)
    bf16_round(k, G+1, G+1); k(f"v_add_f32 v{G+1}, {f2h(1e-5)}, v{G+1}"); bf16_round(k, G+1, G+1)
    k(f"v_sqrt_f32 v{G+1}, v{G+1}"); bf16_round(k, G, G); bf16_round(k, G+1, G+1)
    k(f"""
    v_rcp_f32 v{G+1}, v{G+1}
    s_lshl_b32 s{sT}, s{sW}, 9
    s_add_u32 s{sT+2}, s{sT}, {TOP}
    v_lshl_add_u32 v{G+2}, v0, 2, s{sT+2}
    v_mul_f32 v{G}, -v{G}, v{G+1}
    ds_write_b32 v{G+2}, v{G+1} offset:{NT}
    ds_write_b32 v{G+2}, v{G} offset:{NT + 256}
    s_add_u32 s{sT+2}, s{sT}, s{sT+3}
    s_sub_u32 s{sT}, s{sT}, s{sT+3}
    v_add_u32 v{ad}, s{sT+2}, v{vG16}
    v_add_u32 v{ad+1}, s{sT}, v{vG16}
    """)
    for j in J1:
        for p in range(2): k(f"buffer_store_dwordx4 {vr(tZ(2*p, j))}, v{vL16}, s[{sOr}:{sOr+3}], s{so(j,p)[0]} offen offset:{so(j,p)[1]} {st_pol}")
    k("s_waitcnt lgkmcnt(0)")
    NR, NM = T+48, T+64
    for a in range(4):
        k.ds(f"ds_read_b128 {vr(NR + a*4)}, v{ad + (a>>1)} offset:{NT + a*64}", f"n{a>>1}")
        k.ds(f"ds_read_b128 {vr(NM + a*4)}, v{ad + (a>>1)} offset:{NT + 256 + a*64}", f"n{a>>1}")
    for p in range(2):
        k.wait(lg=f"n{p}")
        for j in J2:
            ys = [tZ(2*p + (i >> 1), j) + 2*(i & 1) for i in range(4)]
            ab = [(2*p + (i >> 1))*4 + 2*(i & 1) for i in range(4)]
            for i in range(4): k(pk("fma", ys[i], [(ys[i], 0), (NR+ab[i], 0), (NM+ab[i], 0)]))
            for i in range(4): k(f"v_cvt_pk_bf16_f32 v{tZ(2*p, j)+i}, v{ys[i]}, v{ys[i]+1}")
            k(f"buffer_store_dwordx4 {vr(tZ(2*p, j))}, v{vL16}, s[{sPr}:{sPr+3}], s{so(j,p)[0]} offen offset:{so(j,p)[1]} {st_pol}")

def epi_attn(k, lab, st_pol, tQ, tK, tV):
    vI4, vG16 = T+3, T+7
    AL, BL = T+8, T+18
    CQ, CK, CV = T+28, T+32, T+27
    QP, KP, VP = T+36, T+52, T+70
    tmp = T+88
    MC, MP = T+96, T+98
    cS, cN = T, T+1
    RA = T+100
    k(f"v_add_u32 v{T+4}, s{sT+1}, v{vG16}\nv_add_u32 v{T+5}, s{sT+1}, v{vI4}")
    k.ds(f"ds_read_b128 {vr(CQ)}, v{T+4} offset:{TC}", "t")
    k.ds(f"ds_read_b128 {vr(CK)}, v{T+4} offset:{TC + 64}", "t")
    k.ds(f"ds_read_b32 v{CV}, v{T+5} offset:{TC + 128}", "t")
    for a in range(9):
        k.ds(f"ds_read_b32 v{AL+a}, v{vI4} offset:{TA + a*64}", f"l{a}")
        k.ds(f"ds_read_b32 v{BL+a}, v{vI4} offset:{TB + a*64}", f"l{a}")
    k(f"""
    v_and_b32 v{tmp}, 1, v2
    v_lshl_add_u32 v{tmp+1}, v1, 2, v{tmp}
    v_cmp_le_u32 s[{sM+2}:{sM+3}], v{tmp+1}, v2
    v_add_u32 v{tmp+1}, 2, v{tmp+1}
    v_cmp_le_u32 s[{sM+4}:{sM+5}], v{tmp+1}, v2
    v_lshlrev_b32 v{tmp}, 4, v{tmp}
    v_mov_b32 v{tmp+1}, 0xffff
    v_lshlrev_b32 v{tmp}, v{tmp}, v{tmp+1}
    v_cndmask_b32 v{MC}, 0, v{tmp}, s[{sM+2}:{sM+3}]
    v_cndmask_b32 v{MP}, v{tmp}, 0, s[{sM+2}:{sM+3}]
    v_cndmask_b32 v{MC+1}, 0, v{tmp}, s[{sM+4}:{sM+5}]
    v_cndmask_b32 v{MP+1}, v{tmp}, 0, s[{sM+4}:{sM+5}]
    v_mov_b32 v{cS}, {f2h(0.25*LOG2E)}
    v_mov_b32 v{cN}, {f2h(-1e30)}
    s_cmp_eq_u32 s{sRB}, 0
    s_cselect_b64 s[{sM+6}:{sM+7}], -1, 0
    """)
    for a in range(9):
        k.wait(lg=f"l{a}")
        tiles = [(tK(a), CK, KP+2*a)] + ([(tQ(a), CQ, QP+2*(a-1))] if a else [])
        for n, (y, cs, d) in enumerate(tiles):
            for i in range(2): k(pk("mul", tmp+4*n+2*i, [(cs+2*i, 0), (BL+a, 1)]))
        for n, (y, cs, d) in enumerate(tiles):
            for i in range(2): k(pk("fma", y+2*i, [(y+2*i, 0), (AL+a, 1), (tmp+4*n+2*i, 0)]))
        for n, (y, cs, d) in enumerate(tiles):
            for i in range(2): k(f"v_cvt_pk_bf16_f32 v{d+i}, v{y+2*i}, v{y+2*i+1}")
        FILL(k, 1)
    Sc = lambda a: tQ(a); Sp = lambda a: tK(a)
    RV = 256
    buf = [T+8, T+16, T+100]
    def rd(a):
        b = buf[a % 3]
        k.ds(f"ds_read_b128 {vr(b)}, v{vG16} offset:{TA + a*64}", f"v{a}")
        k.ds(f"ds_read_b128 {vr(b+4)}, v{vG16} offset:{TB + a*64}", f"v{a}")
    rd(0); rd(1)
    for a in range(1, 9):
        k(f"v_mfma_f32_16x16x16_bf16 {vr(Sc(a))}, {vr(KP+2*a, 2)}, {vr(QP+2*(a-1), 2)}, 0")
        k(f"v_mfma_f32_16x16x16_bf16 {vr(Sp(a))}, {vr(KP+2*(a-1), 2)}, {vr(QP+2*(a-1), 2)}, 0")
    for a in range(9):
        if a + 2 < 9: rd(a + 2)
        k.wait(lg=f"v{a}")
        b = buf[a % 3]; y = tV(a)
        for i in range(2): k(pk("mul", tmp+2*i, [(b+4+2*i, 0), (CV, 1)]))
        for i in range(2): k(pk("fma", y+2*i, [(b+2*i, 0), (y+2*i, 0), (tmp+2*i, 0)]))
        for i in range(2): k(f"v_cvt_pk_bf16_f32 v{VP+2*a+i}, v{y+2*i}, v{y+2*i+1}")
        FILL(k, 1)
    U = range(1, 9)
    X = lambda a: tV(a)
    for a in U:
        for v in range(2):
            k(f"v_cndmask_b32 v{X(a)+v}, v{Sc(a)+2*v}, v{Sc(a)+2*v+1}, s[{sM}:{sM+1}]")
            k(f"v_cndmask_b32 v{X(a)+2+v}, v{Sp(a)+2*v}, v{Sp(a)+2*v+1}, s[{sM}:{sM+1}]")
    for v in range(2): k(f"v_cndmask_b32 v{X(1)+2+v}, v{X(1)+2+v}, v{cN}, s[{sM+6}:{sM+7}]")
    for a in U:
        for v in range(2): k(f"v_cndmask_b32 v{X(a)+v}, v{X(a)+2+v}, v{X(a)+v}, s[{sM+2+2*v}:{sM+3+2*v}]")
    def allred(op):
        for sw in ("v_permlane16_swap_b32", "v_permlane32_swap_b32"):
            for a in U: k(f"v_mov_b32 v{X(a)+3}, v{X(a)+2}")
            for a in U: k(f"{sw} v{X(a)+2}, v{X(a)+3}")
            for a in U: k(f"{op} v{X(a)+2}, v{X(a)+2}, v{X(a)+3}")
            FILL(k, 2)
    FILL(k, 3)
    for a in U: k(f"v_max_f32 v{X(a)+2}, v{X(a)}, v{X(a)+1}")
    allred("v_max_f32")
    for a in U: k(f"v_pk_add_f32 {P(X(a))}, {P(X(a))}, {P(X(a)+2)} op_sel_hi:[1,0] neg_lo:[0,1] neg_hi:[0,1]")
    for a in U: k(pk("mul", X(a), [(X(a), 0), (cS, 1)]))
    for a in U:
        for v in range(2): k(f"v_exp_f32 v{X(a)+v}, v{X(a)+v}")
    for a in U: k(f"v_add_f32 v{X(a)+2}, v{X(a)}, v{X(a)+1}")
    allred("v_add_f32")
    for a in U: k(f"v_rcp_f32 v{X(a)+2}, v{X(a)+2}")
    for a in U: k(pk("mul", X(a), [(X(a), 0), (X(a)+2, 1)]))
    for a in U:
        for v in range(2): k(f"v_cvt_pk_bf16_f32 v{X(a)+v}, v{X(a)+v}, v{X(a)+v}")
    for a in U:
        for v in range(2): k(f"v_and_b32 v{Sc(a)+v}, v{X(a)+v}, v{MP+v}\nv_and_b32 v{Sc(a)+2+v}, v{X(a)+v}, v{MC+v}")
    for a in U: k(f"v_mfma_f32_16x16x32_bf16 {vr(Sp(a))}, {vr(VP+2*(a-1))}, {vr(Sc(a))}, 0")
    FILL.flush(k)
    OP = T+8
    k(f"""
    s_lshl_b32 s{sT}, s{sW}, 12
    s_add_u32 s{sT}, s{sT}, {TOP}
    v_add_u32 v{tmp}, s{sT}, v{vL16}
    s_and_b32 s{sT+1}, s{sW}, 2
    s_lshl_b32 s{sT+1}, s{sT+1}, 12
    s_and_b32 s{sT+2}, s{sW}, 1
    s_lshl_b32 s{sT+3}, s{sT+2}, 11
    s_add_u32 s{sT+1}, s{sT+1}, s{sT+3}
    s_add_u32 s{sT+1}, s{sT+1}, {TOP}
    v_add_u32 v{tmp+1}, s{sT+1}, v{vL16}
    s_add_u32 s{sOr}, s{sWS}, {A3_OFF}
    s_addc_u32 s{sOr+1}, s{sWS+1}, 0
    s_mov_b32 s{sOr+2}, {A3_SZ}
    s_mov_b32 s{sOr+3}, 0x20000
    s_lshl_b32 s{sT}, s{sRB}, 1
    s_add_u32 s{sT}, s{sT}, s{sT+2}
    s_mul_i32 s{sT}, s{sT}, 176
    s_lshl_b32 s{sT+1}, s{sSUB}, 1
    s_add_u32 s{sT}, s{sT}, s{sT+1}
    s_lshr_b32 s{sT+1}, s{sW}, 1
    s_add_u32 s{sT}, s{sT}, s{sT+1}
    s_lshl_b32 s{sT}, s{sT}, 10
    s_add_u32 s{sT+1}, s{sT}, {44*1024}
    s_add_u32 s{sT+2}, s{sT}, {88*1024}
    s_add_u32 s{sT+3}, s{sT}, {132*1024}
    """)
    for a in U:
        for d in range(2): k(f"v_cvt_pk_bf16_f32 v{OP+2*(a-1)+d}, v{Sp(a)+2*d}, v{Sp(a)+2*d+1}")
    k.stamp(4)
    for n in range(4): k(f"ds_write_b128 v{tmp}, {vr(OP+4*n)} offset:{OX + n*1024}")
    k("s_waitcnt lgkmcnt(0)\ns_barrier"); k.lg.q = []
    for n in range(4):
        o = OX + (n >> 1)*1024 + (n & 1)*8
        k.ds(f"ds_read_b64 {vr(OP+16+4*n, 2)}, v{tmp+1} offset:{o}", f"o{n}")
        k.ds(f"ds_read_b64 {vr(OP+18+4*n, 2)}, v{tmp+1} offset:{o + 4096}", f"o{n}")
    for n in range(4):
        k.wait(lg=f"o{n}")
        k(f"buffer_store_dwordx4 {vr(OP+16+4*n)}, v{vL16}, s[{sOr}:{sOr+3}], s{sT+n} offen {st_pol}")
    k.stamp(5)
```

```python
from asmlib import *
from layout import *
from f1 import pk, P, vL16
WREG = 33792
LDS2 = 4*WREG
RING = 1024
sAr, sZ2, sZ1, sA3, sBs = sR0, sR1, sR2, sR3, sR4
sRB2, sCB, sReg, sBo = 81, 82, 83, 73
sAo = [3, 10, 11, 26]
sU = 74
vAd = [4, 5]; vB1 = 6; vAr = [8, 9, 10, 11]; vRW = 12; vRR = [13, 14, 15]; BS = 16; vZ = 17
Z1 = 18
ACC = 32
RAW = 144
Z1 = 176
T = 192
BR = 256
AS = 256 + 112

def setup(k):
    k(f"""
    s_and_b32 s{sU}, s2, 7
    s_lshr_b32 s{sU+1}, s2, 3
    s_lshr_b32 s{sRB2}, s{sU}, 1
    s_lshl_b32 s{sRB2}, s{sRB2}, 3
    s_lshr_b32 s27, s{sU+1}, 2
    s_add_u32 s{sRB2}, s{sRB2}, s27
    s_and_b32 s{sCB}, s{sU}, 1
    s_lshl_b32 s{sCB}, s{sCB}, 2
    s_and_b32 s27, s{sU+1}, 3
    s_add_u32 s{sCB}, s{sCB}, s27
    s_mul_i32 s{sReg}, s{sW}, {WREG}
    v_add_u32 v{vB1}, 4096, v{vL16}
    v_and_b32 v8, 7, v0
    v_xor_b32 v8, v8, v1
    v_lshlrev_b32 v8, 4, v8
    v_lshrrev_b32 v9, 3, v0
    v_lshl_add_u32 v{vAd[0]}, v9, 12, v8
    v_xor_b32 v{vAd[1]}, 64, v{vAd[0]}
    v_add_u32 v{vAd[1]}, 0x8000, v{vAd[1]}
    """)
    for u in range(4):
        k(f"""
        s_xor_b32 s{sU}, s{sW}, {u}
        s_lshl_b32 s{sU+1}, s{sRB2}, 2
        s_add_u32 s{sU}, s{sU}, s{sU+1}
        s_lshl_b32 s{sU}, s{sU}, 16
        s_lshl_b32 s{sU+1}, s{sW}, 10
        s_add_u32 s{sAo[u]}, s{sU}, s{sU+1}
        """)
    k(f"""
    s_mul_i32 s{sBo}, s{sW}, {16*56*1024}
    s_mul_i32 s{sU}, s{sCB}, 7168
    s_add_u32 s{sBo}, s{sBo}, s{sU}
    """)


def dma_groups(k, nsl, a_pol=""):
    setup(k)
    k.srd(sAr, sWSP, 2048*4096)
    return [[f"s_add_u32 m0, s{sReg}, {RING + sl*8192 + m*1024 - 128*sl}", "s_nop 0",
             f"buffer_load_dwordx4 v{vAd[m&1]}, s[{sAr}:{sAr+3}], s{sAo[m>>1]} offen offset:{128*sl} {a_pol} lds"] for sl in range(nsl) for m in range(8)]

def gen_p2(k, name, wait_z2, done, st_pol="sc1", a_pol="", h_pol="", DB=4, pfb=0, tail=None, mid=None, pre=None):
    NS = 16
    vB = [vL16, vB1]
    if not wait_z2: k.srd(sAr, sWSP, 2048*4096)
    k.srd(sZ2, sWS, Z2F_SZ)
    def gA(sl, m):
        return [("i", f"s_add_u32 m0, s{sReg}, {RING + (sl%4)*8192 + m*1024 - 128*sl}"), ("i", "s_nop 0"),
                ("v", f"buffer_load_dwordx4 v{vAd[m&1]}, s[{sAr}:{sAr+3}], s{sAo[m>>1]} offen offset:{128*sl} {a_pol} lds", f"A{sl}")]
    def gB(s, j):
        g = [("i", f"s_add_u32 s{sT}, s{sBo}, {s*57344}")] if j == 0 else []
        return g + [("v", f"buffer_load_dwordx4 {vr(BR + (s%DB)*28 + j*4)}, v{vB[j//4]}, s[{sZ2}:{sZ2+3}], s{sT} offen offset:{(j%4)*1024} {h_pol}", f"B{s}")]
    def emit(item):
        if item[0] == "i": k(item[1])
        elif item[0] == "v": k.vmem(item[1], item[2])
        elif item[0] == "d": k.ds(item[1], item[2])
        elif item[0] == "w": k.wait(vm=item[1], lg=item[2])
    def em(gs):
        for g in gs:
            for it in g: emit(it)
    if not wait_z2: em([gA(0, m) for m in range(8)] + [gB(0, j) for j in range(7)])
    k(f"""
    s_add_u32 s{sZ1}, s{sWS}, {Z1L_OFF}
    s_addc_u32 s{sZ1+1}, s{sWS+1}, 0
    s_mov_b32 s{sZ1+2}, {Z1L_SZ}
    s_mov_b32 s{sZ1+3}, 0x20000
    s_add_u32 s{sA3}, s{sWS}, {A3_OFF}
    s_addc_u32 s{sA3+1}, s{sWS+1}, 0
    s_mov_b32 s{sA3+2}, {A3_SZ}
    s_mov_b32 s{sA3+3}, 0x20000
    """)
    k.srd(sBs, sBSP, 4096)
    k(f"""
    v_xor_b32 v3, v2, v1
    v_lshrrev_b32 v3, 1, v3                 ; (i>>1) ^ (g>>1)
    v_lshlrev_b32 v3, 4, v3
    v_lshl_add_u32 v3, v2, 7, v3
    v_and_b32 v7, 1, v1
    v_lshl_add_u32 v3, v7, 3, v3
    v_add_u32 v{vAr[0]}, s{sReg}, v3
    v_xor_b32 v{vAr[1]}, 32, v{vAr[0]}
    v_xor_b32 v{vAr[2]}, 64, v{vAr[0]}
    v_xor_b32 v{vAr[3]}, 96, v{vAr[0]}
    v_add_u32 v{vRW}, s{sReg}, v{vL16}
    """)
    for u in range(1, 4):
        k(f"""
        s_xor_b32 s{sT+1}, s{sW}, {u}
        s_mul_i32 s{sT+1}, s{sT+1}, {WREG}
        s_add_u32 s{sT+1}, s{sT+1}, {(u-1)*7168}
        v_add_u32 v{vRR[u-1]}, s{sT+1}, v{vL16}
        """)
    k(f"""
    s_lshl_b32 s{sT+4}, s{sRB2}, 1
    s_lshr_b32 s{sT+1}, s{sW}, 1
    s_add_u32 s{sT+4}, s{sT+4}, s{sT+1}
    s_mul_i32 s{sT+4}, s{sT+4}, 56
    s_mul_i32 s{sT+1}, s{sCB}, 7
    s_add_u32 s{sT+4}, s{sT+4}, s{sT+1}
    s_lshl_b32 s{sT+4}, s{sT+4}, 10
    s_and_b32 s{sT+1}, s{sW}, 1
    s_lshl_b32 s{sT+1}, s{sT+1}, 3
    s_add_u32 s{sT+2}, s{sT+4}, s{sT+1}
    s_lshl_b32 s{sT+3}, s{sRB2}, 2
    s_add_u32 s{sT+3}, s{sT+3}, s{sW}
    s_mul_i32 s{sT+4}, s{sT+3}, 44
    s_lshl_b32 s{sT+3}, s{sT+3}, 5
    s_mul_i32 s{sT+1}, s{sCB}, 7
    s_lshr_b32 s{sT+1}, s{sT+1}, 1
    s_add_u32 s{sT+4}, s{sT+4}, s{sT+1}
    s_add_u32 s{sT+4}, s{sT+4}, 16
    s_lshl_b32 s{sT+4}, s{sT+4}, 10
    v_lshlrev_b32 v{vZ}, 1, v2
    """)
    if pfb:
        for i in range(2):
            k(f"""
            v_add_u32 v3, {64*i}, v0
            v_mul_u32_u24 v7, 147, v3
            v_lshrrev_b32 v7, 10, v7
            v_mul_u32_u24 v{24+i}, {57344 - 7168}, v7
            v_lshl_add_u32 v{24+i}, v3, 10, v{24+i}
            """)
        k(f"v_cmp_gt_u32 vcc, {(16-DB+1)*7 - 64}, v0\nv_cndmask_b32 v25, -1, v25, vcc")
    k.vmem(f"buffer_load_ushort v{BS}, v{vZ}, s[{sBs}:{sBs+3}], s{sT+3} offen", "bs")
    def R(s, dst=None):
        d = RAW + (s&1)*16 if dst is None else dst
        return [("d", f"ds_read_b64 {vr(d + u*4 + 2*j2, 2)}, v{vAr[2*(s&1) + j2]} offset:{RING + ((s>>1)%4)*8192 + u*2048}", f"R{s}") for u in range(4) for j2 in range(2)]
    if wait_z2:
        for sl in range(4):
            for it in R(2*sl, AS + 32*sl) + R(2*sl + 1, AS + 32*sl + 16): emit(it)
            if sl: em([gA(sl + 3, m) for m in range(8)])
            k.wait(lg=f"R{2*sl+1}")
        em([gA(7, m) for m in range(8)])
        if pre: pre(k)
        wait_z2(k)
        em([gB(s, j) for s in range(DB - 1) for j in range(7)])
        if pfb:
            k(f"""
            s_and_b32 s{sT}, s{sRB2}, 7
            s_lshl_b32 s{sT}, s{sT}, 7
            s_add_u32 s{sT}, s{sT}, s{sBo}
            s_add_u32 s{sT}, s{sT}, {(DB-1)*57344}
            """)
            for i in range(2):
                k.vmem(f"buffer_load_dword v31, v{24+i}, s[{sZ2}:{sZ2+3}], s{sT} offen {h_pol}", "pfb")
        pend = []
    else:
        pend = [gB(1, j) for j in range(7)] + [gA(1, m) for m in range(8)] + [gB(2, j) for j in range(7)] + [gA(2, m) for m in range(8)]
        em(pend[:15]); pend = pend[15:]
    k.stamp(1)
    if not wait_z2:
        k.wait(vm="A0")
        for it in R(0): emit(it)
    Aop = lambda s: AS + 16*s if (wait_z2 and s < 8) else RAW + (s&1)*16
    for s in range(NS):
        if s == 1: k.stamp(2)
        MF = []
        for j in range(7):
            for u in range(4):
                a = ACC + (u*7 + j)*4
                MF.append(f"v_mfma_f32_16x16x32_bf16 {vr(a)}, {vr(BR + (s%DB)*28 + j*4)}, {vr(Aop(s) + u*4)}, {vr(a) if s else '0'}")
        slots = [[] for _ in range(29)]
        slots[0].append(("w", f"B{s}", f"R{s}"))
        if s + 1 < NS and not (wait_z2 and s + 1 < 8):
            slots[1].append(("w", f"A{(s+1)>>1}", None))
            for u, it in enumerate(R(s + 1)): slots[1 + u].append(it)
        G = list(pend); pend = []
        if s + DB - 1 < NS: G += [gB(s + DB - 1, j) for j in range(7)]
        sl = (s >> 1) + 3; hf = s & 1
        if sl < 8 and not wait_z2:
            for m in range(4*hf, 4*hf + 4): G.insert(min(len(G), len(G) - 7 + 2*(m % 4) + 1) if len(G) >= 7 else len(G), gA(sl, m))
        if s == 13:
            G += [[("v", f"buffer_load_dwordx2 {vr(Z1 + 2*j, 2)}, v{vB[j//4]}, s[{sZ1}:{sZ1+3}], s{sT+2} offen offset:{(j%4)*1024} {h_pol}", "z1")] for j in range(7)]
        if tail: G += tail(k, s)
        for n, g in enumerate(G): slots[1 + n*27//max(1, len(G))] += g
        for i, m in enumerate(MF):
            for it in slots[i]: emit(it)
            k(m)
        for it in slots[28]: emit(it)
    k.stamp(3)
    for u in range(1, 4):
        for j in range(7):
            k.ds(f"ds_write_b128 v{vRW}, {vr(ACC + (u*7+j)*4)} offset:{(u-1)*7168 + j*1024}", "rw")
    k.wait(vm="z1")
    ZU = 192
    for j in range(7):
        for d in range(2):
            k(f"v_lshlrev_b32 v{ZU + j*4 + 2*d}, 16, v{Z1 + 2*j + d}\nv_and_b32 v{ZU + j*4 + 2*d + 1}, 0xffff0000, v{Z1 + 2*j + d}")
    k(f"v_lshlrev_b32 v{BS}, 16, v{BS}")
    for j in range(7):
        for d in range(2): k(pk("add", ACC + j*4 + 2*d, [(ACC + j*4 + 2*d, 0), (BS, 1)]))
    k("s_waitcnt lgkmcnt(0)\ns_barrier"); k.lg.q = []
    k.stamp(4)
    Pp = ACC + 28
    for j in range(7):
        for u in range(3):
            k.ds(f"ds_read_b128 {vr(Pp + j*12 + u*4)}, v{vRR[u]} offset:{j*1024}", f"p{j}")
    H = 224
    for j in range(7):
        k.wait(lg=f"p{j}")
        p = Pp + j*12; g = ACC + j*4
        for d in range(2): k(pk("add", g+2*d, [(g+2*d, 0), (p+2*d, 0)]))
        for d in range(2): k(pk("add", p+4+2*d, [(p+4+2*d, 0), (p+8+2*d, 0)]))
        for d in range(2): k(pk("add", g+2*d, [(g+2*d, 0), (p+4+2*d, 0)]))
        for d in range(2): k(pk("mul", g+2*d, [(g+2*d, 0), (ZU+j*4+2*d, 0)]))
        for d in range(2): k(f"v_cvt_pk_bf16_f32 v{H+2*j+d}, v{g+2*d}, v{g+2*d+1}")
    k(f"s_bitcmp1_b32 s{sCB}, 0\ns_cbranch_scc1 L_{name}_odd")
    for q in range(4): k.vm.issue("hs")
    for q in range(3): k(f"buffer_store_dwordx4 {vr(H+4*q)}, v{vL16}, s[{sA3}:{sA3+3}], s{sT+4} offen offset:{q*1024} {st_pol}")
    k(f"buffer_store_dwordx2 {vr(H+12, 2)}, v{vL16}, s[{sA3}:{sA3+3}], s{sT+4} offen offset:3072 {st_pol}")
    k(f"s_branch L_{name}_hdone\nL_{name}_odd:")
    k(f"buffer_store_dwordx2 {vr(H, 2)}, v{vL16}, s[{sA3}:{sA3+3}], s{sT+4} offen offset:8 {st_pol}")
    for q in range(3): k(f"buffer_store_dwordx4 {vr(H+2+4*q)}, v{vL16}, s[{sA3}:{sA3+3}], s{sT+4} offen offset:{(q+1)*1024} {st_pol}")
    k(f"L_{name}_hdone:")
    done(k)
```

```python
from asmlib import *
from layout import *
from f1 import pk, P, vL16, TOP
from f2 import WREG, sRB2, sCB, sReg, sA3
sWoR, sWuR, sXr3, sOr3 = sR0, sR1, sR2, sR4
vWd, vT, vRW, vRR, vX = 4, [5, 7], 8, [9, 10], 11
vA = [vL16, 6]
XD = 12
ACC = 32
BF = 96
AO = 256 + 112
AH = 256
sAo = [3, 10, 11, 26]; sXo = [27, 73]; sSo = [74, 75]; sTop = 76; sNB = 77


def stage(s):
    if s < 3: return (sReg, 21504 + s*4096)
    if s == 3: return (sTop, 0)
    if s < 9: return (sReg, (s - 4)*4096)
    return (sReg, 21504 + (s - 9)*4096)
def gW(s):
    srd = sWoR if s < 4 else sWuR
    b, o = stage(s)
    G = []
    for q in range(2):
        for m2 in range(2):
            G.append([("i", f"s_add_u32 m0, s{b}, {o + q*2048 + m2*1024 - 64*q}"), ("i", "s_nop 0"),
                      ("v", f"buffer_load_dwordx4 v{vWd}, s[{srd}:{srd+3}], s{sSo[m2]} offen offset:{64*q} lds", f"W{s}")])
    G[-1].append(("i", f"s_add_u32 s{sSo[0]}, s{sSo[0]}, 32768\ns_add_u32 s{sSo[1]}, s{sSo[1]}, 32768"))
    return G
def early_setup(k):
    k(f"""
    v_and_b32 v22, 1, v1
    v_lshlrev_b32 v22, 1, v22
    v_and_b32 v3, 3, v0
    v_xor_b32 v22, v3, v22
    v_lshlrev_b32 v22, 4, v22
    v_lshrrev_b32 v23, 2, v0
    v_lshl_add_u32 v{vWd}, v23, 10, v22
    s_lshl_b32 s{sNB}, s{sCB}, 7
    s_lshl_b32 s{sSo[0]}, s{sW}, 17
    s_add_u32 s{sSo[0]}, s{sSo[0]}, s{sNB}
    s_add_u32 s{sSo[1]}, s{sSo[0]}, 16384
    s_mul_i32 s{sTop}, s{sW}, 4096
    s_add_u32 s{sTop}, s{sTop}, {TOP}
    s_mul_i32 s{sAo[0]}, s{sRB2}, 176
    s_lshl_b32 s{sAo[1]}, s{sW}, 2
    s_add_u32 s{sAo[0]}, s{sAo[0]}, s{sAo[1]}
    s_lshl_b32 s{sAo[0]}, s{sAo[0]}, 10
    s_add_u32 s{sAo[1]}, s{sAo[0]}, {44*1024}
    s_add_u32 s{sAo[2]}, s{sAo[0]}, {88*1024}
    s_add_u32 s{sAo[3]}, s{sAo[0]}, {132*1024}
    """)
    k.srd(sWoR, sWO, 512*1024)
def tail(h_pol):
    def f(k, s):
        gO = lambda t: [[("v", f"buffer_load_dwordx4 {vr(AO + t*16 + u*4)}, v{vL16}, s[{sA3}:{sA3+3}], s{sAo[u]} offen offset:{t*1024} {h_pol}", f"A{t}")] for u in range(4)]
        if s == 13: return gO(0) + gO(1)
        if s == 14: return gO(2) + gO(3) + gW(3*0 + 3)[:0]
        if s == 15: return gW(0) + gW(1) + gW(2) + gW(3)
        return []
    return f

def gen_p3(k, name, flag, wait_h, st_pol="sc1", h_pol="sc1"):
    def em(gs):
        for g in gs:
            for it in g:
                if it[0] == "i": k(it[1])
                else: k.vmem(it[1], it[2])
    k(f"""
    s_barrier
    s_mul_i32 s{sSo[0]}, s{sW}, {7*32768}
    s_add_u32 s{sSo[0]}, s{sSo[0]}, s{sNB}
    s_add_u32 s{sSo[1]}, s{sSo[0]}, 16384
    """)
    k.srd(sWuR, sWOUT, 896*1024)
    em(gW(4) + gW(5))
    k(f"""
    v_and_b32 v12, 1, v1
    v_lshlrev_b32 v12, 1, v12
    v_bfe_u32 v13, v0, 1, 1
    v_xor_b32 v13, v13, v12
    v_lshlrev_b32 v13, 4, v13
    v_lshrrev_b32 v14, 2, v0
    v_lshl_add_u32 v13, v14, 6, v13
    v_and_b32 v15, 1, v0
    v_lshl_add_u32 v13, v15, 3, v13
    v_add_u32 v{vT[0]}, s{sReg}, v13
    v_xor_b32 v{vT[1]}, 32, v{vT[0]}
    v_add_u32 v22, s{sTop}, v13
    v_xor_b32 v23, 32, v22
    """)
    def step(s, A):
        b = BF + (s & 1)*16
        base = vT if s != 3 else [22, 23]
        for j in range(4):
            for j2 in range(2):
                k.ds(f"ds_read_b64_tr_b16 {vr(b + j*4 + j2*2, 2)}, v{base[j&1]} offset:{stage(s)[1] + (j>>1)*2048 + j2*1024}", f"b{s}_{j}")
        return [(f"b{s}_{j}", [f"v_mfma_f32_16x16x32_bf16 {vr(ACC + (u*4+j)*4)}, {vr(b + j*4)}, {vr(A + u*4)}, {vr(ACC + (u*4+j)*4) if s else '0'}" for u in range(4)]) for j in range(4)]
    k.wait(vm="W3")
    nxt = step(0, AO)
    later = gW(6) + gW(7) + gW(8)
    for s in range(4):
        cur = nxt
        for n, (tag, M) in enumerate(cur):
            k.wait(lg=tag)
            for m in M: k(m)
            if n == 0 and s < 3: nxt = step(s + 1, AO + (s + 1)*16)
            if s < 2: em([later.pop(0)] if n & 1 else [later.pop(0), later.pop(0)])
        if s == 1: flag(k)
    em(gW(9) + gW(10))
    k(f"""
    v_mul_u32_u24 v13, 272, v2
    v_lshl_add_u32 v13, v1, 4, v13
    v_add_u32 v{vRW}, s{sReg}, v13
    v_lshrrev_b32 v13, 3, v0
    v_and_b32 v14, 7, v0
    v_mul_u32_u24 v15, 272, v13
    v_lshl_add_u32 v15, v14, 5, v15
    s_mul_i32 s{sT+2}, s{sW}, 4352
    v_add_u32 v{vRR[0]}, s{sT+2}, v15
    v_add_u32 v{vRR[1]}, {2*WREG}, v{vRR[0]}
    v_lshlrev_b32 v14, 4, v14
    v_lshl_add_u32 v{vX}, v13, 10, v14
    s_lshl_b32 s{sT+1}, s{sRB2}, 2
    s_add_u32 s{sT+1}, s{sT+1}, s{sW}
    s_lshl_b32 s{sT+1}, s{sT+1}, 14
    s_add_u32 s{sXo[0]}, s{sT+1}, s{sNB}
    s_add_u32 s{sXo[1]}, s{sXo[0]}, 8192
    s_mul_i32 s{sT+1}, s{sW}, 3
    s_add_u32 s{sT+1}, s{sT+1}, 16
    s_lshl_b32 s{sT+1}, s{sT+1}, 10
    """)
    for u in range(4): k(f"s_add_u32 s{sAo[u]}, s{sAo[u]}, s{sT+1}")
    k.srd(sXr3, sX, 2048*1024)
    for i2 in range(2):
        k.vmem(f"buffer_load_dwordx4 {vr(XD + 4*i2)}, v{vX}, s[{sXr3}:{sXr3+3}], s{sXo[i2]} offen", "x")
    k.stamp(6)
    wait_h(k)
    for s in range(7):
        for u in range(4):
            k.vmem(f"buffer_load_dwordx4 {vr(AH + s*16 + u*4)}, v{vA[s//4]}, s[{sA3}:{sA3+3}], s{sAo[u]} offen offset:{(s%4)*1024} {h_pol}", f"H{s}")
    k.wait(vm="x")
    nxt = step(4, AH)
    for s in range(4, 11):
        cur = nxt
        k.wait(vm=f"H{s-4}")
        for n, (tag, M) in enumerate(cur):
            k.wait(lg=tag)
            for m in M: k(m)
            if n == 0 and s < 10: nxt = step(s + 1, AH + (s - 3)*16)
    k.stamp(7)
    for j in range(4):
        for u in range(4):
            k.ds(f"ds_write_b128 v{vRW}, {vr(ACC + (u*4+j)*4)} offset:{u*4352 + j*64}", "rw")
    XU = 128
    for i2 in range(2):
        for d in range(4):
            k(f"v_lshlrev_b32 v{XU + i2*8 + 2*d}, 16, v{XD + i2*4 + d}")
            k(f"v_and_b32 v{XU + i2*8 + 2*d + 1}, 0xffff0000, v{XD + i2*4 + d}")
    k("s_waitcnt lgkmcnt(0)\ns_barrier"); k.lg.q = []
    R = 32
    for i2 in range(2):
        for src in range(4):
            for hf in range(2):
                k.ds(f"ds_read_b128 {vr(R + i2*32 + src*8 + hf*4)}, v{vRR[src>>1]} offset:{(src&1)*WREG + i2*8*272 + hf*16}", f"r{i2}")
    for i2 in range(2):
        k.wait(lg=f"r{i2}")
        b = R + i2*32
        for e in range(0, 8, 2): k(pk("add", b+e, [(b+e, 0), (b+8+e, 0)]))
        for e in range(0, 8, 2): k(pk("add", b+16+e, [(b+16+e, 0), (b+24+e, 0)]))
        for e in range(0, 8, 2): k(pk("add", b+e, [(b+e, 0), (XU+i2*8+e, 0)]))
        for e in range(0, 8, 2): k(pk("add", b+e, [(b+e, 0), (b+16+e, 0)]))
        for d in range(4): k(f"v_cvt_pk_bf16_f32 v{XD + i2*4 + d}, v{b+2*d}, v{b+2*d+1}")
        k(f"buffer_store_dwordx4 {vr(XD + i2*4)}, v{vX}, s[{sOr3}:{sOr3+3}], s{sXo[i2]} offen {st_pol}")
```

```python
import sys
sys.path.insert(0, "gen")
from build import *
from layout import *
import f1, f2, f3
NAME = "parallel_sum__sliding_local_dilated__mixer_gmlp__prompt_kernel"
args = sys.argv[2:]
K.diag = "c" if "c" in args else "h" if "h" in args else ("d" in args)
kv = dict(a.split("=") for a in args if "=" in a)
for o in args:
    if o not in 'dch' and '=' not in o: f1.OPT[o] = 1
K.dbgslot = 0
pol = lambda n, d: kv.get(n, d).replace("_", " ").replace("-", "")
k = K(NAME); n = "F"
real_stamp = K.stamp
PH = {"p": 1}
MAP = {1: {0: 0, 2: 1}, 2: {3: 4}, 3: {6: 6}}
P1D = "p1" in args
if P1D: MAP = {1: {0: 0, 1: 1, 2: 2, 3: 3, 4: 4, 5: 5}}
P3D = "p3" in args
if P3D: MAP = {2: {3: 0, 4: 1}, 3: {6: 4, 7: 6}}
_rs = real_stamp
def real_stamp(k, i):
    if P3D:
        if i in (5, 8, 9): _rs(k, {5: 2, 8: 3, 9: 5}[i])
        return
    if i > 7: return
    if P1D and PH.get("direct", True):
        if i == 2: _rs(k, 6)
        if i == 3: _rs(k, 7)
    else: _rs(k, i)
def stamp(self, i):
    m = MAP.get(PH["p"], {})
    if i in m: _rs(self, m[i])
K.stamp = stamp
sFl = sR4
def flag_srd(k, s):
    k(f"s_add_u32 s{s}, s{sWS}, {FL_OFF}\ns_addc_u32 s{s+1}, s{sWS+1}, 0\ns_mov_b32 s{s+2}, {FL_SZ}\ns_mov_b32 s{s+3}, 0x20000")
def set_flag(k, lab, soff_code, lanes, vstride_shift, tag=None):
    if tag: k.wait(vm=tag)
    else: k("s_waitcnt vmcnt(0)"); k.vm.q = []
    k(f"s_barrier\ns_cmp_lg_u32 s{sW}, 0\ns_cbranch_scc1 {lab}")
    flag_srd(k, sFl)
    k(soff_code)
    k(f"v_lshlrev_b32 v28, {vstride_shift}, v0\nv_mov_b32 v29, s{sNON}\ns_mov_b64 exec, {(1 << lanes) - 1}")
    k(f"buffer_store_dword v29, v28, s[{sFl}:{sFl+3}], s{sT} offen sc1\ns_mov_b64 exec, -1\n{lab}:")
def after1(k, V):
    real_stamp(k, 2)
    if NOFILL:
        for g in f2.dma_groups(K("x"), 4):
            for l in g: k(l)
    if V == "A":
        code = f"s_lshl_b32 s{sT}, s{f1.sRB}, 3\ns_add_u32 s{sT}, s{sT}, s{f1.sSUB}\ns_lshl_b32 s{sT}, s{sT}, 2\ns_add_u32 s{sT}, s{sT}, {FD}"
    else:
        code = f"s_lshl_b32 s{sT}, s{f1.sRB}, 2\ns_add_u32 s{sT}, s{sT}, s{f1.sCQ}\ns_lshl_b32 s{sT}, s{sT}, 3\ns_add_u32 s{sT}, s{sT}, {FZ2 + (0 if V == 'B43' else 4)}"
    set_flag(k, f"L_{n}_fl{V}", code, 8, 9)
    if V != "B34": k(f"s_branch L_{n}_p2")
def poll(k, lab, loads, nreg):
    k(f"s_cmp_lg_u32 s{sW}, 0\ns_cbranch_scc1 {lab}_go")
    flag_srd(k, sFl)
    loads(k, True)
    k(f"s_mov_b32 s{sT+10}, 0\n{lab}:")
    loads(k, False)
    k(f"s_add_u32 s{sT+10}, s{sT+10}, 1\ns_waitcnt vmcnt(0)")
    for r in range(nreg): k(f"v_xor_b32 v{28+r}, s{sNON}, v{28+r}")
    for r in range(1, nreg): k(f"v_or_b32 v28, v28, v{28+r}")
    k(f"v_cmp_ne_u32 vcc, 0, v28\ns_nop 3\ns_cmp_gt_u32 s{sT+10}, 100000\ns_cbranch_scc1 {lab}_go\ns_cbranch_vccnz {lab}\n{lab}_go:\ns_barrier")
def wait_z2(k):
    def loads(k, pre):
        if pre:
            k(f"""
            s_and_b32 s{sT+8}, s2, 7
            s_lshl_b32 s{sT+8}, s{sT+8}, 9
            s_lshr_b32 s{sT+9}, s{f2.sRB2}, 1
            s_lshl_b32 s{sT+9}, s{sT+9}, 5
            s_add_u32 s{sT+9}, s{sT+9}, s{sT+8}
            v_lshlrev_b32 v26, 3, v0
            v_and_b32 v27, 7, v0
            v_lshlrev_b32 v27, 2, v27
            """)
        else:
            k(f"buffer_load_dwordx2 v[28:29], v26, s[{sFl}:{sFl+3}], s{sT+8} offen offset:{FZ2} sc1")
            k(f"s_add_u32 s{sT+11}, s{sT+9}, {FD}\nbuffer_load_dword v30, v27, s[{sFl}:{sFl+3}], s{sT+11} offen sc1")
    poll(k, f"L_{n}_pz", loads, 3)
    k.srd(f2.sBs, sBSP, 4096)
    real_stamp(k, 3)
def done2(k): real_stamp(k, 5)
def flag2(k):
    code = f"s_lshl_b32 s{sT}, s{f2.sRB2}, 7\ns_lshl_b32 s{sT+1}, s{f2.sCB}, 2\ns_add_u32 s{sT}, s{sT}, s{sT+1}\ns_add_u32 s{sT}, s{sT}, {FH}"
    set_flag(k, f"L_{n}_flh", code, 1, 2, tag="hs")
    real_stamp(k, 8)
def wait_h(k):
    def loads(k, pre):
        if pre: k(f"s_lshl_b32 s{sT+8}, s{f2.sRB2}, 7\ns_add_u32 s{sT+8}, s{sT+8}, {FH}\nv_and_b32 v27, 7, v0\nv_lshlrev_b32 v27, 2, v27")
        else: k(f"buffer_load_dword v28, v27, s[{sFl}:{sFl+3}], s{sT+8} offen sc1")
    poll(k, f"L_{n}_ph", loads, 1)
    k.srd(f3.sOr3, sOUT, 2048*1024)
    real_stamp(k, 9)
f1.OPT["bulk"] = (pol("bulk", "-") or 1) if kv.get("bulk") != "0" else 0
def pre2(k):
    f3.early_setup(k)
    if int(kv.get("pf3", 1)):
        k.srd(sR4, sWOUT, 896*1024)
        k(f"""
        s_lshr_b32 s{sT}, s2, 3
        s_lshl_b32 s{sT}, s{sT}, 2
        s_add_u32 s{sT}, s{sT}, s{sW}
        s_and_b32 s{sT+1}, s2, 1
        s_lshl_b32 s{sT+1}, s{sT+1}, 9
        v_lshrrev_b32 v22, 2, v0
        v_and_b32 v23, 3, v0
        v_lshlrev_b32 v23, 7, v23
        v_lshl_add_u32 v22, v22, 10, v23
        s_mul_i32 s{sT+5}, s{sT}, 7168
        s_add_u32 s{sT+5}, s{sT+5}, s{sT+1}
        s_lshl_b32 s{sT+6}, s{sT}, 12
        s_add_u32 s{sT+6}, s{sT+6}, s{sT+1}
        s_bfe_u32 s{sT+7}, s2, 0x20001
        s_lshl_b32 s{sT+7}, s{sT+7}, 19
        s_add_u32 s{sT+7}, s{sT+7}, s{sT+6}
        s_mov_b64 exec, 0xfffffff
        """)
        k.vmem(f"buffer_load_dword v31, v22, s[{sR4}:{sR4+3}], s{sT+5} offen", "pf3")
        k.srd(sR4, sX, 2048*1024)
        k("s_mov_b64 exec, 0xffff")
        k.vmem(f"buffer_load_dword v31, v22, s[{f3.sWoR}:{f3.sWoR+3}], s{sT+6} offen", "pf3")
        k.vmem(f"buffer_load_dword v31, v22, s[{sR4}:{sR4+3}], s{sT+7} offen", "pf3")
        k("s_mov_b64 exec, -1")
f1.prologue(k, n)
NOFILL = 'nofill' in args
f1.FILL.mk = (lambda k: [sum(f2.dma_groups(k, 4), [])][:0]) if NOFILL else (lambda k: f2.dma_groups(k, 4))
f1.gen_p1(k, n, after1, st_pol="sc1", pf=int(kv.get("pf", 1)))
k(f"L_{n}_p2:")
PH["p"] = 2
k.vm.q = []; k.lg.q = []
f2.gen_p2(k, n, wait_z2, done2, st_pol="sc1", h_pol=pol("h2", "sc1"), DB=int(kv.get("DB", 4)), pfb=int(kv.get("pfb", 0)), tail=f3.tail(pol("h3", "sc1")), pre=pre2)
PH["p"] = 3
f3.gen_p3(k, n, flag2, wait_h, st_pol=pol("st3", "sc1"), h_pol=pol("h3", "sc1"))
K.stamp = (lambda self, i: None) if P1D else _rs
k.stamp_end(0, sWS, sW, 7)
k(f"L_{n}_end:\ns_endpgm")
txt = assemble([(k, 512, 256, f1.LDSF)]).replace(f"; @launch kernel={NAME} grid", "; @launch grid")
open(sys.argv[1], "w").write(txt)
check(sys.argv[1], NAME)
```

```python
from asmlib import *
from layout import *
import struct
def f2h(x): return hex(struct.unpack("<I", struct.pack("<f", x))[0])
OPT = {}
XW = 18432
STG = XW + 7*4096
LDS1 = 3*STG
TOP = 135168
TA, TB, TC, PS, OX, NT = 0, 1024, 2048, 4096, 8192, 6144
LDSF = 163840
LOG2E = 1.4426950408889634
GC1 = -2*0.7978845608028654*LOG2E
GC2 = GC1*0.044715
sXr, sWr, sOr, sPr, sXs = sR0, sR1, sR2, sR3, sR4
sRB, sCQ, sSUB, sH, sE = 76, 77, 78, 79, 80
sXo = [81, 82]; sWo = [83, 26]; sHo, sXl, sWl = 27, 3, 10
sSt, sDelta, sI, sA, sB, sSTG = 100, 101, 11, 74, 75, 73
vXe, vXo, vWd, vH = 4, 5, 6, 7
vL16, vNon, vZero = 20, 21, 22
ONES = 24
ACC = 32
T = 144
FR = 256
XA = 256 + 112

def bf16_round(k, dst, src):
    k(f"v_cvt_pk_bf16_f32 v{dst}, v{src}, v{src}\nv_and_b32 v{dst}, 0xffff0000, v{dst}")
def P(r): return f"v[{r}:{r+1}]"
def pk(op, d, srcs):
    ops, lo, hi = [], [], []
    for r, bc in srcs:
        if isinstance(r, str): ops.append(r); lo.append(0); hi.append(0)
        elif bc: ops.append(P(r & ~1)); lo.append(r & 1); hi.append(r & 1)
        else: ops.append(P(r)); lo.append(0); hi.append(1)
    m = ""
    if any(lo): m += " op_sel:[" + ",".join(map(str, lo)) + "]"
    if not all(hi): m += " op_sel_hi:[" + ",".join(map(str, hi)) + "]"
    return f"v_pk_{op}_f32 {P(d)}, " + ", ".join(ops) + m

def prologue(k, name):
    k(f"""
    L_{name}_code:
    s_cmp_ge_u32 s2, 256
    s_cbranch_scc1 L_{name}_end
    s_load_dwordx16 s[4:19], s[0:1], 0
    s_load_dwordx4 s[20:23], s[0:1], {KA_OUT}
    s_load_dwordx2 s[24:25], s[0:1], {KA_WS}
    v_lshrrev_b32 v1, 6, v0
    v_and_b32 v0, 63, v0
    v_readfirstlane_b32 s{sW}, v1
    v_lshrrev_b32 v1, 4, v0                 ; g
    v_and_b32 v2, 15, v0                    ; i
    v_lshlrev_b32 v{vL16}, 4, v0
    """)

class Fill:
    def __init__(self, mk=None): self.mk = mk; self.q = []
    def start(self, k):
        self.q = self.mk(k) if self.mk else []
    def __call__(self, k, n):
        for _ in range(n):
            if self.q:
                for it in self.q.pop(0):
                    if it[0] == "i": k(it[1])
                    elif it[0] == "v": k.vmem(it[1], it[2])
                    elif it[0] == "d": k.ds(it[1], it[2])
                    else: k.wait(vm=it[1], lg=it[2])
    def flush(self, k): self(k, len(self.q))
FILL = Fill()

def gen_p1(k, name, after, st_pol="sc1", ld_pol="", pf_pol="", pf=True):
    k(f"""
    s_and_b32 s{sT}, s2, 7
    s_lshr_b32 s{sT+1}, s2, 3
    s_lshr_b32 s{sRB}, s{sT}, 2
    s_lshl_b32 s{sRB}, s{sRB}, 3
    s_lshr_b32 s{sT+2}, s{sT+1}, 2
    s_add_u32 s{sRB}, s{sRB}, s{sT+2}
    s_and_b32 s{sCQ}, s{sT}, 3
    s_and_b32 s{sSUB}, s{sT+1}, 3
    v_and_b32 v3, 7, v0
    v_xor_b32 v{T}, v3, v1
    v_lshlrev_b32 v{T}, 4, v{T}
    v_lshrrev_b32 v{T+1}, 3, v0
    v_lshl_add_u32 v{vXe}, v{T+1}, 10, v{T}
    v_xor_b32 v{vXo}, 64, v{vXe}
    v_add_u32 v{vXo}, 8192, v{vXo}
    v_lshrrev_b32 v{T}, 5, v0
    v_lshlrev_b32 v{T}, 1, v{T}
    v_and_b32 v{T+2}, 3, v0
    v_xor_b32 v{T}, v{T}, v{T+2}
    v_lshlrev_b32 v{T}, 4, v{T}
    v_lshrrev_b32 v{T+2}, 2, v0             ; l>>2
    s_lshl_b32 s{sXo[0]}, s{sRB}, 2
    s_add_u32 s{sXo[0]}, s{sXo[0]}, s{sW}
    s_lshl_b32 s{sXo[0]}, s{sXo[0]}, 15     ; (128rb+32w)*1024
    s_add_u32 s{sXo[1]}, s{sXo[0]}, 16384
    s_lshl_b32 s{sXl}, s{sW}, 12
    s_mov_b32 s{sSt}, 0
    s_mov_b32 s{sSTG}, {STG}
    s_cmp_ge_u32 s{sSUB}, 2
    s_cbranch_scc1 L_{name}_B
    v_mul_u32_u24 v{T+2}, 3072, v{T+2}
    v_add_u32 v{vWd}, v{T+2}, v{T}
    s_lshl_b32 s{sT+6}, s{sCQ}, 1
    s_add_u32 s{sSUB}, s{sSUB}, s{sT+6}
    s_mul_i32 s{sWo[0]}, s{sW}, {16*3072}
    s_lshl_b32 s{sT+6}, s{sSUB}, 7
    s_add_u32 s{sWo[0]}, s{sWo[0]}, s{sT+6}
    s_lshl_b32 s{sT+6}, s{sW}, 1
    v_add_u32 v{T}, s{sT+6}, v1
    v_xor_b32 v{T}, v{T}, v3
    v_lshlrev_b32 v{T}, 4, v{T}
    v_lshl_add_u32 v{vH}, v{T+1}, 10, v{T}
    s_lshl_b32 s{sHo}, s{sRB}, 7
    s_sub_u32 s{sHo}, s{sHo}, 16
    s_max_i32 s{sHo}, s{sHo}, 0
    s_lshl_b32 s{sT+6}, s{sW}, 2
    s_add_u32 s{sHo}, s{sHo}, s{sT+6}
    s_lshl_b32 s{sHo}, s{sHo}, 10
    s_waitcnt lgkmcnt(0)
    """)
    k.srd(sXr, sX, 2048*1024); k.srd(sWr, sWQ, 512*3072)
    variant(k, name, "A", after, st_pol, ld_pol, pf_pol, pf)
    k(f"""
    L_{name}_B:
    v_mul_u32_u24 v{T+2}, 3584, v{T+2}
    v_add_u32 v{vWd}, v{T+2}, v{T}
    s_mul_i32 s{sT+5}, s{sW}, {16*3584}
    s_mul_i32 s{sT+6}, s{sCQ}, 448
    s_add_u32 s{sT+5}, s{sT+5}, s{sT+6}
    s_add_u32 s{sT+6}, s{sT+5}, 1792
    s_and_b32 s{sH}, s{sW}, 1
    s_lshr_b32 s{sE}, s{sW}, 1
    s_cmp_eq_u32 s{sSUB}, 2
    s_cselect_b32 s{sT+7}, s{sT+6}, s{sT+5}
    s_cselect_b32 s{sT+8}, s{sT+5}, s{sT+6}
    s_waitcnt lgkmcnt(0)
    s_mov_b32 s{sWo[0]}, s{sT+7}
    s_mov_b32 s{sWo[1]}, s{sT+8}
    """)
    k.srd(sXr, sX, 2048*1024); k.srd(sWr, sWIN, 512*3584)
    k(f"s_cmp_eq_u32 s{sSUB}, 3\ns_cbranch_scc1 L_{name}_B34")
    variant(k, name, "B43", after, st_pol, ld_pol, pf_pol, pf)
    k(f"L_{name}_B34:")
    variant(k, name, "B34", after, st_pol, ld_pol, pf_pol, pf)

def variant(k, name, V, after, st_pol, ld_pol, pf_pol, pf):
    isA = V == "A"
    pitch = 3072 if isA else 3584
    ndma = 11
    lab = f"L_{name}_{V}"
    k(f"s_lshl_b32 s{sWl}, s{sW}, 10")
    k.stamp(0)
    def dma():
        G = []
        pre = [f"s_add_u32 s{sA}, s{sSt}, s{sXl}", f"s_add_u32 s{sB}, s{sSt}, s{sWl}"]
        for m in range(4):
            g = [f"s_add_u32 m0, s{sA}, {2048 + m*1024}", f"buffer_load_dwordx4 v{vXo if m & 1 else vXe}, s[{sXr}:{sXr+3}], s{sXo[m>>1]} offen {ld_pol} lds"]
            if m & 1: g.append(f"s_add_u32 s{sXo[m>>1]}, s{sXo[m>>1]}, 128")
            G.append(g)
        W = []
        for q in range(6 if isA else 7):
            imm = 64*(q & 1) + 1024*(q >> 1) if isA else 64*q
            so = sWo[0] if (isA or q < 4) else sWo[1]
            g = [f"s_add_u32 m0, s{sB}, {XW + q*4096 - imm}", f"buffer_load_dwordx4 v{vWd}, s[{sWr}:{sWr+3}], s{so} offen offset:{imm} {ld_pol} lds"]
            if q == (5 if isA else 3): g.append(f"s_add_u32 s{sWo[0]}, s{sWo[0]}, {64*pitch}")
            if q == 6: g.append(f"s_add_u32 s{sWo[1]}, s{sWo[1]}, {64*pitch}")
            W.append(g)
        if isA:
            W.append([f"s_lshr_b32 s{sT}, s{sWl}, 1", f"s_add_u32 m0, s{sSt}, s{sT}", "s_mov_b64 exec, 0xffffffff",
                      f"buffer_load_dwordx4 v{vH}, s[{sXr}:{sXr+3}], s{sHo} offen {ld_pol} lds", "s_mov_b64 exec, -1", f"s_add_u32 s{sHo}, s{sHo}, 128"])
        G = interleave(W, G)
        G[0] = pre + G[0]
        return G
    def dma_now():
        for g in dma():
            for l in g: k(l)
    dma_now(); k(f"s_add_u32 s{sSt}, s{sSt}, {STG}")
    if isA:
        k(f"""
        s_or_b32 s{sT}, s2, s{sW}
        s_cmp_lg_u32 s{sT}, 0
        s_cbranch_scc1 {lab}_nn
        s_memrealtime s[{sT}:{sT+1}]
        v_mov_b32 v{T}, 0
        s_waitcnt lgkmcnt(0)
        s_or_b32 s{sT}, s{sT}, 1
        v_mov_b32 v{T+1}, s{sT}
        s_mov_b64 exec, 1
        global_store_dword v{T}, v{T+1}, s[{sDBG}:{sDBG+1}] sc1
        s_mov_b64 exec, -1
        {lab}_nn:
        """)
    k(f"""
    v_lshrrev_b32 v{T}, 1, v2
    v_xor_b32 v{T}, v{T}, v1
    v_lshlrev_b32 v{T}, 4, v{T}
    v_lshl_add_u32 v{T}, v2, 7, v{T}        ; i*128 + (g^(i>>1))*16
    v_and_b32 v{T+2}, 1, v1
    v_lshlrev_b32 v{T+2}, 1, v{T+2}
    v_bfe_u32 v{T+1}, v0, 1, 1
    v_xor_b32 v{T+2}, v{T+2}, v{T+1}
    v_lshlrev_b32 v{T+2}, 4, v{T+2}
    v_bfe_u32 v{T+1}, v0, 2, 2
    v_lshl_add_u32 v{T+1}, v1, 3, v{T+1}
    v_lshl_add_u32 v{T+2}, v{T+1}, 6, v{T+2}
    v_and_b32 v{T+1}, 1, v0
    v_lshl_add_u32 v{T+2}, v{T+1}, 3, v{T+2}
    v_mov_b32 v{vZero}, 0
    """)
    if isA:
        vX = [[8], [11]]; vS = [9, 12]; vW = [[10], [13]]
        k(f"""
        v_mov_b32 v{vX[0][0]}, v{T}
        v_xor_b32 v{vX[1][0]}, 64, v{T}
        v_add_u32 v{vS[0]}, s{sXl}, v{vX[0][0]}
        v_add_u32 v{vS[1]}, s{sXl}, v{vX[1][0]}
        s_and_b32 s{sT}, s{sW}, 1
        s_lshl_b32 s{sT}, s{sT}, 5
        v_xor_b32 v{T+2}, s{sT}, v{T+2}
        s_lshr_b32 s{sT}, s{sW}, 1
        s_lshl_b32 s{sT}, s{sT}, 12
        s_add_u32 s{sT}, s{sT}, {XW}
        v_add_u32 v{vW[0][0]}, s{sT}, v{T+2}
        v_add_u32 v{vW[1][0]}, 2048, v{vW[0][0]}
        """)
        bases = [[8, 9, 10], [11, 12, 13]]
        nX, nW = 9, 3
        xaddr = lambda sg, a: (vX[sg][0], a*2048)
        waddr = lambda sg, j, j2: (vW[sg][0], j*8192 + j2*256)
    else:
        vX = [[8, 9], [14, 15]]; vW = [[10, 11, 12, 13], [16, 17, 18, 19]]
        k(f"""
        s_lshl_b32 s{sT}, s{sH}, 6
        v_xor_b32 v{T}, s{sT}, v{T}
        s_lshl_b32 s{sT}, s{sH}, 13
        s_add_u32 s{sT}, s{sT}, 2048
        s_lshl_b32 s{sT+1}, s{sE}, 12
        s_add_u32 s{sT+2}, s{sT}, s{sT+1}
        v_add_u32 v{vX[0][0]}, s{sT+2}, v{T}
        s_sub_u32 s{sT+2}, s{sT}, s{sT+1}
        v_add_u32 v{vX[0][1]}, s{sT+2}, v{T}
        v_xor_b32 v{vX[1][0]}, 64, v{vX[0][0]}
        v_xor_b32 v{vX[1][1]}, 64, v{vX[0][1]}
        s_lshl_b32 s{sT}, s{sH}, 11
        s_add_u32 s{sT}, s{sT}, {XW}
        s_lshl_b32 s{sT+2}, s{sE}, 13
        s_add_u32 s{sT+3}, s{sT}, s{sT+2}
        v_add_u32 v{vW[0][0]}, s{sT+3}, v{T+2}
        v_xor_b32 v{vW[0][1]}, 32, v{vW[0][0]}
        s_lshl_b32 s{sT+4}, s{sE}, 5
        v_xor_b32 v{T+1}, s{sT+4}, v{T+2}
        s_add_u32 s{sT+5}, s{sT}, s{sT+1}
        v_add_u32 v{vW[0][2]}, s{sT+5}, v{T+1}
        v_xor_b32 v{T+1}, 32, v{T+1}
        v_add_u32 v{vW[0][3]}, s{sT+3}, v{T+1}
        s_lshl_b32 s{sT}, s{sH}, 12
        s_sub_u32 s{sT}, 2048, s{sT}
        """)
        for n in range(4): k(f"v_add_u32 v{vW[1][n]}, s{sT}, v{vW[0][n]}")
        bases = [[8, 9, 10, 11, 12, 13], [14, 15, 16, 17, 18, 19]]
        nX, nW = 4, 7
        xaddr = lambda sg, a: (vX[sg][a >> 1], a*2048)
        def waddr(sg, j, j2):
            if j < 4: return vW[sg][j & 1], (j >> 1)*4096 + j2*256
            return vW[sg][2 + (j & 1)], 4*4096 + ((j - 4) >> 1)*4096 + j2*256
    dma_now(); k(f"s_add_u32 s{sSt}, s{sSt}, {STG}")
    fX = lambda sg, a: FR + sg*56 + a*4
    fW = lambda sg, j: FR + sg*56 + nX*4 + j*4
    fS = (lambda sg, a: FR + sg*56 + 48 + a*4) if isA else fX
    tG = lambda a: XA + a*8
    tS = lambda a: XA + a*8 + 4
    if isA:
        tQ = lambda a: ACC + (a-1)*4; tK = lambda a: ACC + 32 + a*4; tV = lambda a: ACC + 68 + a*4
        tC = lambda j: XA + 24 + j*4
        nacc, nxa = 104, 36
    else:
        tZ = lambda a, j: ACC + (j*4 + a)*4
        tC = lambda j: XA + 16 + j*4
        nacc, nxa = 112, 44
        isz2 = (lambda j: j < 4) if V == "B43" else (lambda j: j >= 4)
    for r in range(4): k(f"v_mov_b32 v{ONES+r}, 0x3f803f80")
    for r in range(nacc): k(f"v_mov_b32 v{ACC+r}, 0")
    for r in range(nxa): k(f"v_accvgpr_write_b32 {vr(XA+r, 1)}, 0")
    dma_now(); k(f"s_mov_b32 s{sSt}, 0")
    nbulk = 0
    if OPT.get("bulk"):
        bp = OPT["bulk"] if isinstance(OPT["bulk"], str) else ""
        nbulk = 3
        k(f"""
        s_getpc_b64 s[{sPr}:{sPr+1}]
        {lab}_pc:
        s_sub_u32 s{sPr}, s{sPr}, {lab}_pc - L_{name}_code
        s_subb_u32 s{sPr+1}, s{sPr+1}, 0
        s_mov_b32 s{sPr+2}, L_{name}_end - L_{name}_code
        s_mov_b32 s{sPr+3}, 0x20000
        s_lshr_b32 s{sT}, s2, 3
        s_lshl_b32 s{sT+1}, s{sT}, 2
        s_add_u32 s{sT+1}, s{sT+1}, s{sW}
        s_lshl_b32 s{sT+1}, s{sT+1}, 9
        v_lshlrev_b32 v{T}, 7, v0
        s_mov_b64 exec, 15
        buffer_load_dword v28, v{T}, s[{sPr}:{sPr+3}], s{sT+1} offen
        s_mov_b64 exec, -1
        s_and_b32 s{sT+1}, s{sT}, 3
        s_lshl_b32 s{sT+1}, s{sT+1}, 2
        s_add_u32 s{sT+1}, s{sT+1}, s{sW}
        s_lshl_b32 s{sT+1}, s{sT+1}, 13
        s_lshl_b32 s{sT+2}, s{sRB}, 17
        s_add_u32 s{sT+1}, s{sT+1}, s{sT+2}
        s_mov_b32 exec_lo, 0xf8f8f8f8
        s_mov_b32 exec_hi, 0xf8f8f8f8
        buffer_load_dword v28, v{T}, s[{sXr}:{sXr+3}], s{sT+1} offen {bp}
        s_mov_b64 exec, -1
        v_mul_u32_u24 v{T+1}, 52, v0
        v_lshrrev_b32 v{T+1}, 8, v{T+1}
        v_mul_u32_u24 v{T+2}, 5, v{T+1}
        v_sub_u32 v{T+2}, v0, v{T+2}
        v_mul_u32_u24 v{T+1}, {pitch}, v{T+1}
        s_and_b32 s{sT+1}, s{sRB}, 7
        s_mul_i32 s{sT+1}, s{sT+1}, 40
        s_mul_i32 s{sT+2}, s{sW}, -6
        s_add_u32 s{sT+1}, s{sT+1}, s{sT+2}
        s_mul_i32 s{sT+1}, s{sT+1}, {pitch}
        s_add_u32 s{sT+2}, s{sT+1}, s{sWo[0]}
        """)
        if isA:
            k(f"""
            v_lshl_add_u32 v{T+1}, v{T+2}, 10, v{T+1}
            v_cmp_gt_u32 vcc, 3, v{T+2}
            s_and_b64 exec, vcc, 0x3ffffffffffff
            """.replace("s_and_b64 exec, vcc, 0x3ffffffffffff", f"s_mov_b32 s{sT+5}, 0x3ffff\ns_and_b32 exec_hi, vcc_hi, s{sT+5}\ns_mov_b32 exec_lo, vcc_lo"))
        else:
            k(f"""
            s_sub_u32 s{sT+3}, s{sWo[1]}, s{sWo[0]}
            s_sub_u32 s{sT+3}, s{sT+3}, 128
            v_lshlrev_b32 v{T+3}, 7, v{T+2}
            v_min_u32 v{T+4}, 192, v{T+3}
            v_add_u32 v{T+3}, s{sT+3}, v{T+3}
            v_cmp_gt_u32 vcc, 3, v{T+2}
            v_cndmask_b32 v{T+3}, v{T+3}, v{T+4}, vcc
            v_add_u32 v{T+1}, v{T+1}, v{T+3}
            v_add_u32 v{T+1}, s{sT+2}, v{T+1}
            s_mov_b32 s{sT+2}, 0
            s_mov_b32 exec_hi, 0x3ffff
            """)
        k(f"buffer_load_dword v28, v{T+1}, s[{sWr}:{sWr+3}], s{sT+2} offen {bp}\ns_mov_b64 exec, -1")
    def reads(sg):
        X = [f"ds_read_b128 {vr(fX(sg, a))}, v{xaddr(sg, a)[0]} offset:{xaddr(sg, a)[1]}" for a in range(nX)]
        Wl = [f"ds_read_b64_tr_b16 {vr(fW(sg, j) + 2*j2, 2)}, v{waddr(sg, j, j2)[0]} offset:{waddr(sg, j, j2)[1]}" for j in range(nW) for j2 in range(2)]
        if isA:
            if OPT.get("noread"): return []
            return Wl + X + [f"ds_read_b128 {vr(fS(sg, a))}, v{vS[sg]} offset:{2048 + a*2048}" for a in range(2)]
        if OPT.get("noread"): return []
        return X + Wl
    def mf(d, a, b): return f"v_mfma_f32_16x16x32_bf16 {vr(d)}, {vr(a)}, {vr(b)}, {vr(d)}"
    def mfmas(sg):
        L = []
        if isA:
            for a in range(9):
                if a: L.append(mf(tQ(a), fW(sg, 0), fX(sg, a)))
                L.append(mf(tK(a), fW(sg, 1), fX(sg, a)))
                L.append(mf(tV(a), fX(sg, a), fW(sg, 2)))
            L += [mf(tG(2), fX(sg, 0), fX(sg, 0)), mf(tS(2), ONES, fX(sg, 0))]
        else:
            for j in range(7):
                for a in range(4):
                    L.append(mf(tZ(a, j), fX(sg, a), fW(sg, j)) if isz2(j) else mf(tZ(a, j), fW(sg, j), fX(sg, a)))
        for a in range(2): L += [mf(tG(a), fS(sg, a), fS(sg, a)), mf(tS(a), ONES, fS(sg, a))]
        if sg == 0 or isA:
            for j in range(nW): L.append(mf(tC(j), ONES, fW(sg, j)))
        if OPT.get("noextra"): return L[:26 if isA else 28]
        return L
    adv = lambda sg: [f"v_add_u32 v{r}, s{sDelta}, v{r}" for r in bases[sg]]
    k(f"s_mov_b32 s{sI}, 0\ns_waitcnt vmcnt({2*ndma + nbulk})\ns_barrier")
    k.stamp(1)
    for l in reads(0): k(l)
    k("s_waitcnt lgkmcnt(0)")
    k(f".p2align 6\n{lab}_loop:")
    for l in interleave(mfmas(0), reads(1) + [f"s_cmp_eq_u32 s{sSt}, {2*STG}\ns_cselect_b32 s{sDelta}, {-2*STG}, s{sSTG}"] + adv(0), per=1): k(l)
    npf = (3 if pf else 1) + (3 if OPT.get("pf3") else 0)
    k(f"s_cmp_ge_u32 s{sI}, 5\ns_cbranch_scc1 {lab}_nodma")
    k(f"s_waitcnt vmcnt({ndma}) lgkmcnt(0)\ns_barrier")
    def half2(with_dma):
        M = mfmas(1)
        slots = [[] for _ in range(len(M) + 1)]
        R = reads(0)
        for n, l in enumerate(R): slots[n + 1].append(l)
        for n, l in enumerate(adv(1)): slots[len(R) + 1 + n].append(l)
        if with_dma and not OPT.get("nodma"):
            G = dma()
            for n, g in enumerate(G):
                pos = 1 + n*(len(M) - 2)//len(G)
                cut = max(i for i, l in enumerate(g) if " m0," in l) + 1
                slots[pos] += g[:cut]; slots[pos + 1] = g[cut:] + slots[pos + 1]
        for i, m in enumerate(M):
            for l in slots[i]: k(l)
            k(m)
        for l in slots[len(M)]: k(l)
        k(f"""
        s_add_u32 s{sSt}, s{sSt}, s{sDelta}
        s_add_u32 s{sI}, s{sI}, 1
        s_cmp_lt_u32 s{sI}, 8
        s_waitcnt lgkmcnt(0)
        s_cbranch_scc1 {lab}_loop
        """)
    half2(True)
    k(f"{lab}_nodma:\ns_cmp_eq_u32 s{sI}, 5\ns_cbranch_scc1 {lab}_five\ns_waitcnt vmcnt({npf}) lgkmcnt(0)\ns_barrier\ns_branch {lab}_cont")
    k(f"{lab}_five:\ns_waitcnt vmcnt({ndma}) lgkmcnt(0)\ns_barrier")
    k.srd(sPr, sWSP, 2048*4096)
    k(f"""
    s_and_b32 s{sT}, s2, 7
    s_lshr_b32 s{sT}, s{sT}, 1
    s_lshl_b32 s{sT}, s{sT}, 21
    s_lshr_b32 s{sT+1}, s2, 3
    s_lshl_b32 s{sT+1}, s{sT+1}, 2
    s_add_u32 s{sT+1}, s{sT+1}, s{sW}
    s_lshl_b32 s{sT+2}, s{sT+1}, 14
    s_add_u32 s{sT}, s{sT}, s{sT+2}
    s_add_u32 s{sT+1}, s{sT}, 8192
    v_lshlrev_b32 v23, 7, v0
    s_mov_b32 s{sT+3}, 0x7fffffff
    global_load_dword v{vNon}, v{vZero}, s[{sDBG}:{sDBG+1}] sc1
    """)
    for n in range(1, 3 if pf else 1): k(f"buffer_load_dword v28, v23, s[{sPr}:{sPr+3}], s{sT+n-1} offen {pf_pol}")
    if OPT.get("pf3"): OPT["pf3"](k)
    k(f"{lab}_cont:")
    half2(False)
    k.stamp(2)
    cI, cE = T, T+1
    X = T + 16
    k(f"""
    s_barrier
    v_mov_b32 v{cI}, {f2h(1/512)}
    v_mov_b32 v{cE}, {f2h(1e-5)}
    v_and_b32 v{T+2}, 1, v0
    v_cmp_eq_u32 s[{sM}:{sM+1}], 1, v{T+2}
    v_and_b32 v{T+2}, 2, v0
    v_cmp_eq_u32 s[{sM+2}:{sM+3}], 2, v{T+2}
    v_lshrrev_b32 v{T+2}, 2, v2
    v_cmp_eq_u32 s[{sM+4}:{sM+5}], v1, v{T+2}
    v_lshlrev_b32 v{T+3}, 2, v2
    v_add_u32 v{T+3}, {TOP}, v{T+3}
    """)
    ns = 3 if isA else 2
    for a in range(ns):
        for r in range(4): k(f"v_accvgpr_read_b32 v{X+a*8+r}, {vr(tG(a)+r, 1)}")
        k(f"v_accvgpr_read_b32 v{X+a*8+4}, {vr(tS(a), 1)}")
    A_ = range(ns)
    for a in A_: k(f"v_cndmask_b32 v{X+a*8}, v{X+a*8}, v{X+a*8+1}, s[{sM}:{sM+1}]\nv_cndmask_b32 v{X+a*8+2}, v{X+a*8+2}, v{X+a*8+3}, s[{sM}:{sM+1}]")
    for a in A_: k(f"v_mul_f32 v{X+a*8+4}, v{X+a*8+4}, v{cI}\nv_cndmask_b32 v{X+a*8}, v{X+a*8}, v{X+a*8+2}, s[{sM+2}:{sM+3}]")
    for a in A_: k(f"v_mul_f32 v{X+a*8}, v{X+a*8}, v{cI}")
    for a in A_: k(f"v_fma_f32 v{X+a*8}, -v{X+a*8+4}, v{X+a*8+4}, v{X+a*8}")
    for a in A_: k(f"v_max_f32 v{X+a*8}, 0, v{X+a*8}")
    for a in A_: bf16_round(k, X+a*8, X+a*8)
    for a in A_: k(f"v_add_f32 v{X+a*8}, v{X+a*8}, v{cE}")
    for a in A_: bf16_round(k, X+a*8, X+a*8)
    for a in A_: k(f"v_sqrt_f32 v{X+a*8}, v{X+a*8}")
    for a in A_: bf16_round(k, X+a*8+4, X+a*8+4)
    for a in A_: bf16_round(k, X+a*8, X+a*8)
    for a in A_: k(f"v_rcp_f32 v{X+a*8}, v{X+a*8}")
    if isA: k(f"s_lshl_b32 s{sT}, s{sW}, 7\ns_add_u32 s{sT}, s{sT}, 64\ns_mul_i32 s{sT+1}, s{sW}, 192\ns_mov_b32 s{sT+2}, s{sT+1}")
    else:
        k(f"""
        s_lshl_b32 s{sT}, s{sH}, 8
        s_lshl_b32 s{sT+3}, s{sE}, 7
        s_add_u32 s{sT}, s{sT}, s{sT+3}
        s_add_u32 s{sT}, s{sT}, 64
        s_lshl_b32 s{sT+1}, s{sE}, 8
        s_mul_i32 s{sT+4}, s{sE}, 192
        s_lshl_b32 s{sT+5}, s{sH}, 10
        s_add_u32 s{sT+2}, s{sT+1}, s{sT+5}
        s_add_u32 s{sT+5}, s{sT+4}, s{sT+5}
        """)
    k(f"v_add_u32 v{T+4}, s{sT}, v{T+3}\nv_add_u32 v{T+5}, s{sT+2}, v{T+3}")
    if not isA: k(f"v_add_u32 v{T+6}, s{sT+5}, v{T+3}")
    for a in A_: k(f"v_mul_f32 v{X+a*8+4}, -v{X+a*8+4}, v{X+a*8}")
    for j in range(nW):
        k(f"ds_write_b32 v{T+5 if j < 4 else T+6}, {vr(tC(j), 1)} offset:{TC + (j*64 if j < 4 else 512 + (j-4)*64)}")
    k(f"s_mov_b64 exec, s[{sM+4}:{sM+5}]")
    for a in A_:
        ad, o = (T+4, a*64) if a < 2 else (T+3, 0)
        k(f"ds_write_b32 v{ad}, v{X+a*8} offset:{TA + o}\nds_write_b32 v{ad}, v{X+a*8+4} offset:{TB + o}")
    k("s_mov_b64 exec, -1")
    k(f"""
    s_waitcnt vmcnt({npf-1})
    v_readfirstlane_b32 s{sNON}, v{vNon}
    s_cmp_lg_u32 s{sNON}, 0
    s_cbranch_scc1 {lab}_non
    s_mov_b32 s{sT+6}, 0
    {lab}_nspin:
    s_sleep 4
    global_load_dword v{vNon}, v{vZero}, s[{sDBG}:{sDBG+1}] sc1
    s_add_u32 s{sT+6}, s{sT+6}, 1
    s_waitcnt vmcnt(0)
    v_readfirstlane_b32 s{sNON}, v{vNon}
    s_cmp_gt_u32 s{sT+6}, 100000
    s_cbranch_scc1 {lab}_non
    s_cmp_eq_u32 s{sNON}, 0
    s_cbranch_scc1 {lab}_nspin
    {lab}_non:
    v_lshlrev_b32 v{T+7}, 4, v1
    v_add_u32 v{T+7}, {TOP}, v{T+7}
    s_waitcnt lgkmcnt(0)
    s_barrier
    """)
    k.stamp(3)
    k.lg.q = []; k.vm.q = []
    FILL.start(k)
    if isA: epi_attn(k, lab, st_pol, tQ, tK, tV)
    else: epi_B(k, lab, V, st_pol, tZ, isz2)
    after(k, V)

def gelu_pk(k, ys, c, t):
    n = range(len(ys))
    for i in n: k(pk("mul", t+2*i, [(ys[i], 0), (ys[i], 0)]))
    for i in n: k(pk("fma", t+2*i, [(t+2*i, 0), (c+1, 1), (c, 1)]))
    for i in n: k(pk("mul", t+2*i, [(t+2*i, 0), (ys[i], 0)]))
    for i in range(2*len(ys)): k(f"v_exp_f32 v{t+i}, v{t+i}")
    for i in n: k(pk("add", t+2*i, [(t+2*i, 0), ("1.0", 1)]))
    for i in range(2*len(ys)): k(f"v_rcp_f32 v{t+i}, v{t+i}")
    for i in n: k(pk("mul", ys[i], [(ys[i], 0), (t+2*i, 0)]))

def epi_B(k, lab, V, st_pol, tZ, isz2):
    z2flag = OPT.get('z2flag', lambda k, V: None)
    J2 = [j for j in range(7) if isz2(j)]; J1 = [j for j in range(7) if not isz2(j)]
    vI4, vG16 = T+3, T+7
    c = T
    AR, BR = T+8, T+24
    C2 = T+40
    ST = T+48
    tmp = T+80
    AL = T+88
    ad = T+96
    coff = lambda j: (j*64 if j < 4 else 512 + (j-4)*64)
    k(f"""
    s_lshl_b32 s{sT}, s{sH}, 8
    s_add_u32 s{sT}, s{sT}, 64
    s_add_u32 s{sT+2}, s{sT}, s{sT+3}
    s_sub_u32 s{sT+5}, s{sT}, s{sT+3}
    v_add_u32 v{ad}, s{sT+2}, v{vG16}
    v_add_u32 v{ad+1}, s{sT+5}, v{vG16}
    v_add_u32 v{ad+2}, s{sT+2}, v{vI4}
    v_add_u32 v{ad+3}, s{sT+5}, v{vI4}
    v_add_u32 v{ad+4}, s{sT+1 if V == "B43" else sT+4}, v{vI4}
    v_add_u32 v{ad+5}, s{sT+4 if V == "B43" else sT+1}, v{vG16}
    """)
    for a in range(4):
        k.ds(f"ds_read_b128 {vr(AR + a*4)}, v{ad + (a>>1)} offset:{TA + a*64}", "t")
        k.ds(f"ds_read_b128 {vr(BR + a*4)}, v{ad + (a>>1)} offset:{TB + a*64}", "t")
    for n, j in enumerate(J2):
        for hh in range(2): k.ds(f"ds_read_b32 v{C2 + 2*n + hh}, v{ad+4} offset:{TC + hh*1024 + coff(j)}", "t")
    k(f"v_mov_b32 v{c}, {f2h(GC1)}\nv_mov_b32 v{c+1}, {f2h(GC2)}")
    k.wait(lg="t")
    for a in range(4):
        k.ds(f"ds_read_b32 v{AL + a}, v{ad + 2 + (a>>1)} offset:{TA + a*64}", "u")
        k.ds(f"ds_read_b32 v{AL + 4 + a}, v{ad + 2 + (a>>1)} offset:{TB + a*64}", "u")
    for n in range(len(J2)): k(f"v_add_f32 v{C2+2*n}, v{C2+2*n}, v{C2+2*n+1}")
    for n, j in enumerate(J2):
        for p in range(2):
            ys = [tZ(2*p + (i >> 1), j) + 2*(i & 1) for i in range(4)]
            ab = [(2*p + (i >> 1))*4 + 2*(i & 1) for i in range(4)]
            for i in range(4): k(pk("mul", tmp+2*i, [(BR+ab[i], 0), (C2+2*n, 1)]))
            for i in range(4): k(pk("fma", ys[i], [(AR+ab[i], 0), (ys[i], 0), (tmp+2*i, 0)]))
            gelu_pk(k, ys, c, tmp)
            for i in range(4):
                s_ = ST + (2*p + (i >> 1))*8 + 2*(i & 1); q_ = s_ + 4
                if n == 0: k(f"v_mov_b32 v{s_}, v{ys[i]}\nv_mov_b32 v{s_+1}, v{ys[i]+1}\n" + pk("mul", q_, [(ys[i], 0), (ys[i], 0)]))
                else: k(pk("add", s_, [(s_, 0), (ys[i], 0)]) + "\n" + pk("fma", q_, [(ys[i], 0), (ys[i], 0), (q_, 0)]))
            FILL(k, 4 if len(J2) == 4 else 5)
    k.stamp(4)
    C1 = T+8
    for n, j in enumerate(J1):
        for hh in range(2): k.ds(f"ds_read_b128 {vr(C1 + 8*n + 4*hh)}, v{ad+5} offset:{TC + hh*1024 + coff(j)}", "u")
    for n in range(16): k(f"v_add_f32_dpp v{ST+n}, v{ST+n}, v{ST+n} row_mirror row_mask:0xf bank_mask:0x3")
    for n in range(16): k(f"v_add_f32_dpp v{ST+n}, v{ST+16+n}, v{ST+16+n} row_mirror row_mask:0xf bank_mask:0xc")
    FILL(k, 32 - 8*(4 if len(J2) == 4 else 0) - 6*(5 if len(J2) == 3 else 0) + 4)
    for n in range(8): k(f"v_add_f32_dpp v{ST+n}, v{ST+n}, v{ST+n} row_half_mirror row_mask:0xf bank_mask:0x5")
    for n in range(8): k(f"v_add_f32_dpp v{ST+n}, v{ST+8+n}, v{ST+8+n} row_half_mirror row_mask:0xf bank_mask:0xa")
    for n in range(8): k(f"v_add_f32_dpp v{ST+n}, v{ST+n}, v{ST+n} quad_perm:[1,0,3,2] row_mask:0xf bank_mask:0xf")
    for n in range(8): k(f"v_add_f32_dpp v{ST+n}, v{ST+n}, v{ST+n} quad_perm:[2,3,0,1] row_mask:0xf bank_mask:0xf")
    k(f"""
    v_lshrrev_b32 v{tmp}, 2, v2
    s_lshl_b32 s{sT+6}, s{sE}, 1
    v_xor_b32 v{tmp}, s{sT+6}, v{tmp}
    v_lshl_add_u32 v{tmp}, v{tmp}, 6, v{vG16}
    s_lshl_b32 s{sT+6}, s{sE}, 10
    s_lshl_b32 s{sT+7}, s{sH}, 8
    s_add_u32 s{sT+6}, s{sT+6}, s{sT+7}
    v_add_u32 v{tmp}, s{sT+6}, v{tmp}
    ds_write_b128 v{tmp}, {vr(ST)} offset:{PS}
    ds_write_b128 v{tmp}, {vr(ST+4)} offset:{PS + 512}
    v_and_b32 v{tmp+1}, 31, v0
    s_lshl_b32 s{sT+6}, s{sW}, 7
    s_add_u32 s{sT+6}, s{sT+6}, {TOP}
    v_lshl_add_u32 v{tmp+1}, v{tmp+1}, 2, s{sT+6}
    s_add_u32 s{sXs}, s{sWS}, {XS_OFF}
    s_addc_u32 s{sXs+1}, s{sWS+1}, 0
    s_mov_b32 s{sXs+2}, {XS_SZ}
    s_mov_b32 s{sXs+3}, 0x20000
    s_lshl_b32 s{sT+8}, s{sRB}, 14                 ; rb*16384
    s_lshl_b32 s{sT+6}, s{sCQ}, 12
    s_add_u32 s{sT+6}, s{sT+6}, {0 if V == "B43" else 2048}
    s_add_u32 s{sT+6}, s{sT+6}, s{sT+8}
    s_lshl_b32 s{sT+7}, s{sW}, 9
    s_add_u32 s{sT+6}, s{sT+6}, s{sT+7}
    v_mov_b32 v{ST+10}, s{sNON}
    v_mov_b32 v{ST+11}, s{sNON}
    s_waitcnt lgkmcnt(0)
    s_barrier
    ds_read_b32 v{ST+8}, v{tmp+1} offset:{PS}
    ds_read_b32 v{ST+9}, v{tmp+1} offset:{PS + 512}
    ds_read_b32 v{ST+12}, v{tmp+1} offset:{PS + 1024}
    ds_read_b32 v{ST+13}, v{tmp+1} offset:{PS + 1536}
    """)
    k.lg.q = []
    for n in range(len(J1)):
        for i in range(2): k(pk("add", C1+8*n+2*i, [(C1+8*n+2*i, 0), (C1+8*n+4+2*i, 0)]))
    k(f"""
    s_waitcnt lgkmcnt(0)
    {pk("add", ST+8, [(ST+8, 0), (ST+12, 0)])}
    s_mov_b64 exec, 0xffffffff
    buffer_store_dwordx4 {vr(ST+8)}, v{vL16}, s[{sXs}:{sXs+3}], s{sT+6} offen sc1
    s_mov_b64 exec, -1
    """)
    k.lg.q = []; k.vm.issue("pub")
    def z1_unit(n, j):
        for p in range(2):
            ys = [tZ(2*p + (i >> 1), j) + 2*(i & 1) for i in range(4)]
            for i in range(4): k(pk("mul", tmp+2*i, [(C1+8*n+2*(i & 1), 0), (AL+4+2*p+(i >> 1), 1)]))
            for i in range(4): k(pk("fma", ys[i], [(ys[i], 0), (AL+2*p+(i >> 1), 1), (tmp+2*i, 0)]))
            gelu_pk(k, ys, c, tmp)
            for i in range(4): k(f"v_cvt_pk_bf16_f32 v{tZ(2*p, j)+i}, v{ys[i]}, v{ys[i]+1}")
            FILL(k, 7)
    NZA = OPT.get("nza", 2)
    for n, j in list(enumerate(J1))[:NZA]: z1_unit(n, j)
    FILL.flush(k)
    k.stamp(5)
    G = T+40
    k(f"""
    s_lshl_b32 s{sT+6}, s{sH}, 10
    s_add_u32 s{sT+6}, s{sT+6}, s{sT+8}
    s_add_u32 s{sT+7}, s{sT+6}, 4096
    s_add_u32 s{sT+8}, s{sT+6}, 8192
    s_add_u32 s{sT+9}, s{sT+6}, 12288
    s_mov_b32 s{sT+10}, 0
    {lab}_poll:
    """)
    for cidx in range(8): k(f"buffer_load_dwordx4 {vr(G+4*cidx)}, v{vL16}, s[{sXs}:{sXs+3}], s{sT+6+(cidx>>1)} offen offset:{(cidx&1)*2048} sc1")
    k(f"s_add_u32 s{sT+10}, s{sT+10}, 1\ns_waitcnt vmcnt(0)")
    for cidx in range(8): k(f"v_xor_b32 v{G+4*cidx+3}, s{sNON}, v{G+4*cidx+2}")
    k(f"""
    v_or3_b32 v{G+3}, v{G+3}, v{G+7}, v{G+11}
    v_or3_b32 v{G+15}, v{G+15}, v{G+19}, v{G+23}
    v_or3_b32 v{G+3}, v{G+3}, v{G+27}, v{G+31}
    v_or_b32 v{G+3}, v{G+3}, v{G+15}
    v_cmp_ne_u32 vcc, 0, v{G+3}
    s_nop 3
    s_cmp_gt_u32 s{sT+10}, 100000
    s_cbranch_scc1 {lab}_got
    s_cbranch_vccnz {lab}_poll
    {lab}_got:
    """)
    k(f"""
    s_add_u32 s{sOr}, s{sWS}, {Z1L_OFF}
    s_addc_u32 s{sOr+1}, s{sWS+1}, 0
    s_mov_b32 s{sOr+2}, {Z1L_SZ}
    s_mov_b32 s{sOr+3}, 0x20000
    s_mov_b32 s{sPr}, s{sWS}
    s_mov_b32 s{sPr+1}, s{sWS+1}
    s_mov_b32 s{sPr+2}, {Z2F_SZ}
    s_mov_b32 s{sPr+3}, 0x20000
    s_lshl_b32 s{sT}, s{sRB}, 1
    s_add_u32 s{sT}, s{sT}, s{sH}
    s_mul_i32 s{sT}, s{sT}, 112
    s_mul_i32 s{sT+2}, s{sCQ}, 14
    s_add_u32 s{sT}, s{sT}, s{sT+2}
    s_mul_i32 s{sT+2}, s{sE}, 56
    s_add_u32 s{sT+5}, s{sT}, s{sT+2}
    s_sub_u32 s{sT+6}, s{sT}, s{sT+2}
    s_add_u32 s{sT+6}, s{sT+6}, 56
    s_lshl_b32 s{sT+5}, s{sT+5}, 10
    s_lshl_b32 s{sT+6}, s{sT+6}, 10
    s_lshl_b32 s{sT+1}, s{sT+1}, 4                 ; 4e*1024
    s_lshl_b32 s{sT+4}, s{sT+4}, 4
    s_add_u32 s{sT+4}, s{sT+4}, 8192               ; (8+3e)*1024
    s_add_u32 s{sT+7}, s{sT+5}, s{sT+1}
    s_add_u32 s{sT+8}, s{sT+6}, s{sT+1}
    s_add_u32 s{sT+9}, s{sT+5}, s{sT+4}
    s_add_u32 s{sT+10}, s{sT+6}, s{sT+4}
    """)
    so = lambda j, p: (sT+7+p if j < 4 else sT+9+p, (j if j < 4 else j-4)*1024)
    for i in range(4): k(pk("add", G+8*i, [(G+8*i, 0), (G+8*i+4, 0)]))
    for i in range(2): k(pk("add", G+16*i, [(G+16*i, 0), (G+16*i+8, 0)]))
    k(pk("add", G, [(G, 0), (G+16, 0)]))
    k(f"""
    v_mov_b32 v{G+2}, {f2h(1/896)}
    v_mul_f32 v{G}, v{G}, v{G+2}
    v_mul_f32 v{G+1}, v{G+1}, v{G+2}
    v_fma_f32 v{G+1}, -v{G}, v{G}, v{G+1}
    v_max_f32 v{G+1}, 0, v{G+1}
    """)
    bf16_round(k, G+1, G+1); k(f"v_add_f32 v{G+1}, {f2h(1e-5)}, v{G+1}"); bf16_round(k, G+1, G+1)
    k(f"v_sqrt_f32 v{G+1}, v{G+1}"); bf16_round(k, G, G); bf16_round(k, G+1, G+1)
    k(f"""
    v_rcp_f32 v{G+1}, v{G+1}
    s_lshl_b32 s{sT}, s{sW}, 9
    s_add_u32 s{sT+2}, s{sT}, {TOP}
    v_lshl_add_u32 v{G+2}, v0, 2, s{sT+2}
    v_mul_f32 v{G}, -v{G}, v{G+1}
    ds_write_b32 v{G+2}, v{G+1} offset:{NT}
    ds_write_b32 v{G+2}, v{G} offset:{NT + 256}
    s_add_u32 s{sT+2}, s{sT}, s{sT+3}
    s_sub_u32 s{sT}, s{sT}, s{sT+3}
    v_add_u32 v{ad}, s{sT+2}, v{vG16}
    v_add_u32 v{ad+1}, s{sT}, v{vG16}
    """)
    k("s_waitcnt lgkmcnt(0)"); k.lg.q = []; k.vm.q = []
    NR, NM = T+48, T+64
    for a in range(4):
        k.ds(f"ds_read_b128 {vr(NR + a*4)}, v{ad + (a>>1)} offset:{NT + a*64}", f"n{a>>1}")
        k.ds(f"ds_read_b128 {vr(NM + a*4)}, v{ad + (a>>1)} offset:{NT + 256 + a*64}", f"n{a>>1}")
    for p in range(2):
        k.wait(lg=f"n{p}")
        for j in J2:
            ys = [tZ(2*p + (i >> 1), j) + 2*(i & 1) for i in range(4)]
            ab = [(2*p + (i >> 1))*4 + 2*(i & 1) for i in range(4)]
            for i in range(4): k(pk("fma", ys[i], [(ys[i], 0), (NR+ab[i], 0), (NM+ab[i], 0)]))
            for i in range(4): k(f"v_cvt_pk_bf16_f32 v{tZ(2*p, j)+i}, v{ys[i]}, v{ys[i]+1}")
            k(f"buffer_store_dwordx4 {vr(tZ(2*p, j))}, v{vL16}, s[{sPr}:{sPr+3}], s{so(j,p)[0]} offen offset:{so(j,p)[1]} {st_pol}")
    for n, j in list(enumerate(J1))[NZA:]: z1_unit(n, j)
    z2flag(k, V)
    for j in J1:
        for p in range(2): k.vmem(f"buffer_store_dwordx4 {vr(tZ(2*p, j))}, v{vL16}, s[{sOr}:{sOr+3}], s{so(j,p)[0]} offen offset:{so(j,p)[1]} {st_pol}", "p1st")

def epi_attn(k, lab, st_pol, tQ, tK, tV):
    vI4, vG16 = T+3, T+7
    AL, BL = T+8, T+18
    CQ, CK, CV = T+28, T+32, T+27
    QP, KP, VP = T+36, T+52, T+70
    tmp = T+88
    MC, MP = T+96, T+98
    cS, cN = T, T+1
    RA = T+100
    k(f"v_add_u32 v{T+4}, s{sT+1}, v{vG16}\nv_add_u32 v{T+5}, s{sT+1}, v{vI4}")
    k.ds(f"ds_read_b128 {vr(CQ)}, v{T+4} offset:{TC}", "t")
    k.ds(f"ds_read_b128 {vr(CK)}, v{T+4} offset:{TC + 64}", "t")
    k.ds(f"ds_read_b32 v{CV}, v{T+5} offset:{TC + 128}", "t")
    for a in range(9):
        k.ds(f"ds_read_b32 v{AL+a}, v{vI4} offset:{TA + a*64}", f"l{a}")
        k.ds(f"ds_read_b32 v{BL+a}, v{vI4} offset:{TB + a*64}", f"l{a}")
    k(f"""
    v_and_b32 v{tmp}, 1, v2
    v_lshl_add_u32 v{tmp+1}, v1, 2, v{tmp}
    v_cmp_le_u32 s[{sM+2}:{sM+3}], v{tmp+1}, v2
    v_add_u32 v{tmp+1}, 2, v{tmp+1}
    v_cmp_le_u32 s[{sM+4}:{sM+5}], v{tmp+1}, v2
    v_lshlrev_b32 v{tmp}, 4, v{tmp}
    v_mov_b32 v{tmp+1}, 0xffff
    v_lshlrev_b32 v{tmp}, v{tmp}, v{tmp+1}
    v_cndmask_b32 v{MC}, 0, v{tmp}, s[{sM+2}:{sM+3}]
    v_cndmask_b32 v{MP}, v{tmp}, 0, s[{sM+2}:{sM+3}]
    v_cndmask_b32 v{MC+1}, 0, v{tmp}, s[{sM+4}:{sM+5}]
    v_cndmask_b32 v{MP+1}, v{tmp}, 0, s[{sM+4}:{sM+5}]
    v_mov_b32 v{cS}, {f2h(0.25*LOG2E)}
    v_mov_b32 v{cN}, {f2h(-1e30)}
    s_cmp_eq_u32 s{sRB}, 0
    s_cselect_b64 s[{sM+6}:{sM+7}], -1, 0
    """)
    for a in range(9):
        k.wait(lg=f"l{a}")
        tiles = [(tK(a), CK, KP+2*a)] + ([(tQ(a), CQ, QP+2*(a-1))] if a else [])
        for n, (y, cs, d) in enumerate(tiles):
            for i in range(2): k(pk("mul", tmp+4*n+2*i, [(cs+2*i, 0), (BL+a, 1)]))
        for n, (y, cs, d) in enumerate(tiles):
            for i in range(2): k(pk("fma", y+2*i, [(y+2*i, 0), (AL+a, 1), (tmp+4*n+2*i, 0)]))
        for n, (y, cs, d) in enumerate(tiles):
            for i in range(2): k(f"v_cvt_pk_bf16_f32 v{d+i}, v{y+2*i}, v{y+2*i+1}")
        FILL(k, 2)
    Sc = lambda a: tQ(a); Sp = lambda a: tK(a)
    RV = 256
    buf = [T+8, T+16, T+100]
    def rd(a):
        b = buf[a % 3]
        k.ds(f"ds_read_b128 {vr(b)}, v{vG16} offset:{TA + a*64}", f"v{a}")
        k.ds(f"ds_read_b128 {vr(b+4)}, v{vG16} offset:{TB + a*64}", f"v{a}")
    rd(0); rd(1)
    for a in range(1, 9):
        k(f"v_mfma_f32_16x16x16_bf16 {vr(Sc(a))}, {vr(KP+2*a, 2)}, {vr(QP+2*(a-1), 2)}, 0")
        k(f"v_mfma_f32_16x16x16_bf16 {vr(Sp(a))}, {vr(KP+2*(a-1), 2)}, {vr(QP+2*(a-1), 2)}, 0")
    for a in range(9):
        if a + 2 < 9: rd(a + 2)
        k.wait(lg=f"v{a}")
        b = buf[a % 3]; y = tV(a)
        for i in range(2): k(pk("mul", tmp+2*i, [(b+4+2*i, 0), (CV, 1)]))
        for i in range(2): k(pk("fma", y+2*i, [(b+2*i, 0), (y+2*i, 0), (tmp+2*i, 0)]))
        for i in range(2): k(f"v_cvt_pk_bf16_f32 v{VP+2*a+i}, v{y+2*i}, v{y+2*i+1}")
        FILL(k, 2)
    U = range(1, 9)
    X = lambda a: tV(a)
    for a in U:
        for v in range(2):
            k(f"v_cndmask_b32 v{X(a)+v}, v{Sc(a)+2*v}, v{Sc(a)+2*v+1}, s[{sM}:{sM+1}]")
            k(f"v_cndmask_b32 v{X(a)+2+v}, v{Sp(a)+2*v}, v{Sp(a)+2*v+1}, s[{sM}:{sM+1}]")
    for v in range(2): k(f"v_cndmask_b32 v{X(1)+2+v}, v{X(1)+2+v}, v{cN}, s[{sM+6}:{sM+7}]")
    for a in U:
        for v in range(2): k(f"v_cndmask_b32 v{X(a)+v}, v{X(a)+2+v}, v{X(a)+v}, s[{sM+2+2*v}:{sM+3+2*v}]")
    def allred(op):
        for sw in ("v_permlane16_swap_b32", "v_permlane32_swap_b32"):
            for a in U: k(f"v_mov_b32 v{X(a)+3}, v{X(a)+2}")
            for a in U: k(f"{sw} v{X(a)+2}, v{X(a)+3}")
            for a in U: k(f"{op} v{X(a)+2}, v{X(a)+2}, v{X(a)+3}")
            FILL(k, 4)
    FILL(k, 6)
    for a in U: k(f"v_max_f32 v{X(a)+2}, v{X(a)}, v{X(a)+1}")
    allred("v_max_f32")
    for a in U: k(f"v_pk_add_f32 {P(X(a))}, {P(X(a))}, {P(X(a)+2)} op_sel_hi:[1,0] neg_lo:[0,1] neg_hi:[0,1]")
    for a in U: k(pk("mul", X(a), [(X(a), 0), (cS, 1)]))
    for a in U:
        for v in range(2): k(f"v_exp_f32 v{X(a)+v}, v{X(a)+v}")
    for a in U: k(f"v_add_f32 v{X(a)+2}, v{X(a)}, v{X(a)+1}")
    allred("v_add_f32")
    for a in U: k(f"v_rcp_f32 v{X(a)+2}, v{X(a)+2}")
    for a in U: k(pk("mul", X(a), [(X(a), 0), (X(a)+2, 1)]))
    for a in U:
        for v in range(2): k(f"v_cvt_pk_bf16_f32 v{X(a)+v}, v{X(a)+v}, v{X(a)+v}")
    for a in U:
        for v in range(2): k(f"v_and_b32 v{Sc(a)+v}, v{X(a)+v}, v{MP+v}\nv_and_b32 v{Sc(a)+2+v}, v{X(a)+v}, v{MC+v}")
    for a in U: k(f"v_mfma_f32_16x16x32_bf16 {vr(Sp(a))}, {vr(VP+2*(a-1))}, {vr(Sc(a))}, 0")
    FILL(k, 6)
    OP = T+8
    k(f"""
    s_lshl_b32 s{sT}, s{sW}, 12
    s_add_u32 s{sT}, s{sT}, {TOP}
    v_add_u32 v{tmp}, s{sT}, v{vL16}
    s_and_b32 s{sT+1}, s{sW}, 2
    s_lshl_b32 s{sT+1}, s{sT+1}, 12
    s_and_b32 s{sT+2}, s{sW}, 1
    s_lshl_b32 s{sT+3}, s{sT+2}, 11
    s_add_u32 s{sT+1}, s{sT+1}, s{sT+3}
    s_add_u32 s{sT+1}, s{sT+1}, {TOP}
    v_add_u32 v{tmp+1}, s{sT+1}, v{vL16}
    s_add_u32 s{sOr}, s{sWS}, {A3_OFF}
    s_addc_u32 s{sOr+1}, s{sWS+1}, 0
    s_mov_b32 s{sOr+2}, {A3_SZ}
    s_mov_b32 s{sOr+3}, 0x20000
    s_lshl_b32 s{sT}, s{sRB}, 1
    s_add_u32 s{sT}, s{sT}, s{sT+2}
    s_mul_i32 s{sT}, s{sT}, 176
    s_lshl_b32 s{sT+1}, s{sSUB}, 1
    s_add_u32 s{sT}, s{sT}, s{sT+1}
    s_lshr_b32 s{sT+1}, s{sW}, 1
    s_add_u32 s{sT}, s{sT}, s{sT+1}
    s_lshl_b32 s{sT}, s{sT}, 10
    s_add_u32 s{sT+1}, s{sT}, {44*1024}
    s_add_u32 s{sT+2}, s{sT}, {88*1024}
    s_add_u32 s{sT+3}, s{sT}, {132*1024}
    """)
    for a in U:
        for d in range(2): k(f"v_cvt_pk_bf16_f32 v{OP+2*(a-1)+d}, v{Sp(a)+2*d}, v{Sp(a)+2*d+1}")
    k.stamp(4)
    for n in range(4): k.ds(f"ds_write_b128 v{tmp}, {vr(OP+4*n)} offset:{OX + n*1024}", "ow")
    k("s_waitcnt lgkmcnt(0)\ns_barrier"); k.lg.q = []
    for n in range(4):
        o = OX + (n >> 1)*1024 + (n & 1)*8
        k.ds(f"ds_read_b64 {vr(OP+16+4*n, 2)}, v{tmp+1} offset:{o}", f"o{n}")
        k.ds(f"ds_read_b64 {vr(OP+18+4*n, 2)}, v{tmp+1} offset:{o + 4096}", f"o{n}")
    for n in range(4):
        k.wait(lg=f"o{n}")
        k.vmem(f"buffer_store_dwordx4 {vr(OP+16+4*n)}, v{vL16}, s[{sOr}:{sOr+3}], s{sT+n} offen {st_pol}", "p1st")
    FILL.flush(k)
    k.stamp(5)
```

```python
from asmlib import *
from layout import *
from f1 import pk, P, vL16
WREG = 33792
LDS2 = 4*WREG
RING = 1024
sAr, sZ2, sZ1, sA3, sBs = sR0, sR1, sR2, sR3, sR4
sRB2, sCB, sReg, sBo = 81, 82, 83, 73
sAo = [3, 10, 11, 26]
sU = 74
vAd = [4, 5]; vB1 = 6; vAr = [8, 9, 10, 11]; vRW = 12; vRR = [13, 14, 15]; BS = 16; vZ = 17
Z1 = 18
ACC = 32
RAW = 144
Z1 = 176
T = 192
BR = 256
AS = 256 + 112

def setup(k):
    k(f"""
    s_and_b32 s{sU}, s2, 7
    s_lshr_b32 s{sU+1}, s2, 3
    s_lshr_b32 s{sRB2}, s{sU}, 1
    s_lshl_b32 s{sRB2}, s{sRB2}, 3
    s_lshr_b32 s27, s{sU+1}, 2
    s_add_u32 s{sRB2}, s{sRB2}, s27
    s_and_b32 s{sCB}, s{sU}, 1
    s_lshl_b32 s{sCB}, s{sCB}, 2
    s_and_b32 s27, s{sU+1}, 3
    s_add_u32 s{sCB}, s{sCB}, s27
    s_mul_i32 s{sReg}, s{sW}, {WREG}
    v_add_u32 v{vB1}, 4096, v{vL16}
    v_and_b32 v8, 7, v0
    v_xor_b32 v8, v8, v1
    v_lshlrev_b32 v8, 4, v8
    v_lshrrev_b32 v9, 3, v0
    v_lshl_add_u32 v{vAd[0]}, v9, 12, v8
    v_xor_b32 v{vAd[1]}, 64, v{vAd[0]}
    v_add_u32 v{vAd[1]}, 0x8000, v{vAd[1]}
    """)
    for u in range(4):
        k(f"""
        s_xor_b32 s{sU}, s{sW}, {u}
        s_lshl_b32 s{sU+1}, s{sRB2}, 2
        s_add_u32 s{sU}, s{sU}, s{sU+1}
        s_lshl_b32 s{sU}, s{sU}, 16
        s_lshl_b32 s{sU+1}, s{sW}, 10
        s_add_u32 s{sAo[u]}, s{sU}, s{sU+1}
        """)
    k(f"""
    s_mul_i32 s{sBo}, s{sW}, {16*56*1024}
    s_mul_i32 s{sU}, s{sCB}, 7168
    s_add_u32 s{sBo}, s{sBo}, s{sU}
    """)


def gA(sl, m, a_pol=""):
    return [("i", f"s_add_u32 m0, s{sReg}, {RING + (sl%4)*8192 + m*1024 - 128*sl}"), ("i", "s_nop 0"),
            ("v", f"buffer_load_dwordx4 v{vAd[m&1]}, s[{sAr}:{sAr+3}], s{sAo[m>>1]} offen offset:{128*sl} {a_pol} lds", f"A{sl}")]
def R(s, dst=None):
    d = RAW + (s&1)*16 if dst is None else dst
    return [("d", f"ds_read_b64 {vr(d + u*4 + 2*j2, 2)}, v{vAr[2*(s&1) + j2]} offset:{RING + ((s>>1)%4)*8192 + u*2048}", f"R{s}") for u in range(4) for j2 in range(2)]
def read_bases(k):
    k(f"""
    v_xor_b32 v3, v2, v1
    v_lshrrev_b32 v3, 1, v3                 ; (i>>1) ^ (g>>1)
    v_lshlrev_b32 v3, 4, v3
    v_lshl_add_u32 v3, v2, 7, v3
    v_and_b32 v7, 1, v1
    v_lshl_add_u32 v3, v7, 3, v3
    v_add_u32 v{vAr[0]}, s{sReg}, v3
    v_xor_b32 v{vAr[1]}, 32, v{vAr[0]}
    v_xor_b32 v{vAr[2]}, 64, v{vAr[0]}
    v_xor_b32 v{vAr[3]}, 96, v{vAr[0]}
    """)
def stage_groups(k):
    setup(k); read_bases(k)
    k.srd(sAr, sWSP, 2048*4096)
    G = [gA(sl, m) for sl in range(4) for m in range(8)]
    def rd(sl):
        L = R(2*sl, AS + 32*sl) + R(2*sl + 1, AS + 32*sl + 16)
        return [[("w", f"A{sl}", None)] + L[:8], L[8:]]
    def dm(sl):
        g = [gA(sl, m) for m in range(8)]
        g[0] = [("w", None, f"R{2*(sl-4)+1}")] + g[0]
        return g
    return G + rd(0) + rd(1) + dm(4) + rd(2) + dm(5) + rd(3) + dm(6) + dm(7)

def gen_p2(k, name, wait_z2, done, st_pol="sc1", a_pol="", h_pol="", DB=4, pfb=0, tail=None, mid=None, pre=None):
    NS = 16
    vB = [vL16, vB1]
    if not wait_z2: k.srd(sAr, sWSP, 2048*4096)
    k.srd(sZ2, sWS, Z2F_SZ)
    def gB(s, j):
        g = [("i", f"s_add_u32 s{sT}, s{sBo}, {s*57344}")] if j == 0 else []
        return g + [("v", f"buffer_load_dwordx4 {vr(BR + (s%DB)*28 + j*4)}, v{vB[j//4]}, s[{sZ2}:{sZ2+3}], s{sT} offen offset:{(j%4)*1024} {h_pol}", f"B{s}")]
    def emit(item):
        if item[0] == "i": k(item[1])
        elif item[0] == "v": k.vmem(item[1], item[2])
        elif item[0] == "d": k.ds(item[1], item[2])
        elif item[0] == "w": k.wait(vm=item[1], lg=item[2])
    def em(gs):
        for g in gs:
            for it in g: emit(it)
    if not wait_z2: em([gA(0, m) for m in range(8)] + [gB(0, j) for j in range(7)])
    k(f"""
    s_add_u32 s{sZ1}, s{sWS}, {Z1L_OFF}
    s_addc_u32 s{sZ1+1}, s{sWS+1}, 0
    s_mov_b32 s{sZ1+2}, {Z1L_SZ}
    s_mov_b32 s{sZ1+3}, 0x20000
    s_add_u32 s{sA3}, s{sWS}, {A3_OFF}
    s_addc_u32 s{sA3+1}, s{sWS+1}, 0
    s_mov_b32 s{sA3+2}, {A3_SZ}
    s_mov_b32 s{sA3+3}, 0x20000
    """)
    k.srd(sBs, sBSP, 4096)
    if not wait_z2: read_bases(k)
    k(f"""
    v_add_u32 v{vRW}, s{sReg}, v{vL16}
    """)
    for u in range(1, 4):
        k(f"""
        s_xor_b32 s{sT+1}, s{sW}, {u}
        s_mul_i32 s{sT+1}, s{sT+1}, {WREG}
        s_add_u32 s{sT+1}, s{sT+1}, {(u-1)*7168}
        v_add_u32 v{vRR[u-1]}, s{sT+1}, v{vL16}
        """)
    k(f"""
    s_lshl_b32 s{sT+4}, s{sRB2}, 1
    s_lshr_b32 s{sT+1}, s{sW}, 1
    s_add_u32 s{sT+4}, s{sT+4}, s{sT+1}
    s_mul_i32 s{sT+4}, s{sT+4}, 56
    s_mul_i32 s{sT+1}, s{sCB}, 7
    s_add_u32 s{sT+4}, s{sT+4}, s{sT+1}
    s_lshl_b32 s{sT+4}, s{sT+4}, 10
    s_and_b32 s{sT+1}, s{sW}, 1
    s_lshl_b32 s{sT+1}, s{sT+1}, 3
    s_add_u32 s{sT+2}, s{sT+4}, s{sT+1}
    s_lshl_b32 s{sT+3}, s{sRB2}, 2
    s_add_u32 s{sT+3}, s{sT+3}, s{sW}
    s_mul_i32 s{sT+4}, s{sT+3}, 44
    s_lshl_b32 s{sT+3}, s{sT+3}, 5
    s_mul_i32 s{sT+1}, s{sCB}, 7
    s_lshr_b32 s{sT+1}, s{sT+1}, 1
    s_add_u32 s{sT+4}, s{sT+4}, s{sT+1}
    s_add_u32 s{sT+4}, s{sT+4}, 16
    s_lshl_b32 s{sT+4}, s{sT+4}, 10
    v_lshlrev_b32 v{vZ}, 1, v2
    """)
    if pfb:
        for i in range(2):
            k(f"""
            v_add_u32 v3, {64*i}, v0
            v_mul_u32_u24 v7, 147, v3
            v_lshrrev_b32 v7, 10, v7
            v_mul_u32_u24 v{24+i}, {57344 - 7168}, v7
            v_lshl_add_u32 v{24+i}, v3, 10, v{24+i}
            """)
        k(f"v_cmp_gt_u32 vcc, {(16-DB+1)*7 - 64}, v0\nv_cndmask_b32 v25, -1, v25, vcc")
    k.vmem(f"buffer_load_ushort v{BS}, v{vZ}, s[{sBs}:{sBs+3}], s{sT+3} offen", "bs")
    if wait_z2:
        if pre: pre(k)
        wait_z2(k)
        em([gB(s, j) for s in range(DB - 1) for j in range(7)])
        if pfb:
            k(f"""
            s_and_b32 s{sT}, s{sRB2}, 7
            s_lshl_b32 s{sT}, s{sT}, 7
            s_add_u32 s{sT}, s{sT}, s{sBo}
            s_add_u32 s{sT}, s{sT}, {(DB-1)*57344}
            """)
            for i in range(2):
                k.vmem(f"buffer_load_dword v31, v{24+i}, s[{sZ2}:{sZ2+3}], s{sT} offen {h_pol}", "pfb")
        pend = []
    else:
        pend = [gB(1, j) for j in range(7)] + [gA(1, m) for m in range(8)] + [gB(2, j) for j in range(7)] + [gA(2, m) for m in range(8)]
        em(pend[:15]); pend = pend[15:]
    k.stamp(1)
    if not wait_z2:
        k.wait(vm="A0")
        for it in R(0): emit(it)
    Aop = lambda s: AS + 16*s if (wait_z2 and s < 8) else RAW + (s&1)*16
    for s in range(NS):
        if s == 1: k.stamp(2)
        MF = []
        for j in range(7):
            for u in range(4):
                a = ACC + (u*7 + j)*4
                MF.append(f"v_mfma_f32_16x16x32_bf16 {vr(a)}, {vr(BR + (s%DB)*28 + j*4)}, {vr(Aop(s) + u*4)}, {vr(a) if s else '0'}")
        slots = [[] for _ in range(29)]
        slots[0].append(("w", f"B{s}", f"R{s}"))
        if s + 1 < NS and not (wait_z2 and s + 1 < 8):
            slots[1].append(("w", f"A{(s+1)>>1}", None))
            for u, it in enumerate(R(s + 1)): slots[1 + u].append(it)
        G = list(pend); pend = []
        if s + DB - 1 < NS: G += [gB(s + DB - 1, j) for j in range(7)]
        sl = (s >> 1) + 3; hf = s & 1
        if sl < 8 and not wait_z2:
            for m in range(4*hf, 4*hf + 4): G.insert(min(len(G), len(G) - 7 + 2*(m % 4) + 1) if len(G) >= 7 else len(G), gA(sl, m))
        if s == 13:
            G += [[("v", f"buffer_load_dwordx2 {vr(Z1 + 2*j, 2)}, v{vB[j//4]}, s[{sZ1}:{sZ1+3}], s{sT+2} offen offset:{(j%4)*1024} {h_pol}", "z1")] for j in range(7)]
        if s == 8 and mid: G = G + [mid[0](k)]
        if s == 13 and mid: slots[0] = [("w", "fz1", None)] + slots[0] + mid[1](k)
        for n, g in enumerate(G): slots[1 + n*27//max(1, len(G))] += g
        for i, m in enumerate(MF):
            for it in slots[i]: emit(it)
            k(m)
        for it in slots[28]: emit(it)
    k.stamp(3)
    TG = tail(k) if tail else []
    k.wait(vm="z1")
    for u in range(1, 4):
        for j in range(7):
            if TG: em([TG.pop(0)])
            k.ds(f"ds_write_b128 v{vRW}, {vr(ACC + (u*7+j)*4)} offset:{(u-1)*7168 + j*1024}", "rw")
    ZU = 192
    for j in range(7):
        for d in range(2):
            k(f"v_lshlrev_b32 v{ZU + j*4 + 2*d}, 16, v{Z1 + 2*j + d}\nv_and_b32 v{ZU + j*4 + 2*d + 1}, 0xffff0000, v{Z1 + 2*j + d}")
    k(f"v_lshlrev_b32 v{BS}, 16, v{BS}")
    for j in range(7):
        for d in range(2): k(pk("add", ACC + j*4 + 2*d, [(ACC + j*4 + 2*d, 0), (BS, 1)]))
    k("s_waitcnt lgkmcnt(0)\ns_barrier"); k.lg.q = []
    k.stamp(4)
    Pp = ACC + 28
    for j in range(7):
        for u in range(3):
            k.ds(f"ds_read_b128 {vr(Pp + j*12 + u*4)}, v{vRR[u]} offset:{j*1024}", f"p{j}")
    H = 224
    for j in range(7):
        em(TG[:2]); TG = TG[2:]
        k.wait(lg=f"p{j}")
        p = Pp + j*12; g = ACC + j*4
        for d in range(2): k(pk("add", g+2*d, [(g+2*d, 0), (p+2*d, 0)]))
        for d in range(2): k(pk("add", p+4+2*d, [(p+4+2*d, 0), (p+8+2*d, 0)]))
        for d in range(2): k(pk("add", g+2*d, [(g+2*d, 0), (p+4+2*d, 0)]))
        for d in range(2): k(pk("mul", g+2*d, [(g+2*d, 0), (ZU+j*4+2*d, 0)]))
        for d in range(2): k(f"v_cvt_pk_bf16_f32 v{H+2*j+d}, v{g+2*d}, v{g+2*d+1}")
    k(f"s_bitcmp1_b32 s{sCB}, 0\ns_cbranch_scc1 L_{name}_odd")
    for q in range(4): k.vm.issue("hs")
    for q in range(3): k(f"buffer_store_dwordx4 {vr(H+4*q)}, v{vL16}, s[{sA3}:{sA3+3}], s{sT+4} offen offset:{q*1024} {st_pol}")
    k(f"buffer_store_dwordx2 {vr(H+12, 2)}, v{vL16}, s[{sA3}:{sA3+3}], s{sT+4} offen offset:3072 {st_pol}")
    k(f"s_branch L_{name}_hdone\nL_{name}_odd:")
    k(f"buffer_store_dwordx2 {vr(H, 2)}, v{vL16}, s[{sA3}:{sA3+3}], s{sT+4} offen offset:8 {st_pol}")
    for q in range(3): k(f"buffer_store_dwordx4 {vr(H+2+4*q)}, v{vL16}, s[{sA3}:{sA3+3}], s{sT+4} offen offset:{(q+1)*1024} {st_pol}")
    k(f"L_{name}_hdone:")
    done(k)
```

```python
from asmlib import *
from layout import *
from f1 import pk, P, vL16, TOP
from f2 import WREG, sRB2, sCB, sReg, sA3
sWoR, sWuR, sXr3, sOr3 = sR0, sR1, sR2, sR4
vWd, vT, vRW, vRR, vX = 4, [5, 7], 8, [9, 10], 11
vA = [vL16, 6]
XD = 12
ACC = 32
BF = 96
AO = 256 + 112
AH = 256
sAo = [3, 10, 26, 78]; sXo = [79, 80]; sSo = [74, 75]; sTop = 76; sNB = 77


def stage(s):
    if s < 3: return (sReg, 21504 + s*4096)
    if s == 3: return (sTop, 0)
    if s < 9: return (sReg, (s - 4)*4096)
    return (sReg, 21504 + (s - 9)*4096)
def gW(s):
    srd = sWoR if s < 4 else sWuR
    b, o = stage(s)
    G = []
    for q in range(2):
        for m2 in range(2):
            G.append([("i", f"s_add_u32 m0, s{b}, {o + q*2048 + m2*1024 - 64*q}"), ("i", "s_nop 0"),
                      ("v", f"buffer_load_dwordx4 v{vWd}, s[{srd}:{srd+3}], s{sSo[m2]} offen offset:{64*q} lds", f"W{s}")])
    G[-1].append(("i", f"s_add_u32 s{sSo[0]}, s{sSo[0]}, 32768\ns_add_u32 s{sSo[1]}, s{sSo[1]}, 32768"))
    return G
def early_setup(k):
    k(f"""
    v_and_b32 v22, 1, v1
    v_lshlrev_b32 v22, 1, v22
    v_and_b32 v3, 3, v0
    v_xor_b32 v22, v3, v22
    v_lshlrev_b32 v22, 4, v22
    v_lshrrev_b32 v23, 2, v0
    v_lshl_add_u32 v{vWd}, v23, 10, v22
    s_lshl_b32 s{sNB}, s{sCB}, 7
    s_lshl_b32 s{sSo[0]}, s{sW}, 17
    s_add_u32 s{sSo[0]}, s{sSo[0]}, s{sNB}
    s_add_u32 s{sSo[1]}, s{sSo[0]}, 16384
    s_mul_i32 s{sTop}, s{sW}, 4096
    s_add_u32 s{sTop}, s{sTop}, {TOP}
    s_mul_i32 s{sAo[0]}, s{sRB2}, 176
    s_lshl_b32 s{sAo[1]}, s{sW}, 2
    s_add_u32 s{sAo[0]}, s{sAo[0]}, s{sAo[1]}
    s_lshl_b32 s{sAo[0]}, s{sAo[0]}, 10
    s_add_u32 s{sAo[1]}, s{sAo[0]}, {44*1024}
    s_add_u32 s{sAo[2]}, s{sAo[0]}, {88*1024}
    s_add_u32 s{sAo[3]}, s{sAo[0]}, {132*1024}
    """)
def tail(h_pol):
    def f(k):
        gO = lambda t: [[("v", f"buffer_load_dwordx4 {vr(AO + t*16 + u*4)}, v{vL16}, s[{sA3}:{sA3+3}], s{sAo[u]} offen offset:{t*1024} {h_pol}", f"A{t}")] for u in range(4)]
        k.srd(sWoR, sWO, 512*1024)
        return sum([gW(t) + gO(t) for t in range(4)], [])
    return f

def gen_p3(k, name, flag, wait_h, st_pol="sc1", h_pol="sc1"):
    def em(gs):
        for g in gs:
            for it in g:
                if it[0] == "i": k(it[1])
                else: k.vmem(it[1], it[2])
    k(f"""
    s_barrier
    s_mul_i32 s{sSo[0]}, s{sW}, {7*32768}
    s_add_u32 s{sSo[0]}, s{sSo[0]}, s{sNB}
    s_add_u32 s{sSo[1]}, s{sSo[0]}, 16384
    """)
    k.srd(sWuR, sWOUT, 896*1024)
    later = gW(4) + gW(5) + gW(6) + gW(7) + gW(8)
    NE = 4
    em(later[:NE]); later = later[NE:]
    k(f"""
    v_and_b32 v12, 1, v1
    v_lshlrev_b32 v12, 1, v12
    v_bfe_u32 v13, v0, 1, 1
    v_xor_b32 v13, v13, v12
    v_lshlrev_b32 v13, 4, v13
    v_lshrrev_b32 v14, 2, v0
    v_lshl_add_u32 v13, v14, 6, v13
    v_and_b32 v15, 1, v0
    v_lshl_add_u32 v13, v15, 3, v13
    v_add_u32 v{vT[0]}, s{sReg}, v13
    v_xor_b32 v{vT[1]}, 32, v{vT[0]}
    v_add_u32 v22, s{sTop}, v13
    v_xor_b32 v23, 32, v22
    """)
    def step(s, A):
        b = BF + (s & 1)*16
        base = vT if s != 3 else [22, 23]
        for j in range(4):
            for j2 in range(2):
                k.ds(f"ds_read_b64_tr_b16 {vr(b + j*4 + j2*2, 2)}, v{base[j&1]} offset:{stage(s)[1] + (j>>1)*2048 + j2*1024}", f"b{s}_{j}")
        return [(f"b{s}_{j}", [f"v_mfma_f32_16x16x32_bf16 {vr(ACC + (u*4+j)*4)}, {vr(b + j*4)}, {vr(A + u*4)}, {vr(ACC + (u*4+j)*4) if s else '0'}" for u in range(4)]) for j in range(4)]
    k.wait(vm="A3")
    nxt = step(0, AO)
    for s in range(4):
        cur = nxt
        for n, (tag, M) in enumerate(cur):
            k.wait(lg=tag)
            for m in M: k(m)
            if n == 0 and s < 3: nxt = step(s + 1, AO + (s + 1)*16)
            if n & 1 or s >= 2: em([later.pop(0)])
        if s == 1: flag(k)
    em(later + gW(9) + gW(10))
    k(f"""
    v_mul_u32_u24 v13, 272, v2
    v_lshl_add_u32 v13, v1, 4, v13
    v_add_u32 v{vRW}, s{sReg}, v13
    v_lshrrev_b32 v13, 3, v0
    v_and_b32 v14, 7, v0
    v_mul_u32_u24 v15, 272, v13
    v_lshl_add_u32 v15, v14, 5, v15
    s_mul_i32 s{sT+2}, s{sW}, 4352
    v_add_u32 v{vRR[0]}, s{sT+2}, v15
    v_add_u32 v{vRR[1]}, {2*WREG}, v{vRR[0]}
    v_lshlrev_b32 v14, 4, v14
    v_lshl_add_u32 v{vX}, v13, 10, v14
    s_lshl_b32 s{sT+1}, s{sRB2}, 2
    s_add_u32 s{sT+1}, s{sT+1}, s{sW}
    s_lshl_b32 s{sT+1}, s{sT+1}, 14
    s_add_u32 s{sXo[0]}, s{sT+1}, s{sNB}
    s_add_u32 s{sXo[1]}, s{sXo[0]}, 8192
    s_mul_i32 s{sT+1}, s{sW}, 3
    s_add_u32 s{sT+1}, s{sT+1}, 16
    s_lshl_b32 s{sT+1}, s{sT+1}, 10
    """)
    for u in range(4): k(f"s_add_u32 s{sAo[u]}, s{sAo[u]}, s{sT+1}")
    k.srd(sXr3, sX, 2048*1024)
    for i2 in range(2):
        k.vmem(f"buffer_load_dwordx4 {vr(XD + 4*i2)}, v{vX}, s[{sXr3}:{sXr3+3}], s{sXo[i2]} offen", "x")
    k.stamp(6)
    wait_h(k)
    for s in range(7):
        for u in range(4):
            k.vmem(f"buffer_load_dwordx4 {vr(AH + s*16 + u*4)}, v{vA[s//4]}, s[{sA3}:{sA3+3}], s{sAo[u]} offen offset:{(s%4)*1024} {h_pol}", f"H{s}")
    k.wait(vm="x")
    nxt = step(4, AH)
    for s in range(4, 11):
        cur = nxt
        k.wait(vm=f"H{s-4}")
        for n, (tag, M) in enumerate(cur):
            k.wait(lg=tag)
            for m in M: k(m)
            if n == 0 and s < 10: nxt = step(s + 1, AH + (s - 3)*16)
    k.stamp(7)
    for j in range(4):
        for u in range(4):
            k.ds(f"ds_write_b128 v{vRW}, {vr(ACC + (u*4+j)*4)} offset:{u*4352 + j*64}", "rw")
    XU = 128
    for i2 in range(2):
        for d in range(4):
            k(f"v_lshlrev_b32 v{XU + i2*8 + 2*d}, 16, v{XD + i2*4 + d}")
            k(f"v_and_b32 v{XU + i2*8 + 2*d + 1}, 0xffff0000, v{XD + i2*4 + d}")
    k("s_waitcnt lgkmcnt(0)\ns_barrier"); k.lg.q = []
    R = 32
    for i2 in range(2):
        for src in range(4):
            for hf in range(2):
                k.ds(f"ds_read_b128 {vr(R + i2*32 + src*8 + hf*4)}, v{vRR[src>>1]} offset:{(src&1)*WREG + i2*8*272 + hf*16}", f"r{i2}")
    for i2 in range(2):
        k.wait(lg=f"r{i2}")
        b = R + i2*32
        for e in range(0, 8, 2): k(pk("add", b+e, [(b+e, 0), (b+8+e, 0)]))
        for e in range(0, 8, 2): k(pk("add", b+16+e, [(b+16+e, 0), (b+24+e, 0)]))
        for e in range(0, 8, 2): k(pk("add", b+e, [(b+e, 0), (XU+i2*8+e, 0)]))
        for e in range(0, 8, 2): k(pk("add", b+e, [(b+e, 0), (b+16+e, 0)]))
        for d in range(4): k(f"v_cvt_pk_bf16_f32 v{XD + i2*4 + d}, v{b+2*d}, v{b+2*d+1}")
        k(f"buffer_store_dwordx4 {vr(XD + i2*4)}, v{vX}, s[{sOr3}:{sOr3+3}], s{sXo[i2]} offen {st_pol}")
```

```python
import sys
sys.path.insert(0, "gen")
from build import *
from layout import *
import f1, f2, f3
NAME = "parallel_sum__sliding_local_dilated__mixer_gmlp__prompt_kernel"
args = sys.argv[2:]
K.diag = "c" if "c" in args else "h" if "h" in args else ("d" in args)
kv = dict(a.split("=") for a in args if "=" in a)
for o in args:
    if o not in 'dch' and '=' not in o: f1.OPT[o] = 1
K.dbgslot = 0
pol = lambda n, d: kv.get(n, d).replace("_", " ").replace("-", "")
k = K(NAME); n = "F"
real_stamp = K.stamp
PH = {"p": 1}
MAP = {1: {0: 0, 2: 1}, 2: {3: 4}, 3: {6: 6}}
P1D = "p1" in args
if P1D: MAP = {1: {0: 0, 1: 1, 2: 2, 3: 3, 4: 4, 5: 5}}
P3D = "p3" in args
if P3D: MAP = {2: {3: 0, 4: 1}, 3: {6: 4, 7: 6}}
_rs = real_stamp
def real_stamp(k, i):
    if P3D:
        if i in (5, 8, 9): _rs(k, {5: 2, 8: 3, 9: 5}[i])
        return
    if i > 7: return
    if P1D and PH.get("direct", True):
        if i == 2: _rs(k, 6)
        if i == 3: _rs(k, 7)
    else: _rs(k, i)
def stamp(self, i):
    m = MAP.get(PH["p"], {})
    if i in m: _rs(self, m[i])
K.stamp = stamp
sFl = sR4
def flag_srd(k, s):
    k(f"s_add_u32 s{s}, s{sWS}, {FL_OFF}\ns_addc_u32 s{s+1}, s{sWS+1}, 0\ns_mov_b32 s{s+2}, {FL_SZ}\ns_mov_b32 s{s+3}, 0x20000")
def set_flag(k, lab, soff_code, lanes, vstride_shift, tag=None):
    if tag: k.wait(vm=tag)
    else: k("s_waitcnt vmcnt(0)"); k.vm.q = []
    k(f"s_barrier\ns_cmp_lg_u32 s{sW}, 0\ns_cbranch_scc1 {lab}")
    flag_srd(k, sFl)
    k(soff_code)
    k(f"v_lshlrev_b32 v28, {vstride_shift}, v0\nv_mov_b32 v29, s{sNON}\ns_mov_b64 exec, {(1 << lanes) - 1}")
    k(f"buffer_store_dword v29, v28, s[{sFl}:{sFl+3}], s{sT} offen sc1\ns_mov_b64 exec, -1\n{lab}:")
sFD = 100
def z2flag(k, V):
    code = f"s_lshl_b32 s{sT}, s{f1.sRB}, 2\ns_add_u32 s{sT}, s{sT}, s{f1.sCQ}\ns_lshl_b32 s{sT}, s{sT}, 7\ns_add_u32 s{sT}, s{sT}, {FZ2 + (0 if V == 'B43' else 64)}"
    set_flag(k, f"L_{n}_fz{V}", code, 1, 2)
f1.OPT["z2flag"] = z2flag
def after1(k, V):
    real_stamp(k, 2)
    PH["V"] = V
    if V == "A":
        k(f"s_lshl_b32 s{sFD}, s{f1.sRB}, 4\ns_add_u32 s{sFD}, s{sFD}, s{f1.sSUB}\ns_lshl_b32 s{sFD}, s{sFD}, 6")
    else:
        k(f"s_lshl_b32 s{sFD}, s{f1.sRB}, 3\ns_add_u32 s{sFD}, s{sFD}, s{f1.sCQ}\ns_lshl_b32 s{sFD}, s{sFD}, 7\ns_add_u32 s{sFD}, s{sFD}, {512 + (0 if V == 'B43' else 64)}")
    set_flag(k, f"L_{n}_fd{V}", f"s_add_u32 s{sT}, s{sFD}, {FD}", 1, 2, tag="p1st")
    if V != "B34": k(f"s_branch L_{n}_p2")
def poll(k, lab, loads, nreg):
    k(f"s_cmp_lg_u32 s{sW}, 0\ns_cbranch_scc1 {lab}_go")
    flag_srd(k, sFl)
    loads(k, True)
    k(f"s_mov_b32 s{sT+10}, 0\n{lab}:")
    loads(k, False)
    k(f"s_add_u32 s{sT+10}, s{sT+10}, 1\ns_waitcnt vmcnt(0)")
    for r in range(nreg): k(f"v_xor_b32 v{28+r}, s{sNON}, v{28+r}")
    for r in range(1, nreg): k(f"v_or_b32 v28, v28, v{28+r}")
    k(f"v_cmp_ne_u32 vcc, 0, v28\ns_nop 3\ns_cmp_gt_u32 s{sT+10}, 100000\ns_cbranch_scc1 {lab}_go\ns_cbranch_vccnz {lab}\n{lab}_go:\ns_barrier")
def wait_z2(k):
    def loads(k, pre):
        if pre: k(f"s_mov_b32 s{sT+8}, {FZ2 + 4096}\nv_lshlrev_b32 v26, 6, v0")
        else: k(f"buffer_load_dword v28, v26, s[{sFl}:{sFl+3}], 0 offen offset:{FZ2} sc1\nbuffer_load_dword v29, v26, s[{sFl}:{sFl+3}], s{sT+8} offen sc1")
    poll(k, f"L_{n}_pz", loads, 2)
    real_stamp(k, 3)
def mid_load(k):
    return [("i", f"""s_add_u32 s{sFl}, s{sWS}, {FL_OFF}
    s_addc_u32 s{sFl+1}, s{sWS+1}, 0
    s_mov_b32 s{sFl+2}, {FL_SZ}
    s_mov_b32 s{sFl+3}, 0x20000
    s_lshr_b32 s{sT+9}, s{f2.sRB2}, 1
    s_lshl_b32 s{sT+9}, s{sT+9}, 10
    s_add_u32 s{sT+9}, s{sT+9}, {FD}
    v_lshlrev_b32 v27, 6, v2
    s_mov_b32 s{sT+10}, 0"""), ("v", f"buffer_load_dword v28, v27, s[{sFl}:{sFl+3}], s{sT+9} offen sc1", "fz1")]
def mid_check(k):
    lab = f"L_{n}_pd"
    return [("i", f"""s_branch {lab}_chk
    {lab}:
    s_sleep 2
    buffer_load_dword v28, v27, s[{sFl}:{sFl+3}], s{sT+9} offen sc1
    s_add_u32 s{sT+10}, s{sT+10}, 1
    s_waitcnt vmcnt(0)
    {lab}_chk:
    v_cmp_ne_u32 vcc, s{sNON}, v28
    s_nop 3
    s_cmp_gt_u32 s{sT+10}, 100000
    s_cbranch_scc1 {lab}_go
    s_cbranch_vccnz {lab}
    {lab}_go:""")]
def done2(k): real_stamp(k, 5)
def flag2(k):
    code = f"s_lshl_b32 s{sT}, s{f2.sRB2}, 9\ns_lshl_b32 s{sT+1}, s{f2.sCB}, 6\ns_add_u32 s{sT}, s{sT}, s{sT+1}\ns_add_u32 s{sT}, s{sT}, {FH}"
    set_flag(k, f"L_{n}_flh", code, 1, 2, tag="hs")
    real_stamp(k, 8)
def wait_h(k):
    def loads(k, pre):
        if pre: k(f"s_lshl_b32 s{sT+8}, s{f2.sRB2}, 9\ns_add_u32 s{sT+8}, s{sT+8}, {FH}\nv_and_b32 v27, 7, v0\nv_lshlrev_b32 v27, 6, v27")
        else: k(f"buffer_load_dword v28, v27, s[{sFl}:{sFl+3}], s{sT+8} offen sc1")
    poll(k, f"L_{n}_ph", loads, 1)
    k.srd(f3.sOr3, sOUT, 2048*1024)
    real_stamp(k, 9)
f1.OPT["bulk"] = (pol("bulk", "-") or 1) if kv.get("bulk") != "0" else 0
def pre2(k):
    f3.early_setup(k)
def pf3(k):
    k.srd(sR4, sWOUT, 896*1024)
    k(f"""
    s_lshr_b32 s{sT}, s2, 3
    s_lshl_b32 s{sT}, s{sT}, 2
    s_add_u32 s{sT}, s{sT}, s{sW}
    s_and_b32 s{sT+1}, s2, 1
    s_lshl_b32 s{sT+1}, s{sT+1}, 9
    v_lshrrev_b32 v23, 2, v0
    v_and_b32 v29, 3, v0
    v_lshlrev_b32 v29, 7, v29
    v_lshl_add_u32 v23, v23, 10, v29
    s_mul_i32 s{sT+5}, s{sT}, 7168
    s_add_u32 s{sT+5}, s{sT+5}, s{sT+1}
    s_lshl_b32 s{sT+6}, s{sT}, 12
    s_add_u32 s{sT+6}, s{sT+6}, s{sT+1}
    s_bfe_u32 s{sT+7}, s2, 0x20001
    s_lshl_b32 s{sT+7}, s{sT+7}, 19
    s_add_u32 s{sT+7}, s{sT+7}, s{sT+6}
    s_mov_b64 exec, 0xfffffff
    buffer_load_dword v28, v23, s[{sR4}:{sR4+3}], s{sT+5} offen
    """)
    k.srd(sR4, sWO, 512*1024)
    k(f"""
    s_mov_b64 exec, 0xffff
    buffer_load_dword v28, v23, s[{sR4}:{sR4+3}], s{sT+6} offen
    buffer_load_dword v28, v23, s[{f1.sXr}:{f1.sXr+3}], s{sT+7} offen
    s_mov_b64 exec, -1
    """)
if int(kv.get("pf3", 1)): f1.OPT["pf3"] = pf3
if "nza" in kv: f1.OPT["nza"] = int(kv["nza"])
f1.prologue(k, n)
f1.FILL.mk = f2.stage_groups
f1.gen_p1(k, n, after1, st_pol="sc1", pf=int(kv.get("pf", 1)))
k(f"L_{n}_p2:")
PH["p"] = 2
k("s_waitcnt lgkmcnt(0)")
k.vm.q = ["A4", "A5", "A6", "A7"]; k.lg.q = []
f2.gen_p2(k, n, wait_z2, done2, st_pol="sc1", h_pol=pol("h2", "sc1"), DB=int(kv.get("DB", 4)), pfb=int(kv.get("pfb", 0)), tail=f3.tail(pol("h3", "sc1")), pre=pre2, mid=(mid_load, mid_check))
PH["p"] = 3
f3.gen_p3(k, n, flag2, wait_h, st_pol=pol("st3", "sc1"), h_pol=pol("h3", "sc1"))
K.stamp = (lambda self, i: None) if P1D else _rs
k.stamp_end(0, sWS, sW, 7)
k(f"L_{n}_end:\ns_endpgm")
txt = assemble([(k, 512, 256, f1.LDSF)]).replace(f"; @launch kernel={NAME} grid", "; @launch grid")
open(sys.argv[1], "w").write(txt)
check(sys.argv[1], NAME)
```

```python
from asmlib import *
from layout import *
import struct
def f2h(x): return hex(struct.unpack("<I", struct.pack("<f", x))[0])
OPT = {}
XW = 18432
STG = XW + 7*4096
LDS1 = 3*STG
TOP = 135168
TA, TB, TC, PS, OX, NT = 0, 1024, 2048, 4096, 8192, 6144
LDSF = 163840
LOG2E = 1.4426950408889634
GC1 = -2*0.7978845608028654*LOG2E
GC2 = GC1*0.044715
sXr, sWr, sOr, sPr, sXs = sR0, sR1, sR2, sR3, sR4
sRB, sCQ, sSUB, sH, sE = 76, 77, 78, 79, 80
sXo = [81, 82]; sWo = [83, 26]; sHo, sXl, sWl = 27, 3, 10
sSt, sDelta, sI, sA, sB, sSTG = 100, 101, 11, 74, 75, 73
vXe, vXo, vWd, vH = 4, 5, 6, 7
vL16, vNon, vZero = 20, 21, 22
ONES = 24
ACC = 32
T = 144
FR = 256
XA = 256 + 112

def bf16_round(k, dst, src):
    k(f"v_cvt_pk_bf16_f32 v{dst}, v{src}, v{src}\nv_and_b32 v{dst}, 0xffff0000, v{dst}")
def P(r): return f"v[{r}:{r+1}]"
def pk(op, d, srcs):
    ops, lo, hi = [], [], []
    for r, bc in srcs:
        if isinstance(r, str): ops.append(r); lo.append(0); hi.append(0)
        elif bc: ops.append(P(r & ~1)); lo.append(r & 1); hi.append(r & 1)
        else: ops.append(P(r)); lo.append(0); hi.append(1)
    m = ""
    if any(lo): m += " op_sel:[" + ",".join(map(str, lo)) + "]"
    if not all(hi): m += " op_sel_hi:[" + ",".join(map(str, hi)) + "]"
    return f"v_pk_{op}_f32 {P(d)}, " + ", ".join(ops) + m

def prologue(k, name):
    k(f"""
    L_{name}_code:
    s_cmp_ge_u32 s2, 256
    s_cbranch_scc1 L_{name}_end
    s_load_dwordx16 s[4:19], s[0:1], 0
    s_load_dwordx4 s[20:23], s[0:1], {KA_OUT}
    s_load_dwordx2 s[24:25], s[0:1], {KA_WS}
    v_lshrrev_b32 v1, 6, v0
    v_and_b32 v0, 63, v0
    v_readfirstlane_b32 s{sW}, v1
    v_lshrrev_b32 v1, 4, v0                 ; g
    v_and_b32 v2, 15, v0                    ; i
    v_lshlrev_b32 v{vL16}, 4, v0
    """)

class Fill:
    def __init__(self, mk=None): self.mk = mk; self.q = []
    def start(self, k):
        self.q = self.mk(k) if self.mk else []
    def __call__(self, k, n):
        for _ in range(n):
            if self.q:
                for it in self.q.pop(0):
                    if it[0] == "i": k(it[1])
                    elif it[0] == "v": k.vmem(it[1], it[2])
                    elif it[0] == "d": k.ds(it[1], it[2])
                    else: k.wait(vm=it[1], lg=it[2])
    def flush(self, k): self(k, len(self.q))
FILL = Fill()

def gen_p1(k, name, after, st_pol="sc1", ld_pol="", pf_pol="", pf=True):
    k(f"""
    s_and_b32 s{sT}, s2, 7
    s_lshr_b32 s{sT+1}, s2, 3
    s_lshr_b32 s{sRB}, s{sT}, 2
    s_lshl_b32 s{sRB}, s{sRB}, 3
    s_lshr_b32 s{sT+2}, s{sT+1}, 2
    s_add_u32 s{sRB}, s{sRB}, s{sT+2}
    s_and_b32 s{sCQ}, s{sT}, 3
    s_and_b32 s{sSUB}, s{sT+1}, 3
    v_and_b32 v3, 7, v0
    v_xor_b32 v{T}, v3, v1
    v_lshlrev_b32 v{T}, 4, v{T}
    v_lshrrev_b32 v{T+1}, 3, v0
    v_lshl_add_u32 v{vXe}, v{T+1}, 10, v{T}
    v_xor_b32 v{vXo}, 64, v{vXe}
    v_add_u32 v{vXo}, 8192, v{vXo}
    v_lshrrev_b32 v{T}, 5, v0
    v_lshlrev_b32 v{T}, 1, v{T}
    v_and_b32 v{T+2}, 3, v0
    v_xor_b32 v{T}, v{T}, v{T+2}
    v_lshlrev_b32 v{T}, 4, v{T}
    v_lshrrev_b32 v{T+2}, 2, v0             ; l>>2
    s_lshl_b32 s{sXo[0]}, s{sRB}, 2
    s_add_u32 s{sXo[0]}, s{sXo[0]}, s{sW}
    s_lshl_b32 s{sXo[0]}, s{sXo[0]}, 15     ; (128rb+32w)*1024
    s_add_u32 s{sXo[1]}, s{sXo[0]}, 16384
    s_lshl_b32 s{sXl}, s{sW}, 12
    s_mov_b32 s{sSt}, 0
    s_mov_b32 s{sSTG}, {STG}
    s_cmp_ge_u32 s{sSUB}, 2
    s_cbranch_scc1 L_{name}_B
    v_mul_u32_u24 v{T+2}, 3072, v{T+2}
    v_add_u32 v{vWd}, v{T+2}, v{T}
    s_lshl_b32 s{sT+6}, s{sCQ}, 1
    s_add_u32 s{sSUB}, s{sSUB}, s{sT+6}
    s_mul_i32 s{sWo[0]}, s{sW}, {16*3072}
    s_lshl_b32 s{sT+6}, s{sSUB}, 7
    s_add_u32 s{sWo[0]}, s{sWo[0]}, s{sT+6}
    s_lshl_b32 s{sT+6}, s{sW}, 1
    v_add_u32 v{T}, s{sT+6}, v1
    v_xor_b32 v{T}, v{T}, v3
    v_lshlrev_b32 v{T}, 4, v{T}
    v_lshl_add_u32 v{vH}, v{T+1}, 10, v{T}
    s_lshl_b32 s{sHo}, s{sRB}, 7
    s_sub_u32 s{sHo}, s{sHo}, 16
    s_max_i32 s{sHo}, s{sHo}, 0
    s_lshl_b32 s{sT+6}, s{sW}, 2
    s_add_u32 s{sHo}, s{sHo}, s{sT+6}
    s_lshl_b32 s{sHo}, s{sHo}, 10
    s_waitcnt lgkmcnt(0)
    """)
    k.srd(sXr, sX, 2048*1024); k.srd(sWr, sWQ, 512*3072)
    variant(k, name, "A", after, st_pol, ld_pol, pf_pol, pf)
    k(f"""
    L_{name}_B:
    v_mul_u32_u24 v{T+2}, 3584, v{T+2}
    v_add_u32 v{vWd}, v{T+2}, v{T}
    s_mul_i32 s{sT+5}, s{sW}, {16*3584}
    s_mul_i32 s{sT+6}, s{sCQ}, 448
    s_add_u32 s{sT+5}, s{sT+5}, s{sT+6}
    s_add_u32 s{sT+6}, s{sT+5}, 1792
    s_and_b32 s{sH}, s{sW}, 1
    s_lshr_b32 s{sE}, s{sW}, 1
    s_cmp_eq_u32 s{sSUB}, 2
    s_cselect_b32 s{sT+7}, s{sT+6}, s{sT+5}
    s_cselect_b32 s{sT+8}, s{sT+5}, s{sT+6}
    s_waitcnt lgkmcnt(0)
    s_mov_b32 s{sWo[0]}, s{sT+7}
    s_mov_b32 s{sWo[1]}, s{sT+8}
    """)
    k.srd(sXr, sX, 2048*1024); k.srd(sWr, sWIN, 512*3584)
    k(f"s_cmp_eq_u32 s{sSUB}, 3\ns_cbranch_scc1 L_{name}_B34")
    variant(k, name, "B43", after, st_pol, ld_pol, pf_pol, pf)
    k(f"L_{name}_B34:")
    variant(k, name, "B34", after, st_pol, ld_pol, pf_pol, pf)

def variant(k, name, V, after, st_pol, ld_pol, pf_pol, pf):
    isA = V == "A"
    pitch = 3072 if isA else 3584
    ndma = 11
    lab = f"L_{name}_{V}"
    k(f"s_lshl_b32 s{sWl}, s{sW}, 10")
    k.stamp(0)
    def dma():
        G = []
        pre = [f"s_add_u32 s{sA}, s{sSt}, s{sXl}", f"s_add_u32 s{sB}, s{sSt}, s{sWl}"]
        for m in range(4):
            g = [f"s_add_u32 m0, s{sA}, {2048 + m*1024}", f"buffer_load_dwordx4 v{vXo if m & 1 else vXe}, s[{sXr}:{sXr+3}], s{sXo[m>>1]} offen {ld_pol} lds"]
            if m & 1: g.append(f"s_add_u32 s{sXo[m>>1]}, s{sXo[m>>1]}, 128")
            G.append(g)
        W = []
        for q in range(6 if isA else 7):
            imm = 64*(q & 1) + 1024*(q >> 1) if isA else 64*q
            so = sWo[0] if (isA or q < 4) else sWo[1]
            g = [f"s_add_u32 m0, s{sB}, {XW + q*4096 - imm}", f"buffer_load_dwordx4 v{vWd}, s[{sWr}:{sWr+3}], s{so} offen offset:{imm} {ld_pol} lds"]
            if q == (5 if isA else 3): g.append(f"s_add_u32 s{sWo[0]}, s{sWo[0]}, {64*pitch}")
            if q == 6: g.append(f"s_add_u32 s{sWo[1]}, s{sWo[1]}, {64*pitch}")
            W.append(g)
        if isA:
            W.append([f"s_lshr_b32 s{sT}, s{sWl}, 1", f"s_add_u32 m0, s{sSt}, s{sT}", "s_mov_b64 exec, 0xffffffff",
                      f"buffer_load_dwordx4 v{vH}, s[{sXr}:{sXr+3}], s{sHo} offen {ld_pol} lds", "s_mov_b64 exec, -1", f"s_add_u32 s{sHo}, s{sHo}, 128"])
        G = interleave(W, G)
        G[0] = pre + G[0]
        return G
    def dma_now():
        for g in dma():
            for l in g: k(l)
    dma_now(); k(f"s_add_u32 s{sSt}, s{sSt}, {STG}")
    if isA:
        k(f"""
        s_or_b32 s{sT}, s2, s{sW}
        s_cmp_lg_u32 s{sT}, 0
        s_cbranch_scc1 {lab}_nn
        s_memrealtime s[{sT}:{sT+1}]
        v_mov_b32 v{T}, 0
        s_waitcnt lgkmcnt(0)
        s_or_b32 s{sT}, s{sT}, 1
        v_mov_b32 v{T+1}, s{sT}
        s_mov_b64 exec, 1
        global_store_dword v{T}, v{T+1}, s[{sDBG}:{sDBG+1}] sc1
        s_mov_b64 exec, -1
        {lab}_nn:
        """)
    k(f"""
    v_lshrrev_b32 v{T}, 1, v2
    v_xor_b32 v{T}, v{T}, v1
    v_lshlrev_b32 v{T}, 4, v{T}
    v_lshl_add_u32 v{T}, v2, 7, v{T}        ; i*128 + (g^(i>>1))*16
    v_and_b32 v{T+2}, 1, v1
    v_lshlrev_b32 v{T+2}, 1, v{T+2}
    v_bfe_u32 v{T+1}, v0, 1, 1
    v_xor_b32 v{T+2}, v{T+2}, v{T+1}
    v_lshlrev_b32 v{T+2}, 4, v{T+2}
    v_bfe_u32 v{T+1}, v0, 2, 2
    v_lshl_add_u32 v{T+1}, v1, 3, v{T+1}
    v_lshl_add_u32 v{T+2}, v{T+1}, 6, v{T+2}
    v_and_b32 v{T+1}, 1, v0
    v_lshl_add_u32 v{T+2}, v{T+1}, 3, v{T+2}
    v_mov_b32 v{vZero}, 0
    """)
    if isA:
        vX = [[8], [11]]; vS = [9, 12]; vW = [[10], [13]]
        k(f"""
        v_mov_b32 v{vX[0][0]}, v{T}
        v_xor_b32 v{vX[1][0]}, 64, v{T}
        v_add_u32 v{vS[0]}, s{sXl}, v{vX[0][0]}
        v_add_u32 v{vS[1]}, s{sXl}, v{vX[1][0]}
        s_and_b32 s{sT}, s{sW}, 1
        s_lshl_b32 s{sT}, s{sT}, 5
        v_xor_b32 v{T+2}, s{sT}, v{T+2}
        s_lshr_b32 s{sT}, s{sW}, 1
        s_lshl_b32 s{sT}, s{sT}, 12
        s_add_u32 s{sT}, s{sT}, {XW}
        v_add_u32 v{vW[0][0]}, s{sT}, v{T+2}
        v_add_u32 v{vW[1][0]}, 2048, v{vW[0][0]}
        """)
        bases = [[8, 9, 10], [11, 12, 13]]
        nX, nW = 9, 3
        xaddr = lambda sg, a: (vX[sg][0], a*2048)
        waddr = lambda sg, j, j2: (vW[sg][0], j*8192 + j2*256)
    else:
        vX = [[8, 9], [14, 15]]; vW = [[10, 11, 12, 13], [16, 17, 18, 19]]
        k(f"""
        s_lshl_b32 s{sT}, s{sH}, 6
        v_xor_b32 v{T}, s{sT}, v{T}
        s_lshl_b32 s{sT}, s{sH}, 13
        s_add_u32 s{sT}, s{sT}, 2048
        s_lshl_b32 s{sT+1}, s{sE}, 12
        s_add_u32 s{sT+2}, s{sT}, s{sT+1}
        v_add_u32 v{vX[0][0]}, s{sT+2}, v{T}
        s_sub_u32 s{sT+2}, s{sT}, s{sT+1}
        v_add_u32 v{vX[0][1]}, s{sT+2}, v{T}
        v_xor_b32 v{vX[1][0]}, 64, v{vX[0][0]}
        v_xor_b32 v{vX[1][1]}, 64, v{vX[0][1]}
        s_lshl_b32 s{sT}, s{sH}, 11
        s_add_u32 s{sT}, s{sT}, {XW}
        s_lshl_b32 s{sT+2}, s{sE}, 13
        s_add_u32 s{sT+3}, s{sT}, s{sT+2}
        v_add_u32 v{vW[0][0]}, s{sT+3}, v{T+2}
        v_xor_b32 v{vW[0][1]}, 32, v{vW[0][0]}
        s_lshl_b32 s{sT+4}, s{sE}, 5
        v_xor_b32 v{T+1}, s{sT+4}, v{T+2}
        s_add_u32 s{sT+5}, s{sT}, s{sT+1}
        v_add_u32 v{vW[0][2]}, s{sT+5}, v{T+1}
        v_xor_b32 v{T+1}, 32, v{T+1}
        v_add_u32 v{vW[0][3]}, s{sT+3}, v{T+1}
        s_lshl_b32 s{sT}, s{sH}, 12
        s_sub_u32 s{sT}, 2048, s{sT}
        """)
        for n in range(4): k(f"v_add_u32 v{vW[1][n]}, s{sT}, v{vW[0][n]}")
        bases = [[8, 9, 10, 11, 12, 13], [14, 15, 16, 17, 18, 19]]
        nX, nW = 4, 7
        xaddr = lambda sg, a: (vX[sg][a >> 1], a*2048)
        def waddr(sg, j, j2):
            if j < 4: return vW[sg][j & 1], (j >> 1)*4096 + j2*256
            return vW[sg][2 + (j & 1)], 4*4096 + ((j - 4) >> 1)*4096 + j2*256
    dma_now(); k(f"s_add_u32 s{sSt}, s{sSt}, {STG}")
    fX = lambda sg, a: FR + sg*56 + a*4
    fW = lambda sg, j: FR + sg*56 + nX*4 + j*4
    fS = (lambda sg, a: FR + sg*56 + 48 + a*4) if isA else fX
    tG = lambda a: XA + a*8
    tS = lambda a: XA + a*8 + 4
    if isA:
        tQ = lambda a: ACC + (a-1)*4; tK = lambda a: ACC + 32 + a*4; tV = lambda a: ACC + 68 + a*4
        tC = lambda j: XA + 24 + j*4
        nacc, nxa = 104, 36
    else:
        tZ = lambda a, j: ACC + (j*4 + a)*4
        tC = lambda j: XA + 16 + j*4
        nacc, nxa = 112, 44
        isz2 = (lambda j: j < 4) if V == "B43" else (lambda j: j >= 4)
    for r in range(4): k(f"v_mov_b32 v{ONES+r}, 0x3f803f80")
    for r in range(nacc): k(f"v_mov_b32 v{ACC+r}, 0")
    for r in range(nxa): k(f"v_accvgpr_write_b32 {vr(XA+r, 1)}, 0")
    dma_now(); k(f"s_mov_b32 s{sSt}, 0")
    nbulk = 0
    if OPT.get("bulk"):
        bp = OPT["bulk"] if isinstance(OPT["bulk"], str) else ""
        nbulk = 3
        k(f"""
        s_getpc_b64 s[{sPr}:{sPr+1}]
        {lab}_pc:
        s_sub_u32 s{sPr}, s{sPr}, {lab}_pc - L_{name}_code
        s_subb_u32 s{sPr+1}, s{sPr+1}, 0
        s_mov_b32 s{sPr+2}, L_{name}_end - L_{name}_code
        s_mov_b32 s{sPr+3}, 0x20000
        s_lshr_b32 s{sT}, s2, 3
        s_lshl_b32 s{sT+1}, s{sT}, 2
        s_add_u32 s{sT+1}, s{sT+1}, s{sW}
        s_lshl_b32 s{sT+1}, s{sT+1}, 9
        v_lshlrev_b32 v{T}, 7, v0
        s_mov_b64 exec, 15
        buffer_load_dword v28, v{T}, s[{sPr}:{sPr+3}], s{sT+1} offen
        s_mov_b64 exec, -1
        s_and_b32 s{sT+1}, s{sT}, 3
        s_lshl_b32 s{sT+1}, s{sT+1}, 2
        s_add_u32 s{sT+1}, s{sT+1}, s{sW}
        s_lshl_b32 s{sT+1}, s{sT+1}, 13
        s_lshl_b32 s{sT+2}, s{sRB}, 17
        s_add_u32 s{sT+1}, s{sT+1}, s{sT+2}
        s_mov_b32 exec_lo, 0xf8f8f8f8
        s_mov_b32 exec_hi, 0xf8f8f8f8
        buffer_load_dword v28, v{T}, s[{sXr}:{sXr+3}], s{sT+1} offen {bp}
        s_mov_b64 exec, -1
        v_mul_u32_u24 v{T+1}, 52, v0
        v_lshrrev_b32 v{T+1}, 8, v{T+1}
        v_mul_u32_u24 v{T+2}, 5, v{T+1}
        v_sub_u32 v{T+2}, v0, v{T+2}
        v_mul_u32_u24 v{T+1}, {pitch}, v{T+1}
        s_and_b32 s{sT+1}, s{sRB}, 7
        s_mul_i32 s{sT+1}, s{sT+1}, 40
        s_mul_i32 s{sT+2}, s{sW}, -6
        s_add_u32 s{sT+1}, s{sT+1}, s{sT+2}
        s_mul_i32 s{sT+1}, s{sT+1}, {pitch}
        s_add_u32 s{sT+2}, s{sT+1}, s{sWo[0]}
        """)
        if isA:
            k(f"""
            v_lshl_add_u32 v{T+1}, v{T+2}, 10, v{T+1}
            v_cmp_gt_u32 vcc, 3, v{T+2}
            s_and_b64 exec, vcc, 0x3ffffffffffff
            """.replace("s_and_b64 exec, vcc, 0x3ffffffffffff", f"s_mov_b32 s{sT+5}, 0x3ffff\ns_and_b32 exec_hi, vcc_hi, s{sT+5}\ns_mov_b32 exec_lo, vcc_lo"))
        else:
            k(f"""
            s_sub_u32 s{sT+3}, s{sWo[1]}, s{sWo[0]}
            s_sub_u32 s{sT+3}, s{sT+3}, 128
            v_lshlrev_b32 v{T+3}, 7, v{T+2}
            v_min_u32 v{T+4}, 192, v{T+3}
            v_add_u32 v{T+3}, s{sT+3}, v{T+3}
            v_cmp_gt_u32 vcc, 3, v{T+2}
            v_cndmask_b32 v{T+3}, v{T+3}, v{T+4}, vcc
            v_add_u32 v{T+1}, v{T+1}, v{T+3}
            v_add_u32 v{T+1}, s{sT+2}, v{T+1}
            s_mov_b32 s{sT+2}, 0
            s_mov_b32 exec_hi, 0x3ffff
            """)
        k(f"buffer_load_dword v28, v{T+1}, s[{sWr}:{sWr+3}], s{sT+2} offen {bp}\ns_mov_b64 exec, -1")
    def reads(sg):
        X = [f"ds_read_b128 {vr(fX(sg, a))}, v{xaddr(sg, a)[0]} offset:{xaddr(sg, a)[1]}" for a in range(nX)]
        Wl = [f"ds_read_b64_tr_b16 {vr(fW(sg, j) + 2*j2, 2)}, v{waddr(sg, j, j2)[0]} offset:{waddr(sg, j, j2)[1]}" for j in range(nW) for j2 in range(2)]
        if isA:
            if OPT.get("noread"): return []
            return Wl + X + [f"ds_read_b128 {vr(fS(sg, a))}, v{vS[sg]} offset:{2048 + a*2048}" for a in range(2)]
        if OPT.get("noread"): return []
        return X + Wl
    def mf(d, a, b): return f"v_mfma_f32_16x16x32_bf16 {vr(d)}, {vr(a)}, {vr(b)}, {vr(d)}"
    def mfmas(sg):
        L = []
        if isA:
            for a in range(9):
                if a: L.append(mf(tQ(a), fW(sg, 0), fX(sg, a)))
                L.append(mf(tK(a), fW(sg, 1), fX(sg, a)))
                L.append(mf(tV(a), fX(sg, a), fW(sg, 2)))
            L += [mf(tG(2), fX(sg, 0), fX(sg, 0)), mf(tS(2), ONES, fX(sg, 0))]
        else:
            for j in range(7):
                for a in range(4):
                    L.append(mf(tZ(a, j), fX(sg, a), fW(sg, j)) if isz2(j) else mf(tZ(a, j), fW(sg, j), fX(sg, a)))
        for a in range(2): L += [mf(tG(a), fS(sg, a), fS(sg, a)), mf(tS(a), ONES, fS(sg, a))]
        if sg == 0 or isA:
            for j in range(nW): L.append(mf(tC(j), ONES, fW(sg, j)))
        if OPT.get("noextra"): return L[:26 if isA else 28]
        return L
    adv = lambda sg: [f"v_add_u32 v{r}, s{sDelta}, v{r}" for r in bases[sg]]
    k(f"s_mov_b32 s{sI}, 0\ns_waitcnt vmcnt({2*ndma + nbulk})\ns_barrier")
    k.stamp(1)
    for l in reads(0): k(l)
    k("s_waitcnt lgkmcnt(0)")
    k(f".p2align 6\n{lab}_loop:")
    for l in interleave(mfmas(0), reads(1) + [f"s_cmp_eq_u32 s{sSt}, {2*STG}\ns_cselect_b32 s{sDelta}, {-2*STG}, s{sSTG}"] + adv(0), per=1): k(l)
    npf = (3 if pf else 1) + (3 if OPT.get("pf3") else 0)
    k(f"s_cmp_ge_u32 s{sI}, 5\ns_cbranch_scc1 {lab}_nodma")
    k(f"s_waitcnt vmcnt({ndma}) lgkmcnt(0)\ns_barrier")
    def half2(with_dma):
        M = mfmas(1)
        slots = [[] for _ in range(len(M) + 1)]
        R = reads(0)
        for n, l in enumerate(R): slots[n + 1].append(l)
        for n, l in enumerate(adv(1)): slots[len(R) + 1 + n].append(l)
        if with_dma and not OPT.get("nodma"):
            G = dma()
            for n, g in enumerate(G):
                pos = 1 + n*(len(M) - 2)//len(G)
                cut = max(i for i, l in enumerate(g) if " m0," in l) + 1
                slots[pos] += g[:cut]; slots[pos + 1] = g[cut:] + slots[pos + 1]
        for i, m in enumerate(M):
            for l in slots[i]: k(l)
            k(m)
        for l in slots[len(M)]: k(l)
        k(f"""
        s_add_u32 s{sSt}, s{sSt}, s{sDelta}
        s_add_u32 s{sI}, s{sI}, 1
        s_cmp_lt_u32 s{sI}, 8
        s_waitcnt lgkmcnt(0)
        s_cbranch_scc1 {lab}_loop
        """)
    half2(True)
    k(f"{lab}_nodma:\ns_cmp_eq_u32 s{sI}, 5\ns_cbranch_scc1 {lab}_five\ns_waitcnt vmcnt({npf}) lgkmcnt(0)\ns_barrier\ns_branch {lab}_cont")
    k(f"{lab}_five:\ns_waitcnt vmcnt({ndma}) lgkmcnt(0)\ns_barrier")
    k.srd(sPr, sWSP, 2048*4096)
    k(f"""
    s_and_b32 s{sT}, s2, 7
    s_lshr_b32 s{sT}, s{sT}, 1
    s_lshl_b32 s{sT}, s{sT}, 21
    s_lshr_b32 s{sT+1}, s2, 3
    s_lshl_b32 s{sT+1}, s{sT+1}, 2
    s_add_u32 s{sT+1}, s{sT+1}, s{sW}
    s_lshl_b32 s{sT+2}, s{sT+1}, 14
    s_add_u32 s{sT}, s{sT}, s{sT+2}
    s_add_u32 s{sT+1}, s{sT}, 8192
    v_lshlrev_b32 v23, 7, v0
    s_mov_b32 s{sT+3}, 0x7fffffff
    global_load_dword v{vNon}, v{vZero}, s[{sDBG}:{sDBG+1}] sc1
    """)
    for n in range(1, 3 if pf else 1): k(f"buffer_load_dword v28, v23, s[{sPr}:{sPr+3}], s{sT+n-1} offen {pf_pol}")
    if OPT.get("pf3"): OPT["pf3"](k)
    k(f"{lab}_cont:")
    half2(False)
    k.stamp(2)
    cI, cE = T, T+1
    X = T + 16
    k(f"""
    s_barrier
    v_mov_b32 v{cI}, {f2h(1/512)}
    v_mov_b32 v{cE}, {f2h(1e-5)}
    v_and_b32 v{T+2}, 1, v0
    v_cmp_eq_u32 s[{sM}:{sM+1}], 1, v{T+2}
    v_and_b32 v{T+2}, 2, v0
    v_cmp_eq_u32 s[{sM+2}:{sM+3}], 2, v{T+2}
    v_lshrrev_b32 v{T+2}, 2, v2
    v_cmp_eq_u32 s[{sM+4}:{sM+5}], v1, v{T+2}
    v_lshlrev_b32 v{T+3}, 2, v2
    v_add_u32 v{T+3}, {TOP}, v{T+3}
    """)
    ns = 3 if isA else 2
    for a in range(ns):
        for r in range(4): k(f"v_accvgpr_read_b32 v{X+a*8+r}, {vr(tG(a)+r, 1)}")
        k(f"v_accvgpr_read_b32 v{X+a*8+4}, {vr(tS(a), 1)}")
    A_ = range(ns)
    for a in A_: k(f"v_cndmask_b32 v{X+a*8}, v{X+a*8}, v{X+a*8+1}, s[{sM}:{sM+1}]\nv_cndmask_b32 v{X+a*8+2}, v{X+a*8+2}, v{X+a*8+3}, s[{sM}:{sM+1}]")
    for a in A_: k(f"v_mul_f32 v{X+a*8+4}, v{X+a*8+4}, v{cI}\nv_cndmask_b32 v{X+a*8}, v{X+a*8}, v{X+a*8+2}, s[{sM+2}:{sM+3}]")
    for a in A_: k(f"v_mul_f32 v{X+a*8}, v{X+a*8}, v{cI}")
    for a in A_: k(f"v_fma_f32 v{X+a*8}, -v{X+a*8+4}, v{X+a*8+4}, v{X+a*8}")
    for a in A_: k(f"v_max_f32 v{X+a*8}, 0, v{X+a*8}")
    for a in A_: bf16_round(k, X+a*8, X+a*8)
    for a in A_: k(f"v_add_f32 v{X+a*8}, v{X+a*8}, v{cE}")
    for a in A_: bf16_round(k, X+a*8, X+a*8)
    for a in A_: k(f"v_sqrt_f32 v{X+a*8}, v{X+a*8}")
    for a in A_: bf16_round(k, X+a*8+4, X+a*8+4)
    for a in A_: bf16_round(k, X+a*8, X+a*8)
    for a in A_: k(f"v_rcp_f32 v{X+a*8}, v{X+a*8}")
    if isA: k(f"s_lshl_b32 s{sT}, s{sW}, 7\ns_add_u32 s{sT}, s{sT}, 64\ns_mul_i32 s{sT+1}, s{sW}, 192\ns_mov_b32 s{sT+2}, s{sT+1}")
    else:
        k(f"""
        s_lshl_b32 s{sT}, s{sH}, 8
        s_lshl_b32 s{sT+3}, s{sE}, 7
        s_add_u32 s{sT}, s{sT}, s{sT+3}
        s_add_u32 s{sT}, s{sT}, 64
        s_lshl_b32 s{sT+1}, s{sE}, 8
        s_mul_i32 s{sT+4}, s{sE}, 192
        s_lshl_b32 s{sT+5}, s{sH}, 10
        s_add_u32 s{sT+2}, s{sT+1}, s{sT+5}
        s_add_u32 s{sT+5}, s{sT+4}, s{sT+5}
        """)
    k(f"v_add_u32 v{T+4}, s{sT}, v{T+3}\nv_add_u32 v{T+5}, s{sT+2}, v{T+3}")
    if not isA: k(f"v_add_u32 v{T+6}, s{sT+5}, v{T+3}")
    for a in A_: k(f"v_mul_f32 v{X+a*8+4}, -v{X+a*8+4}, v{X+a*8}")
    for j in range(nW):
        k(f"ds_write_b32 v{T+5 if j < 4 else T+6}, {vr(tC(j), 1)} offset:{TC + (j*64 if j < 4 else 512 + (j-4)*64)}")
    k(f"s_mov_b64 exec, s[{sM+4}:{sM+5}]")
    for a in A_:
        ad, o = (T+4, a*64) if a < 2 else (T+3, 0)
        k(f"ds_write_b32 v{ad}, v{X+a*8} offset:{TA + o}\nds_write_b32 v{ad}, v{X+a*8+4} offset:{TB + o}")
    k("s_mov_b64 exec, -1")
    k(f"""
    s_waitcnt vmcnt({npf-1})
    v_readfirstlane_b32 s{sNON}, v{vNon}
    s_cmp_lg_u32 s{sNON}, 0
    s_cbranch_scc1 {lab}_non
    s_mov_b32 s{sT+6}, 0
    {lab}_nspin:
    s_sleep 4
    global_load_dword v{vNon}, v{vZero}, s[{sDBG}:{sDBG+1}] sc1
    s_add_u32 s{sT+6}, s{sT+6}, 1
    s_waitcnt vmcnt(0)
    v_readfirstlane_b32 s{sNON}, v{vNon}
    s_cmp_gt_u32 s{sT+6}, 100000
    s_cbranch_scc1 {lab}_non
    s_cmp_eq_u32 s{sNON}, 0
    s_cbranch_scc1 {lab}_nspin
    {lab}_non:
    v_lshlrev_b32 v{T+7}, 4, v1
    v_add_u32 v{T+7}, {TOP}, v{T+7}
    s_waitcnt lgkmcnt(0)
    s_barrier
    """)
    k.stamp(3)
    k.lg.q = []; k.vm.q = []
    FILL.start(k)
    if isA: epi_attn(k, lab, st_pol, tQ, tK, tV)
    else: epi_B(k, lab, V, st_pol, tZ, isz2)
    after(k, V)

def gelu_pk(k, ys, c, t, nf=(0, 0, 0, 0)):
    n = range(len(ys))
    for i in n: k(pk("mul", t+2*i, [(ys[i], 0), (ys[i], 0)]))
    for i in n: k(pk("fma", t+2*i, [(t+2*i, 0), (c+1, 1), (c, 1)]))
    for i in n: k(pk("mul", t+2*i, [(t+2*i, 0), (ys[i], 0)]))
    FILL(k, nf[0])
    for i in range(2*len(ys)): k(f"v_exp_f32 v{t+i}, v{t+i}")
    FILL(k, nf[1])
    for i in n: k(pk("add", t+2*i, [(t+2*i, 0), ("1.0", 1)]))
    for i in range(2*len(ys)): k(f"v_rcp_f32 v{t+i}, v{t+i}")
    FILL(k, nf[2])
    for i in n: k(pk("mul", ys[i], [(ys[i], 0), (t+2*i, 0)]))
    FILL(k, nf[3])

def epi_B(k, lab, V, st_pol, tZ, isz2):
    z2flag = OPT.get('z2flag', lambda k, V: None)
    J2 = [j for j in range(7) if isz2(j)]; J1 = [j for j in range(7) if not isz2(j)]
    vI4, vG16 = T+3, T+7
    c = T
    AR, BR = T+8, T+24
    C2 = T+40
    ST = T+48
    tmp = T+80
    AL = T+88
    ad = T+96
    coff = lambda j: (j*64 if j < 4 else 512 + (j-4)*64)
    k(f"""
    s_lshl_b32 s{sT}, s{sH}, 8
    s_add_u32 s{sT}, s{sT}, 64
    s_add_u32 s{sT+2}, s{sT}, s{sT+3}
    s_sub_u32 s{sT+5}, s{sT}, s{sT+3}
    v_add_u32 v{ad}, s{sT+2}, v{vG16}
    v_add_u32 v{ad+1}, s{sT+5}, v{vG16}
    v_add_u32 v{ad+2}, s{sT+2}, v{vI4}
    v_add_u32 v{ad+3}, s{sT+5}, v{vI4}
    v_add_u32 v{ad+4}, s{sT+1 if V == "B43" else sT+4}, v{vI4}
    v_add_u32 v{ad+5}, s{sT+4 if V == "B43" else sT+1}, v{vG16}
    """)
    for a in range(4):
        k.ds(f"ds_read_b128 {vr(AR + a*4)}, v{ad + (a>>1)} offset:{TA + a*64}", "t")
        k.ds(f"ds_read_b128 {vr(BR + a*4)}, v{ad + (a>>1)} offset:{TB + a*64}", "t")
    for n, j in enumerate(J2):
        for hh in range(2): k.ds(f"ds_read_b32 v{C2 + 2*n + hh}, v{ad+4} offset:{TC + hh*1024 + coff(j)}", "t")
    k(f"v_mov_b32 v{c}, {f2h(GC1)}\nv_mov_b32 v{c+1}, {f2h(GC2)}")
    k.wait(lg="t")
    for a in range(4):
        k.ds(f"ds_read_b32 v{AL + a}, v{ad + 2 + (a>>1)} offset:{TA + a*64}", "u")
        k.ds(f"ds_read_b32 v{AL + 4 + a}, v{ad + 2 + (a>>1)} offset:{TB + a*64}", "u")
    for n in range(len(J2)): k(f"v_add_f32 v{C2+2*n}, v{C2+2*n}, v{C2+2*n+1}")
    for n, j in enumerate(J2):
        for p in range(2):
            ys = [tZ(2*p + (i >> 1), j) + 2*(i & 1) for i in range(4)]
            ab = [(2*p + (i >> 1))*4 + 2*(i & 1) for i in range(4)]
            for i in range(4): k(pk("mul", tmp+2*i, [(BR+ab[i], 0), (C2+2*n, 1)]))
            for i in range(4): k(pk("fma", ys[i], [(AR+ab[i], 0), (ys[i], 0), (tmp+2*i, 0)]))
            gelu_pk(k, ys, c, tmp)
            for i in range(4):
                s_ = ST + (2*p + (i >> 1))*8 + 2*(i & 1); q_ = s_ + 4
                if n == 0: k(f"v_mov_b32 v{s_}, v{ys[i]}\nv_mov_b32 v{s_+1}, v{ys[i]+1}\n" + pk("mul", q_, [(ys[i], 0), (ys[i], 0)]))
                else: k(pk("add", s_, [(s_, 0), (ys[i], 0)]) + "\n" + pk("fma", q_, [(ys[i], 0), (ys[i], 0), (q_, 0)]))
            FILL(k, 4 if len(J2) == 4 else 5)
    k.stamp(4)
    C1 = T+8
    for n, j in enumerate(J1):
        for hh in range(2): k.ds(f"ds_read_b128 {vr(C1 + 8*n + 4*hh)}, v{ad+5} offset:{TC + hh*1024 + coff(j)}", "u")
    for n in range(16): k(f"v_add_f32_dpp v{ST+n}, v{ST+n}, v{ST+n} row_mirror row_mask:0xf bank_mask:0x3")
    for n in range(16): k(f"v_add_f32_dpp v{ST+n}, v{ST+16+n}, v{ST+16+n} row_mirror row_mask:0xf bank_mask:0xc")
    FILL(k, 32 - 8*(4 if len(J2) == 4 else 0) - 6*(5 if len(J2) == 3 else 0) + 4)
    for n in range(8): k(f"v_add_f32_dpp v{ST+n}, v{ST+n}, v{ST+n} row_half_mirror row_mask:0xf bank_mask:0x5")
    for n in range(8): k(f"v_add_f32_dpp v{ST+n}, v{ST+8+n}, v{ST+8+n} row_half_mirror row_mask:0xf bank_mask:0xa")
    for n in range(8): k(f"v_add_f32_dpp v{ST+n}, v{ST+n}, v{ST+n} quad_perm:[1,0,3,2] row_mask:0xf bank_mask:0xf")
    for n in range(8): k(f"v_add_f32_dpp v{ST+n}, v{ST+n}, v{ST+n} quad_perm:[2,3,0,1] row_mask:0xf bank_mask:0xf")
    k(f"""
    v_lshrrev_b32 v{tmp}, 2, v2
    s_lshl_b32 s{sT+6}, s{sE}, 1
    v_xor_b32 v{tmp}, s{sT+6}, v{tmp}
    v_lshl_add_u32 v{tmp}, v{tmp}, 6, v{vG16}
    s_lshl_b32 s{sT+6}, s{sE}, 10
    s_lshl_b32 s{sT+7}, s{sH}, 8
    s_add_u32 s{sT+6}, s{sT+6}, s{sT+7}
    v_add_u32 v{tmp}, s{sT+6}, v{tmp}
    ds_write_b128 v{tmp}, {vr(ST)} offset:{PS}
    ds_write_b128 v{tmp}, {vr(ST+4)} offset:{PS + 512}
    v_and_b32 v{tmp+1}, 31, v0
    s_lshl_b32 s{sT+6}, s{sW}, 7
    s_add_u32 s{sT+6}, s{sT+6}, {TOP}
    v_lshl_add_u32 v{tmp+1}, v{tmp+1}, 2, s{sT+6}
    s_add_u32 s{sXs}, s{sWS}, {XS_OFF}
    s_addc_u32 s{sXs+1}, s{sWS+1}, 0
    s_mov_b32 s{sXs+2}, {XS_SZ}
    s_mov_b32 s{sXs+3}, 0x20000
    s_lshl_b32 s{sT+8}, s{sRB}, 14                 ; rb*16384
    s_lshl_b32 s{sT+6}, s{sCQ}, 12
    s_add_u32 s{sT+6}, s{sT+6}, {0 if V == "B43" else 2048}
    s_add_u32 s{sT+6}, s{sT+6}, s{sT+8}
    s_lshl_b32 s{sT+7}, s{sW}, 9
    s_add_u32 s{sT+6}, s{sT+6}, s{sT+7}
    v_mov_b32 v{ST+10}, s{sNON}
    v_mov_b32 v{ST+11}, s{sNON}
    s_waitcnt lgkmcnt(0)
    s_barrier
    ds_read_b32 v{ST+8}, v{tmp+1} offset:{PS}
    ds_read_b32 v{ST+9}, v{tmp+1} offset:{PS + 512}
    ds_read_b32 v{ST+12}, v{tmp+1} offset:{PS + 1024}
    ds_read_b32 v{ST+13}, v{tmp+1} offset:{PS + 1536}
    """)
    k.lg.q = []
    for n in range(len(J1)):
        for i in range(2): k(pk("add", C1+8*n+2*i, [(C1+8*n+2*i, 0), (C1+8*n+4+2*i, 0)]))
    k(f"""
    s_waitcnt lgkmcnt(0)
    {pk("add", ST+8, [(ST+8, 0), (ST+12, 0)])}
    s_mov_b64 exec, 0xffffffff
    buffer_store_dwordx4 {vr(ST+8)}, v{vL16}, s[{sXs}:{sXs+3}], s{sT+6} offen sc1
    s_mov_b64 exec, -1
    """)
    k.lg.q = []; k.vm.issue("pub")
    def z1_unit(n, j):
        for p in range(2):
            ys = [tZ(2*p + (i >> 1), j) + 2*(i & 1) for i in range(4)]
            for i in range(4): k(pk("mul", tmp+2*i, [(C1+8*n+2*(i & 1), 0), (AL+4+2*p+(i >> 1), 1)]))
            for i in range(4): k(pk("fma", ys[i], [(ys[i], 0), (AL+2*p+(i >> 1), 1), (tmp+2*i, 0)]))
            gelu_pk(k, ys, c, tmp)
            for i in range(4): k(f"v_cvt_pk_bf16_f32 v{tZ(2*p, j)+i}, v{ys[i]}, v{ys[i]+1}")
            FILL(k, 7)
    NZA = OPT.get("nza", 2)
    for n, j in list(enumerate(J1))[:NZA]: z1_unit(n, j)
    k.stamp(5)
    G = T+40
    k(f"""
    s_lshl_b32 s{sT+6}, s{sH}, 10
    s_add_u32 s{sT+6}, s{sT+6}, s{sT+8}
    s_add_u32 s{sT+7}, s{sT+6}, 4096
    s_add_u32 s{sT+8}, s{sT+6}, 8192
    s_add_u32 s{sT+9}, s{sT+6}, 12288
    s_mov_b32 s{sT+10}, 0
    {lab}_poll:
    """)
    for cidx in range(8): k(f"buffer_load_dwordx4 {vr(G+4*cidx)}, v{vL16}, s[{sXs}:{sXs+3}], s{sT+6+(cidx>>1)} offen offset:{(cidx&1)*2048} sc1")
    k(f"s_add_u32 s{sT+10}, s{sT+10}, 1\ns_waitcnt vmcnt(0)")
    for cidx in range(8): k(f"v_xor_b32 v{G+4*cidx+3}, s{sNON}, v{G+4*cidx+2}")
    k(f"""
    v_or3_b32 v{G+3}, v{G+3}, v{G+7}, v{G+11}
    v_or3_b32 v{G+15}, v{G+15}, v{G+19}, v{G+23}
    v_or3_b32 v{G+3}, v{G+3}, v{G+27}, v{G+31}
    v_or_b32 v{G+3}, v{G+3}, v{G+15}
    v_cmp_ne_u32 vcc, 0, v{G+3}
    s_nop 3
    s_cmp_gt_u32 s{sT+10}, 100000
    s_cbranch_scc1 {lab}_got
    s_cbranch_vccnz {lab}_poll
    {lab}_got:
    """)
    k(f"""
    s_add_u32 s{sOr}, s{sWS}, {Z1L_OFF}
    s_addc_u32 s{sOr+1}, s{sWS+1}, 0
    s_mov_b32 s{sOr+2}, {Z1L_SZ}
    s_mov_b32 s{sOr+3}, 0x20000
    s_mov_b32 s{sPr}, s{sWS}
    s_mov_b32 s{sPr+1}, s{sWS+1}
    s_mov_b32 s{sPr+2}, {Z2F_SZ}
    s_mov_b32 s{sPr+3}, 0x20000
    s_lshl_b32 s{sT}, s{sRB}, 1
    s_add_u32 s{sT}, s{sT}, s{sH}
    s_mul_i32 s{sT}, s{sT}, 112
    s_mul_i32 s{sT+2}, s{sCQ}, 14
    s_add_u32 s{sT}, s{sT}, s{sT+2}
    s_mul_i32 s{sT+2}, s{sE}, 56
    s_add_u32 s{sT+5}, s{sT}, s{sT+2}
    s_sub_u32 s{sT+6}, s{sT}, s{sT+2}
    s_add_u32 s{sT+6}, s{sT+6}, 56
    s_lshl_b32 s{sT+5}, s{sT+5}, 10
    s_lshl_b32 s{sT+6}, s{sT+6}, 10
    s_lshl_b32 s{sT+1}, s{sT+1}, 4                 ; 4e*1024
    s_lshl_b32 s{sT+4}, s{sT+4}, 4
    s_add_u32 s{sT+4}, s{sT+4}, 8192               ; (8+3e)*1024
    s_add_u32 s{sT+7}, s{sT+5}, s{sT+1}
    s_add_u32 s{sT+8}, s{sT+6}, s{sT+1}
    s_add_u32 s{sT+9}, s{sT+5}, s{sT+4}
    s_add_u32 s{sT+10}, s{sT+6}, s{sT+4}
    """)
    so = lambda j, p: (sT+7+p if j < 4 else sT+9+p, (j if j < 4 else j-4)*1024)
    for i in range(4): k(pk("add", G+8*i, [(G+8*i, 0), (G+8*i+4, 0)]))
    for i in range(2): k(pk("add", G+16*i, [(G+16*i, 0), (G+16*i+8, 0)]))
    k(pk("add", G, [(G, 0), (G+16, 0)]))
    k(f"""
    v_mov_b32 v{G+2}, {f2h(1/896)}
    v_mul_f32 v{G}, v{G}, v{G+2}
    v_mul_f32 v{G+1}, v{G+1}, v{G+2}
    v_fma_f32 v{G+1}, -v{G}, v{G}, v{G+1}
    v_max_f32 v{G+1}, 0, v{G+1}
    """)
    bf16_round(k, G+1, G+1); k(f"v_add_f32 v{G+1}, {f2h(1e-5)}, v{G+1}"); bf16_round(k, G+1, G+1)
    k(f"v_sqrt_f32 v{G+1}, v{G+1}"); bf16_round(k, G, G); bf16_round(k, G+1, G+1)
    k(f"""
    v_rcp_f32 v{G+1}, v{G+1}
    s_lshl_b32 s{sT}, s{sW}, 9
    s_add_u32 s{sT+2}, s{sT}, {TOP}
    v_lshl_add_u32 v{G+2}, v0, 2, s{sT+2}
    v_mul_f32 v{G}, -v{G}, v{G+1}
    ds_write_b32 v{G+2}, v{G+1} offset:{NT}
    ds_write_b32 v{G+2}, v{G} offset:{NT + 256}
    s_add_u32 s{sT+2}, s{sT}, s{sT+3}
    s_sub_u32 s{sT}, s{sT}, s{sT+3}
    v_add_u32 v{ad}, s{sT+2}, v{vG16}
    v_add_u32 v{ad+1}, s{sT}, v{vG16}
    """)
    k("s_waitcnt lgkmcnt(0)"); k.lg.q = []; k.vm.q = []
    NR, NM = T+48, T+64
    for a in range(4):
        k.ds(f"ds_read_b128 {vr(NR + a*4)}, v{ad + (a>>1)} offset:{NT + a*64}", f"n{a>>1}")
        k.ds(f"ds_read_b128 {vr(NM + a*4)}, v{ad + (a>>1)} offset:{NT + 256 + a*64}", f"n{a>>1}")
    for p in range(2):
        k.wait(lg=f"n{p}")
        for j in J2:
            ys = [tZ(2*p + (i >> 1), j) + 2*(i & 1) for i in range(4)]
            ab = [(2*p + (i >> 1))*4 + 2*(i & 1) for i in range(4)]
            for i in range(4): k(pk("fma", ys[i], [(ys[i], 0), (NR+ab[i], 0), (NM+ab[i], 0)]))
            for i in range(4): k(f"v_cvt_pk_bf16_f32 v{tZ(2*p, j)+i}, v{ys[i]}, v{ys[i]+1}")
            k(f"buffer_store_dwordx4 {vr(tZ(2*p, j))}, v{vL16}, s[{sPr}:{sPr+3}], s{so(j,p)[0]} offen offset:{so(j,p)[1]} {st_pol}")
    for n, j in list(enumerate(J1))[NZA:]: z1_unit(n, j)
    z2flag(k, V)
    for j in J1:
        for p in range(2): k.vmem(f"buffer_store_dwordx4 {vr(tZ(2*p, j))}, v{vL16}, s[{sOr}:{sOr+3}], s{so(j,p)[0]} offen offset:{so(j,p)[1]} {st_pol}", "p1st")

def epi_attn(k, lab, st_pol, tQ, tK, tV):
    vI4, vG16 = T+3, T+7
    AL, BL = T+8, T+18
    CQ, CK, CV = T+28, T+32, T+27
    QP, KP, VP = T+36, T+52, T+70
    tmp = T+88
    MC, MP = T+96, T+98
    cS, cN = T, T+1
    RA = T+100
    k(f"v_add_u32 v{T+4}, s{sT+1}, v{vG16}\nv_add_u32 v{T+5}, s{sT+1}, v{vI4}")
    k.ds(f"ds_read_b128 {vr(CQ)}, v{T+4} offset:{TC}", "t")
    k.ds(f"ds_read_b128 {vr(CK)}, v{T+4} offset:{TC + 64}", "t")
    k.ds(f"ds_read_b32 v{CV}, v{T+5} offset:{TC + 128}", "t")
    for a in range(9):
        k.ds(f"ds_read_b32 v{AL+a}, v{vI4} offset:{TA + a*64}", f"l{a}")
        k.ds(f"ds_read_b32 v{BL+a}, v{vI4} offset:{TB + a*64}", f"l{a}")
    k(f"""
    v_and_b32 v{tmp}, 1, v2
    v_lshl_add_u32 v{tmp+1}, v1, 2, v{tmp}
    v_cmp_le_u32 s[{sM+2}:{sM+3}], v{tmp+1}, v2
    v_add_u32 v{tmp+1}, 2, v{tmp+1}
    v_cmp_le_u32 s[{sM+4}:{sM+5}], v{tmp+1}, v2
    v_lshlrev_b32 v{tmp}, 4, v{tmp}
    v_mov_b32 v{tmp+1}, 0xffff
    v_lshlrev_b32 v{tmp}, v{tmp}, v{tmp+1}
    v_cndmask_b32 v{MC}, 0, v{tmp}, s[{sM+2}:{sM+3}]
    v_cndmask_b32 v{MP}, v{tmp}, 0, s[{sM+2}:{sM+3}]
    v_cndmask_b32 v{MC+1}, 0, v{tmp}, s[{sM+4}:{sM+5}]
    v_cndmask_b32 v{MP+1}, v{tmp}, 0, s[{sM+4}:{sM+5}]
    v_mov_b32 v{cS}, {f2h(0.25*LOG2E)}
    v_mov_b32 v{cN}, {f2h(-1e30)}
    s_cmp_eq_u32 s{sRB}, 0
    s_cselect_b64 s[{sM+6}:{sM+7}], -1, 0
    """)
    for a in range(9):
        k.wait(lg=f"l{a}")
        tiles = [(tK(a), CK, KP+2*a)] + ([(tQ(a), CQ, QP+2*(a-1))] if a else [])
        for n, (y, cs, d) in enumerate(tiles):
            for i in range(2): k(pk("mul", tmp+4*n+2*i, [(cs+2*i, 0), (BL+a, 1)]))
        for n, (y, cs, d) in enumerate(tiles):
            for i in range(2): k(pk("fma", y+2*i, [(y+2*i, 0), (AL+a, 1), (tmp+4*n+2*i, 0)]))
        for n, (y, cs, d) in enumerate(tiles):
            for i in range(2): k(f"v_cvt_pk_bf16_f32 v{d+i}, v{y+2*i}, v{y+2*i+1}")
        FILL(k, 2)
    Sc = lambda a: tQ(a); Sp = lambda a: tK(a)
    RV = 256
    buf = [T+8, T+16, T+100]
    def rd(a):
        b = buf[a % 3]
        k.ds(f"ds_read_b128 {vr(b)}, v{vG16} offset:{TA + a*64}", f"v{a}")
        k.ds(f"ds_read_b128 {vr(b+4)}, v{vG16} offset:{TB + a*64}", f"v{a}")
    rd(0); rd(1)
    for a in range(1, 9):
        k(f"v_mfma_f32_16x16x16_bf16 {vr(Sc(a))}, {vr(KP+2*a, 2)}, {vr(QP+2*(a-1), 2)}, 0")
        k(f"v_mfma_f32_16x16x16_bf16 {vr(Sp(a))}, {vr(KP+2*(a-1), 2)}, {vr(QP+2*(a-1), 2)}, 0")
    for a in range(9):
        if a + 2 < 9: rd(a + 2)
        k.wait(lg=f"v{a}")
        b = buf[a % 3]; y = tV(a)
        for i in range(2): k(pk("mul", tmp+2*i, [(b+4+2*i, 0), (CV, 1)]))
        for i in range(2): k(pk("fma", y+2*i, [(b+2*i, 0), (y+2*i, 0), (tmp+2*i, 0)]))
        for i in range(2): k(f"v_cvt_pk_bf16_f32 v{VP+2*a+i}, v{y+2*i}, v{y+2*i+1}")
        FILL(k, 2)
    U = range(1, 9)
    X = lambda a: tV(a)
    for a in U:
        for v in range(2):
            k(f"v_cndmask_b32 v{X(a)+v}, v{Sc(a)+2*v}, v{Sc(a)+2*v+1}, s[{sM}:{sM+1}]")
            k(f"v_cndmask_b32 v{X(a)+2+v}, v{Sp(a)+2*v}, v{Sp(a)+2*v+1}, s[{sM}:{sM+1}]")
    for v in range(2): k(f"v_cndmask_b32 v{X(1)+2+v}, v{X(1)+2+v}, v{cN}, s[{sM+6}:{sM+7}]")
    for a in U:
        for v in range(2): k(f"v_cndmask_b32 v{X(a)+v}, v{X(a)+2+v}, v{X(a)+v}, s[{sM+2+2*v}:{sM+3+2*v}]")
    def allred(op):
        for sw in ("v_permlane16_swap_b32", "v_permlane32_swap_b32"):
            for a in U: k(f"v_mov_b32 v{X(a)+3}, v{X(a)+2}")
            for a in U: k(f"{sw} v{X(a)+2}, v{X(a)+3}")
            for a in U: k(f"{op} v{X(a)+2}, v{X(a)+2}, v{X(a)+3}")
            FILL(k, 4)
    FILL(k, 6)
    for a in U: k(f"v_max_f32 v{X(a)+2}, v{X(a)}, v{X(a)+1}")
    allred("v_max_f32")
    for a in U: k(f"v_pk_add_f32 {P(X(a))}, {P(X(a))}, {P(X(a)+2)} op_sel_hi:[1,0] neg_lo:[0,1] neg_hi:[0,1]")
    for a in U: k(pk("mul", X(a), [(X(a), 0), (cS, 1)]))
    for a in U:
        for v in range(2): k(f"v_exp_f32 v{X(a)+v}, v{X(a)+v}")
    for a in U: k(f"v_add_f32 v{X(a)+2}, v{X(a)}, v{X(a)+1}")
    allred("v_add_f32")
    for a in U: k(f"v_rcp_f32 v{X(a)+2}, v{X(a)+2}")
    for a in U: k(pk("mul", X(a), [(X(a), 0), (X(a)+2, 1)]))
    for a in U:
        for v in range(2): k(f"v_cvt_pk_bf16_f32 v{X(a)+v}, v{X(a)+v}, v{X(a)+v}")
    for a in U:
        for v in range(2): k(f"v_and_b32 v{Sc(a)+v}, v{X(a)+v}, v{MP+v}\nv_and_b32 v{Sc(a)+2+v}, v{X(a)+v}, v{MC+v}")
    for a in U: k(f"v_mfma_f32_16x16x32_bf16 {vr(Sp(a))}, {vr(VP+2*(a-1))}, {vr(Sc(a))}, 0")
    FILL(k, 6)
    OP = T+8
    k(f"""
    s_lshl_b32 s{sT}, s{sW}, 12
    s_add_u32 s{sT}, s{sT}, {TOP}
    v_add_u32 v{tmp}, s{sT}, v{vL16}
    s_and_b32 s{sT+1}, s{sW}, 2
    s_lshl_b32 s{sT+1}, s{sT+1}, 12
    s_and_b32 s{sT+2}, s{sW}, 1
    s_lshl_b32 s{sT+3}, s{sT+2}, 11
    s_add_u32 s{sT+1}, s{sT+1}, s{sT+3}
    s_add_u32 s{sT+1}, s{sT+1}, {TOP}
    v_add_u32 v{tmp+1}, s{sT+1}, v{vL16}
    s_add_u32 s{sOr}, s{sWS}, {A3_OFF}
    s_addc_u32 s{sOr+1}, s{sWS+1}, 0
    s_mov_b32 s{sOr+2}, {A3_SZ}
    s_mov_b32 s{sOr+3}, 0x20000
    s_lshl_b32 s{sT}, s{sRB}, 1
    s_add_u32 s{sT}, s{sT}, s{sT+2}
    s_mul_i32 s{sT}, s{sT}, 176
    s_lshl_b32 s{sT+1}, s{sSUB}, 1
    s_add_u32 s{sT}, s{sT}, s{sT+1}
    s_lshr_b32 s{sT+1}, s{sW}, 1
    s_add_u32 s{sT}, s{sT}, s{sT+1}
    s_lshl_b32 s{sT}, s{sT}, 10
    s_add_u32 s{sT+1}, s{sT}, {44*1024}
    s_add_u32 s{sT+2}, s{sT}, {88*1024}
    s_add_u32 s{sT+3}, s{sT}, {132*1024}
    """)
    for a in U:
        for d in range(2): k(f"v_cvt_pk_bf16_f32 v{OP+2*(a-1)+d}, v{Sp(a)+2*d}, v{Sp(a)+2*d+1}")
    k.stamp(4)
    for n in range(4): k.ds(f"ds_write_b128 v{tmp}, {vr(OP+4*n)} offset:{OX + n*1024}", "ow")
    k("s_waitcnt lgkmcnt(0)\ns_barrier"); k.lg.q = []
    for n in range(4):
        o = OX + (n >> 1)*1024 + (n & 1)*8
        k.ds(f"ds_read_b64 {vr(OP+16+4*n, 2)}, v{tmp+1} offset:{o}", f"o{n}")
        k.ds(f"ds_read_b64 {vr(OP+18+4*n, 2)}, v{tmp+1} offset:{o + 4096}", f"o{n}")
    for n in range(4):
        k.wait(lg=f"o{n}")
        k.vmem(f"buffer_store_dwordx4 {vr(OP+16+4*n)}, v{vL16}, s[{sOr}:{sOr+3}], s{sT+n} offen {st_pol}", "p1st")
    k.stamp(5)
```

```python
from asmlib import *
from layout import *
from f1 import pk, P, vL16
WREG = 33792
LDS2 = 4*WREG
RING = 1024
sAr, sZ2, sZ1, sA3, sBs = sR0, sR1, sR2, sR3, sR4
sRB2, sCB, sReg, sBo = 11, 27, 73, 81
sAo = [83, 100, 101, 72]
sLand = 58
sU = sT + 6
vAd = [16, 17]; vB1 = 6; vAr = [252, 253, 254, 255]; vRW = 12; vRR = [13, 14, 15]; BS = 18; vZ = 19
Z1 = 18
ACC = 32
RAW = 144
Z1 = 176
T = 192
BR = 256
AS = 256 + 112

def setup(k):
    k(f"""
    s_and_b32 s{sU}, s2, 7
    s_lshr_b32 s{sU+1}, s2, 3
    s_lshr_b32 s{sRB2}, s{sU}, 1
    s_lshl_b32 s{sRB2}, s{sRB2}, 3
    s_lshr_b32 s{sU+2}, s{sU+1}, 2
    s_add_u32 s{sRB2}, s{sRB2}, s{sU+2}
    s_and_b32 s{sCB}, s{sU}, 1
    s_lshl_b32 s{sCB}, s{sCB}, 2
    s_and_b32 s{sU+2}, s{sU+1}, 3
    s_add_u32 s{sCB}, s{sCB}, s{sU+2}
    s_mul_i32 s{sReg}, s{sW}, {WREG}
    v_and_b32 v3, 7, v0
    v_xor_b32 v3, v3, v1
    v_lshlrev_b32 v3, 4, v3
    v_lshrrev_b32 v7, 3, v0
    v_lshl_add_u32 v{vAd[0]}, v7, 12, v3
    v_xor_b32 v{vAd[1]}, 64, v{vAd[0]}
    v_add_u32 v{vAd[1]}, 0x8000, v{vAd[1]}
    """)
    for u in range(4):
        k(f"""
        s_xor_b32 s{sU}, s{sW}, {u}
        s_lshl_b32 s{sU+1}, s{sRB2}, 2
        s_add_u32 s{sU}, s{sU}, s{sU+1}
        s_lshl_b32 s{sU}, s{sU}, 16
        s_lshl_b32 s{sU+1}, s{sW}, 10
        s_add_u32 s{sAo[u]}, s{sU}, s{sU+1}
        """)

def gA(sl, m, a_pol="", sAr=sAr):
    return [("i", f"s_add_u32 m0, s{sReg}, {RING + (sl%4)*8192 + m*1024 - 128*sl}"), ("i", "s_nop 0"),
            ("v", f"buffer_load_dwordx4 v{vAd[m&1]}, s[{sAr}:{sAr+3}], s{sAo[m>>1]} offen offset:{128*sl} {a_pol} lds", f"A{sl}")]
def R(s, dst=None):
    d = RAW + (s&1)*16 if dst is None else dst
    return [("d", f"ds_read_b64 {vr(d + u*4 + 2*j2, 2)}, v{vAr[2*(s&1) + j2]} offset:{RING + ((s>>1)%4)*8192 + u*2048}", f"R{s}") for u in range(4) for j2 in range(2)]
def read_bases(k, sReg=sReg):
    k(f"""
    v_xor_b32 v3, v2, v1
    v_lshrrev_b32 v3, 1, v3                 ; (i>>1) ^ (g>>1)
    v_lshlrev_b32 v3, 4, v3
    v_lshl_add_u32 v3, v2, 7, v3
    v_and_b32 v7, 1, v1
    v_lshl_add_u32 v3, v7, 3, v3
    v_add_u32 v{vAr[0]}, s{sReg}, v3
    v_xor_b32 v{vAr[1]}, 32, v{vAr[0]}
    v_xor_b32 v{vAr[2]}, 64, v{vAr[0]}
    v_xor_b32 v{vAr[3]}, 96, v{vAr[0]}
    """)
def stage_groups(k):
    setup(k); read_bases(k)
    k.srd(sAr, sWSP, 2048*4096)
    G = [gA(sl, m) for sl in range(4) for m in range(8)]
    def rd(sl):
        L = R(2*sl, AS + 32*sl) + R(2*sl + 1, AS + 32*sl + 16)
        return [[("w", f"A{sl}", None)] + L[:8], L[8:]]
    def dm(sl):
        g = [gA(sl, m) for m in range(8)]
        g[0] = [("w", None, f"R{2*(sl-4)+1}")] + g[0]
        return g
    return G + rd(0) + rd(1) + dm(4) + rd(2) + dm(5) + rd(3) + dm(6)

def stage_groups_B(k):
    setup(k)
    k(f"s_mul_i32 s{sLand}, s{sW}, 14336\ns_add_u32 s{sLand}, s{sLand}, {98304 + 1024}")
    read_bases(k, sLand)
    k.srd(sR2, sWSP, 2048*4096)
    def dm(h):
        sl, hf, buf = h >> 1, h & 1, h % 3
        G = []
        for m in range(4*hf, 4*hf + 4):
            G.append([("i", f"s_add_u32 m0, s{sLand}, {buf*4096 + (m&3)*1024 - 128*sl}"), ("i", "s_nop 0"),
                      ("v", f"buffer_load_dwordx4 v{vAd[m&1]}, s[{sR2}:{sR2+3}], s{sAo[m>>1]} offen offset:{128*sl} lds", f"H{h}")])
        if h >= 3: G[0] = [("w", None, f"L{h-3}")] + G[0]
        return G
    def rd(h):
        sl, hf, buf = h >> 1, h & 1, h % 3
        return [("w", f"H{h}", None)] + [("d", f"ds_read_b64 {vr(AS + 32*sl + 16*sp + (2*hf + u)*4 + 2*j2, 2)}, v{vAr[2*sp + j2]} offset:{buf*4096 + u*2048}", f"L{h}")
                                         for sp in range(2) for u in range(2) for j2 in range(2)]
    G = dm(0) + dm(1) + dm(2)[:2] + [rd(0)] + dm(2)[2:]
    for h in range(1, 8):
        d = dm(h + 2) if h + 2 < 8 else []
        G += d[:2] + [rd(h)] + d[2:]
    G[-1] = G[-1] + [("i", f"s_sub_u32 s{sLand}, s{sReg}, s{sLand}")] + [("i", f"v_add_u32 v{r}, s{sLand}, v{r}") for r in vAr]
    return G
def stage_groups_B2(k):
    k.srd(sAr, sWSP, 2048*4096)
    return [gA(sl, m) for sl in range(4, 7) for m in range(8)]

def gen_p2(k, name, wait_z2, done, st_pol="sc1", a_pol="", h_pol="", DB=4, pfb=0, tail=None, mid=None, pre=None, rest=None):
    NS = 16
    vB = [vL16, vB1]
    k(f"v_add_u32 v{vB1}, 4096, v{vL16}\ns_mul_i32 s{sBo}, s{sW}, {16*56*1024}\ns_mul_i32 s{sT}, s{sCB}, 7168\ns_add_u32 s{sBo}, s{sBo}, s{sT}")
    if not wait_z2: k.srd(sAr, sWSP, 2048*4096)
    k.srd(sZ2, sWS, Z2F_SZ)
    def gB(s, j):
        g = [("i", f"s_add_u32 s{sT}, s{sBo}, {s*57344}")] if j == 0 else []
        return g + [("v", f"buffer_load_dwordx4 {vr(BR + (s%DB)*28 + j*4)}, v{vB[j//4]}, s[{sZ2}:{sZ2+3}], s{sT} offen offset:{(j%4)*1024} {h_pol}", f"B{s}")]
    def emit(item):
        if item[0] == "i": k(item[1])
        elif item[0] == "v": k.vmem(item[1], item[2])
        elif item[0] == "d": k.ds(item[1], item[2])
        elif item[0] == "w": k.wait(vm=item[1], lg=item[2])
    def em(gs):
        for g in gs:
            for it in g: emit(it)
    if not wait_z2: em([gA(0, m) for m in range(8)] + [gB(0, j) for j in range(7)])
    k(f"""
    s_add_u32 s{sZ1}, s{sWS}, {Z1L_OFF}
    s_addc_u32 s{sZ1+1}, s{sWS+1}, 0
    s_mov_b32 s{sZ1+2}, {Z1L_SZ}
    s_mov_b32 s{sZ1+3}, 0x20000
    s_add_u32 s{sA3}, s{sWS}, {A3_OFF}
    s_addc_u32 s{sA3+1}, s{sWS+1}, 0
    s_mov_b32 s{sA3+2}, {A3_SZ}
    s_mov_b32 s{sA3+3}, 0x20000
    """)
    k.srd(sBs, sBSP, 4096)
    if not wait_z2: read_bases(k)
    k(f"""
    v_add_u32 v{vRW}, s{sReg}, v{vL16}
    """)
    for u in range(1, 4):
        k(f"""
        s_xor_b32 s{sT+1}, s{sW}, {u}
        s_mul_i32 s{sT+1}, s{sT+1}, {WREG}
        s_add_u32 s{sT+1}, s{sT+1}, {(u-1)*7168}
        v_add_u32 v{vRR[u-1]}, s{sT+1}, v{vL16}
        """)
    k(f"""
    s_lshl_b32 s{sT+4}, s{sRB2}, 1
    s_lshr_b32 s{sT+1}, s{sW}, 1
    s_add_u32 s{sT+4}, s{sT+4}, s{sT+1}
    s_mul_i32 s{sT+4}, s{sT+4}, 56
    s_mul_i32 s{sT+1}, s{sCB}, 7
    s_add_u32 s{sT+4}, s{sT+4}, s{sT+1}
    s_lshl_b32 s{sT+4}, s{sT+4}, 10
    s_and_b32 s{sT+1}, s{sW}, 1
    s_lshl_b32 s{sT+1}, s{sT+1}, 3
    s_add_u32 s{sT+2}, s{sT+4}, s{sT+1}
    s_lshl_b32 s{sT+3}, s{sRB2}, 2
    s_add_u32 s{sT+3}, s{sT+3}, s{sW}
    s_mul_i32 s{sT+4}, s{sT+3}, 44
    s_lshl_b32 s{sT+3}, s{sT+3}, 5
    s_mul_i32 s{sT+1}, s{sCB}, 7
    s_lshr_b32 s{sT+1}, s{sT+1}, 1
    s_add_u32 s{sT+4}, s{sT+4}, s{sT+1}
    s_add_u32 s{sT+4}, s{sT+4}, 16
    s_lshl_b32 s{sT+4}, s{sT+4}, 10
    v_lshlrev_b32 v{vZ}, 1, v2
    """)
    if pfb:
        for i in range(2):
            k(f"""
            v_add_u32 v3, {64*i}, v0
            v_mul_u32_u24 v7, 147, v3
            v_lshrrev_b32 v7, 10, v7
            v_mul_u32_u24 v{24+i}, {57344 - 7168}, v7
            v_lshl_add_u32 v{24+i}, v3, 10, v{24+i}
            """)
        k(f"v_cmp_gt_u32 vcc, {(16-DB+1)*7 - 64}, v0\nv_cndmask_b32 v25, -1, v25, vcc")
    k.vmem(f"buffer_load_ushort v{BS}, v{vZ}, s[{sBs}:{sBs+3}], s{sT+3} offen", "bs")
    if wait_z2:
        if pre: pre(k)
        wait_z2(k)
        em([gB(s, j) for s in range(DB - 1) for j in range(7)])
        if pfb:
            k(f"""
            s_and_b32 s{sT}, s{sRB2}, 7
            s_lshl_b32 s{sT}, s{sT}, 7
            s_add_u32 s{sT}, s{sT}, s{sBo}
            s_add_u32 s{sT}, s{sT}, {(DB-1)*57344}
            """)
            for i in range(2):
                k.vmem(f"buffer_load_dword v31, v{24+i}, s[{sZ2}:{sZ2+3}], s{sT} offen {h_pol}", "pfb")
        pend = []
    else:
        pend = [gB(1, j) for j in range(7)] + [gA(1, m) for m in range(8)] + [gB(2, j) for j in range(7)] + [gA(2, m) for m in range(8)]
        em(pend[:15]); pend = pend[15:]
    k.stamp(1)
    if not wait_z2:
        k.wait(vm="A0")
        for it in R(0): emit(it)
    Aop = lambda s: AS + 16*s if (wait_z2 and s < 8) else RAW + (s&1)*16
    for s in range(NS):
        if s == 1: k.stamp(2)
        MF = []
        for j in range(7):
            for u in range(4):
                a = ACC + (u*7 + j)*4
                MF.append(f"v_mfma_f32_16x16x32_bf16 {vr(a)}, {vr(BR + (s%DB)*28 + j*4)}, {vr(Aop(s) + u*4)}, {vr(a) if s else '0'}")
        slots = [[] for _ in range(29)]
        slots[0].append(("w", f"B{s}", f"R{s}"))
        if s + 1 < NS and not (wait_z2 and s + 1 < 8):
            slots[1].append(("w", f"A{(s+1)>>1}", None))
            for u, it in enumerate(R(s + 1)): slots[1 + u].append(it)
        G = list(pend); pend = []
        if s + DB - 1 < NS: G += [gB(s + DB - 1, j) for j in range(7)]
        sl = (s >> 1) + 3; hf = s & 1
        if sl < 8 and not wait_z2:
            for m in range(4*hf, 4*hf + 4): G.insert(min(len(G), len(G) - 7 + 2*(m % 4) + 1) if len(G) >= 7 else len(G), gA(sl, m))
        if s == 13:
            G += [[("v", f"buffer_load_dwordx2 {vr(Z1 + 2*j, 2)}, v{vB[j//4]}, s[{sZ1}:{sZ1+3}], s{sT+2} offen offset:{(j%4)*1024} {h_pol}", "z1")] for j in range(7)]
        if mid: G = G + mid[2](s)
        if rest and s < 4:
            G = G + rest[s*len(rest)//4:(s + 1)*len(rest)//4]
        if s == 8 and mid: G = G + [mid[0](k)]
        if s == 13 and mid: slots[0] = [("w", "fz1", None)] + slots[0] + mid[1](k)
        for n, g in enumerate(G): slots[1 + n*27//max(1, len(G))] += g
        for i, m in enumerate(MF):
            for it in slots[i]: emit(it)
            k(m)
        for it in slots[28]: emit(it)
    k.stamp(3)
    TG = tail(k) if tail else []
    k.wait(vm="z1")
    for u in range(1, 4):
        for j in range(7):
            if TG: em([TG.pop(0)])
            k.ds(f"ds_write_b128 v{vRW}, {vr(ACC + (u*7+j)*4)} offset:{(u-1)*7168 + j*1024}", "rw")
    ZU = 192
    for j in range(7):
        for d in range(2):
            k(f"v_lshlrev_b32 v{ZU + j*4 + 2*d}, 16, v{Z1 + 2*j + d}\nv_and_b32 v{ZU + j*4 + 2*d + 1}, 0xffff0000, v{Z1 + 2*j + d}")
    k(f"v_lshlrev_b32 v{BS}, 16, v{BS}")
    for j in range(7):
        for d in range(2): k(pk("add", ACC + j*4 + 2*d, [(ACC + j*4 + 2*d, 0), (BS, 1)]))
    k("s_waitcnt lgkmcnt(0)\ns_barrier"); k.lg.q = []
    k.stamp(4)
    Pp = ACC + 28
    for j in range(7):
        for u in range(3):
            k.ds(f"ds_read_b128 {vr(Pp + j*12 + u*4)}, v{vRR[u]} offset:{j*1024}", f"p{j}")
    H = 224
    for j in range(7):
        em(TG[:2]); TG = TG[2:]
        k.wait(lg=f"p{j}")
        p = Pp + j*12; g = ACC + j*4
        for d in range(2): k(pk("add", g+2*d, [(g+2*d, 0), (p+2*d, 0)]))
        for d in range(2): k(pk("add", p+4+2*d, [(p+4+2*d, 0), (p+8+2*d, 0)]))
        for d in range(2): k(pk("add", g+2*d, [(g+2*d, 0), (p+4+2*d, 0)]))
        for d in range(2): k(pk("mul", g+2*d, [(g+2*d, 0), (ZU+j*4+2*d, 0)]))
        for d in range(2): k(f"v_cvt_pk_bf16_f32 v{H+2*j+d}, v{g+2*d}, v{g+2*d+1}")
    k(f"s_bitcmp1_b32 s{sCB}, 0\ns_cbranch_scc1 L_{name}_odd")
    for q in range(4): k.vm.issue("hs")
    for q in range(3): k(f"buffer_store_dwordx4 {vr(H+4*q)}, v{vL16}, s[{sA3}:{sA3+3}], s{sT+4} offen offset:{q*1024} {st_pol}")
    k(f"buffer_store_dwordx2 {vr(H+12, 2)}, v{vL16}, s[{sA3}:{sA3+3}], s{sT+4} offen offset:3072 {st_pol}")
    k(f"s_branch L_{name}_hdone\nL_{name}_odd:")
    k(f"buffer_store_dwordx2 {vr(H, 2)}, v{vL16}, s[{sA3}:{sA3+3}], s{sT+4} offen offset:8 {st_pol}")
    for q in range(3): k(f"buffer_store_dwordx4 {vr(H+2+4*q)}, v{vL16}, s[{sA3}:{sA3+3}], s{sT+4} offen offset:{(q+1)*1024} {st_pol}")
    k(f"L_{name}_hdone:")
    done(k)
```

```python
from asmlib import *
from layout import *
import f1
from f1 import (f2h, pk, P, bf16_round, gelu_pk, prologue, epi_attn, FILL, OPT, XW, STG, TOP, TA, TB, TC, PS, OX, NT, LDSF, GC1, GC2,
                sXr, sWr, sOr, sPr, sXs, sRB, sCQ, sSUB, sH, sE, sXo, sWo, sHo, sXl, sWl, sSt, sDelta, sI, sA, sB, sSTG,
                vXe, vXo, vWd, vH, vL16, vNon, vZero, ONES, ACC, T)
SB = 32768
TOPB = 155648
sPF = 72
vPF = 23
def emit(k, it):
    if isinstance(it, str): k(it)
    elif it[0] == "i": k(it[1])
    elif it[0] == "v": k.vmem(it[1], it[2])
    elif it[0] == "d": k.ds(it[1], it[2])
    else: k.wait(vm=it[1], lg=it[2])
def weave(k, M, slots):
    for i, m in enumerate(M):
        for it in slots[i]: emit(k, it)
        k(m)
    for it in slots[len(M)]: emit(k, it)
def place_groups(slots, G, nM, first=1):
    assert len(G) <= nM - first - 1
    for n, g in enumerate(G):
        pos = first + n*(nM - first - 1)//len(G)
        txt = [x if isinstance(x, str) else x[1] for x in g]
        c = [i for i, l in enumerate(txt) if " m0," in l]
        cut = c[-1] + 1 if c else 0
        slots[pos] += g[:cut]; slots[pos + 1] = g[cut:] + slots[pos + 1]
def mf(d, a, b): return f"v_mfma_f32_16x16x32_bf16 {vr(d)}, {vr(a)}, {vr(b)}, {vr(d)}"
vPX, vPW, sPX, sPW = 18, 19, 58, 59
def pf_xw(pitch, lanesW):
    return [["s_mov_b64 exec, 0xff", f"buffer_load_dword v28, v{vPX}, s[{sXr}:{sXr+3}], s{sPX} offen", "s_mov_b64 exec, -1", f"s_add_u32 s{sPX}, s{sPX}, 128"],
            [f"s_mov_b64 exec, {(1 << lanesW) - 1}", f"buffer_load_dword v28, v{vPW}, s[{sWr}:{sWr+3}], s{sPW} offen", "s_mov_b64 exec, -1", f"s_add_u32 s{sPW}, s{sPW}, {64*pitch}"]]
def cheap(g): return [f"buffer_load_dword v28, v{vZero}, s[{sXr}:{sXr+3}], 0 offen"]
def pf_groups(pitch, lanesW, isA=False):
    G = pf_groups0(pitch, lanesW)
    if OPT.get("noxw"): G[0] = cheap(G[0]); G[1] = cheap(G[1])
    if OPT.get("pfm", 0) == 2 or (OPT.get("pfm", 0) == 1 and not isA): G[2] = cheap(G[2])
    return G
def pf_groups0(pitch, lanesW):
    return pf_xw(pitch, lanesW) + [["s_mov_b64 exec, 0xffff", f"buffer_load_dword v28, v{vPF}, s[{sPr}:{sPr+3}], s{sPF} offen", "s_mov_b64 exec, -1", f"s_add_u32 s{sPF}, s{sPF}, 128"]]

def bulk(k, name, lab, isA, pitch, wadv):
    k(f"""
    s_getpc_b64 s[{sPr}:{sPr+1}]
    {lab}_pc:
    s_sub_u32 s{sPr}, s{sPr}, {lab}_pc - L_{name}_code
    s_subb_u32 s{sPr+1}, s{sPr+1}, 0
    s_mov_b32 s{sPr+2}, L_{name}_end - L_{name}_code
    s_mov_b32 s{sPr+3}, 0x20000
    s_lshr_b32 s{sT}, s2, 3
    s_lshl_b32 s{sT+1}, s{sT}, 2
    s_add_u32 s{sT+6}, s{sT+1}, s{sW}
    s_mul_i32 s{sT+1}, s{sT+6}, 640
    v_lshlrev_b32 v{T}, 7, v0
    s_mov_b64 exec, 31
    buffer_load_dword v28, v{T}, s[{sPr}:{sPr+3}], s{sT+1} offen
    s_mov_b64 exec, -1
    v_lshlrev_b32 v{vPX}, 10, v0
    s_and_b32 s{sT+1}, s{sT+6}, 15
    s_lshl_b32 s{sT+1}, s{sT+1}, 13
    s_lshl_b32 s{sPX}, s{sRB}, 17
    s_add_u32 s{sPX}, s{sPX}, s{sT+1}
    s_add_u32 s{sPX}, s{sPX}, 384
    v_mul_u32_u24 v{T+1}, 86, v0
    v_lshrrev_b32 v{T+1}, 8, v{T+1}            ; l/3
    v_mul_u32_u24 v{T+2}, 3, v{T+1}
    v_sub_u32 v{T+2}, v0, v{T+2}               ; l%3
    v_and_b32 v{T+3}, 1, v{T+1}
    v_mul_u32_u24 v{T+3}, {pitch}, v{T+3}
    s_and_b32 s{sT+1}, s{sRB}, 7
    s_lshl_b32 s{sT+1}, s{sT+1}, 3
    s_mul_i32 s{sT+2}, s{sW}, -14
    s_add_u32 s{sT+1}, s{sT+1}, s{sT+2}        ; 8*(rb&7) + 2w - 16w
    s_mul_i32 s{sT+1}, s{sT+1}, {pitch}
    """)
    if isA:
        k(f"v_lshl_add_u32 v{vPW}, v{T+2}, 10, v{T+3}\ns_add_u32 s{sPW}, s{sT+1}, s{sWo[0]}")
    else:
        k(f"""
        v_lshlrev_b32 v{T+2}, 7, v{T+2}
        v_min_u32 v{T+2}, 192, v{T+2}
        v_add_u32 v{T+3}, v{T+3}, v{T+2}
        s_add_u32 s{sT+2}, s{sT+1}, s{sWo[0]}
        s_add_u32 s{sT+3}, s{sT+1}, s{sWo[1]}
        v_mov_b32 v{T+2}, s{sT+3}
        v_mov_b32 v{T+4}, s{sT+2}
        v_cmp_gt_u32 vcc, 6, v0
        v_cndmask_b32 v{T+2}, v{T+2}, v{T+4}, vcc
        v_add_u32 v{vPW}, v{T+3}, v{T+2}
        s_mov_b32 s{sPW}, 0
        """)
    for r in range(2):
        for g in pf_xw(pitch, 6 if isA else 12):
            for l in g: k(l)
    k.srd(sPr, sWSP, 2048*4096)
    k(f"""
    v_lshrrev_b32 v{vPF}, 2, v0
    v_and_b32 v{T+1}, 3, v0
    v_lshlrev_b32 v{T+1}, 10, v{T+1}
    v_lshl_add_u32 v{vPF}, v{vPF}, 12, v{T+1}
    s_bfe_u32 s{sPF}, s2, 0x20001
    s_lshl_b32 s{sPF}, s{sPF}, 21
    s_lshl_b32 s{sT+6}, s{sT+6}, 14
    s_add_u32 s{sPF}, s{sPF}, s{sT+6}
    """)
    return 5

def lane_parts(k):
    k(f"""
    v_lshrrev_b32 v{T}, 1, v2
    v_xor_b32 v{T}, v{T}, v1
    v_lshlrev_b32 v{T}, 4, v{T}
    v_lshl_add_u32 v{T}, v2, 7, v{T}        ; i*128 + (g^(i>>1))*16
    v_and_b32 v{T+2}, 1, v1
    v_lshlrev_b32 v{T+2}, 1, v{T+2}
    v_bfe_u32 v{T+1}, v0, 1, 1
    v_xor_b32 v{T+2}, v{T+2}, v{T+1}
    v_lshlrev_b32 v{T+2}, 4, v{T+2}
    v_bfe_u32 v{T+1}, v0, 2, 2
    v_lshl_add_u32 v{T+1}, v1, 3, v{T+1}
    v_lshl_add_u32 v{T+2}, v{T+1}, 6, v{T+2}
    v_and_b32 v{T+1}, 1, v0
    v_lshl_add_u32 v{T+2}, v{T+1}, 3, v{T+2}
    v_mov_b32 v{vZero}, 0
    """)

def row_tables(k, ns, tG, tS, pre, writes, TOP=TOP):
    cI, cE = T, T+1
    X = T + 16
    k(f"""
    v_mov_b32 v{cI}, {f2h(1/512)}
    v_mov_b32 v{cE}, {f2h(1e-5)}
    v_and_b32 v{T+2}, 1, v0
    v_cmp_eq_u32 s[{sM}:{sM+1}], 1, v{T+2}
    v_and_b32 v{T+2}, 2, v0
    v_cmp_eq_u32 s[{sM+2}:{sM+3}], 2, v{T+2}
    v_lshrrev_b32 v{T+2}, 2, v2
    v_cmp_eq_u32 s[{sM+4}:{sM+5}], v1, v{T+2}
    v_lshlrev_b32 v{T+3}, 2, v2
    v_add_u32 v{T+3}, {TOP}, v{T+3}
    """)
    A_ = range(ns)
    FILL(k, 1)
    for a in A_:
        for r in range(4): k(f"v_accvgpr_read_b32 v{X+a*8+r}, {vr(tG(a)+r, 1)}")
        k(f"v_accvgpr_read_b32 v{X+a*8+4}, {vr(tS(a), 1)}")
    for a in A_: k(f"v_cndmask_b32 v{X+a*8}, v{X+a*8}, v{X+a*8+1}, s[{sM}:{sM+1}]\nv_cndmask_b32 v{X+a*8+2}, v{X+a*8+2}, v{X+a*8+3}, s[{sM}:{sM+1}]")
    for a in A_: k(f"v_mul_f32 v{X+a*8+4}, v{X+a*8+4}, v{cI}\nv_cndmask_b32 v{X+a*8}, v{X+a*8}, v{X+a*8+2}, s[{sM+2}:{sM+3}]")
    FILL(k, 1)
    for a in A_: k(f"v_mul_f32 v{X+a*8}, v{X+a*8}, v{cI}")
    for a in A_: k(f"v_fma_f32 v{X+a*8}, -v{X+a*8+4}, v{X+a*8+4}, v{X+a*8}")
    for a in A_: k(f"v_max_f32 v{X+a*8}, 0, v{X+a*8}")
    for a in A_: bf16_round(k, X+a*8, X+a*8)
    FILL(k, 1)
    for a in A_: k(f"v_add_f32 v{X+a*8}, v{X+a*8}, v{cE}")
    for a in A_: bf16_round(k, X+a*8, X+a*8)
    for a in A_: k(f"v_sqrt_f32 v{X+a*8}, v{X+a*8}")
    FILL(k, 1)
    for a in A_: bf16_round(k, X+a*8+4, X+a*8+4)
    for a in A_: bf16_round(k, X+a*8, X+a*8)
    for a in A_: k(f"v_rcp_f32 v{X+a*8}, v{X+a*8}")
    FILL(k, 1)
    k(pre)
    for a in A_: k(f"v_mul_f32 v{X+a*8+4}, -v{X+a*8+4}, v{X+a*8}")
    k(writes)
    k(f"s_mov_b64 exec, s[{sM+4}:{sM+5}]")
    for a in A_:
        ad, o = (T+4, a*64) if a < 2 else (T+3, 0)
        k(f"ds_write_b32 v{ad}, v{X+a*8} offset:{TA + o}\nds_write_b32 v{ad}, v{X+a*8+4} offset:{TB + o}")
    k("s_mov_b64 exec, -1")

def nonce_check(k, lab):
    k(f"""
    v_readfirstlane_b32 s{sNON}, v{vNon}
    s_cmp_lg_u32 s{sNON}, 0
    s_cbranch_scc1 {lab}_non
    s_mov_b32 s{sT+6}, 0
    {lab}_nspin:
    s_sleep 4
    global_load_dword v{vNon}, v{vZero}, s[{sDBG}:{sDBG+1}] sc1
    s_add_u32 s{sT+6}, s{sT+6}, 1
    s_waitcnt vmcnt(0)
    v_readfirstlane_b32 s{sNON}, v{vNon}
    s_cmp_gt_u32 s{sT+6}, 100000
    s_cbranch_scc1 {lab}_non
    s_cmp_eq_u32 s{sNON}, 0
    s_cbranch_scc1 {lab}_nspin
    {lab}_non:
    """)

def gen_p1(k, name, after, hooks):
    k(f"""
    s_and_b32 s{sT}, s2, 7
    s_lshr_b32 s{sT+1}, s2, 3
    s_lshr_b32 s{sRB}, s{sT}, 2
    s_lshl_b32 s{sRB}, s{sRB}, 3
    s_lshr_b32 s{sT+2}, s{sT+1}, 2
    s_add_u32 s{sRB}, s{sRB}, s{sT+2}
    s_and_b32 s{sCQ}, s{sT}, 3
    s_and_b32 s{sSUB}, s{sT+1}, 3
    v_and_b32 v3, 7, v0
    v_xor_b32 v{T}, v3, v1
    v_lshlrev_b32 v{T}, 4, v{T}
    v_lshrrev_b32 v{T+1}, 3, v0
    v_lshl_add_u32 v{vXe}, v{T+1}, 10, v{T}
    v_xor_b32 v{vXo}, 64, v{vXe}
    v_add_u32 v{vXo}, 8192, v{vXo}
    v_lshrrev_b32 v{T}, 5, v0
    v_lshlrev_b32 v{T}, 1, v{T}
    v_and_b32 v{T+2}, 3, v0
    v_xor_b32 v{T}, v{T}, v{T+2}
    v_lshlrev_b32 v{T}, 4, v{T}
    v_lshrrev_b32 v{T+2}, 2, v0             ; l>>2
    s_lshl_b32 s{sXo[0]}, s{sRB}, 2
    s_add_u32 s{sXo[0]}, s{sXo[0]}, s{sW}
    s_lshl_b32 s{sXo[0]}, s{sXo[0]}, 15     ; (128rb+32w)*1024
    s_add_u32 s{sXo[1]}, s{sXo[0]}, 16384
    s_lshl_b32 s{sXl}, s{sW}, 12
    s_mov_b32 s{sSt}, 0
    s_cmp_lt_u32 s{sSUB}, 2
    s_cbranch_scc1 L_{name}_A
    v_mul_u32_u24 v{T+2}, 3584, v{T+2}
    v_add_u32 v{vWd}, v{T+2}, v{T}
    s_mul_i32 s{sT+5}, s{sW}, {16*3584}
    s_mul_i32 s{sT+6}, s{sCQ}, 448
    s_add_u32 s{sT+5}, s{sT+5}, s{sT+6}
    s_and_b32 s{sH}, s{sW}, 1
    s_lshr_b32 s{sE}, s{sW}, 1
    s_mov_b32 s{sSTG}, {SB}
    s_cmp_eq_u32 s{sSUB}, 2
    s_cselect_b32 s{sT+7}, 0, 256
    s_add_u32 s{sWo[0]}, s{sT+5}, s{sT+7}
    s_add_u32 s{sWo[0]}, s{sWo[0]}, 1792
    s_sub_u32 s{sT+7}, 256, s{sT+7}
    s_add_u32 s{sWo[1]}, s{sT+5}, s{sT+7}
    s_waitcnt lgkmcnt(0)
    """)
    k.srd(sXr, sX, 2048*1024); k.srd(sWr, sWIN, 512*3584)
    k(f"s_cmp_eq_u32 s{sSUB}, 3\ns_cbranch_scc1 L_{name}_B34")
    var_B(k, name, "B43", after, hooks)
    k(f"L_{name}_B34:")
    var_B(k, name, "B34", after, hooks)
    k(f"""
    L_{name}_A:
    v_mul_u32_u24 v{T+2}, 3072, v{T+2}
    v_add_u32 v{vWd}, v{T+2}, v{T}
    s_mov_b32 s{sSTG}, {STG}
    s_lshl_b32 s{sT+6}, s{sCQ}, 1
    s_add_u32 s{sSUB}, s{sSUB}, s{sT+6}
    s_mul_i32 s{sWo[0]}, s{sW}, {16*3072}
    s_lshl_b32 s{sT+6}, s{sSUB}, 7
    s_add_u32 s{sWo[0]}, s{sWo[0]}, s{sT+6}
    s_lshl_b32 s{sT+6}, s{sW}, 1
    v_add_u32 v{T}, s{sT+6}, v1
    v_xor_b32 v{T}, v{T}, v3
    v_lshlrev_b32 v{T}, 4, v{T}
    v_lshl_add_u32 v{vH}, v{T+1}, 10, v{T}
    s_lshl_b32 s{sHo}, s{sRB}, 7
    s_sub_u32 s{sHo}, s{sHo}, 16
    s_max_i32 s{sHo}, s{sHo}, 0
    s_lshl_b32 s{sT+6}, s{sW}, 2
    s_add_u32 s{sHo}, s{sHo}, s{sT+6}
    s_lshl_b32 s{sHo}, s{sHo}, 10
    s_waitcnt lgkmcnt(0)
    """)
    k.srd(sXr, sX, 2048*1024); k.srd(sWr, sWQ, 512*3072)
    var_A(k, name, after, hooks)

def xdma(xbase, tag=None):
    G = []
    for m in range(4):
        ld = f"buffer_load_dwordx4 v{vXo if m & 1 else vXe}, s[{sXr}:{sXr+3}], s{sXo[m>>1]} offen lds"
        g = [f"s_add_u32 m0, s{sA}, {xbase + m*1024}", ("v", ld, tag) if tag else ld]
        if m & 1: g.append(f"s_add_u32 s{sXo[m>>1]}, s{sXo[m>>1]}, 128")
        G.append(g)
    return G
def itstamp(k):
    if OPT.get("it"): k(f"s_memrealtime s[98:99]\ns_waitcnt lgkmcnt(0)\nv_cmp_eq_u32 vcc, s{sI}, v0\nv_mov_b32 v30, s98\nv_cndmask_b32 v31, v31, v30, vcc")
def itfinish(k):
    if OPT.get("it"):
        for i in range(8): k(f"v_readlane_b32 s{84+2*i}, v31, {i}\ns_mov_b32 s{85+2*i}, 0")
LOOP_TAIL = f"""
s_add_u32 s{sSt}, s{sSt}, s{sDelta}
s_add_u32 s{sI}, s{sI}, 1
s_cmp_lt_u32 s{sI}, 8
s_waitcnt lgkmcnt(0)
"""

def var_A(k, name, after, hooks):
    lab = f"L_{name}_A"; pitch = 3072
    FR, XA = 256, 256 + 112
    k(f"s_lshl_b32 s{sWl}, s{sW}, 10")
    k.stamp(0)
    def dma():
        W = []
        for q in range(6):
            imm = 64*(q & 1) + 1024*(q >> 1)
            g = [f"s_add_u32 m0, s{sB}, {XW + q*4096 - imm}", f"buffer_load_dwordx4 v{vWd}, s[{sWr}:{sWr+3}], s{sWo[0]} offen offset:{imm} lds"]
            if q == 5: g.append(f"s_add_u32 s{sWo[0]}, s{sWo[0]}, {64*pitch}")
            W.append(g)
        W.append([f"s_lshr_b32 s{sT}, s{sWl}, 1", f"s_add_u32 m0, s{sSt}, s{sT}", "s_mov_b64 exec, 0xffffffff",
                  f"buffer_load_dwordx4 v{vH}, s[{sXr}:{sXr+3}], s{sHo} offen lds", "s_mov_b64 exec, -1", f"s_add_u32 s{sHo}, s{sHo}, 128"])
        G = interleave(W, xdma(2048))
        G[0] = [f"s_add_u32 s{sA}, s{sSt}, s{sXl}", f"s_add_u32 s{sB}, s{sSt}, s{sWl}"] + G[0]
        return G
    def dma_now():
        for g in dma():
            for l in g: k(l)
    dma_now(); k(f"s_add_u32 s{sSt}, s{sSt}, {STG}")
    k(f"""
    s_or_b32 s{sT}, s2, s{sW}
    s_cmp_lg_u32 s{sT}, 0
    s_cbranch_scc1 {lab}_nn
    s_memrealtime s[{sT}:{sT+1}]
    v_mov_b32 v{T}, 0
    s_waitcnt lgkmcnt(0)
    s_or_b32 s{sT}, s{sT}, 1
    v_mov_b32 v{T+1}, s{sT}
    s_mov_b64 exec, 1
    global_store_dword v{T}, v{T+1}, s[{sDBG}:{sDBG+1}] sc1
    s_mov_b64 exec, -1
    {lab}_nn:
    """)
    lane_parts(k)
    vX = [8, 11]; vS = [9, 12]; vW = [10, 13]
    k(f"""
    v_mov_b32 v{vX[0]}, v{T}
    v_xor_b32 v{vX[1]}, 64, v{T}
    v_add_u32 v{vS[0]}, s{sXl}, v{vX[0]}
    v_add_u32 v{vS[1]}, s{sXl}, v{vX[1]}
    s_and_b32 s{sT}, s{sW}, 1
    s_lshl_b32 s{sT}, s{sT}, 5
    v_xor_b32 v{T+2}, s{sT}, v{T+2}
    s_lshr_b32 s{sT}, s{sW}, 1
    s_lshl_b32 s{sT}, s{sT}, 12
    s_add_u32 s{sT}, s{sT}, {XW}
    v_add_u32 v{vW[0]}, s{sT}, v{T+2}
    v_add_u32 v{vW[1]}, 2048, v{vW[0]}
    """)
    bases = [[8, 9, 10], [11, 12, 13]]
    dma_now(); k(f"s_add_u32 s{sSt}, s{sSt}, {STG}")
    fX = lambda sg, a: FR + sg*56 + a*4
    fW = lambda sg, j: FR + sg*56 + 36 + j*4
    fS = lambda sg, a: FR + sg*56 + 48 + a*4
    tG = lambda a: XA + a*8; tS = lambda a: XA + a*8 + 4
    tQ = lambda a: ACC + (a-1)*4; tK = lambda a: ACC + 32 + a*4; tV = lambda a: ACC + 68 + a*4
    tC = lambda j: XA + 24 + j*4
    for r in range(4): k(f"v_mov_b32 v{ONES+r}, 0x3f803f80")
    for r in range(104): k(f"v_mov_b32 v{ACC+r}, 0")
    for r in range(36): k(f"v_accvgpr_write_b32 {vr(XA+r, 1)}, 0")
    dma_now(); k(f"s_mov_b32 s{sSt}, 0")
    nb = bulk(k, name, lab, True, pitch, 3)
    def reads(sg):
        return ([f"ds_read_b64_tr_b16 {vr(fW(sg, j) + 2*j2, 2)}, v{vW[sg]} offset:{j*8192 + j2*256}" for j in range(3) for j2 in range(2)]
                + [f"ds_read_b128 {vr(fX(sg, a))}, v{vX[sg]} offset:{a*2048}" for a in range(9)]
                + [f"ds_read_b128 {vr(fS(sg, a))}, v{vS[sg]} offset:{2048 + a*2048}" for a in range(2)])
    def mfmas(sg):
        L = []
        for a in range(9):
            if a: L.append(mf(tQ(a), fW(sg, 0), fX(sg, a)))
            L.append(mf(tK(a), fW(sg, 1), fX(sg, a))); L.append(mf(tV(a), fX(sg, a), fW(sg, 2)))
        L += [mf(tG(2), fX(sg, 0), fX(sg, 0)), mf(tS(2), ONES, fX(sg, 0))]
        for a in range(2): L += [mf(tG(a), fS(sg, a), fS(sg, a)), mf(tS(a), ONES, fS(sg, a))]
        return L + [mf(tC(j), ONES, fW(sg, j)) for j in range(3)]
    adv = lambda sg: [f"v_add_u32 v{r}, s{sDelta}, v{r}" for r in bases[sg]]
    k(f"s_mov_b32 s{sI}, 0\ns_waitcnt vmcnt({22 + nb})\ns_barrier")
    k.stamp(1)
    for l in reads(0): k(l)
    k(f"s_waitcnt lgkmcnt(0)\n.p2align 6\n{lab}_loop:")
    for l in interleave(mfmas(0), reads(1) + [f"s_cmp_eq_u32 s{sSt}, {2*STG}\ns_cselect_b32 s{sDelta}, {-2*STG}, s{sSTG}"] + adv(0), per=1): k(l)
    k(f"s_cmp_ge_u32 s{sI}, 5\ns_cbranch_scc1 {lab}_nodma\ns_waitcnt vmcnt(16) lgkmcnt(0)\ns_barrier"); itstamp(k)
    def half2(G):
        M = mfmas(1); slots = [[] for _ in range(len(M) + 1)]
        for n, l in enumerate(reads(0) + adv(1)): slots[n + 1].append(l)
        place_groups(slots, G, len(M))
        weave(k, M, slots)
        k(LOOP_TAIL + f"s_cbranch_scc1 {lab}_loop")
    half2(dma() + pf_groups(pitch, 6, True))
    k(f"""
    {lab}_nodma:
    s_cmp_eq_u32 s{sI}, 5
    s_cbranch_scc1 {lab}_five
    s_waitcnt vmcnt({9 if OPT.get("pfm", 0) == 2 else 5}) lgkmcnt(0)
    s_barrier
    s_branch {lab}_cont
    {lab}_five:
    s_waitcnt vmcnt(16) lgkmcnt(0)
    s_barrier
    global_load_dword v{vNon}, v{vZero}, s[{sDBG}:{sDBG+1}] sc1
    """)
    if OPT.get("pfm", 0) == 2:
        k(f"""
        s_lshr_b32 s{sT}, s2, 5
        s_lshl_b32 s{sT}, s{sT}, 1
        s_bfe_u32 s{sT+1}, s2, 0x10003
        s_add_u32 s{sT}, s{sT}, s{sT+1}
        s_lshl_b32 s{sT}, s{sT}, 2
        s_add_u32 s{sT}, s{sT}, s{sW}
        s_lshl_b32 s{sT}, s{sT}, 15
        s_bfe_u32 s{sT+1}, s2, 0x20001
        s_lshl_b32 s{sT+1}, s{sT+1}, 21
        s_add_u32 s{sT}, s{sT}, s{sT+1}
        v_lshrrev_b32 v29, 3, v0
        v_lshlrev_b32 v29, 12, v29
        v_bfe_u32 v30, v0, 1, 2
        v_lshl_add_u32 v29, v30, 10, v29
        v_and_b32 v30, 1, v0
        v_lshl_add_u32 v29, v30, 7, v29
        """)
        for n in range(4): k(f"buffer_load_dword v28, v29, s[{sPr}:{sPr+3}], s{sT} offen offset:{256*n}")
    k(f"{lab}_cont:")
    itstamp(k)
    half2(pf_groups(pitch, 6, True)[2:])
    itfinish(k)
    k.stamp(2)
    k("s_barrier")
    k.lg.q = []; k.vm.q = ["non"] + ["pf"]*(7 if OPT.get("pfm", 0) == 2 else 3)
    hooks["stageA"](k)
    row_tables(k, 3, tG, tS,
               f"s_lshl_b32 s{sT}, s{sW}, 7\ns_add_u32 s{sT}, s{sT}, 64\ns_mul_i32 s{sT+1}, s{sW}, 192\nv_add_u32 v{T+4}, s{sT}, v{T+3}\nv_add_u32 v{T+5}, s{sT+1}, v{T+3}",
               "\n".join(f"ds_write_b32 v{T+5}, {vr(tC(j), 1)} offset:{TC + j*64}" for j in range(3)))
    k.wait(vm="non")
    nonce_check(k, lab)
    k(f"v_lshlrev_b32 v{T+7}, 4, v1\nv_add_u32 v{T+7}, {TOP}, v{T+7}\ns_waitcnt lgkmcnt(0)\ns_barrier")
    k.stamp(3)
    epi_attn(k, lab, "sc1", tQ, tK, tV)
    FILL.flush(k)
    after(k, "A")

def var_B(k, name, V, after, hooks):
    lab = f"L_{name}_{V}"; pitch = 3584
    n1 = 4 if V == "B43" else 3; n2 = 7 - n1
    FR, XA = 256, 256 + 64
    k(f"s_lshl_b32 s{sWl}, s{sW}, 10")
    k.stamp(0)
    def dma(ps, tag=None, st=None):
        nw = n1 if ps == 0 else n2
        W = []
        for q in range(nw):
            ld = f"buffer_load_dwordx4 v{vWd}, s[{sWr}:{sWr+3}], s{sWo[ps]} offen offset:{64*q} lds"
            g = [f"s_add_u32 m0, s{sB}, {16384 + q*4096 - 64*q}", ("v", ld, tag) if tag else ld]
            if q == nw - 1: g.append(f"s_add_u32 s{sWo[ps]}, s{sWo[ps]}, {64*pitch}")
            W.append(g)
        sst = f"s{sSt}" if st is None else str(st)
        W[0] = [f"s_add_u32 s{sA}, s{sXl}, {sst}", f"s_add_u32 s{sB}, s{sWl}, {sst}"] + W[0]
        return W
    def dma_now(x=True):
        for g in dma(0) + (xdma(0) if x else []):
            for l in g: k(l)
    dma_now(); k(f"s_add_u32 s{sSt}, s{sSt}, {SB}")
    lane_parts(k)
    vX = [[8, 9], [12, 13]]; vW = [[10, 11], [14, 15]]
    k(f"""
    s_lshl_b32 s{sT}, s{sH}, 6
    v_xor_b32 v{T}, s{sT}, v{T}
    s_lshl_b32 s{sT}, s{sH}, 13
    s_lshl_b32 s{sT+1}, s{sE}, 12
    s_add_u32 s{sT+2}, s{sT}, s{sT+1}
    v_add_u32 v{vX[0][0]}, s{sT+2}, v{T}
    s_sub_u32 s{sT+2}, s{sT}, s{sT+1}
    v_add_u32 v{vX[0][1]}, s{sT+2}, v{T}
    v_xor_b32 v{vX[1][0]}, 64, v{vX[0][0]}
    v_xor_b32 v{vX[1][1]}, 64, v{vX[0][1]}
    s_lshl_b32 s{sT}, s{sH}, 11
    s_lshl_b32 s{sT+2}, s{sE}, 13
    s_add_u32 s{sT+3}, s{sT}, s{sT+2}
    s_add_u32 s{sT+3}, s{sT+3}, 16384
    v_add_u32 v{vW[0][0]}, s{sT+3}, v{T+2}
    v_xor_b32 v{vW[0][1]}, 32, v{vW[0][0]}
    s_lshl_b32 s{sT}, s{sH}, 12
    s_sub_u32 s{sT}, 2048, s{sT}
    v_add_u32 v{vW[1][0]}, s{sT}, v{vW[0][0]}
    v_add_u32 v{vW[1][1]}, s{sT}, v{vW[0][1]}
    """)
    def switch(to3):
        k(f"s_lshl_b32 s{sT+11}, s{sE}, 5")
        k(f"s_lshl_b32 s{sT+10}, s{sE}, 12")
        for sg in range(2):
            k(f"v_xor_b32 v{vW[sg][0]}, s{sT+11}, v{vW[sg][0]}\nv_xor_b32 v{vW[sg][1]}, s{sT+11}, v{vW[sg][1]}")
            k(f"v_subrev_u32 v{vW[sg][0]}, s{sT+10}, v{vW[sg][0]}" if to3 else f"v_add_u32 v{vW[sg][0]}, s{sT+10}, v{vW[sg][0]}")
    if n1 == 3: switch(True)
    bases = [[8, 9, 10, 11], [12, 13, 14, 15]]
    dma_now(); k(f"s_add_u32 s{sSt}, s{sSt}, {SB}")
    fX = lambda sg, a: FR + sg*32 + a*4
    fW = lambda sg, j: FR + sg*32 + 16 + j*4
    tG = lambda a: XA + a*8; tS = lambda a: XA + a*8 + 4
    tC = lambda ps, j: XA + 16 + ps*16 + j*4
    tZ = lambda ps, a, j: ACC + ((0 if ps == 0 else n1)*4 + j*4 + a)*4
    for r in range(4): k(f"v_mov_b32 v{ONES+r}, 0x3f803f80")
    for r in range(n1*16): k(f"v_mov_b32 v{ACC+r}, 0")
    for r in range(16 + n1*4): k(f"v_accvgpr_write_b32 {vr(XA+r, 1)}, 0")
    dma_now(False); k(f"s_mov_b32 s{sSt}, 0")
    nb = bulk(k, name, lab, False, pitch, 3)
    def reads(ps, sg, tag=None):
        L = ([f"ds_read_b128 {vr(fX(sg, a))}, v{vX[sg][a >> 1]} offset:{a*2048}" for a in range(4)]
             + [f"ds_read_b64_tr_b16 {vr(fW(sg, j) + 2*j2, 2)}, v{vW[sg][j & 1]} offset:{(j >> 1)*4096 + j2*256}" for j in range(n1 if ps == 0 else n2) for j2 in range(2)])
        return [("d", l, tag) for l in L] if tag else L
    def mfmas(ps, sg, first=False):
        z = lambda d, a, b: mf(d, a, b) if not first else f"v_mfma_f32_16x16x32_bf16 {vr(d)}, {vr(a)}, {vr(b)}, 0"
        nw = n1 if ps == 0 else n2
        L = [z(tZ(ps, a, j), fX(sg, a), fW(sg, j)) if ps == 0 else z(tZ(ps, a, j), fW(sg, j), fX(sg, a)) for j in range(nw) for a in range(4)]
        if ps == 0:
            for a in range(2): L += [mf(tG(a), fX(sg, a), fX(sg, a)), mf(tS(a), ONES, fX(sg, a))]
        if sg == 0: L += [z(tC(ps, j), ONES, fW(sg, j)) for j in range(nw)]
        return L
    adv = lambda sg, d=None: [f"v_add_u32 v{r}, {'s%d' % sDelta if d is None else d}, v{r}" for r in bases[sg]]
    nd1 = 4 + n1
    k(f"s_mov_b32 s{sI}, 0\ns_waitcnt vmcnt({nd1 + n1 + nb})\ns_barrier")
    k.stamp(1)
    for l in reads(0, 0): k(l)
    k(f"s_waitcnt lgkmcnt(0)\n.p2align 6\n{lab}_loop:")
    M = mfmas(0, 0); slots = [[] for _ in range(len(M) + 1)]
    for n, l in enumerate(reads(0, 1) + [f"s_cmp_eq_u32 s{sSt}, {2*SB}\ns_cselect_b32 s{sDelta}, {-2*SB}, s{sSTG}"] + adv(0)): slots[n + 1].append(l)
    place_groups(slots, xdma(0) + (pf_groups0(pitch, 12)[2:] if OPT.get("pfm", 0) == 1 else []), len(M), first=0)
    weave(k, M, slots)
    k(f"s_cmp_ge_u32 s{sI}, 5\ns_waitcnt vmcnt(9) lgkmcnt(0)\ns_barrier\ns_cbranch_scc1 {lab}_d2"); itstamp(k)
    def half2(G):
        M = mfmas(0, 1); slots = [[] for _ in range(len(M) + 1)]
        for n, l in enumerate(reads(0, 0) + adv(1)): slots[min(n + 1, len(M))].append(l)
        place_groups(slots, G, len(M), first=0)
        weave(k, M, slots)
        k(LOOP_TAIL + f"s_cbranch_scc1 {lab}_loop")
    half2(dma(0) + pf_groups(pitch, 12))
    k(f"""
    {lab}_d2:
    s_cmp_eq_u32 s{sI}, 5
    s_cbranch_scc0 {lab}_cont
    s_sub_u32 s{sXo[0]}, s{sXo[0]}, 1024
    s_sub_u32 s{sXo[1]}, s{sXo[1]}, 1024
    global_load_dword v{vNon}, v{vZero}, s[{sDBG}:{sDBG+1}] sc1
    {lab}_cont:
    """)
    itstamp(k)
    half2(dma(1) + pf_groups(pitch, 12)[1:])
    itfinish(k)
    k.stamp(2)
    k.lg.q = []; k.vm.q = ["S9"]*(6 + n2) + ["S10"]*(2 + n2)
    XQ = xdma(0, "S10")
    hooks["stageB"](k)
    FILL.q = [[("i", x) if isinstance(x, str) else x for x in g[:1] + ["s_nop 0"] + g[1:]] for g in XQ] + FILL.q
    z4 = n1 == 4
    coff = lambda ps, j: (j*64 if (z4 == (ps == 0)) else 512 + j*64)
    pre = f"""
    s_lshl_b32 s{sT}, s{sH}, 8
    s_lshl_b32 s{sT+3}, s{sE}, 7
    s_add_u32 s{sT}, s{sT}, s{sT+3}
    s_add_u32 s{sT}, s{sT}, 64
    s_lshl_b32 s{sT+1}, s{sE}, 8
    s_mul_i32 s{sT+4}, s{sE}, 192
    s_lshl_b32 s{sT+5}, s{sH}, 10
    s_add_u32 s{sT+2}, s{sT+1 if z4 else sT+4}, s{sT+5}
    s_add_u32 s{sT+5}, s{sT+4 if z4 else sT+1}, s{sT+5}
    v_add_u32 v{T+4}, s{sT}, v{T+3}
    v_add_u32 v{T+5}, s{sT+2}, v{T+3}
    v_add_u32 v{T+6}, s{sT+5}, v{T+3}
    """
    row_tables(k, 2, tG, tS, pre, "\n".join(f"ds_write_b32 v{T+5}, {vr(tC(0, j), 1)} offset:{TC + coff(0, j)}" for j in range(n1)), TOPB)
    nonce_check(k, lab)
    k(f"v_lshlrev_b32 v{T+7}, 4, v1\nv_add_u32 v{T+7}, {TOPB}, v{T+7}\ns_waitcnt lgkmcnt(0)\ns_barrier")
    k.stamp(3)
    vI4, vG16 = T+3, T+7
    c = T; AR, BR = T+8, T+24; C2 = T+40; ST = T+48; tmp = T+80; AL = T+88; ad = T+96
    k(f"""
    s_lshl_b32 s{sT}, s{sH}, 8
    s_add_u32 s{sT}, s{sT}, 64
    s_add_u32 s{sT+2}, s{sT}, s{sT+3}
    s_sub_u32 s{sT+5}, s{sT}, s{sT+3}
    v_add_u32 v{ad}, s{sT+2}, v{vG16}
    v_add_u32 v{ad+1}, s{sT+5}, v{vG16}
    v_add_u32 v{ad+2}, s{sT+2}, v{vI4}
    v_add_u32 v{ad+3}, s{sT+5}, v{vI4}
    v_add_u32 v{ad+4}, s{sT+1 if z4 else sT+4}, v{vI4}
    v_add_u32 v{ad+5}, s{sT+4 if z4 else sT+1}, v{vG16}
    """)
    for a in range(4):
        k.ds(f"ds_read_b128 {vr(AR + a*4)}, v{ad + (a>>1)} offset:{TA + a*64}", "t")
        k.ds(f"ds_read_b128 {vr(BR + a*4)}, v{ad + (a>>1)} offset:{TB + a*64}", "t")
    for j in range(n1):
        for hh in range(2): k.ds(f"ds_read_b32 v{C2 + 2*j + hh}, v{ad+4} offset:{TC + hh*1024 + coff(0, j)}", "t")
    k(f"v_mov_b32 v{c}, {f2h(GC1)}\nv_mov_b32 v{c+1}, {f2h(GC2)}")
    k.wait(lg="t")
    for a in range(4):
        k.ds(f"ds_read_b32 v{AL + a}, v{ad + 2 + (a>>1)} offset:{TA + a*64}", "u")
        k.ds(f"ds_read_b32 v{AL + 4 + a}, v{ad + 2 + (a>>1)} offset:{TB + a*64}", "u")
    for j in range(n1): k(f"v_add_f32 v{C2+2*j}, v{C2+2*j}, v{C2+2*j+1}")
    NF2 = (1, 1, 1, 2) if n1 == 4 else (1, 2, 2, 2)
    prs = lambda ps, p, j: [tZ(ps, 2*p + (i >> 1), j) + 2*(i & 1) for i in range(4)]
    for j in range(n1):
        for p in range(2):
            ys = prs(0, p, j); ab = [(2*p + (i >> 1))*4 + 2*(i & 1) for i in range(4)]
            for i in range(4): k(pk("mul", tmp+2*i, [(BR+ab[i], 0), (C2+2*j, 1)]))
            for i in range(4): k(pk("fma", ys[i], [(AR+ab[i], 0), (ys[i], 0), (tmp+2*i, 0)]))
            gelu_pk(k, ys, c, tmp, NF2)
            for i in range(4):
                s_ = ST + (2*p + (i >> 1))*8 + 2*(i & 1); q_ = s_ + 4
                if j == 0: k(f"v_mov_b32 v{s_}, v{ys[i]}\nv_mov_b32 v{s_+1}, v{ys[i]+1}\n" + pk("mul", q_, [(ys[i], 0), (ys[i], 0)]))
                else: k(pk("add", s_, [(s_, 0), (ys[i], 0)]) + "\n" + pk("fma", q_, [(ys[i], 0), (ys[i], 0), (q_, 0)]))
    k.stamp(4)
    FILL(k, 2)
    for n in range(16): k(f"v_add_f32_dpp v{ST+n}, v{ST+n}, v{ST+n} row_mirror row_mask:0xf bank_mask:0x3")
    for n in range(16): k(f"v_add_f32_dpp v{ST+n}, v{ST+16+n}, v{ST+16+n} row_mirror row_mask:0xf bank_mask:0xc")
    for n in range(8): k(f"v_add_f32_dpp v{ST+n}, v{ST+n}, v{ST+n} row_half_mirror row_mask:0xf bank_mask:0x5")
    for n in range(8): k(f"v_add_f32_dpp v{ST+n}, v{ST+8+n}, v{ST+8+n} row_half_mirror row_mask:0xf bank_mask:0xa")
    for n in range(8): k(f"v_add_f32_dpp v{ST+n}, v{ST+n}, v{ST+n} quad_perm:[1,0,3,2] row_mask:0xf bank_mask:0xf")
    for n in range(8): k(f"v_add_f32_dpp v{ST+n}, v{ST+n}, v{ST+n} quad_perm:[2,3,0,1] row_mask:0xf bank_mask:0xf")
    k(f"""
    v_lshrrev_b32 v{tmp}, 2, v2
    s_lshl_b32 s{sT+6}, s{sE}, 1
    v_xor_b32 v{tmp}, s{sT+6}, v{tmp}
    v_lshl_add_u32 v{tmp}, v{tmp}, 6, v{vG16}
    s_lshl_b32 s{sT+6}, s{sE}, 10
    s_lshl_b32 s{sT+7}, s{sH}, 8
    s_add_u32 s{sT+6}, s{sT+6}, s{sT+7}
    v_add_u32 v{tmp}, s{sT+6}, v{tmp}
    """)
    k.ds(f"ds_write_b128 v{tmp}, {vr(ST)} offset:{PS}", "ps"); k.ds(f"ds_write_b128 v{tmp}, {vr(ST+4)} offset:{PS + 512}", "ps")
    k(f"""
    v_and_b32 v{tmp+1}, 31, v0
    s_lshl_b32 s{sT+6}, s{sW}, 7
    s_add_u32 s{sT+6}, s{sT+6}, {TOPB}
    v_lshl_add_u32 v{tmp+1}, v{tmp+1}, 2, s{sT+6}
    s_add_u32 s{sXs}, s{sWS}, {XS_OFF}
    s_addc_u32 s{sXs+1}, s{sWS+1}, 0
    s_mov_b32 s{sXs+2}, {XS_SZ}
    s_mov_b32 s{sXs+3}, 0x20000
    s_lshl_b32 s{sT+8}, s{sRB}, 14
    s_lshl_b32 s{sT+6}, s{sCQ}, 12
    s_add_u32 s{sT+6}, s{sT+6}, {0 if z4 else 2048}
    s_add_u32 s{sT+6}, s{sT+6}, s{sT+8}
    s_lshl_b32 s{sT+7}, s{sW}, 9
    s_add_u32 s{sT+6}, s{sT+6}, s{sT+7}
    v_mov_b32 v{ST+10}, s{sNON}
    v_mov_b32 v{ST+11}, s{sNON}
    """)
    switch(z4)
    k("s_waitcnt lgkmcnt(0)\ns_barrier"); k.lg.q = []
    for n, o in enumerate((0, 512, 1024, 1536)): k.ds(f"ds_read_b32 v{ST + (8, 9, 12, 13)[n]}, v{tmp+1} offset:{PS + o}", "pr")
    for it in reads(1, 0, "F0"): emit(k, it)
    k.wait(lg="pr")
    k(pk("add", ST+8, [(ST+8, 0), (ST+12, 0)]) + "\ns_mov_b64 exec, 0xffffffff")
    k.vmem(f"buffer_store_dwordx4 {vr(ST+8)}, v{vL16}, s[{sXs}:{sXs+3}], s{sT+6} offen sc1", "pub")
    k("s_mov_b64 exec, -1")
    FILL.flush(k)
    k(f"""
    s_lshl_b32 s{sT+6}, s{sH}, 10
    s_add_u32 s{sT+6}, s{sT+6}, s{sT+8}
    s_add_u32 s{sT+7}, s{sT+6}, 4096
    s_add_u32 s{sT+8}, s{sT+6}, 8192
    s_add_u32 s{sT+9}, s{sT+6}, 12288
    s_lshl_b32 s{sT}, s{sW}, 9
    s_add_u32 s{sT+2}, s{sT}, {TOPB}
    v_lshl_add_u32 v{ad+2}, v0, 2, s{sT+2}
    s_add_u32 s{sT+2}, s{sT}, s{sT+3}
    s_sub_u32 s{sT}, s{sT}, s{sT+3}
    v_add_u32 v{ad}, s{sT+2}, v{vG16}
    v_add_u32 v{ad+1}, s{sT}, v{vG16}
    s_mov_b32 s{sPr}, s{sWS}
    s_mov_b32 s{sPr+1}, s{sWS+1}
    s_mov_b32 s{sPr+2}, {Z2F_SZ}
    s_mov_b32 s{sPr+3}, 0x20000
    s_lshl_b32 s{sT}, s{sRB}, 1
    s_add_u32 s{sT}, s{sT}, s{sH}
    s_mul_i32 s{sT}, s{sT}, 112
    s_mul_i32 s{sT+2}, s{sCQ}, 14
    s_add_u32 s{sT}, s{sT}, s{sT+2}
    s_mul_i32 s{sT+2}, s{sE}, 56
    s_add_u32 s{sT+5}, s{sT}, s{sT+2}
    s_sub_u32 s{sT+10}, s{sT}, s{sT+2}
    s_add_u32 s{sT+10}, s{sT+10}, 56
    s_lshl_b32 s{sT+5}, s{sT+5}, 10
    s_lshl_b32 s{sT+10}, s{sT+10}, 10
    s_lshl_b32 s{sT+1}, s{sT+1}, 4                 ; 4e*1024
    s_lshl_b32 s{sT+4}, s{sT+4}, 4
    s_add_u32 s{sT+4}, s{sT+4}, 8192               ; (8+3e)*1024
    s_add_u32 s{sT}, s{sT+5}, s{sT+1 if z4 else sT+4}
    s_add_u32 s{sT+2}, s{sT+10}, s{sT+1 if z4 else sT+4}
    s_add_u32 s{sT+5}, s{sT+5}, s{sT+4 if z4 else sT+1}
    s_add_u32 s{sT+10}, s{sT+10}, s{sT+4 if z4 else sT+1}
    s_mov_b32 s{sT+11}, 0
    """)
    sZ2o, sZ1o = [sT, sT+2], [sT+5, sT+10]
    k.stamp(5)
    G = T+8; NR, NM = T+48, T+64
    polls = [f"buffer_load_dwordx4 {vr(G+4*x)}, v{vL16}, s[{sXs}:{sXs+3}], s{sT+6+(x>>1)} offen offset:{(x&1)*2048} sc1" for x in range(8)]
    chk = [f"v_xor_b32 v{G+4*x+3}, s{sNON}, v{G+4*x+2}" for x in range(8)] + [
        f"v_or3_b32 v{G+3}, v{G+3}, v{G+7}, v{G+11}", f"v_or3_b32 v{G+15}, v{G+15}, v{G+19}, v{G+23}",
        f"v_or3_b32 v{G+3}, v{G+3}, v{G+27}, v{G+31}", f"v_or_b32 v{G+3}, v{G+3}, v{G+15}", f"v_cmp_ne_u32 vcc, 0, v{G+3}"]
    rnd = lambda r: [f"v_cvt_pk_bf16_f32 v{r}, v{r}, v{r}", f"v_and_b32 v{r}, 0xffff0000, v{r}"]
    fin = ([f"v_add_f32 v{G+8*i+e}, v{G+8*i+e}, v{G+8*i+4+e}" for i in range(4) for e in range(2)]
           + [f"v_add_f32 v{G+16*i+e}, v{G+16*i+e}, v{G+16*i+8+e}" for i in range(2) for e in range(2)]
           + [f"v_add_f32 v{G+e}, v{G+e}, v{G+16+e}" for e in range(2)]
           + [f"v_mul_f32 v{G+e}, {f2h(1/896)}, v{G+e}" for e in range(2)]
           + [f"v_fma_f32 v{G+1}, -v{G}, v{G}, v{G+1}", f"v_max_f32 v{G+1}, 0, v{G+1}"] + rnd(G+1)
           + [f"v_add_f32 v{G+1}, {f2h(1e-5)}, v{G+1}"] + rnd(G+1) + [f"v_sqrt_f32 v{G+1}, v{G+1}"] + rnd(G) + rnd(G+1)
           + [f"v_rcp_f32 v{G+1}, v{G+1}", "s_nop 0", f"v_mul_f32 v{G}, -v{G}, v{G+1}",
              ("d", f"ds_write_b32 v{ad+2}, v{G+1} offset:{NT}", "nw"), ("d", f"ds_write_b32 v{ad+2}, v{G} offset:{NT + 256}", "nw")])
    nrd = [("d", f"ds_read_b128 {vr((NR, NM)[x] + a*4)}, v{ad + (a>>1)} offset:{NT + 256*x + a*64}", "nr") for a in range(4) for x in range(2)]
    norm = []
    for p in range(2):
        for j in range(n1):
            for aa in range(2):
                a = 2*p + aa; y = tZ(0, a, j)
                norm += [f"v_fma_f32 v{y+r}, v{y+r}, v{NR+a*4+r}, v{NM+a*4+r}" for r in range(4)]
            ys = prs(0, p, j)
            norm += [f"v_cvt_pk_bf16_f32 v{tZ(0, 2*p, j)+i}, v{ys[i]}, v{ys[i]+1}" for i in range(4)]
            norm.append(("v", f"buffer_store_dwordx4 {vr(tZ(0, 2*p, j))}, v{vL16}, s[{sPr}:{sPr+3}], s{sZ2o[p]} offen offset:{j*1024} sc1", "z2st"))
    TP, TC_ = OPT.get("tp", 1), OPT.get("tc", 3)
    work = []
    def spread(slots, nM, per, start=0):
        for i in range(start, nM + 1):
            for _ in range(per):
                if work: slots[i].append(work.pop(0))
    for t in range(8):
        st = (8 + t) % 3; dlt = SB if st < 2 else -2*SB
        M = mfmas(1, 0, first=(t == 0)); slots = [[] for _ in range(len(M) + 1)]
        slots[0].append(("w", None, "F0"))
        for n, it in enumerate(reads(1, 1, "F1") + (adv(0, dlt) if t < 7 else [])): slots[min(n + 1, len(M))].append(it)
        if 1 <= t <= 5: place_groups(slots, xdma(0, f"S{10+t}"), len(M), first=0)
        spread(slots, len(M), 2, 1)
        weave(k, M, slots)
        if t < 7:
            k.wait(vm=f"S{9+t}", lg="F1"); k("s_barrier")
        else: k.wait(lg="F1")
        if t == TC_:
            k.wait(vm="poll")
            for l in chk: k(l)
            k(f"s_nop 3\ns_cbranch_vccnz {lab}_slow\n{lab}_got:")
            work += fin
        if t == TC_ + 1: work += [("w", None, "nw")] + nrd + [("w", None, "nr")] + norm
        M = mfmas(1, 1); slots = [[] for _ in range(len(M) + 1)]
        if t < 7:
            for n, it in enumerate(reads(1, 0, "F0") + adv(1, dlt)): slots[min(n + 1, len(M))].append(it)
        G_ = dma(1, f"S{11+t}", st*SB) if t < 5 else []
        if G_: place_groups(slots, G_, len(M), first=0)
        if t == TP: slots[len(M)] += [("v", l, "poll") for l in polls]
        spread(slots, len(M), 2 if t >= 5 else 1, 1)
        weave(k, M, slots)
    for it in work: emit(k, it)
    k(f"s_branch {lab}_p2end\n{lab}_slow:\ns_sleep 2")
    for l in polls: k(l)
    k(f"s_add_u32 s{sT+11}, s{sT+11}, 1\ns_waitcnt vmcnt(0)")
    for l in chk: k(l)
    k(f"s_nop 3\ns_cmp_gt_u32 s{sT+11}, 100000\ns_cbranch_scc1 {lab}_got\ns_cbranch_vccnz {lab}_slow\ns_branch {lab}_got\n{lab}_p2end:")
    k.stamp(6)
    for j in range(n2): k.ds(f"ds_write_b32 v{T+6}, {vr(tC(1, j), 1)} offset:{TC + coff(1, j)}", "cw")
    k(f"s_add_u32 s{sOr}, s{sWS}, {Z1L_OFF}\ns_addc_u32 s{sOr+1}, s{sWS+1}, 0\ns_mov_b32 s{sOr+2}, {Z1L_SZ}\ns_mov_b32 s{sOr+3}, 0x20000")
    k("s_waitcnt lgkmcnt(0)\ns_barrier"); k.lg.q = []
    C1 = T+8
    for j in range(n2):
        for hh in range(2): k.ds(f"ds_read_b128 {vr(C1 + 8*j + 4*hh)}, v{ad+5} offset:{TC + hh*1024 + coff(1, j)}", f"c{j}")
    hooks["stageB2"](k)
    for j in range(n2):
        k.wait(lg=f"c{j}")
        for i in range(2): k(pk("add", C1+8*j+2*i, [(C1+8*j+2*i, 0), (C1+8*j+4+2*i, 0)]))
        for p in range(2):
            ys = prs(1, p, j)
            for i in range(4): k(pk("mul", tmp+2*i, [(C1+8*j+2*(i & 1), 0), (AL+4+2*p+(i >> 1), 1)]))
            for i in range(4): k(pk("fma", ys[i], [(ys[i], 0), (AL+2*p+(i >> 1), 1), (tmp+2*i, 0)]))
            gelu_pk(k, ys, c, tmp, (1, 1, 1, 1))
            for i in range(4): k(f"v_cvt_pk_bf16_f32 v{tZ(1, 2*p, j)+i}, v{ys[i]}, v{ys[i]+1}")
            k.vmem(f"buffer_store_dwordx4 {vr(tZ(1, 2*p, j))}, v{vL16}, s[{sOr}:{sOr+3}], s{sZ1o[p]} offen offset:{j*1024} sc1", "p1st")
            if j == 0 and p == OPT.get("zf", 0): hooks["z2flag"](k, V)
    FILL.flush(k)
    after(k, V)
```

```python
import sys
sys.path.insert(0, "gen")
from build import *
from layout import *
import f1, f2, f3, g1
NAME = "parallel_sum__sliding_local_dilated__mixer_gmlp__prompt_kernel"
args = sys.argv[2:]
K.diag = "c" if "c" in args else "h" if "h" in args else ("d" in args)
kv = dict(a.split("=") for a in args if "=" in a)
for o in args:
    if o not in 'dch' and '=' not in o: f1.OPT[o] = 1
K.dbgslot = 0
pol = lambda n, d: kv.get(n, d).replace("_", " ").replace("-", "")
k = K(NAME); n = "F"
real_stamp = K.stamp
PH = {"p": 1}
MAP = {1: {0: 0, 2: 1}, 2: {3: 4}, 3: {6: 6}}
P1D = "p1" in args
if P1D: MAP = {1: {0: 0, 2: 1, 3: 2, 4: 3, 5: 4, 6: 5}}
if "it" in args: MAP = {}; P1D = True; PH["direct"] = None
P3D = "p3" in args
if P3D: MAP = {2: {3: 0, 4: 1}, 3: {6: 4, 7: 6}}
_rs = real_stamp
def real_stamp(k, i):
    if P3D:
        if i in (5, 8, 9): _rs(k, {5: 2, 8: 3, 9: 5}[i])
        return
    if i > 7: return
    if PH.get("direct", 1) is None: return
    if P1D and PH.get("direct", True):
        if i == 2: _rs(k, 6)
        if i == 3: _rs(k, 7)
    else: _rs(k, i)
def stamp(self, i):
    m = MAP.get(PH["p"], {})
    if i in m: _rs(self, m[i])
K.stamp = stamp
sFl = sR4
def flag_srd(k, s):
    k(f"s_add_u32 s{s}, s{sWS}, {FL_OFF}\ns_addc_u32 s{s+1}, s{sWS+1}, 0\ns_mov_b32 s{s+2}, {FL_SZ}\ns_mov_b32 s{s+3}, 0x20000")
def set_flag(k, lab, soff_code, lanes, vstride_shift, tag=None, so=sT):
    if tag: k.wait(vm=tag)
    else: k("s_waitcnt vmcnt(0)"); k.vm.q = []
    k(f"s_barrier\ns_cmp_lg_u32 s{sW}, 0\ns_cbranch_scc1 {lab}")
    flag_srd(k, sFl)
    k(soff_code)
    k(f"v_lshlrev_b32 v28, {vstride_shift}, v0\nv_mov_b32 v29, s{sNON}\ns_mov_b64 exec, {(1 << lanes) - 1}")
    k(f"buffer_store_dword v29, v28, s[{sFl}:{sFl+3}], s{so} offen sc1\ns_mov_b64 exec, -1\n{lab}:")
sFD = 59
def z2flag(k, V):
    code = f"s_lshl_b32 s{sT}, s{f1.sRB}, 2\ns_add_u32 s{sT}, s{sT}, s{f1.sCQ}\ns_lshl_b32 s{sT}, s{sT}, 7\ns_add_u32 s{sT}, s{sT}, {FZ2 + (0 if V == 'B43' else 64)}"
    set_flag(k, f"L_{n}_fz{V}", code, 1, 2, tag="z2st")
f1.OPT["z2flag"] = z2flag
def after1(k, V):
    real_stamp(k, 2)
    PH["V"] = V
    if V == "A":
        k(f"s_lshl_b32 s{sFD}, s{f1.sRB}, 4\ns_add_u32 s{sFD}, s{sFD}, s{f1.sSUB}\ns_lshl_b32 s{sFD}, s{sFD}, 8")
    else:
        k(f"s_lshl_b32 s{sFD}, s{f1.sRB}, 3\ns_add_u32 s{sFD}, s{sFD}, s{f1.sCQ}\ns_lshl_b32 s{sFD}, s{sFD}, 9\ns_add_u32 s{sFD}, s{sFD}, {2048 + (0 if V == 'B43' else 256)}")
    k(f"s_lshl_b32 s{sT}, s{sW}, 6\ns_add_u32 s{sFD}, s{sFD}, s{sT}\ns_add_u32 s{sFD}, s{sFD}, {FD}")
    if V != "A": k(f"s_branch L_{n}_p2")
def poll(k, lab, loads, nreg):
    k(f"s_cmp_lg_u32 s{sW}, 0\ns_cbranch_scc1 {lab}_go")
    flag_srd(k, sFl)
    loads(k, True)
    k(f"s_mov_b32 s{sT+10}, 0\n{lab}:")
    loads(k, False)
    k(f"s_add_u32 s{sT+10}, s{sT+10}, 1\ns_waitcnt vmcnt(0)")
    for r in range(nreg): k(f"v_xor_b32 v{28+r}, s{sNON}, v{28+r}")
    for r in range(1, nreg): k(f"v_or_b32 v28, v28, v{28+r}")
    k(f"v_cmp_ne_u32 vcc, 0, v28\ns_nop 3\ns_cmp_gt_u32 s{sT+10}, 100000\ns_cbranch_scc1 {lab}_go\ns_cbranch_vccnz {lab}\n{lab}_go:\ns_barrier")
def wait_z2(k):
    def loads(k, pre):
        if pre: k(f"s_mov_b32 s{sT+8}, {FZ2 + 4096}\nv_lshlrev_b32 v26, 6, v0")
        else: k(f"buffer_load_dword v28, v26, s[{sFl}:{sFl+3}], 0 offen offset:{FZ2} sc1\nbuffer_load_dword v29, v26, s[{sFl}:{sFl+3}], s{sT+8} offen sc1")
    poll(k, f"L_{n}_pz", loads, 2)
    real_stamp(k, 3)
def mid_load(k):
    return [("i", f"""s_add_u32 s{sFl}, s{sWS}, {FL_OFF}
    s_addc_u32 s{sFl+1}, s{sWS+1}, 0
    s_mov_b32 s{sFl+2}, {FL_SZ}
    s_mov_b32 s{sFl+3}, 0x20000
    s_lshr_b32 s{sT+9}, s{f2.sRB2}, 1
    s_lshl_b32 s{sT+9}, s{sT+9}, 12
    s_add_u32 s{sT+9}, s{sT+9}, {FD}
    v_lshlrev_b32 v27, 6, v0
    s_mov_b32 s{sT+10}, 0"""), ("v", f"buffer_load_dword v28, v27, s[{sFl}:{sFl+3}], s{sT+9} offen sc1", "fz1")]
def mid_check(k):
    lab = f"L_{n}_pd"
    return [("i", f"""s_branch {lab}_chk
    {lab}:
    s_sleep 2
    buffer_load_dword v28, v27, s[{sFl}:{sFl+3}], s{sT+9} offen sc1
    s_add_u32 s{sT+10}, s{sT+10}, 1
    s_waitcnt vmcnt(0)
    {lab}_chk:
    v_cmp_ne_u32 vcc, s{sNON}, v28
    s_nop 3
    s_cmp_gt_u32 s{sT+10}, 100000
    s_cbranch_scc1 {lab}_go
    s_cbranch_vccnz {lab}
    {lab}_go:""")]
def done2(k): real_stamp(k, 5)
def flag2(k):
    code = f"s_lshl_b32 s{sT}, s{f2.sRB2}, 9\ns_lshl_b32 s{sT+1}, s{f2.sCB}, 6\ns_add_u32 s{sT}, s{sT}, s{sT+1}\ns_add_u32 s{sT}, s{sT}, {FH}"
    set_flag(k, f"L_{n}_flh", code, 1, 2, tag="hs")
    real_stamp(k, 8)
def wait_h(k):
    def loads(k, pre):
        if pre: k(f"s_lshl_b32 s{sT+8}, s{f2.sRB2}, 9\ns_add_u32 s{sT+8}, s{sT+8}, {FH}\nv_and_b32 v27, 7, v0\nv_lshlrev_b32 v27, 6, v27")
        else: k(f"buffer_load_dword v28, v27, s[{sFl}:{sFl+3}], s{sT+8} offen sc1")
    poll(k, f"L_{n}_ph", loads, 1)
    k.srd(f3.sOr3, sOUT, 2048*1024)
    real_stamp(k, 9)
f1.OPT["bulk"] = (pol("bulk", "-") or 1) if kv.get("bulk") != "0" else 0
def pre2(k):
    f3.early_setup(k)
    pf3_setup(k)
def pf3_setup(k):
    k(f"""
    s_lshr_b32 s{sT}, s2, 3
    s_lshl_b32 s{sT}, s{sT}, 2
    s_add_u32 s{sT}, s{sT}, s{sW}
    s_and_b32 s{sT+1}, s2, 1
    s_lshl_b32 s{sT+1}, s{sT+1}, 9
    v_lshrrev_b32 v23, 2, v0
    v_and_b32 v29, 3, v0
    v_lshlrev_b32 v29, 7, v29
    v_lshl_add_u32 v23, v23, 10, v29
    s_mul_i32 s{sT+5}, s{sT}, 7168
    s_add_u32 s{sT+5}, s{sT+5}, s{sT+1}
    s_lshl_b32 s{sT+6}, s{sT}, 12
    s_add_u32 s{sT+6}, s{sT+6}, s{sT+1}
    s_bfe_u32 s{sT+7}, s2, 0x20001
    s_lshl_b32 s{sT+7}, s{sT+7}, 19
    s_add_u32 s{sT+7}, s{sT+7}, s{sT+6}
    """)
def pf3(s):
    if s == 3:
        return [[("i", f"s_add_u32 s{sFl}, s{sWS}, {FL_OFF}\ns_addc_u32 s{sFl+1}, s{sWS+1}, 0\ns_mov_b32 s{sFl+2}, {FL_SZ}\ns_mov_b32 s{sFl+3}, 0x20000\nv_mov_b32 v29, s{sNON}\nv_mov_b32 v30, 0\ns_mov_b64 exec, 1"),
                 ("v", f"buffer_store_dword v29, v30, s[{sFl}:{sFl+3}], s{sFD} offen sc1", "fd"), ("i", "s_mov_b64 exec, -1")]]
    if s > 2 or not int(kv.get("pf3", 1)): return []
    base, sz, so, ex = [(sWO, 512*1024, sT+6, 0xffff), (sWOUT, 896*1024, sT+5, 0xfffffff), (sX, 2048*1024, sT+7, 0xffff)][s]
    return [[("i", f"s_mov_b32 s{sR4}, s{base}\ns_mov_b32 s{sR4+1}, s{base+1}\ns_mov_b32 s{sR4+2}, {sz}\ns_mov_b32 s{sR4+3}, 0x20000\ns_mov_b64 exec, {ex}"),
             ("v", f"buffer_load_dword v31, v23, s[{sR4}:{sR4+3}], s{so} offen", "pf3"), ("i", "s_mov_b64 exec, -1")]]
if "nza" in kv: f1.OPT["nza"] = int(kv["nza"])
f1.prologue(k, n)
def hk(fn):
    def h(k): f1.FILL.q = fn(k)
    return h
for o in ("tp", "tc", "zf", "pfm"):
    if o in kv: f1.OPT[o] = int(kv[o])
g1.gen_p1(k, n, after1, dict(stageA=hk(f2.stage_groups), stageB=hk(f2.stage_groups_B), stageB2=hk(f2.stage_groups_B2), z2flag=z2flag))
k(f"L_{n}_p2:")
PH["p"] = 2
k("s_waitcnt lgkmcnt(0)")
k.vm.q = ["A4", "A5", "A6"]; k.lg.q = []
f2.gen_p2(k, n, wait_z2, done2, st_pol="sc1", h_pol=pol("h2", "sc1"), DB=int(kv.get("DB", 4)), pfb=int(kv.get("pfb", 0)), tail=f3.tail(pol("h3", "sc1")), pre=pre2, mid=(mid_load, mid_check, pf3), rest=[f2.gA(7, m) for m in range(8)])
PH["p"] = 3
f3.gen_p3(k, n, flag2, wait_h, st_pol=pol("st3", "sc1"), h_pol=pol("h3", "sc1"))
K.stamp = (lambda self, i: None) if P1D else _rs
k.stamp_end(0, sWS, sW, 7)
k(f"L_{n}_end:\ns_endpgm")
txt = assemble([(k, 512, 256, f1.LDSF)]).replace(f"; @launch kernel={NAME} grid", "; @launch grid")
open(sys.argv[1], "w").write(txt)
check(sys.argv[1], NAME)
```

```python
from asmlib import *
from layout import *
import struct
def f2h(x): return hex(struct.unpack("<I", struct.pack("<f", x))[0])
OPT = {}
XW = 18432
STG = XW + 7*4096
LDS1 = 3*STG
TOP = 135168
TA, TB, TC, PS, OX, NT = 0, 1024, 2048, 4096, 8192, 6144
LDSF = 163840
LOG2E = 1.4426950408889634
GC1 = -2*0.7978845608028654*LOG2E
GC2 = GC1*0.044715
sXr, sWr, sOr, sPr, sXs = sR0, sR1, sR2, sR3, sR4
sRB, sCQ, sSUB, sH, sE = 76, 77, 78, 79, 80
sXo = [81, 82]; sWo = [83, 26]; sHo, sXl, sWl = 27, 3, 10
sSt, sDelta, sI, sA, sB, sSTG = 100, 101, 11, 74, 75, 73
vXe, vXo, vWd, vH = 4, 5, 6, 7
vL16, vNon, vZero = 20, 21, 22
ONES = 24
ACC = 32
T = 144
FR = 256
XA = 256 + 112

def bf16_round(k, dst, src):
    k(f"v_cvt_pk_bf16_f32 v{dst}, v{src}, v{src}\nv_and_b32 v{dst}, 0xffff0000, v{dst}")
def P(r): return f"v[{r}:{r+1}]"
def pk(op, d, srcs):
    ops, lo, hi = [], [], []
    for r, bc in srcs:
        if isinstance(r, str): ops.append(r); lo.append(0); hi.append(0)
        elif bc: ops.append(P(r & ~1)); lo.append(r & 1); hi.append(r & 1)
        else: ops.append(P(r)); lo.append(0); hi.append(1)
    m = ""
    if any(lo): m += " op_sel:[" + ",".join(map(str, lo)) + "]"
    if not all(hi): m += " op_sel_hi:[" + ",".join(map(str, hi)) + "]"
    return f"v_pk_{op}_f32 {P(d)}, " + ", ".join(ops) + m

def prologue(k, name):
    k(f"""
    L_{name}_code:
    s_cmp_ge_u32 s2, 256
    s_cbranch_scc1 L_{name}_end
    s_load_dwordx16 s[4:19], s[0:1], 0
    s_load_dwordx4 s[20:23], s[0:1], {KA_OUT}
    s_load_dwordx2 s[24:25], s[0:1], {KA_WS}
    s_getpc_b64 s[{sPr}:{sPr+1}]
    L_{name}_pc:
    s_mov_b32 s{sPr+2}, L_{name}_end - L_{name}_pc
    s_mov_b32 s{sPr+3}, 0x20000
    s_lshr_b32 s{sT}, s2, 3
    s_mul_i32 s{sT}, s{sT}, 2560
    v_lshlrev_b32 v3, 7, v0
    v_cmp_gt_u32 vcc, 20, v0
    s_and_saveexec_b64 s[{sM}:{sM+1}], vcc
    s_cbranch_execz L_{name}_nocpf
    buffer_load_dword v28, v3, s[{sPr}:{sPr+3}], s{sT} offen
    L_{name}_nocpf:
    s_mov_b64 exec, -1
    v_lshrrev_b32 v1, 6, v0
    v_and_b32 v0, 63, v0
    v_readfirstlane_b32 s{sW}, v1
    v_lshrrev_b32 v1, 4, v0                 ; g
    v_and_b32 v2, 15, v0                    ; i
    v_lshlrev_b32 v{vL16}, 4, v0
    """)

class Fill:
    def __init__(self, mk=None): self.mk = mk; self.q = []
    def start(self, k):
        self.q = self.mk(k) if self.mk else []
    def __call__(self, k, n):
        for _ in range(n):
            if self.q:
                for it in self.q.pop(0):
                    if it[0] == "i": k(it[1])
                    elif it[0] == "v": k.vmem(it[1], it[2])
                    elif it[0] == "d": k.ds(it[1], it[2])
                    else: k.wait(vm=it[1], lg=it[2])
    def flush(self, k): self(k, len(self.q))
FILL = Fill()

def gen_p1(k, name, after, st_pol="sc1", ld_pol="", pf_pol="", pf=True):
    k(f"""
    s_and_b32 s{sT}, s2, 7
    s_lshr_b32 s{sT+1}, s2, 3
    s_lshr_b32 s{sRB}, s{sT}, 2
    s_lshl_b32 s{sRB}, s{sRB}, 3
    s_lshr_b32 s{sT+2}, s{sT+1}, 2
    s_add_u32 s{sRB}, s{sRB}, s{sT+2}
    s_and_b32 s{sCQ}, s{sT}, 3
    s_and_b32 s{sSUB}, s{sT+1}, 3
    v_and_b32 v3, 7, v0
    v_xor_b32 v{T}, v3, v1
    v_lshlrev_b32 v{T}, 4, v{T}
    v_lshrrev_b32 v{T+1}, 3, v0
    v_lshl_add_u32 v{vXe}, v{T+1}, 10, v{T}
    v_xor_b32 v{vXo}, 64, v{vXe}
    v_add_u32 v{vXo}, 8192, v{vXo}
    v_lshrrev_b32 v{T}, 5, v0
    v_lshlrev_b32 v{T}, 1, v{T}
    v_and_b32 v{T+2}, 3, v0
    v_xor_b32 v{T}, v{T}, v{T+2}
    v_lshlrev_b32 v{T}, 4, v{T}
    v_lshrrev_b32 v{T+2}, 2, v0             ; l>>2
    s_lshl_b32 s{sXo[0]}, s{sRB}, 2
    s_add_u32 s{sXo[0]}, s{sXo[0]}, s{sW}
    s_lshl_b32 s{sXo[0]}, s{sXo[0]}, 15     ; (128rb+32w)*1024
    s_add_u32 s{sXo[1]}, s{sXo[0]}, 16384
    s_lshl_b32 s{sXl}, s{sW}, 12
    s_mov_b32 s{sSt}, 0
    s_mov_b32 s{sSTG}, {STG}
    s_cmp_ge_u32 s{sSUB}, 2
    s_cbranch_scc1 L_{name}_B
    v_mul_u32_u24 v{T+2}, 3072, v{T+2}
    v_add_u32 v{vWd}, v{T+2}, v{T}
    s_lshl_b32 s{sT+6}, s{sCQ}, 1
    s_add_u32 s{sSUB}, s{sSUB}, s{sT+6}
    s_mul_i32 s{sWo[0]}, s{sW}, {16*3072}
    s_lshl_b32 s{sT+6}, s{sSUB}, 7
    s_add_u32 s{sWo[0]}, s{sWo[0]}, s{sT+6}
    s_lshl_b32 s{sT+6}, s{sW}, 1
    v_add_u32 v{T}, s{sT+6}, v1
    v_xor_b32 v{T}, v{T}, v3
    v_lshlrev_b32 v{T}, 4, v{T}
    v_lshl_add_u32 v{vH}, v{T+1}, 10, v{T}
    s_lshl_b32 s{sHo}, s{sRB}, 7
    s_sub_u32 s{sHo}, s{sHo}, 16
    s_max_i32 s{sHo}, s{sHo}, 0
    s_lshl_b32 s{sT+6}, s{sW}, 2
    s_add_u32 s{sHo}, s{sHo}, s{sT+6}
    s_lshl_b32 s{sHo}, s{sHo}, 10
    s_waitcnt lgkmcnt(0)
    """)
    k.srd(sXr, sX, 2048*1024); k.srd(sWr, sWQ, 512*3072)
    variant(k, name, "A", after, st_pol, ld_pol, pf_pol, pf)
    k(f"""
    L_{name}_B:
    v_mul_u32_u24 v{T+2}, 3584, v{T+2}
    v_add_u32 v{vWd}, v{T+2}, v{T}
    s_mul_i32 s{sT+5}, s{sW}, {16*3584}
    s_mul_i32 s{sT+6}, s{sCQ}, 448
    s_add_u32 s{sT+5}, s{sT+5}, s{sT+6}
    s_add_u32 s{sT+6}, s{sT+5}, 1792
    s_and_b32 s{sH}, s{sW}, 1
    s_lshr_b32 s{sE}, s{sW}, 1
    s_cmp_eq_u32 s{sSUB}, 2
    s_cselect_b32 s{sT+7}, s{sT+6}, s{sT+5}
    s_cselect_b32 s{sT+8}, s{sT+5}, s{sT+6}
    s_waitcnt lgkmcnt(0)
    s_mov_b32 s{sWo[0]}, s{sT+7}
    s_mov_b32 s{sWo[1]}, s{sT+8}
    """)
    k.srd(sXr, sX, 2048*1024); k.srd(sWr, sWIN, 512*3584)
    k(f"s_cmp_eq_u32 s{sSUB}, 3\ns_cbranch_scc1 L_{name}_B34")
    variant(k, name, "B43", after, st_pol, ld_pol, pf_pol, pf)
    k(f"L_{name}_B34:")
    variant(k, name, "B34", after, st_pol, ld_pol, pf_pol, pf)

def variant(k, name, V, after, st_pol, ld_pol, pf_pol, pf):
    isA = V == "A"
    pitch = 3072 if isA else 3584
    ndma = 11
    lab = f"L_{name}_{V}"
    k(f"s_lshl_b32 s{sWl}, s{sW}, 10")
    k.stamp(0)
    def dma():
        G = []
        pre = [f"s_add_u32 s{sA}, s{sSt}, s{sXl}", f"s_add_u32 s{sB}, s{sSt}, s{sWl}"]
        for m in range(4):
            g = [f"s_add_u32 m0, s{sA}, {2048 + m*1024}", f"buffer_load_dwordx4 v{vXo if m & 1 else vXe}, s[{sXr}:{sXr+3}], s{sXo[m>>1]} offen {ld_pol} lds"]
            if m & 1: g.append(f"s_add_u32 s{sXo[m>>1]}, s{sXo[m>>1]}, 128")
            G.append(g)
        W = []
        for q in range(6 if isA else 7):
            imm = 64*(q & 1) + 1024*(q >> 1) if isA else 64*q
            so = sWo[0] if (isA or q < 4) else sWo[1]
            g = [f"s_add_u32 m0, s{sB}, {XW + q*4096 - imm}", f"buffer_load_dwordx4 v{vWd}, s[{sWr}:{sWr+3}], s{so} offen offset:{imm} {ld_pol} lds"]
            if q == (5 if isA else 3): g.append(f"s_add_u32 s{sWo[0]}, s{sWo[0]}, {64*pitch}")
            if q == 6: g.append(f"s_add_u32 s{sWo[1]}, s{sWo[1]}, {64*pitch}")
            W.append(g)
        if isA:
            W.append([f"s_lshr_b32 s{sT}, s{sWl}, 1", f"s_add_u32 m0, s{sSt}, s{sT}", "s_mov_b64 exec, 0xffffffff",
                      f"buffer_load_dwordx4 v{vH}, s[{sXr}:{sXr+3}], s{sHo} offen {ld_pol} lds", "s_mov_b64 exec, -1", f"s_add_u32 s{sHo}, s{sHo}, 128"])
        G = interleave(W, G)
        G[0] = pre + G[0]
        return G
    def dma_now():
        for g in dma():
            for l in g: k(l)
    dma_now(); k(f"s_add_u32 s{sSt}, s{sSt}, {STG}")
    if isA:
        k(f"""
        s_or_b32 s{sT}, s2, s{sW}
        s_cmp_lg_u32 s{sT}, 0
        s_cbranch_scc1 {lab}_nn
        s_memrealtime s[{sT}:{sT+1}]
        v_mov_b32 v{T}, 0
        s_waitcnt lgkmcnt(0)
        s_or_b32 s{sT}, s{sT}, 1
        v_mov_b32 v{T+1}, s{sT}
        s_mov_b64 exec, 1
        global_store_dword v{T}, v{T+1}, s[{sDBG}:{sDBG+1}] sc1
        s_mov_b64 exec, -1
        {lab}_nn:
        """)
    k(f"""
    v_lshrrev_b32 v{T}, 1, v2
    v_xor_b32 v{T}, v{T}, v1
    v_lshlrev_b32 v{T}, 4, v{T}
    v_lshl_add_u32 v{T}, v2, 7, v{T}        ; i*128 + (g^(i>>1))*16
    v_and_b32 v{T+2}, 1, v1
    v_lshlrev_b32 v{T+2}, 1, v{T+2}
    v_bfe_u32 v{T+1}, v0, 1, 1
    v_xor_b32 v{T+2}, v{T+2}, v{T+1}
    v_lshlrev_b32 v{T+2}, 4, v{T+2}
    v_bfe_u32 v{T+1}, v0, 2, 2
    v_lshl_add_u32 v{T+1}, v1, 3, v{T+1}
    v_lshl_add_u32 v{T+2}, v{T+1}, 6, v{T+2}
    v_and_b32 v{T+1}, 1, v0
    v_lshl_add_u32 v{T+2}, v{T+1}, 3, v{T+2}
    v_mov_b32 v{vZero}, 0
    """)
    if isA:
        vX = [[8], [11]]; vS = [9, 12]; vW = [[10], [13]]
        k(f"""
        v_mov_b32 v{vX[0][0]}, v{T}
        v_xor_b32 v{vX[1][0]}, 64, v{T}
        v_add_u32 v{vS[0]}, s{sXl}, v{vX[0][0]}
        v_add_u32 v{vS[1]}, s{sXl}, v{vX[1][0]}
        s_and_b32 s{sT}, s{sW}, 1
        s_lshl_b32 s{sT}, s{sT}, 5
        v_xor_b32 v{T+2}, s{sT}, v{T+2}
        s_lshr_b32 s{sT}, s{sW}, 1
        s_lshl_b32 s{sT}, s{sT}, 12
        s_add_u32 s{sT}, s{sT}, {XW}
        v_add_u32 v{vW[0][0]}, s{sT}, v{T+2}
        v_add_u32 v{vW[1][0]}, 2048, v{vW[0][0]}
        """)
        bases = [[8, 9, 10], [11, 12, 13]]
        nX, nW = 9, 3
        xaddr = lambda sg, a: (vX[sg][0], a*2048)
        waddr = lambda sg, j, j2: (vW[sg][0], j*8192 + j2*256)
    else:
        vX = [[8, 9], [14, 15]]; vW = [[10, 11, 12, 13], [16, 17, 18, 19]]
        k(f"""
        s_lshl_b32 s{sT}, s{sH}, 6
        v_xor_b32 v{T}, s{sT}, v{T}
        s_lshl_b32 s{sT}, s{sH}, 13
        s_add_u32 s{sT}, s{sT}, 2048
        s_lshl_b32 s{sT+1}, s{sE}, 12
        s_add_u32 s{sT+2}, s{sT}, s{sT+1}
        v_add_u32 v{vX[0][0]}, s{sT+2}, v{T}
        s_sub_u32 s{sT+2}, s{sT}, s{sT+1}
        v_add_u32 v{vX[0][1]}, s{sT+2}, v{T}
        v_xor_b32 v{vX[1][0]}, 64, v{vX[0][0]}
        v_xor_b32 v{vX[1][1]}, 64, v{vX[0][1]}
        s_lshl_b32 s{sT}, s{sH}, 11
        s_add_u32 s{sT}, s{sT}, {XW}
        s_lshl_b32 s{sT+2}, s{sE}, 13
        s_add_u32 s{sT+3}, s{sT}, s{sT+2}
        v_add_u32 v{vW[0][0]}, s{sT+3}, v{T+2}
        v_xor_b32 v{vW[0][1]}, 32, v{vW[0][0]}
        s_lshl_b32 s{sT+4}, s{sE}, 5
        v_xor_b32 v{T+1}, s{sT+4}, v{T+2}
        s_add_u32 s{sT+5}, s{sT}, s{sT+1}
        v_add_u32 v{vW[0][2]}, s{sT+5}, v{T+1}
        v_xor_b32 v{T+1}, 32, v{T+1}
        v_add_u32 v{vW[0][3]}, s{sT+3}, v{T+1}
        s_lshl_b32 s{sT}, s{sH}, 12
        s_sub_u32 s{sT}, 2048, s{sT}
        """)
        for n in range(4): k(f"v_add_u32 v{vW[1][n]}, s{sT}, v{vW[0][n]}")
        bases = [[8, 9, 10, 11, 12, 13], [14, 15, 16, 17, 18, 19]]
        nX, nW = 4, 7
        xaddr = lambda sg, a: (vX[sg][a >> 1], a*2048)
        def waddr(sg, j, j2):
            if j < 4: return vW[sg][j & 1], (j >> 1)*4096 + j2*256
            return vW[sg][2 + (j & 1)], 4*4096 + ((j - 4) >> 1)*4096 + j2*256
    dma_now(); k(f"s_add_u32 s{sSt}, s{sSt}, {STG}")
    fX = lambda sg, a: FR + sg*56 + a*4
    fW = lambda sg, j: FR + sg*56 + nX*4 + j*4
    fS = (lambda sg, a: FR + sg*56 + 48 + a*4) if isA else fX
    tG = lambda a: XA + a*8
    tS = lambda a: XA + a*8 + 4
    if isA:
        tQ = lambda a: ACC + (a-1)*4; tK = lambda a: ACC + 32 + a*4; tV = lambda a: ACC + 68 + a*4
        tC = lambda j: XA + 24 + j*4
        nacc, nxa = 104, 36
    else:
        tZ = lambda a, j: ACC + (j*4 + a)*4
        tC = lambda j: XA + 16 + j*4
        nacc, nxa = 112, 44
        isz2 = (lambda j: j < 4) if V == "B43" else (lambda j: j >= 4)
    for r in range(4): k(f"v_mov_b32 v{ONES+r}, 0x3f803f80")
    for r in range(nacc): k(f"v_mov_b32 v{ACC+r}, 0")
    for r in range(nxa): k(f"v_accvgpr_write_b32 {vr(XA+r, 1)}, 0")
    dma_now(); k(f"s_mov_b32 s{sSt}, 0")
    nbulk = 0
    if OPT.get("bulk"):
        bp = OPT["bulk"] if isinstance(OPT["bulk"], str) else ""
        nbulk = 3
        k(f"""
        s_getpc_b64 s[{sPr}:{sPr+1}]
        {lab}_pc:
        s_sub_u32 s{sPr}, s{sPr}, {lab}_pc - L_{name}_code
        s_subb_u32 s{sPr+1}, s{sPr+1}, 0
        s_mov_b32 s{sPr+2}, L_{name}_end - L_{name}_code
        s_mov_b32 s{sPr+3}, 0x20000
        s_lshr_b32 s{sT}, s2, 3
        s_lshl_b32 s{sT+1}, s{sT}, 2
        s_add_u32 s{sT+1}, s{sT+1}, s{sW}
        s_lshl_b32 s{sT+1}, s{sT+1}, 9
        v_lshlrev_b32 v{T}, 7, v0
        s_mov_b64 exec, 15
        buffer_load_dword v28, v{T}, s[{sPr}:{sPr+3}], s{sT+1} offen
        s_mov_b64 exec, -1
        s_and_b32 s{sT+1}, s{sT}, 3
        s_lshl_b32 s{sT+1}, s{sT+1}, 2
        s_add_u32 s{sT+1}, s{sT+1}, s{sW}
        s_lshl_b32 s{sT+1}, s{sT+1}, 13
        s_lshl_b32 s{sT+2}, s{sRB}, 17
        s_add_u32 s{sT+1}, s{sT+1}, s{sT+2}
        s_mov_b32 exec_lo, 0xf8f8f8f8
        s_mov_b32 exec_hi, 0xf8f8f8f8
        buffer_load_dword v28, v{T}, s[{sXr}:{sXr+3}], s{sT+1} offen {bp}
        s_mov_b64 exec, -1
        v_mul_u32_u24 v{T+1}, 52, v0
        v_lshrrev_b32 v{T+1}, 8, v{T+1}
        v_mul_u32_u24 v{T+2}, 5, v{T+1}
        v_sub_u32 v{T+2}, v0, v{T+2}
        v_mul_u32_u24 v{T+1}, {pitch}, v{T+1}
        s_and_b32 s{sT+1}, s{sRB}, 7
        s_mul_i32 s{sT+1}, s{sT+1}, 40
        s_mul_i32 s{sT+2}, s{sW}, -6
        s_add_u32 s{sT+1}, s{sT+1}, s{sT+2}
        s_mul_i32 s{sT+1}, s{sT+1}, {pitch}
        s_add_u32 s{sT+2}, s{sT+1}, s{sWo[0]}
        """)
        if isA:
            k(f"""
            v_lshl_add_u32 v{T+1}, v{T+2}, 10, v{T+1}
            v_cmp_gt_u32 vcc, 3, v{T+2}
            s_and_b64 exec, vcc, 0x3ffffffffffff
            """.replace("s_and_b64 exec, vcc, 0x3ffffffffffff", f"s_mov_b32 s{sT+5}, 0x3ffff\ns_and_b32 exec_hi, vcc_hi, s{sT+5}\ns_mov_b32 exec_lo, vcc_lo"))
        else:
            k(f"""
            s_sub_u32 s{sT+3}, s{sWo[1]}, s{sWo[0]}
            s_sub_u32 s{sT+3}, s{sT+3}, 128
            v_lshlrev_b32 v{T+3}, 7, v{T+2}
            v_min_u32 v{T+4}, 192, v{T+3}
            v_add_u32 v{T+3}, s{sT+3}, v{T+3}
            v_cmp_gt_u32 vcc, 3, v{T+2}
            v_cndmask_b32 v{T+3}, v{T+3}, v{T+4}, vcc
            v_add_u32 v{T+1}, v{T+1}, v{T+3}
            v_add_u32 v{T+1}, s{sT+2}, v{T+1}
            s_mov_b32 s{sT+2}, 0
            s_mov_b32 exec_hi, 0x3ffff
            """)
        k(f"buffer_load_dword v28, v{T+1}, s[{sWr}:{sWr+3}], s{sT+2} offen {bp}\ns_mov_b64 exec, -1")
    def reads(sg):
        X = [f"ds_read_b128 {vr(fX(sg, a))}, v{xaddr(sg, a)[0]} offset:{xaddr(sg, a)[1]}" for a in range(nX)]
        Wl = [f"ds_read_b64_tr_b16 {vr(fW(sg, j) + 2*j2, 2)}, v{waddr(sg, j, j2)[0]} offset:{waddr(sg, j, j2)[1]}" for j in range(nW) for j2 in range(2)]
        if isA:
            if OPT.get("noread"): return []
            return Wl + X + [f"ds_read_b128 {vr(fS(sg, a))}, v{vS[sg]} offset:{2048 + a*2048}" for a in range(2)]
        if OPT.get("noread"): return []
        return X + Wl
    def mf(d, a, b): return f"v_mfma_f32_16x16x32_bf16 {vr(d)}, {vr(a)}, {vr(b)}, {vr(d)}"
    def mfmas(sg):
        L = []
        if isA:
            for a in range(9):
                if a: L.append(mf(tQ(a), fW(sg, 0), fX(sg, a)))
                L.append(mf(tK(a), fW(sg, 1), fX(sg, a)))
                L.append(mf(tV(a), fX(sg, a), fW(sg, 2)))
            L += [mf(tG(2), fX(sg, 0), fX(sg, 0)), mf(tS(2), ONES, fX(sg, 0))]
        else:
            for j in range(7):
                for a in range(4):
                    L.append(mf(tZ(a, j), fX(sg, a), fW(sg, j)) if isz2(j) else mf(tZ(a, j), fW(sg, j), fX(sg, a)))
        for a in range(2): L += [mf(tG(a), fS(sg, a), fS(sg, a)), mf(tS(a), ONES, fS(sg, a))]
        if sg == 0 or isA:
            for j in range(nW): L.append(mf(tC(j), ONES, fW(sg, j)))
        if OPT.get("noextra"): return L[:26 if isA else 28]
        return L
    adv = lambda sg: [f"v_add_u32 v{r}, s{sDelta}, v{r}" for r in bases[sg]]
    k(f"s_mov_b32 s{sI}, 0\ns_waitcnt vmcnt({2*ndma + nbulk})\ns_barrier")
    k.stamp(1)
    for l in reads(0): k(l)
    k("s_waitcnt lgkmcnt(0)")
    k(f".p2align 6\n{lab}_loop:")
    for l in interleave(mfmas(0), reads(1) + [f"s_cmp_eq_u32 s{sSt}, {2*STG}\ns_cselect_b32 s{sDelta}, {-2*STG}, s{sSTG}"] + adv(0), per=1): k(l)
    npf = (3 if pf else 1) + (3 if OPT.get("pf3") else 0)
    k(f"s_cmp_ge_u32 s{sI}, 5\ns_cbranch_scc1 {lab}_nodma")
    k(f"s_waitcnt vmcnt({ndma}) lgkmcnt(0)\ns_barrier")
    def half2(with_dma):
        M = mfmas(1)
        slots = [[] for _ in range(len(M) + 1)]
        R = reads(0)
        for n, l in enumerate(R): slots[n + 1].append(l)
        for n, l in enumerate(adv(1)): slots[len(R) + 1 + n].append(l)
        if with_dma and not OPT.get("nodma"):
            G = dma()
            for n, g in enumerate(G):
                pos = 1 + n*(len(M) - 2)//len(G)
                cut = max(i for i, l in enumerate(g) if " m0," in l) + 1
                slots[pos] += g[:cut]; slots[pos + 1] = g[cut:] + slots[pos + 1]
        for i, m in enumerate(M):
            for l in slots[i]: k(l)
            k(m)
        for l in slots[len(M)]: k(l)
        k(f"""
        s_add_u32 s{sSt}, s{sSt}, s{sDelta}
        s_add_u32 s{sI}, s{sI}, 1
        s_cmp_lt_u32 s{sI}, 8
        s_waitcnt lgkmcnt(0)
        s_cbranch_scc1 {lab}_loop
        """)
    half2(True)
    k(f"{lab}_nodma:\ns_cmp_eq_u32 s{sI}, 5\ns_cbranch_scc1 {lab}_five\ns_waitcnt vmcnt({npf}) lgkmcnt(0)\ns_barrier\ns_branch {lab}_cont")
    k(f"{lab}_five:\ns_waitcnt vmcnt({ndma}) lgkmcnt(0)\ns_barrier")
    k.srd(sPr, sWSP, 2048*4096)
    k(f"""
    s_and_b32 s{sT}, s2, 7
    s_lshr_b32 s{sT}, s{sT}, 1
    s_lshl_b32 s{sT}, s{sT}, 21
    s_lshr_b32 s{sT+1}, s2, 3
    s_lshl_b32 s{sT+1}, s{sT+1}, 2
    s_add_u32 s{sT+1}, s{sT+1}, s{sW}
    s_lshl_b32 s{sT+2}, s{sT+1}, 14
    s_add_u32 s{sT}, s{sT}, s{sT+2}
    s_add_u32 s{sT+1}, s{sT}, 8192
    v_lshlrev_b32 v23, 7, v0
    s_mov_b32 s{sT+3}, 0x7fffffff
    global_load_dword v{vNon}, v{vZero}, s[{sDBG}:{sDBG+1}] sc1
    """)
    for n in range(1, 3 if pf else 1): k(f"buffer_load_dword v28, v23, s[{sPr}:{sPr+3}], s{sT+n-1} offen {pf_pol}")
    if OPT.get("pf3"): OPT["pf3"](k)
    k(f"{lab}_cont:")
    half2(False)
    k.stamp(2)
    cI, cE = T, T+1
    X = T + 16
    k(f"""
    s_barrier
    v_mov_b32 v{cI}, {f2h(1/512)}
    v_mov_b32 v{cE}, {f2h(1e-5)}
    v_and_b32 v{T+2}, 1, v0
    v_cmp_eq_u32 s[{sM}:{sM+1}], 1, v{T+2}
    v_and_b32 v{T+2}, 2, v0
    v_cmp_eq_u32 s[{sM+2}:{sM+3}], 2, v{T+2}
    v_lshrrev_b32 v{T+2}, 2, v2
    v_cmp_eq_u32 s[{sM+4}:{sM+5}], v1, v{T+2}
    v_lshlrev_b32 v{T+3}, 2, v2
    v_add_u32 v{T+3}, {TOP}, v{T+3}
    """)
    ns = 3 if isA else 2
    for a in range(ns):
        for r in range(4): k(f"v_accvgpr_read_b32 v{X+a*8+r}, {vr(tG(a)+r, 1)}")
        k(f"v_accvgpr_read_b32 v{X+a*8+4}, {vr(tS(a), 1)}")
    A_ = range(ns)
    for a in A_: k(f"v_cndmask_b32 v{X+a*8}, v{X+a*8}, v{X+a*8+1}, s[{sM}:{sM+1}]\nv_cndmask_b32 v{X+a*8+2}, v{X+a*8+2}, v{X+a*8+3}, s[{sM}:{sM+1}]")
    for a in A_: k(f"v_mul_f32 v{X+a*8+4}, v{X+a*8+4}, v{cI}\nv_cndmask_b32 v{X+a*8}, v{X+a*8}, v{X+a*8+2}, s[{sM+2}:{sM+3}]")
    for a in A_: k(f"v_mul_f32 v{X+a*8}, v{X+a*8}, v{cI}")
    for a in A_: k(f"v_fma_f32 v{X+a*8}, -v{X+a*8+4}, v{X+a*8+4}, v{X+a*8}")
    for a in A_: k(f"v_max_f32 v{X+a*8}, 0, v{X+a*8}")
    for a in A_: bf16_round(k, X+a*8, X+a*8)
    for a in A_: k(f"v_add_f32 v{X+a*8}, v{X+a*8}, v{cE}")
    for a in A_: bf16_round(k, X+a*8, X+a*8)
    for a in A_: k(f"v_sqrt_f32 v{X+a*8}, v{X+a*8}")
    for a in A_: bf16_round(k, X+a*8+4, X+a*8+4)
    for a in A_: bf16_round(k, X+a*8, X+a*8)
    for a in A_: k(f"v_rcp_f32 v{X+a*8}, v{X+a*8}")
    if isA: k(f"s_lshl_b32 s{sT}, s{sW}, 7\ns_add_u32 s{sT}, s{sT}, 64\ns_mul_i32 s{sT+1}, s{sW}, 192\ns_mov_b32 s{sT+2}, s{sT+1}")
    else:
        k(f"""
        s_lshl_b32 s{sT}, s{sH}, 8
        s_lshl_b32 s{sT+3}, s{sE}, 7
        s_add_u32 s{sT}, s{sT}, s{sT+3}
        s_add_u32 s{sT}, s{sT}, 64
        s_lshl_b32 s{sT+1}, s{sE}, 8
        s_mul_i32 s{sT+4}, s{sE}, 192
        s_lshl_b32 s{sT+5}, s{sH}, 10
        s_add_u32 s{sT+2}, s{sT+1}, s{sT+5}
        s_add_u32 s{sT+5}, s{sT+4}, s{sT+5}
        """)
    k(f"v_add_u32 v{T+4}, s{sT}, v{T+3}\nv_add_u32 v{T+5}, s{sT+2}, v{T+3}")
    if not isA: k(f"v_add_u32 v{T+6}, s{sT+5}, v{T+3}")
    for a in A_: k(f"v_mul_f32 v{X+a*8+4}, -v{X+a*8+4}, v{X+a*8}")
    for j in range(nW):
        k(f"ds_write_b32 v{T+5 if j < 4 else T+6}, {vr(tC(j), 1)} offset:{TC + (j*64 if j < 4 else 512 + (j-4)*64)}")
    k(f"s_mov_b64 exec, s[{sM+4}:{sM+5}]")
    for a in A_:
        ad, o = (T+4, a*64) if a < 2 else (T+3, 0)
        k(f"ds_write_b32 v{ad}, v{X+a*8} offset:{TA + o}\nds_write_b32 v{ad}, v{X+a*8+4} offset:{TB + o}")
    k("s_mov_b64 exec, -1")
    k(f"""
    s_waitcnt vmcnt({npf-1})
    v_readfirstlane_b32 s{sNON}, v{vNon}
    s_cmp_lg_u32 s{sNON}, 0
    s_cbranch_scc1 {lab}_non
    s_mov_b32 s{sT+6}, 0
    {lab}_nspin:
    s_sleep 4
    global_load_dword v{vNon}, v{vZero}, s[{sDBG}:{sDBG+1}] sc1
    s_add_u32 s{sT+6}, s{sT+6}, 1
    s_waitcnt vmcnt(0)
    v_readfirstlane_b32 s{sNON}, v{vNon}
    s_cmp_gt_u32 s{sT+6}, 100000
    s_cbranch_scc1 {lab}_non
    s_cmp_eq_u32 s{sNON}, 0
    s_cbranch_scc1 {lab}_nspin
    {lab}_non:
    v_lshlrev_b32 v{T+7}, 4, v1
    v_add_u32 v{T+7}, {TOP}, v{T+7}
    s_waitcnt lgkmcnt(0)
    s_barrier
    """)
    k.stamp(3)
    k.lg.q = []; k.vm.q = []
    FILL.start(k)
    if isA: epi_attn(k, lab, st_pol, tQ, tK, tV)
    else: epi_B(k, lab, V, st_pol, tZ, isz2)
    after(k, V)

def gelu_pk(k, ys, c, t, nf=(0, 0, 0, 0)):
    n = range(len(ys))
    for i in n: k(pk("mul", t+2*i, [(ys[i], 0), (ys[i], 0)]))
    for i in n: k(pk("fma", t+2*i, [(t+2*i, 0), (c+1, 1), (c, 1)]))
    for i in n: k(pk("mul", t+2*i, [(t+2*i, 0), (ys[i], 0)]))
    FILL(k, nf[0])
    for i in range(2*len(ys)): k(f"v_exp_f32 v{t+i}, v{t+i}")
    FILL(k, nf[1])
    for i in n: k(pk("add", t+2*i, [(t+2*i, 0), ("1.0", 1)]))
    for i in range(2*len(ys)): k(f"v_rcp_f32 v{t+i}, v{t+i}")
    FILL(k, nf[2])
    for i in n: k(pk("mul", ys[i], [(ys[i], 0), (t+2*i, 0)]))
    FILL(k, nf[3])

def epi_B(k, lab, V, st_pol, tZ, isz2):
    z2flag = OPT.get('z2flag', lambda k, V: None)
    J2 = [j for j in range(7) if isz2(j)]; J1 = [j for j in range(7) if not isz2(j)]
    vI4, vG16 = T+3, T+7
    c = T
    AR, BR = T+8, T+24
    C2 = T+40
    ST = T+48
    tmp = T+80
    AL = T+88
    ad = T+96
    coff = lambda j: (j*64 if j < 4 else 512 + (j-4)*64)
    k(f"""
    s_lshl_b32 s{sT}, s{sH}, 8
    s_add_u32 s{sT}, s{sT}, 64
    s_add_u32 s{sT+2}, s{sT}, s{sT+3}
    s_sub_u32 s{sT+5}, s{sT}, s{sT+3}
    v_add_u32 v{ad}, s{sT+2}, v{vG16}
    v_add_u32 v{ad+1}, s{sT+5}, v{vG16}
    v_add_u32 v{ad+2}, s{sT+2}, v{vI4}
    v_add_u32 v{ad+3}, s{sT+5}, v{vI4}
    v_add_u32 v{ad+4}, s{sT+1 if V == "B43" else sT+4}, v{vI4}
    v_add_u32 v{ad+5}, s{sT+4 if V == "B43" else sT+1}, v{vG16}
    """)
    for a in range(4):
        k.ds(f"ds_read_b128 {vr(AR + a*4)}, v{ad + (a>>1)} offset:{TA + a*64}", "t")
        k.ds(f"ds_read_b128 {vr(BR + a*4)}, v{ad + (a>>1)} offset:{TB + a*64}", "t")
    for n, j in enumerate(J2):
        for hh in range(2): k.ds(f"ds_read_b32 v{C2 + 2*n + hh}, v{ad+4} offset:{TC + hh*1024 + coff(j)}", "t")
    k(f"v_mov_b32 v{c}, {f2h(GC1)}\nv_mov_b32 v{c+1}, {f2h(GC2)}")
    k.wait(lg="t")
    for a in range(4):
        k.ds(f"ds_read_b32 v{AL + a}, v{ad + 2 + (a>>1)} offset:{TA + a*64}", "u")
        k.ds(f"ds_read_b32 v{AL + 4 + a}, v{ad + 2 + (a>>1)} offset:{TB + a*64}", "u")
    for n in range(len(J2)): k(f"v_add_f32 v{C2+2*n}, v{C2+2*n}, v{C2+2*n+1}")
    for n, j in enumerate(J2):
        for p in range(2):
            ys = [tZ(2*p + (i >> 1), j) + 2*(i & 1) for i in range(4)]
            ab = [(2*p + (i >> 1))*4 + 2*(i & 1) for i in range(4)]
            for i in range(4): k(pk("mul", tmp+2*i, [(BR+ab[i], 0), (C2+2*n, 1)]))
            for i in range(4): k(pk("fma", ys[i], [(AR+ab[i], 0), (ys[i], 0), (tmp+2*i, 0)]))
            gelu_pk(k, ys, c, tmp)
            for i in range(4):
                s_ = ST + (2*p + (i >> 1))*8 + 2*(i & 1); q_ = s_ + 4
                if n == 0: k(f"v_mov_b32 v{s_}, v{ys[i]}\nv_mov_b32 v{s_+1}, v{ys[i]+1}\n" + pk("mul", q_, [(ys[i], 0), (ys[i], 0)]))
                else: k(pk("add", s_, [(s_, 0), (ys[i], 0)]) + "\n" + pk("fma", q_, [(ys[i], 0), (ys[i], 0), (q_, 0)]))
            FILL(k, 4 if len(J2) == 4 else 5)
    k.stamp(4)
    C1 = T+8
    for n, j in enumerate(J1):
        for hh in range(2): k.ds(f"ds_read_b128 {vr(C1 + 8*n + 4*hh)}, v{ad+5} offset:{TC + hh*1024 + coff(j)}", "u")
    for n in range(16): k(f"v_add_f32_dpp v{ST+n}, v{ST+n}, v{ST+n} row_mirror row_mask:0xf bank_mask:0x3")
    for n in range(16): k(f"v_add_f32_dpp v{ST+n}, v{ST+16+n}, v{ST+16+n} row_mirror row_mask:0xf bank_mask:0xc")
    FILL(k, 32 - 8*(4 if len(J2) == 4 else 0) - 6*(5 if len(J2) == 3 else 0) + 4)
    for n in range(8): k(f"v_add_f32_dpp v{ST+n}, v{ST+n}, v{ST+n} row_half_mirror row_mask:0xf bank_mask:0x5")
    for n in range(8): k(f"v_add_f32_dpp v{ST+n}, v{ST+8+n}, v{ST+8+n} row_half_mirror row_mask:0xf bank_mask:0xa")
    for n in range(8): k(f"v_add_f32_dpp v{ST+n}, v{ST+n}, v{ST+n} quad_perm:[1,0,3,2] row_mask:0xf bank_mask:0xf")
    for n in range(8): k(f"v_add_f32_dpp v{ST+n}, v{ST+n}, v{ST+n} quad_perm:[2,3,0,1] row_mask:0xf bank_mask:0xf")
    k(f"""
    v_lshrrev_b32 v{tmp}, 2, v2
    s_lshl_b32 s{sT+6}, s{sE}, 1
    v_xor_b32 v{tmp}, s{sT+6}, v{tmp}
    v_lshl_add_u32 v{tmp}, v{tmp}, 6, v{vG16}
    s_lshl_b32 s{sT+6}, s{sE}, 10
    s_lshl_b32 s{sT+7}, s{sH}, 8
    s_add_u32 s{sT+6}, s{sT+6}, s{sT+7}
    v_add_u32 v{tmp}, s{sT+6}, v{tmp}
    ds_write_b128 v{tmp}, {vr(ST)} offset:{PS}
    ds_write_b128 v{tmp}, {vr(ST+4)} offset:{PS + 512}
    v_and_b32 v{tmp+1}, 31, v0
    s_lshl_b32 s{sT+6}, s{sW}, 7
    s_add_u32 s{sT+6}, s{sT+6}, {TOP}
    v_lshl_add_u32 v{tmp+1}, v{tmp+1}, 2, s{sT+6}
    s_add_u32 s{sXs}, s{sWS}, {XS_OFF}
    s_addc_u32 s{sXs+1}, s{sWS+1}, 0
    s_mov_b32 s{sXs+2}, {XS_SZ}
    s_mov_b32 s{sXs+3}, 0x20000
    s_lshl_b32 s{sT+8}, s{sRB}, 14                 ; rb*16384
    s_lshl_b32 s{sT+6}, s{sCQ}, 12
    s_add_u32 s{sT+6}, s{sT+6}, {0 if V == "B43" else 2048}
    s_add_u32 s{sT+6}, s{sT+6}, s{sT+8}
    s_lshl_b32 s{sT+7}, s{sW}, 9
    s_add_u32 s{sT+6}, s{sT+6}, s{sT+7}
    v_mov_b32 v{ST+10}, s{sNON}
    v_mov_b32 v{ST+11}, s{sNON}
    s_waitcnt lgkmcnt(0)
    s_barrier
    ds_read_b32 v{ST+8}, v{tmp+1} offset:{PS}
    ds_read_b32 v{ST+9}, v{tmp+1} offset:{PS + 512}
    ds_read_b32 v{ST+12}, v{tmp+1} offset:{PS + 1024}
    ds_read_b32 v{ST+13}, v{tmp+1} offset:{PS + 1536}
    """)
    k.lg.q = []
    for n in range(len(J1)):
        for i in range(2): k(pk("add", C1+8*n+2*i, [(C1+8*n+2*i, 0), (C1+8*n+4+2*i, 0)]))
    k(f"""
    s_waitcnt lgkmcnt(0)
    {pk("add", ST+8, [(ST+8, 0), (ST+12, 0)])}
    s_mov_b64 exec, 0xffffffff
    buffer_store_dwordx4 {vr(ST+8)}, v{vL16}, s[{sXs}:{sXs+3}], s{sT+6} offen sc1
    s_mov_b64 exec, -1
    """)
    k.lg.q = []; k.vm.issue("pub")
    def z1_unit(n, j):
        for p in range(2):
            ys = [tZ(2*p + (i >> 1), j) + 2*(i & 1) for i in range(4)]
            for i in range(4): k(pk("mul", tmp+2*i, [(C1+8*n+2*(i & 1), 0), (AL+4+2*p+(i >> 1), 1)]))
            for i in range(4): k(pk("fma", ys[i], [(ys[i], 0), (AL+2*p+(i >> 1), 1), (tmp+2*i, 0)]))
            gelu_pk(k, ys, c, tmp)
            for i in range(4): k(f"v_cvt_pk_bf16_f32 v{tZ(2*p, j)+i}, v{ys[i]}, v{ys[i]+1}")
            FILL(k, 7)
    NZA = OPT.get("nza", 2)
    for n, j in list(enumerate(J1))[:NZA]: z1_unit(n, j)
    k.stamp(5)
    G = T+40
    k(f"""
    s_lshl_b32 s{sT+6}, s{sH}, 10
    s_add_u32 s{sT+6}, s{sT+6}, s{sT+8}
    s_add_u32 s{sT+7}, s{sT+6}, 4096
    s_add_u32 s{sT+8}, s{sT+6}, 8192
    s_add_u32 s{sT+9}, s{sT+6}, 12288
    s_mov_b32 s{sT+10}, 0
    {lab}_poll:
    """)
    for cidx in range(8): k(f"buffer_load_dwordx4 {vr(G+4*cidx)}, v{vL16}, s[{sXs}:{sXs+3}], s{sT+6+(cidx>>1)} offen offset:{(cidx&1)*2048} sc1")
    k(f"s_add_u32 s{sT+10}, s{sT+10}, 1\ns_waitcnt vmcnt(0)")
    for cidx in range(8): k(f"v_xor_b32 v{G+4*cidx+3}, s{sNON}, v{G+4*cidx+2}")
    k(f"""
    v_or3_b32 v{G+3}, v{G+3}, v{G+7}, v{G+11}
    v_or3_b32 v{G+15}, v{G+15}, v{G+19}, v{G+23}
    v_or3_b32 v{G+3}, v{G+3}, v{G+27}, v{G+31}
    v_or_b32 v{G+3}, v{G+3}, v{G+15}
    v_cmp_ne_u32 vcc, 0, v{G+3}
    s_nop 3
    s_cmp_gt_u32 s{sT+10}, 100000
    s_cbranch_scc1 {lab}_got
    s_cbranch_vccnz {lab}_poll
    {lab}_got:
    """)
    k(f"""
    s_add_u32 s{sOr}, s{sWS}, {Z1L_OFF}
    s_addc_u32 s{sOr+1}, s{sWS+1}, 0
    s_mov_b32 s{sOr+2}, {Z1L_SZ}
    s_mov_b32 s{sOr+3}, 0x20000
    s_mov_b32 s{sPr}, s{sWS}
    s_mov_b32 s{sPr+1}, s{sWS+1}
    s_mov_b32 s{sPr+2}, {Z2F_SZ}
    s_mov_b32 s{sPr+3}, 0x20000
    s_lshl_b32 s{sT}, s{sRB}, 1
    s_add_u32 s{sT}, s{sT}, s{sH}
    s_mul_i32 s{sT}, s{sT}, 112
    s_mul_i32 s{sT+2}, s{sCQ}, 14
    s_add_u32 s{sT}, s{sT}, s{sT+2}
    s_mul_i32 s{sT+2}, s{sE}, 56
    s_add_u32 s{sT+5}, s{sT}, s{sT+2}
    s_sub_u32 s{sT+6}, s{sT}, s{sT+2}
    s_add_u32 s{sT+6}, s{sT+6}, 56
    s_lshl_b32 s{sT+5}, s{sT+5}, 10
    s_lshl_b32 s{sT+6}, s{sT+6}, 10
    s_lshl_b32 s{sT+1}, s{sT+1}, 4                 ; 4e*1024
    s_lshl_b32 s{sT+4}, s{sT+4}, 4
    s_add_u32 s{sT+4}, s{sT+4}, 8192               ; (8+3e)*1024
    s_add_u32 s{sT+7}, s{sT+5}, s{sT+1}
    s_add_u32 s{sT+8}, s{sT+6}, s{sT+1}
    s_add_u32 s{sT+9}, s{sT+5}, s{sT+4}
    s_add_u32 s{sT+10}, s{sT+6}, s{sT+4}
    """)
    so = lambda j, p: (sT+7+p if j < 4 else sT+9+p, (j if j < 4 else j-4)*1024)
    for i in range(4): k(pk("add", G+8*i, [(G+8*i, 0), (G+8*i+4, 0)]))
    for i in range(2): k(pk("add", G+16*i, [(G+16*i, 0), (G+16*i+8, 0)]))
    k(pk("add", G, [(G, 0), (G+16, 0)]))
    k(f"""
    v_mov_b32 v{G+2}, {f2h(1/896)}
    v_mul_f32 v{G}, v{G}, v{G+2}
    v_mul_f32 v{G+1}, v{G+1}, v{G+2}
    v_fma_f32 v{G+1}, -v{G}, v{G}, v{G+1}
    v_max_f32 v{G+1}, 0, v{G+1}
    """)
    bf16_round(k, G+1, G+1); k(f"v_add_f32 v{G+1}, {f2h(1e-5)}, v{G+1}"); bf16_round(k, G+1, G+1)
    k(f"v_sqrt_f32 v{G+1}, v{G+1}"); bf16_round(k, G, G); bf16_round(k, G+1, G+1)
    k(f"""
    v_rcp_f32 v{G+1}, v{G+1}
    s_lshl_b32 s{sT}, s{sW}, 9
    s_add_u32 s{sT+2}, s{sT}, {TOP}
    v_lshl_add_u32 v{G+2}, v0, 2, s{sT+2}
    v_mul_f32 v{G}, -v{G}, v{G+1}
    ds_write_b32 v{G+2}, v{G+1} offset:{NT}
    ds_write_b32 v{G+2}, v{G} offset:{NT + 256}
    s_add_u32 s{sT+2}, s{sT}, s{sT+3}
    s_sub_u32 s{sT}, s{sT}, s{sT+3}
    v_add_u32 v{ad}, s{sT+2}, v{vG16}
    v_add_u32 v{ad+1}, s{sT}, v{vG16}
    """)
    k("s_waitcnt lgkmcnt(0)"); k.lg.q = []; k.vm.q = []
    NR, NM = T+48, T+64
    for a in range(4):
        k.ds(f"ds_read_b128 {vr(NR + a*4)}, v{ad + (a>>1)} offset:{NT + a*64}", f"n{a>>1}")
        k.ds(f"ds_read_b128 {vr(NM + a*4)}, v{ad + (a>>1)} offset:{NT + 256 + a*64}", f"n{a>>1}")
    for p in range(2):
        k.wait(lg=f"n{p}")
        for j in J2:
            ys = [tZ(2*p + (i >> 1), j) + 2*(i & 1) for i in range(4)]
            ab = [(2*p + (i >> 1))*4 + 2*(i & 1) for i in range(4)]
            for i in range(4): k(pk("fma", ys[i], [(ys[i], 0), (NR+ab[i], 0), (NM+ab[i], 0)]))
            for i in range(4): k(f"v_cvt_pk_bf16_f32 v{tZ(2*p, j)+i}, v{ys[i]}, v{ys[i]+1}")
            k(f"buffer_store_dwordx4 {vr(tZ(2*p, j))}, v{vL16}, s[{sPr}:{sPr+3}], s{so(j,p)[0]} offen offset:{so(j,p)[1]} {st_pol}")
    for n, j in list(enumerate(J1))[NZA:]: z1_unit(n, j)
    z2flag(k, V)
    for j in J1:
        for p in range(2): k.vmem(f"buffer_store_dwordx4 {vr(tZ(2*p, j))}, v{vL16}, s[{sOr}:{sOr+3}], s{so(j,p)[0]} offen offset:{so(j,p)[1]} {st_pol}", "p1st")

def epi_attn(k, lab, st_pol, tQ, tK, tV):
    vI4, vG16 = T+3, T+7
    AL, BL = T+8, T+18
    CQ, CK, CV = T+28, T+32, T+27
    QP, KP, VP = T+36, T+52, T+70
    tmp = T+88
    MC, MP = T+96, T+98
    cS, cN = T, T+1
    RA = T+100
    k(f"v_add_u32 v{T+4}, s{sT+1}, v{vG16}\nv_add_u32 v{T+5}, s{sT+1}, v{vI4}")
    k.ds(f"ds_read_b128 {vr(CQ)}, v{T+4} offset:{TC}", "t")
    k.ds(f"ds_read_b128 {vr(CK)}, v{T+4} offset:{TC + 64}", "t")
    k.ds(f"ds_read_b32 v{CV}, v{T+5} offset:{TC + 128}", "t")
    for a in range(9):
        k.ds(f"ds_read_b32 v{AL+a}, v{vI4} offset:{TA + a*64}", f"l{a}")
        k.ds(f"ds_read_b32 v{BL+a}, v{vI4} offset:{TB + a*64}", f"l{a}")
    k(f"""
    v_and_b32 v{tmp}, 1, v2
    v_lshl_add_u32 v{tmp+1}, v1, 2, v{tmp}
    v_cmp_le_u32 s[{sM+2}:{sM+3}], v{tmp+1}, v2
    v_add_u32 v{tmp+1}, 2, v{tmp+1}
    v_cmp_le_u32 s[{sM+4}:{sM+5}], v{tmp+1}, v2
    v_lshlrev_b32 v{tmp}, 4, v{tmp}
    v_mov_b32 v{tmp+1}, 0xffff
    v_lshlrev_b32 v{tmp}, v{tmp}, v{tmp+1}
    v_cndmask_b32 v{MC}, 0, v{tmp}, s[{sM+2}:{sM+3}]
    v_cndmask_b32 v{MP}, v{tmp}, 0, s[{sM+2}:{sM+3}]
    v_cndmask_b32 v{MC+1}, 0, v{tmp}, s[{sM+4}:{sM+5}]
    v_cndmask_b32 v{MP+1}, v{tmp}, 0, s[{sM+4}:{sM+5}]
    v_mov_b32 v{cS}, {f2h(0.25*LOG2E)}
    v_mov_b32 v{cN}, {f2h(-1e30)}
    s_cmp_eq_u32 s{sRB}, 0
    s_cselect_b64 s[{sM+6}:{sM+7}], -1, 0
    """)
    for a in range(9):
        k.wait(lg=f"l{a}")
        tiles = [(tK(a), CK, KP+2*a)] + ([(tQ(a), CQ, QP+2*(a-1))] if a else [])
        for n, (y, cs, d) in enumerate(tiles):
            for i in range(2): k(pk("mul", tmp+4*n+2*i, [(cs+2*i, 0), (BL+a, 1)]))
        for n, (y, cs, d) in enumerate(tiles):
            for i in range(2): k(pk("fma", y+2*i, [(y+2*i, 0), (AL+a, 1), (tmp+4*n+2*i, 0)]))
        for n, (y, cs, d) in enumerate(tiles):
            for i in range(2): k(f"v_cvt_pk_bf16_f32 v{d+i}, v{y+2*i}, v{y+2*i+1}")
        FILL(k, 2)
    Sc = lambda a: tQ(a); Sp = lambda a: tK(a)
    RV = 256
    buf = [T+8, T+16, T+100]
    def rd(a):
        b = buf[a % 3]
        k.ds(f"ds_read_b128 {vr(b)}, v{vG16} offset:{TA + a*64}", f"v{a}")
        k.ds(f"ds_read_b128 {vr(b+4)}, v{vG16} offset:{TB + a*64}", f"v{a}")
    rd(0); rd(1)
    for a in range(1, 9):
        k(f"v_mfma_f32_16x16x16_bf16 {vr(Sc(a))}, {vr(KP+2*a, 2)}, {vr(QP+2*(a-1), 2)}, 0")
        k(f"v_mfma_f32_16x16x16_bf16 {vr(Sp(a))}, {vr(KP+2*(a-1), 2)}, {vr(QP+2*(a-1), 2)}, 0")
    for a in range(9):
        if a + 2 < 9: rd(a + 2)
        k.wait(lg=f"v{a}")
        b = buf[a % 3]; y = tV(a)
        for i in range(2): k(pk("mul", tmp+2*i, [(b+4+2*i, 0), (CV, 1)]))
        for i in range(2): k(pk("fma", y+2*i, [(b+2*i, 0), (y+2*i, 0), (tmp+2*i, 0)]))
        for i in range(2): k(f"v_cvt_pk_bf16_f32 v{VP+2*a+i}, v{y+2*i}, v{y+2*i+1}")
        FILL(k, 2)
    U = range(1, 9)
    X = lambda a: tV(a)
    for a in U:
        for v in range(2):
            k(f"v_cndmask_b32 v{X(a)+v}, v{Sc(a)+2*v}, v{Sc(a)+2*v+1}, s[{sM}:{sM+1}]")
            k(f"v_cndmask_b32 v{X(a)+2+v}, v{Sp(a)+2*v}, v{Sp(a)+2*v+1}, s[{sM}:{sM+1}]")
    for v in range(2): k(f"v_cndmask_b32 v{X(1)+2+v}, v{X(1)+2+v}, v{cN}, s[{sM+6}:{sM+7}]")
    for a in U:
        for v in range(2): k(f"v_cndmask_b32 v{X(a)+v}, v{X(a)+2+v}, v{X(a)+v}, s[{sM+2+2*v}:{sM+3+2*v}]")
    def allred(op):
        for sw in ("v_permlane16_swap_b32", "v_permlane32_swap_b32"):
            for a in U: k(f"v_mov_b32 v{X(a)+3}, v{X(a)+2}")
            for a in U: k(f"{sw} v{X(a)+2}, v{X(a)+3}")
            for a in U: k(f"{op} v{X(a)+2}, v{X(a)+2}, v{X(a)+3}")
            FILL(k, 4)
    FILL(k, 6)
    for a in U: k(f"v_max_f32 v{X(a)+2}, v{X(a)}, v{X(a)+1}")
    allred("v_max_f32")
    for a in U: k(f"v_pk_add_f32 {P(X(a))}, {P(X(a))}, {P(X(a)+2)} op_sel_hi:[1,0] neg_lo:[0,1] neg_hi:[0,1]")
    for a in U: k(pk("mul", X(a), [(X(a), 0), (cS, 1)]))
    for a in U:
        for v in range(2): k(f"v_exp_f32 v{X(a)+v}, v{X(a)+v}")
    for a in U: k(f"v_add_f32 v{X(a)+2}, v{X(a)}, v{X(a)+1}")
    allred("v_add_f32")
    for a in U: k(f"v_rcp_f32 v{X(a)+2}, v{X(a)+2}")
    for a in U: k(pk("mul", X(a), [(X(a), 0), (X(a)+2, 1)]))
    for a in U:
        for v in range(2): k(f"v_cvt_pk_bf16_f32 v{X(a)+v}, v{X(a)+v}, v{X(a)+v}")
    for a in U:
        for v in range(2): k(f"v_and_b32 v{Sc(a)+v}, v{X(a)+v}, v{MP+v}\nv_and_b32 v{Sc(a)+2+v}, v{X(a)+v}, v{MC+v}")
    for a in U: k(f"v_mfma_f32_16x16x32_bf16 {vr(Sp(a))}, {vr(VP+2*(a-1))}, {vr(Sc(a))}, 0")
    FILL(k, 6)
    OP = T+8
    k(f"""
    s_lshl_b32 s{sT}, s{sW}, 12
    s_add_u32 s{sT}, s{sT}, {TOP}
    v_add_u32 v{tmp}, s{sT}, v{vL16}
    s_and_b32 s{sT+1}, s{sW}, 2
    s_lshl_b32 s{sT+1}, s{sT+1}, 12
    s_and_b32 s{sT+2}, s{sW}, 1
    s_lshl_b32 s{sT+3}, s{sT+2}, 11
    s_add_u32 s{sT+1}, s{sT+1}, s{sT+3}
    s_add_u32 s{sT+1}, s{sT+1}, {TOP}
    v_add_u32 v{tmp+1}, s{sT+1}, v{vL16}
    s_add_u32 s{sOr}, s{sWS}, {A3_OFF}
    s_addc_u32 s{sOr+1}, s{sWS+1}, 0
    s_mov_b32 s{sOr+2}, {A3_SZ}
    s_mov_b32 s{sOr+3}, 0x20000
    s_lshl_b32 s{sT}, s{sRB}, 1
    s_add_u32 s{sT}, s{sT}, s{sT+2}
    s_mul_i32 s{sT}, s{sT}, 176
    s_lshl_b32 s{sT+1}, s{sSUB}, 1
    s_add_u32 s{sT}, s{sT}, s{sT+1}
    s_lshr_b32 s{sT+1}, s{sW}, 1
    s_add_u32 s{sT}, s{sT}, s{sT+1}
    s_lshl_b32 s{sT}, s{sT}, 10
    s_add_u32 s{sT+1}, s{sT}, {44*1024}
    s_add_u32 s{sT+2}, s{sT}, {88*1024}
    s_add_u32 s{sT+3}, s{sT}, {132*1024}
    """)
    for a in U:
        for d in range(2): k(f"v_cvt_pk_bf16_f32 v{OP+2*(a-1)+d}, v{Sp(a)+2*d}, v{Sp(a)+2*d+1}")
    k.stamp(4)
    for n in range(4): k.ds(f"ds_write_b128 v{tmp}, {vr(OP+4*n)} offset:{OX + n*1024}", "ow")
    k("s_waitcnt lgkmcnt(0)\ns_barrier"); k.lg.q = []
    for n in range(4):
        o = OX + (n >> 1)*1024 + (n & 1)*8
        k.ds(f"ds_read_b64 {vr(OP+16+4*n, 2)}, v{tmp+1} offset:{o}", f"o{n}")
        k.ds(f"ds_read_b64 {vr(OP+18+4*n, 2)}, v{tmp+1} offset:{o + 4096}", f"o{n}")
    for n in range(4):
        k.wait(lg=f"o{n}")
        k.vmem(f"buffer_store_dwordx4 {vr(OP+16+4*n)}, v{vL16}, s[{sOr}:{sOr+3}], s{sT+n} offen {st_pol}", "p1st")
    k.stamp(5)
```

```python
from asmlib import *
from layout import *
from f1 import pk, P, vL16
REST = 0
WREG = 33792
LDS2 = 4*WREG
RING = 1024
sAr, sZ2, sZ1, sA3, sBs = sR0, sR1, sR2, sR3, sR4
sRB2, sCB, sReg, sBo = 81, 82, 73, 11
sAo = [83, 27, 58, 72]
sLand = 101
sU = sT + 6
vAd = [23, 31]; vB1 = 6; vAr = [252, 253, 254, 255]; vRW = 12; vRR = [13, 14, 15]; BS = 18; vZ = 19
Z1 = 18
ACC = 32
RAW = 144
Z1 = 176
T = 192
BR = 256
AS = 256 + 112
def ASr(s): return 256 + 160 + 16*s if s < 6 else 256 + 112 + 16*(s - 6)

def setup_v(k):
    k(f"""
    v_and_b32 v3, 7, v0
    v_xor_b32 v3, v3, v1
    v_lshlrev_b32 v3, 4, v3
    v_lshrrev_b32 v7, 3, v0
    v_lshl_add_u32 v{vAd[0]}, v7, 12, v3
    v_xor_b32 v{vAd[1]}, 64, v{vAd[0]}
    v_add_u32 v{vAd[1]}, 0x8000, v{vAd[1]}
    """)
def ids(k, sRB2=sRB2, sCB=sCB):
    k(f"""
    s_and_b32 s{sU}, s2, 7
    s_lshr_b32 s{sU+1}, s2, 3
    s_lshr_b32 s{sRB2}, s{sU}, 1
    s_lshl_b32 s{sRB2}, s{sRB2}, 3
    s_lshr_b32 s{sU+2}, s{sU+1}, 2
    s_add_u32 s{sRB2}, s{sRB2}, s{sU+2}
    s_and_b32 s{sCB}, s{sU}, 1
    s_lshl_b32 s{sCB}, s{sCB}, 2
    s_and_b32 s{sU+2}, s{sU+1}, 3
    s_add_u32 s{sCB}, s{sCB}, s{sU+2}
    """)
def setup(k):
    sRB2 = sT + 4
    ids(k, sT + 4, sT + 5)
    for u in range(4):
        k(f"""
        s_xor_b32 s{sU}, s{sW}, {u}
        s_lshl_b32 s{sU+1}, s{sRB2}, 2
        s_add_u32 s{sU}, s{sU}, s{sU+1}
        s_lshl_b32 s{sU}, s{sU}, 16
        s_lshl_b32 s{sU+1}, s{sW}, 10
        s_add_u32 s{sAo[u]}, s{sU}, s{sU+1}
        """)

def gA(sl, m, a_pol="", sAr=sAr):
    return [("i", f"s_add_u32 m0, s{sReg}, {RING + (sl%4)*8192 + m*1024 - 128*sl}"), ("i", "s_nop 0"),
            ("v", f"buffer_load_dwordx4 v{vAd[m&1]}, s[{sAr}:{sAr+3}], s{sAo[m>>1]} offen offset:{128*sl} {a_pol} lds", f"A{sl}")]
def R(s, dst=None):
    d = RAW + (s&1)*16 if dst is None else dst
    return [("d", f"ds_read_b64 {vr(d + u*4 + 2*j2, 2)}, v{vAr[2*(s&1) + j2]} offset:{RING + ((s>>1)%4)*8192 + u*2048}", f"R{s}") for u in range(4) for j2 in range(2)]
def read_bases(k, sReg=sReg):
    k(f"""
    v_xor_b32 v3, v2, v1
    v_lshrrev_b32 v3, 1, v3                 ; (i>>1) ^ (g>>1)
    v_lshlrev_b32 v3, 4, v3
    v_lshl_add_u32 v3, v2, 7, v3
    v_and_b32 v7, 1, v1
    v_lshl_add_u32 v3, v7, 3, v3
    v_add_u32 v{vAr[0]}, s{sReg}, v3
    v_xor_b32 v{vAr[1]}, 32, v{vAr[0]}
    v_xor_b32 v{vAr[2]}, 64, v{vAr[0]}
    v_xor_b32 v{vAr[3]}, 96, v{vAr[0]}
    """)
def early(k):
    setup(k)
    k.srd(sAr, sWSP, 2048*4096)
def land_groups(sSt, sXl, sA):
    G = [[f"s_add_u32 m0, s{sA}, {m*1024}", f"buffer_load_dwordx4 v{vAd[m&1]}, s[{sAr}:{sAr+3}], s{sAo[m>>1]} offen lds"] + ([f"s_add_u32 s{sAo[m>>1]}, s{sAo[m>>1]}, 128"] if m & 1 else []) for m in range(8)]
    G[0] = [f"s_lshl_b32 s{sA}, s{sXl}, 1", f"s_add_u32 s{sA}, s{sA}, s{sSt}"] + G[0]
    return G
def stage_groups(k, STG):
    k(f"s_lshl_b32 s{sLand}, s{sW}, 13\ns_mul_i32 s{sReg}, s{sW}, {WREG}")
    read_bases(k, sLand)
    for u in range(4): k(f"s_sub_u32 s{sAo[u]}, s{sAo[u]}, 384")
    adv = lambda d: [("i", f"v_add_u32 v{r}, {d}, v{r}") for r in vAr]
    def rdl(sl, off):
        L = [("d", f"ds_read_b64 {vr(ASr(2*sl + sp) + u*4 + 2*j2, 2)}, v{vAr[2*sp + j2]} offset:{off + u*2048}", f"L{sl}") for sp in range(2) for u in range(4) for j2 in range(2)]
        return [[("w", f"E{sl}", None)] + L[:8], L[8:]]
    r1, r2, r0 = rdl(1, 0), rdl(2, STG), rdl(0, STG)
    pre = [adv(STG) + r0[0], r0[1] + adv(-STG), r1[0], r1[1], r2[0], r2[1] + [("i", f"s_sub_u32 s{sLand}, s{sReg}, s{sLand}")] + [("i", f"v_add_u32 v{r}, s{sLand}, v{r}") for r in vAr]]
    L3 = R(6, ASr(6)) + R(7, ASr(7))
    g7 = [gA(7, m) for m in range(8)]; g7[0] = [("w", None, "R7")] + g7[0]
    post = ([gA(3, m) for m in range(8)] + [gA(4, m) for m in range(8)] + [gA(5, m) for m in range(4)] + [[("w", "A3", None)] + L3[:8], L3[8:]]
            + [gA(5, m) for m in range(4, 8)] + [gA(6, m) for m in range(8)] + g7)
    return pre, post

def stage_groups_B(k):
    setup(k)
    k(f"s_mul_i32 s{sLand}, s{sW}, 14336\ns_add_u32 s{sLand}, s{sLand}, {98304 + 1024}\ns_mul_i32 s{sReg}, s{sW}, {WREG}")
    read_bases(k, sLand)
    k.srd(sR2, sWSP, 2048*4096)
    def dm(h):
        sl, hf, buf = h >> 1, h & 1, h % 3
        G = []
        for m in range(4*hf, 4*hf + 4):
            G.append([("i", f"s_add_u32 m0, s{sLand}, {buf*4096 + (m&3)*1024 - 128*sl}"), ("i", "s_nop 0"),
                      ("v", f"buffer_load_dwordx4 v{vAd[m&1]}, s[{sR2}:{sR2+3}], s{sAo[m>>1]} offen offset:{128*sl} lds", f"H{h}")])
        if h >= 3: G[0] = [("w", None, f"L{h-3}")] + G[0]
        return G
    def rd(h):
        sl, hf, buf = h >> 1, h & 1, h % 3
        return [("w", f"H{h}", None)] + [("d", f"ds_read_b64 {vr(ASr(2*sl + sp) + (2*hf + u)*4 + 2*j2, 2)}, v{vAr[2*sp + j2]} offset:{buf*4096 + u*2048}", f"L{h}")
                                         for sp in range(2) for u in range(2) for j2 in range(2)]
    G = dm(0) + dm(1) + dm(2)[:2] + [rd(0)] + dm(2)[2:]
    for h in range(1, 8):
        d = dm(h + 2) if h + 2 < 8 else []
        G += d[:2] + [rd(h)] + d[2:]
    G[-1] = G[-1] + [("i", f"s_sub_u32 s{sLand}, s{sReg}, s{sLand}")] + [("i", f"v_add_u32 v{r}, s{sLand}, v{r}") for r in vAr]
    return G
def stage_groups_B2(k):
    k.srd(sAr, sWSP, 2048*4096)
    return [gA(sl, m) for sl in range(4, 7 if REST else 8) for m in range(8)]

def gen_p2(k, name, wait_z2, done, st_pol="sc1", a_pol="", h_pol="", DB=4, pfb=0, tail=None, mid=None, pre=None, rest=None):
    NS = 16
    vB = [vL16, vB1]
    ids(k)
    k(f"v_add_u32 v{vB1}, 4096, v{vL16}\ns_mul_i32 s{sBo}, s{sW}, {16*56*1024}\ns_mul_i32 s{sT}, s{sCB}, 7168\ns_add_u32 s{sBo}, s{sBo}, s{sT}")
    if not wait_z2: k.srd(sAr, sWSP, 2048*4096)
    k.srd(sZ2, sWS, Z2F_SZ)
    def gB(s, j):
        g = [("i", f"s_add_u32 s{sT}, s{sBo}, {s*57344}")] if j == 0 else []
        return g + [("v", f"buffer_load_dwordx4 {vr(BR + (s%DB)*28 + j*4)}, v{vB[j//4]}, s[{sZ2}:{sZ2+3}], s{sT} offen offset:{(j%4)*1024} {h_pol}", f"B{s}")]
    def emit(item):
        if item[0] == "i": k(item[1])
        elif item[0] == "v": k.vmem(item[1], item[2])
        elif item[0] == "d": k.ds(item[1], item[2])
        elif item[0] == "w": k.wait(vm=item[1], lg=item[2])
    def em(gs):
        for g in gs:
            for it in g: emit(it)
    if not wait_z2: em([gA(0, m) for m in range(8)] + [gB(0, j) for j in range(7)])
    k(f"""
    s_add_u32 s{sZ1}, s{sWS}, {Z1L_OFF}
    s_addc_u32 s{sZ1+1}, s{sWS+1}, 0
    s_mov_b32 s{sZ1+2}, {Z1L_SZ}
    s_mov_b32 s{sZ1+3}, 0x20000
    s_add_u32 s{sA3}, s{sWS}, {A3_OFF}
    s_addc_u32 s{sA3+1}, s{sWS+1}, 0
    s_mov_b32 s{sA3+2}, {A3_SZ}
    s_mov_b32 s{sA3+3}, 0x20000
    """)
    k.srd(sBs, sBSP, 4096)
    if not wait_z2: read_bases(k)
    k(f"""
    v_add_u32 v{vRW}, s{sReg}, v{vL16}
    """)
    for u in range(1, 4):
        k(f"""
        s_xor_b32 s{sT+1}, s{sW}, {u}
        s_mul_i32 s{sT+1}, s{sT+1}, {WREG}
        s_add_u32 s{sT+1}, s{sT+1}, {(u-1)*7168}
        v_add_u32 v{vRR[u-1]}, s{sT+1}, v{vL16}
        """)
    k(f"""
    s_lshl_b32 s{sT+4}, s{sRB2}, 1
    s_lshr_b32 s{sT+1}, s{sW}, 1
    s_add_u32 s{sT+4}, s{sT+4}, s{sT+1}
    s_mul_i32 s{sT+4}, s{sT+4}, 56
    s_mul_i32 s{sT+1}, s{sCB}, 7
    s_add_u32 s{sT+4}, s{sT+4}, s{sT+1}
    s_lshl_b32 s{sT+4}, s{sT+4}, 10
    s_and_b32 s{sT+1}, s{sW}, 1
    s_lshl_b32 s{sT+1}, s{sT+1}, 3
    s_add_u32 s{sT+2}, s{sT+4}, s{sT+1}
    s_lshl_b32 s{sT+3}, s{sRB2}, 2
    s_add_u32 s{sT+3}, s{sT+3}, s{sW}
    s_mul_i32 s{sT+4}, s{sT+3}, 44
    s_lshl_b32 s{sT+3}, s{sT+3}, 5
    s_mul_i32 s{sT+1}, s{sCB}, 7
    s_lshr_b32 s{sT+1}, s{sT+1}, 1
    s_add_u32 s{sT+4}, s{sT+4}, s{sT+1}
    s_add_u32 s{sT+4}, s{sT+4}, 16
    s_lshl_b32 s{sT+4}, s{sT+4}, 10
    v_lshlrev_b32 v{vZ}, 1, v2
    """)
    if pfb:
        for i in range(2):
            k(f"""
            v_add_u32 v3, {64*i}, v0
            v_mul_u32_u24 v7, 147, v3
            v_lshrrev_b32 v7, 10, v7
            v_mul_u32_u24 v{24+i}, {57344 - 7168}, v7
            v_lshl_add_u32 v{24+i}, v3, 10, v{24+i}
            """)
        k(f"v_cmp_gt_u32 vcc, {(16-DB+1)*7 - 64}, v0\nv_cndmask_b32 v25, -1, v25, vcc")
    k.vmem(f"buffer_load_ushort v{BS}, v{vZ}, s[{sBs}:{sBs+3}], s{sT+3} offen", "bs")
    if wait_z2:
        if pre: pre(k)
        wait_z2(k)
        em([gB(s, j) for s in range(DB - 1) for j in range(7)])
        if pfb:
            k(f"""
            s_and_b32 s{sT}, s{sRB2}, 7
            s_lshl_b32 s{sT}, s{sT}, 7
            s_add_u32 s{sT}, s{sT}, s{sBo}
            s_add_u32 s{sT}, s{sT}, {(DB-1)*57344}
            """)
            for i in range(2):
                k.vmem(f"buffer_load_dword v31, v{24+i}, s[{sZ2}:{sZ2+3}], s{sT} offen {h_pol}", "pfb")
        pend = []
    else:
        pend = [gB(1, j) for j in range(7)] + [gA(1, m) for m in range(8)] + [gB(2, j) for j in range(7)] + [gA(2, m) for m in range(8)]
        em(pend[:15]); pend = pend[15:]
    k.stamp(1)
    if not wait_z2:
        k.wait(vm="A0")
        for it in R(0): emit(it)
    Aop = lambda s: ASr(s) if (wait_z2 and s < 8) else RAW + (s&1)*16
    for s in range(NS):
        if s == 1: k.stamp(2)
        MF = []
        for j in range(7):
            for u in range(4):
                a = ACC + (u*7 + j)*4
                MF.append(f"v_mfma_f32_16x16x32_bf16 {vr(a)}, {vr(BR + (s%DB)*28 + j*4)}, {vr(Aop(s) + u*4)}, {vr(a) if s else '0'}")
        slots = [[] for _ in range(29)]
        slots[0].append(("w", f"B{s}", f"R{s}"))
        if s + 1 < NS and not (wait_z2 and s + 1 < 8):
            slots[1].append(("w", f"A{(s+1)>>1}", None))
            for u, it in enumerate(R(s + 1)): slots[1 + u].append(it)
        G = list(pend); pend = []
        if s + DB - 1 < NS: G += [gB(s + DB - 1, j) for j in range(7)]
        sl = (s >> 1) + 3; hf = s & 1
        if sl < 8 and not wait_z2:
            for m in range(4*hf, 4*hf + 4): G.insert(min(len(G), len(G) - 7 + 2*(m % 4) + 1) if len(G) >= 7 else len(G), gA(sl, m))
        if s == 13:
            G += [[("v", f"buffer_load_dwordx2 {vr(Z1 + 2*j, 2)}, v{vB[j//4]}, s[{sZ1}:{sZ1+3}], s{sT+2} offen offset:{(j%4)*1024} {h_pol}", "z1")] for j in range(7)]
        if mid: G = G + mid[2](s)
        if rest and s < 4:
            G = G + rest[s*len(rest)//4:(s + 1)*len(rest)//4]
        if s == 8 and mid: G = G + [mid[0](k)]
        if s == 13 and mid: slots[0] = [("w", "fz1", None)] + slots[0] + mid[1](k)
        for n, g in enumerate(G): slots[1 + n*27//max(1, len(G))] += g
        for i, m in enumerate(MF):
            for it in slots[i]: emit(it)
            k(m)
        for it in slots[28]: emit(it)
    k.stamp(3)
    TG = tail(k) if tail else []
    k.wait(vm="z1")
    for u in range(1, 4):
        for j in range(7):
            if TG: em([TG.pop(0)])
            k.ds(f"ds_write_b128 v{vRW}, {vr(ACC + (u*7+j)*4)} offset:{(u-1)*7168 + j*1024}", "rw")
    ZU = 192
    for j in range(7):
        for d in range(2):
            k(f"v_lshlrev_b32 v{ZU + j*4 + 2*d}, 16, v{Z1 + 2*j + d}\nv_and_b32 v{ZU + j*4 + 2*d + 1}, 0xffff0000, v{Z1 + 2*j + d}")
    k(f"v_lshlrev_b32 v{BS}, 16, v{BS}")
    for j in range(7):
        for d in range(2): k(pk("add", ACC + j*4 + 2*d, [(ACC + j*4 + 2*d, 0), (BS, 1)]))
    k("s_waitcnt lgkmcnt(0)\ns_barrier"); k.lg.q = []
    k.stamp(4)
    Pp = ACC + 28
    for j in range(7):
        for u in range(3):
            k.ds(f"ds_read_b128 {vr(Pp + j*12 + u*4)}, v{vRR[u]} offset:{j*1024}", f"p{j}")
    H = 224
    for j in range(7):
        em(TG[:2]); TG = TG[2:]
        k.wait(lg=f"p{j}")
        p = Pp + j*12; g = ACC + j*4
        for d in range(2): k(pk("add", g+2*d, [(g+2*d, 0), (p+2*d, 0)]))
        for d in range(2): k(pk("add", p+4+2*d, [(p+4+2*d, 0), (p+8+2*d, 0)]))
        for d in range(2): k(pk("add", g+2*d, [(g+2*d, 0), (p+4+2*d, 0)]))
        for d in range(2): k(pk("mul", g+2*d, [(g+2*d, 0), (ZU+j*4+2*d, 0)]))
        for d in range(2): k(f"v_cvt_pk_bf16_f32 v{H+2*j+d}, v{g+2*d}, v{g+2*d+1}")
    k(f"s_bitcmp1_b32 s{sCB}, 0\ns_cbranch_scc1 L_{name}_odd")
    for q in range(4): k.vm.issue("hs")
    for q in range(3): k(f"buffer_store_dwordx4 {vr(H+4*q)}, v{vL16}, s[{sA3}:{sA3+3}], s{sT+4} offen offset:{q*1024} {st_pol}")
    k(f"buffer_store_dwordx2 {vr(H+12, 2)}, v{vL16}, s[{sA3}:{sA3+3}], s{sT+4} offen offset:3072 {st_pol}")
    k(f"s_branch L_{name}_hdone\nL_{name}_odd:")
    k(f"buffer_store_dwordx2 {vr(H, 2)}, v{vL16}, s[{sA3}:{sA3+3}], s{sT+4} offen offset:8 {st_pol}")
    for q in range(3): k(f"buffer_store_dwordx4 {vr(H+2+4*q)}, v{vL16}, s[{sA3}:{sA3+3}], s{sT+4} offen offset:{(q+1)*1024} {st_pol}")
    k(f"L_{name}_hdone:")
    done(k)
```

```python
from asmlib import *
from layout import *
from f1 import pk, P, vL16, TOP
from f2 import WREG, sRB2, sCB, sReg, sA3
sWoR, sWuR, sXr3, sOr3 = sR0, sR1, sR2, sR4
vWd, vT, vRW, vRR, vX = 4, [5, 7], 8, [9, 10], 11
vA = [vL16, 6]
XD = 12
ACC = 32
BF = 96
AO = 256 + 112
AH = 256
sAo = [3, 10, 100, 78]; sXo = [79, 80]; sSo = [74, 75]; sTop = 76; sNB = 77


def stage(s):
    if s < 3: return (sReg, 21504 + s*4096)
    if s == 3: return (sTop, 0)
    if s < 9: return (sReg, (s - 4)*4096)
    return (sReg, 21504 + (s - 9)*4096)
def gW(s):
    srd = sWoR if s < 4 else sWuR
    b, o = stage(s)
    G = []
    for q in range(2):
        for m2 in range(2):
            G.append([("i", f"s_add_u32 m0, s{b}, {o + q*2048 + m2*1024 - 64*q}"), ("i", "s_nop 0"),
                      ("v", f"buffer_load_dwordx4 v{vWd}, s[{srd}:{srd+3}], s{sSo[m2]} offen offset:{64*q} lds", f"W{s}")])
    G[-1].append(("i", f"s_add_u32 s{sSo[0]}, s{sSo[0]}, 32768\ns_add_u32 s{sSo[1]}, s{sSo[1]}, 32768"))
    return G
def early_setup(k):
    k(f"""
    v_and_b32 v22, 1, v1
    v_lshlrev_b32 v22, 1, v22
    v_and_b32 v3, 3, v0
    v_xor_b32 v22, v3, v22
    v_lshlrev_b32 v22, 4, v22
    v_lshrrev_b32 v23, 2, v0
    v_lshl_add_u32 v{vWd}, v23, 10, v22
    s_lshl_b32 s{sNB}, s{sCB}, 7
    s_lshl_b32 s{sSo[0]}, s{sW}, 17
    s_add_u32 s{sSo[0]}, s{sSo[0]}, s{sNB}
    s_add_u32 s{sSo[1]}, s{sSo[0]}, 16384
    s_mul_i32 s{sTop}, s{sW}, 4096
    s_add_u32 s{sTop}, s{sTop}, {TOP}
    s_mul_i32 s{sAo[0]}, s{sRB2}, 176
    s_lshl_b32 s{sAo[1]}, s{sW}, 2
    s_add_u32 s{sAo[0]}, s{sAo[0]}, s{sAo[1]}
    s_lshl_b32 s{sAo[0]}, s{sAo[0]}, 10
    s_add_u32 s{sAo[1]}, s{sAo[0]}, {44*1024}
    s_add_u32 s{sAo[2]}, s{sAo[0]}, {88*1024}
    s_add_u32 s{sAo[3]}, s{sAo[0]}, {132*1024}
    """)
def tail(h_pol):
    def f(k):
        gO = lambda t: [[("v", f"buffer_load_dwordx4 {vr(AO + t*16 + u*4)}, v{vL16}, s[{sA3}:{sA3+3}], s{sAo[u]} offen offset:{t*1024} {h_pol}", f"A{t}")] for u in range(4)]
        k.srd(sWoR, sWO, 512*1024)
        return sum([gW(t) + gO(t) for t in range(4)], [])
    return f

P3O = {}
def gen_p3(k, name, flag, wait_h, st_pol="sc1", h_pol="sc1"):
    def em(gs):
        for g in gs:
            for it in g:
                if it[0] == "i": k(it[1])
                else: k.vmem(it[1], it[2])
    k(f"""
    s_barrier
    s_mul_i32 s{sSo[0]}, s{sW}, {7*32768}
    s_add_u32 s{sSo[0]}, s{sSo[0]}, s{sNB}
    s_add_u32 s{sSo[1]}, s{sSo[0]}, 16384
    """)
    k.srd(sWuR, sWOUT, 896*1024)
    later = gW(4) + gW(5) + gW(6) + gW(7) + gW(8)
    NE, NS_, FP = P3O.get("ne", 0), P3O.get("ns", 1), P3O.get("fp", 3)
    em(later[:NE]); later = later[NE:]
    k(f"""
    v_and_b32 v12, 1, v1
    v_lshlrev_b32 v12, 1, v12
    v_bfe_u32 v13, v0, 1, 1
    v_xor_b32 v13, v13, v12
    v_lshlrev_b32 v13, 4, v13
    v_lshrrev_b32 v14, 2, v0
    v_lshl_add_u32 v13, v14, 6, v13
    v_and_b32 v15, 1, v0
    v_lshl_add_u32 v13, v15, 3, v13
    v_add_u32 v{vT[0]}, s{sReg}, v13
    v_xor_b32 v{vT[1]}, 32, v{vT[0]}
    v_add_u32 v22, s{sTop}, v13
    v_xor_b32 v23, 32, v22
    """)
    def step(s, A):
        b = BF + (s & 1)*16
        base = vT if s != 3 else [22, 23]
        for j in range(4):
            for j2 in range(2):
                k.ds(f"ds_read_b64_tr_b16 {vr(b + j*4 + j2*2, 2)}, v{base[j&1]} offset:{stage(s)[1] + (j>>1)*2048 + j2*1024}", f"b{s}_{j}")
        return [(f"b{s}_{j}", [f"v_mfma_f32_16x16x32_bf16 {vr(ACC + (u*4+j)*4)}, {vr(b + j*4)}, {vr(A + u*4)}, {vr(ACC + (u*4+j)*4) if s else '0'}" for u in range(4)]) for j in range(4)]
    k.wait(vm="A3")
    nxt = step(0, AO)
    for s in range(4):
        cur = nxt
        for n, (tag, M) in enumerate(cur):
            k.wait(lg=tag)
            for m in M: k(m)
            if n == 0 and s < 3: nxt = step(s + 1, AO + (s + 1)*16)
            if n < (NS_ if s <= FP else 4) and later: em([later.pop(0)])
        if s == FP: flag(k)
    em(later + ([] if P3O.get('wl', 0) else gW(9) + gW(10)))
    k(f"""
    v_mul_u32_u24 v13, 272, v2
    v_lshl_add_u32 v13, v1, 4, v13
    v_add_u32 v{vRW}, s{sReg}, v13
    v_lshrrev_b32 v13, 3, v0
    v_and_b32 v14, 7, v0
    v_mul_u32_u24 v15, 272, v13
    v_lshl_add_u32 v15, v14, 5, v15
    s_mul_i32 s{sT+2}, s{sW}, 4352
    v_add_u32 v{vRR[0]}, s{sT+2}, v15
    v_add_u32 v{vRR[1]}, {2*WREG}, v{vRR[0]}
    v_lshlrev_b32 v14, 4, v14
    v_lshl_add_u32 v{vX}, v13, 10, v14
    s_lshl_b32 s{sT+1}, s{sRB2}, 2
    s_add_u32 s{sT+1}, s{sT+1}, s{sW}
    s_lshl_b32 s{sT+1}, s{sT+1}, 14
    s_add_u32 s{sXo[0]}, s{sT+1}, s{sNB}
    s_add_u32 s{sXo[1]}, s{sXo[0]}, 8192
    s_mul_i32 s{sT+1}, s{sW}, 3
    s_add_u32 s{sT+1}, s{sT+1}, 16
    s_lshl_b32 s{sT+1}, s{sT+1}, 10
    """)
    for u in range(4): k(f"s_add_u32 s{sAo[u]}, s{sAo[u]}, s{sT+1}")
    k.srd(sXr3, sX, 2048*1024)
    for i2 in range(2):
        k.vmem(f"buffer_load_dwordx4 {vr(XD + 4*i2)}, v{vX}, s[{sXr3}:{sXr3+3}], s{sXo[i2]} offen", "x")
    k.stamp(6)
    wait_h(k)
    for s in range(7):
        if s in (5, 6) and P3O.get('wl', 0): em(gW(4 + s))
        for u in range(4):
            k.vmem(f"buffer_load_dwordx4 {vr(AH + s*16 + u*4)}, v{vA[s//4]}, s[{sA3}:{sA3+3}], s{sAo[u]} offen offset:{(s%4)*1024} {h_pol}", f"H{s}")
    k.wait(vm="x")
    nxt = step(4, AH)
    for s in range(4, 11):
        cur = nxt
        k.wait(vm=f"H{s-4}")
        for n, (tag, M) in enumerate(cur):
            k.wait(lg=tag)
            for m in M: k(m)
            if n == 0 and s < 10:
                if s + 1 >= 9: k.wait(vm=f"W{s+1}")
                nxt = step(s + 1, AH + (s - 3)*16)
    k.stamp(7)
    for j in range(4):
        for u in range(4):
            k.ds(f"ds_write_b128 v{vRW}, {vr(ACC + (u*4+j)*4)} offset:{u*4352 + j*64}", "rw")
    XU = 128
    for i2 in range(2):
        for d in range(4):
            k(f"v_lshlrev_b32 v{XU + i2*8 + 2*d}, 16, v{XD + i2*4 + d}")
            k(f"v_and_b32 v{XU + i2*8 + 2*d + 1}, 0xffff0000, v{XD + i2*4 + d}")
    k("s_waitcnt lgkmcnt(0)\ns_barrier"); k.lg.q = []
    R = 32
    for i2 in range(2):
        for src in range(4):
            for hf in range(2):
                k.ds(f"ds_read_b128 {vr(R + i2*32 + src*8 + hf*4)}, v{vRR[src>>1]} offset:{(src&1)*WREG + i2*8*272 + hf*16}", f"r{i2}")
    for i2 in range(2):
        k.wait(lg=f"r{i2}")
        b = R + i2*32
        for e in range(0, 8, 2): k(pk("add", b+e, [(b+e, 0), (b+8+e, 0)]))
        for e in range(0, 8, 2): k(pk("add", b+16+e, [(b+16+e, 0), (b+24+e, 0)]))
        for e in range(0, 8, 2): k(pk("add", b+e, [(b+e, 0), (XU+i2*8+e, 0)]))
        for e in range(0, 8, 2): k(pk("add", b+e, [(b+e, 0), (b+16+e, 0)]))
        for d in range(4): k(f"v_cvt_pk_bf16_f32 v{XD + i2*4 + d}, v{b+2*d}, v{b+2*d+1}")
        k(f"buffer_store_dwordx4 {vr(XD + i2*4)}, v{vX}, s[{sOr3}:{sOr3+3}], s{sXo[i2]} offen {st_pol}")
```

```python
from asmlib import *
from layout import *
import f1, f2
from f1 import (f2h, pk, P, bf16_round, gelu_pk, prologue, epi_attn, FILL, OPT, XW, STG, TOP, TA, TB, TC, PS, OX, NT, LDSF, GC1, GC2,
                sXr, sWr, sOr, sPr, sXs, sRB, sCQ, sSUB, sH, sE, sXo, sWo, sHo, sXl, sWl, sSt, sDelta, sI, sA, sB, sSTG,
                vXe, vXo, vWd, vH, vL16, vNon, vZero, ONES, ACC, T)
SB = 32768
TOPB = 155648
vPF = 3
def emit(k, it):
    if isinstance(it, str): k(it)
    elif it[0] == "i": k(it[1])
    elif it[0] == "v": k.vmem(it[1], it[2])
    elif it[0] == "d": k.ds(it[1], it[2])
    else: k.wait(vm=it[1], lg=it[2])
def weave(k, M, slots):
    for i, m in enumerate(M):
        for it in slots[i]: emit(k, it)
        k(m)
    for it in slots[len(M)]: emit(k, it)
def place_groups(slots, G, nM, first=1):
    assert len(G) <= nM - first - 1
    for n, g in enumerate(G):
        pos = first + n*(nM - first - 1)//len(G)
        txt = [x if isinstance(x, str) else x[1] for x in g]
        c = [i for i, l in enumerate(txt) if " m0," in l]
        cut = c[-1] + 1 if c else 0
        slots[pos] += g[:cut]; slots[pos + 1] = g[cut:] + slots[pos + 1]
def mf(d, a, b): return f"v_mfma_f32_16x16x32_bf16 {vr(d)}, {vr(a)}, {vr(b)}, {vr(d)}"
vPX, vPW, sPX, sPW = 18, 19, 58, 72
def pf_xw(pitch, lanesW):
    if OPT.get('noxw'): return [[f'buffer_load_dword v28, v{vZero}, s[{sXr}:{sXr+3}], 0 offen']]*2
    return [["s_mov_b64 exec, 0xff", f"buffer_load_dword v28, v{vPX}, s[{sXr}:{sXr+3}], s{sPX} offen", "s_mov_b64 exec, -1", f"s_add_u32 s{sPX}, s{sPX}, 128"],
            [f"s_mov_b64 exec, {(1 << lanesW) - 1}", f"buffer_load_dword v28, v{vPW}, s[{sWr}:{sWr+3}], s{sPW} offen", "s_mov_b64 exec, -1", f"s_add_u32 s{sPW}, s{sPW}, {64*pitch}"]]
def bulk(k, name, lab, isA, pitch, wadv):
    k(f"""
    s_lshr_b32 s{sT}, s2, 3
    s_lshl_b32 s{sT+1}, s{sT}, 2
    s_add_u32 s{sT+6}, s{sT+1}, s{sW}
    v_lshlrev_b32 v{vPX}, 10, v0
    s_and_b32 s{sT+1}, s{sT+6}, 15
    s_lshl_b32 s{sT+1}, s{sT+1}, 13
    s_lshl_b32 s{sPX}, s{sRB}, 17
    s_add_u32 s{sPX}, s{sPX}, s{sT+1}
    s_add_u32 s{sPX}, s{sPX}, 384
    v_mul_u32_u24 v{T+1}, 86, v0
    v_lshrrev_b32 v{T+1}, 8, v{T+1}            ; l/3
    v_mul_u32_u24 v{T+2}, 3, v{T+1}
    v_sub_u32 v{T+2}, v0, v{T+2}               ; l%3
    v_and_b32 v{T+3}, 1, v{T+1}
    v_mul_u32_u24 v{T+3}, {pitch}, v{T+3}
    s_and_b32 s{sT+1}, s{sRB}, 7
    s_lshl_b32 s{sT+1}, s{sT+1}, 3
    s_mul_i32 s{sT+2}, s{sW}, -14
    s_add_u32 s{sT+1}, s{sT+1}, s{sT+2}        ; 8*(rb&7) + 2w - 16w
    s_mul_i32 s{sT+1}, s{sT+1}, {pitch}
    """)
    if isA:
        k(f"v_lshl_add_u32 v{vPW}, v{T+2}, 10, v{T+3}\ns_add_u32 s{sPW}, s{sT+1}, s{sWo[0]}")
    else:
        k(f"""
        v_lshlrev_b32 v{T+2}, 7, v{T+2}
        v_min_u32 v{T+2}, 192, v{T+2}
        v_add_u32 v{T+3}, v{T+3}, v{T+2}
        s_add_u32 s{sT+2}, s{sT+1}, s{sWo[0]}
        s_add_u32 s{sT+3}, s{sT+1}, s{sWo[1]}
        v_mov_b32 v{T+2}, s{sT+3}
        v_mov_b32 v{T+4}, s{sT+2}
        v_cmp_gt_u32 vcc, 6, v0
        v_cndmask_b32 v{T+2}, v{T+2}, v{T+4}, vcc
        v_add_u32 v{vPW}, v{T+3}, v{T+2}
        s_mov_b32 s{sPW}, 0
        """)
    for r in range(2):
        for g in pf_xw(pitch, 6 if isA else 12):
            for l in g: k(l)
    k.srd(sPr, sWSP, 2048*4096)
    k(f"""
    v_lshrrev_b32 v{vPF}, 2, v0
    v_and_b32 v{T+1}, 3, v0
    v_lshlrev_b32 v{T+1}, 10, v{T+1}
    v_lshl_add_u32 v{vPF}, v{vPF}, 12, v{T+1}
    s_bfe_u32 s59, s2, 0x20001
    s_lshl_b32 s59, s59, 21
    """)
    if OPT.get("two"):
        k(f"s_lshr_b32 s{sT}, s2, 5\ns_lshl_b32 s{sT}, s{sT}, 1\ns_bfe_u32 s{sT+1}, s2, 0x10003\ns_add_u32 s{sT}, s{sT}, s{sT+1}\ns_lshl_b32 s{sT}, s{sT}, 2\ns_add_u32 s{sT+6}, s{sT}, s{sW}\ns_lshl_b32 s{sT+6}, s{sT+6}, 15")
    else: k(f"s_lshl_b32 s{sT+6}, s{sT+6}, 14")
    k(f"s_add_u32 s59, s59, s{sT+6}")
    return 4

def lane_parts(k):
    k(f"""
    v_lshrrev_b32 v{T}, 1, v2
    v_xor_b32 v{T}, v{T}, v1
    v_lshlrev_b32 v{T}, 4, v{T}
    v_lshl_add_u32 v{T}, v2, 7, v{T}        ; i*128 + (g^(i>>1))*16
    v_and_b32 v{T+2}, 1, v1
    v_lshlrev_b32 v{T+2}, 1, v{T+2}
    v_bfe_u32 v{T+1}, v0, 1, 1
    v_xor_b32 v{T+2}, v{T+2}, v{T+1}
    v_lshlrev_b32 v{T+2}, 4, v{T+2}
    v_bfe_u32 v{T+1}, v0, 2, 2
    v_lshl_add_u32 v{T+1}, v1, 3, v{T+1}
    v_lshl_add_u32 v{T+2}, v{T+1}, 6, v{T+2}
    v_and_b32 v{T+1}, 1, v0
    v_lshl_add_u32 v{T+2}, v{T+1}, 3, v{T+2}
    v_mov_b32 v{vZero}, 0
    """)
    kk = K("t"); f2.setup_v(kk)
    for l in kk.L: k(l.replace("v3,", f"v{T+4},").replace("v3 ", f"v{T+4} ").replace("v7,", f"v{T+5},") .replace(", v3", f", v{T+4}").replace(f"v{T+4}1", "v31"))

def row_tables(k, ns, tG, tS, pre, writes, TOP=TOP):
    cI, cE = T, T+1
    X = T + 16
    k(f"""
    v_mov_b32 v{cI}, {f2h(1/512)}
    v_mov_b32 v{cE}, {f2h(1e-5)}
    v_and_b32 v{T+2}, 1, v0
    v_cmp_eq_u32 s[{sM}:{sM+1}], 1, v{T+2}
    v_and_b32 v{T+2}, 2, v0
    v_cmp_eq_u32 s[{sM+2}:{sM+3}], 2, v{T+2}
    v_lshrrev_b32 v{T+2}, 2, v2
    v_cmp_eq_u32 s[{sM+4}:{sM+5}], v1, v{T+2}
    v_lshlrev_b32 v{T+3}, 2, v2
    v_add_u32 v{T+3}, {TOP}, v{T+3}
    """)
    A_ = range(ns)
    FILL(k, 1)
    for a in A_:
        for r in range(4): k(f"v_accvgpr_read_b32 v{X+a*8+r}, {vr(tG(a)+r, 1)}")
        k(f"v_accvgpr_read_b32 v{X+a*8+4}, {vr(tS(a), 1)}")
    for a in A_: k(f"v_cndmask_b32 v{X+a*8}, v{X+a*8}, v{X+a*8+1}, s[{sM}:{sM+1}]\nv_cndmask_b32 v{X+a*8+2}, v{X+a*8+2}, v{X+a*8+3}, s[{sM}:{sM+1}]")
    for a in A_: k(f"v_mul_f32 v{X+a*8+4}, v{X+a*8+4}, v{cI}\nv_cndmask_b32 v{X+a*8}, v{X+a*8}, v{X+a*8+2}, s[{sM+2}:{sM+3}]")
    FILL(k, 1)
    for a in A_: k(f"v_mul_f32 v{X+a*8}, v{X+a*8}, v{cI}")
    for a in A_: k(f"v_fma_f32 v{X+a*8}, -v{X+a*8+4}, v{X+a*8+4}, v{X+a*8}")
    for a in A_: k(f"v_max_f32 v{X+a*8}, 0, v{X+a*8}")
    for a in A_: bf16_round(k, X+a*8, X+a*8)
    FILL(k, 1)
    for a in A_: k(f"v_add_f32 v{X+a*8}, v{X+a*8}, v{cE}")
    for a in A_: bf16_round(k, X+a*8, X+a*8)
    for a in A_: k(f"v_sqrt_f32 v{X+a*8}, v{X+a*8}")
    FILL(k, 1)
    for a in A_: bf16_round(k, X+a*8+4, X+a*8+4)
    for a in A_: bf16_round(k, X+a*8, X+a*8)
    for a in A_: k(f"v_rcp_f32 v{X+a*8}, v{X+a*8}")
    FILL(k, 1)
    k(pre)
    for a in A_: k(f"v_mul_f32 v{X+a*8+4}, -v{X+a*8+4}, v{X+a*8}")
    k(writes)
    k(f"s_mov_b64 exec, s[{sM+4}:{sM+5}]")
    for a in A_:
        ad, o = (T+4, a*64) if a < 2 else (T+3, 0)
        k(f"ds_write_b32 v{ad}, v{X+a*8} offset:{TA + o}\nds_write_b32 v{ad}, v{X+a*8+4} offset:{TB + o}")
    k("s_mov_b64 exec, -1")

def nonce_check(k, lab):
    k(f"""
    v_readfirstlane_b32 s{sNON}, v{vNon}
    s_cmp_lg_u32 s{sNON}, 0
    s_cbranch_scc1 {lab}_non
    s_mov_b32 s{sT+6}, 0
    {lab}_nspin:
    s_sleep 4
    global_load_dword v{vNon}, v{vZero}, s[{sDBG}:{sDBG+1}] sc1
    s_add_u32 s{sT+6}, s{sT+6}, 1
    s_waitcnt vmcnt(0)
    v_readfirstlane_b32 s{sNON}, v{vNon}
    s_cmp_gt_u32 s{sT+6}, 100000
    s_cbranch_scc1 {lab}_non
    s_cmp_eq_u32 s{sNON}, 0
    s_cbranch_scc1 {lab}_nspin
    {lab}_non:
    """)

def gen_p1(k, name, after, hooks):
    k(f"""
    s_and_b32 s{sT}, s2, 7
    s_lshr_b32 s{sT+1}, s2, 3
    s_lshr_b32 s{sRB}, s{sT}, 2
    s_lshl_b32 s{sRB}, s{sRB}, 3
    s_lshr_b32 s{sT+2}, s{sT+1}, 2
    s_add_u32 s{sRB}, s{sRB}, s{sT+2}
    s_and_b32 s{sCQ}, s{sT}, 3
    s_and_b32 s{sSUB}, s{sT+1}, 3
    v_and_b32 v3, 7, v0
    v_xor_b32 v{T}, v3, v1
    v_lshlrev_b32 v{T}, 4, v{T}
    v_lshrrev_b32 v{T+1}, 3, v0
    v_lshl_add_u32 v{vXe}, v{T+1}, 10, v{T}
    v_xor_b32 v{vXo}, 64, v{vXe}
    v_add_u32 v{vXo}, 8192, v{vXo}
    v_lshrrev_b32 v{T}, 5, v0
    v_lshlrev_b32 v{T}, 1, v{T}
    v_and_b32 v{T+2}, 3, v0
    v_xor_b32 v{T}, v{T}, v{T+2}
    v_lshlrev_b32 v{T}, 4, v{T}
    v_lshrrev_b32 v{T+2}, 2, v0             ; l>>2
    s_lshl_b32 s{sXo[0]}, s{sRB}, 2
    s_add_u32 s{sXo[0]}, s{sXo[0]}, s{sW}
    s_lshl_b32 s{sXo[0]}, s{sXo[0]}, 15     ; (128rb+32w)*1024
    s_add_u32 s{sXo[1]}, s{sXo[0]}, 16384
    s_lshl_b32 s{sXl}, s{sW}, 12
    s_mov_b32 s{sSt}, 0
    s_cmp_lt_u32 s{sSUB}, 2
    s_cbranch_scc1 L_{name}_A
    v_mul_u32_u24 v{T+2}, 3584, v{T+2}
    v_add_u32 v{vWd}, v{T+2}, v{T}
    s_mul_i32 s{sT+5}, s{sW}, {16*3584}
    s_mul_i32 s{sT+6}, s{sCQ}, 448
    s_add_u32 s{sT+5}, s{sT+5}, s{sT+6}
    s_and_b32 s{sH}, s{sW}, 1
    s_lshr_b32 s{sE}, s{sW}, 1
    s_mov_b32 s{sSTG}, {SB}
    s_cmp_eq_u32 s{sSUB}, 2
    s_cselect_b32 s{sT+7}, 0, 256
    s_add_u32 s{sWo[0]}, s{sT+5}, s{sT+7}
    s_add_u32 s{sWo[0]}, s{sWo[0]}, 1792
    s_sub_u32 s{sT+7}, 256, s{sT+7}
    s_add_u32 s{sWo[1]}, s{sT+5}, s{sT+7}
    s_waitcnt lgkmcnt(0)
    """)
    k.srd(sXr, sX, 2048*1024); k.srd(sWr, sWIN, 512*3584)
    k(f"s_cmp_eq_u32 s{sSUB}, 3\ns_cbranch_scc1 L_{name}_B34")
    vb = var_B if OPT.get("two") else var_S
    vb(k, name, "B43", after, hooks)
    k(f"L_{name}_B34:")
    vb(k, name, "B34", after, hooks)
    k(f"""
    L_{name}_A:
    v_mul_u32_u24 v{T+2}, 3072, v{T+2}
    v_add_u32 v{vWd}, v{T+2}, v{T}
    s_mov_b32 s{sSTG}, {STG}
    s_lshl_b32 s{sT+6}, s{sCQ}, 1
    s_add_u32 s{sSUB}, s{sSUB}, s{sT+6}
    s_mul_i32 s{sWo[0]}, s{sW}, {16*3072}
    s_lshl_b32 s{sT+6}, s{sSUB}, 7
    s_add_u32 s{sWo[0]}, s{sWo[0]}, s{sT+6}
    s_lshl_b32 s{sT+6}, s{sW}, 1
    v_add_u32 v{T}, s{sT+6}, v1
    v_xor_b32 v{T}, v{T}, v3
    v_lshlrev_b32 v{T}, 4, v{T}
    v_lshl_add_u32 v{vH}, v{T+1}, 10, v{T}
    s_lshl_b32 s{sHo}, s{sRB}, 7
    s_sub_u32 s{sHo}, s{sHo}, 16
    s_max_i32 s{sHo}, s{sHo}, 0
    s_lshl_b32 s{sT+6}, s{sW}, 2
    s_add_u32 s{sHo}, s{sHo}, s{sT+6}
    s_lshl_b32 s{sHo}, s{sHo}, 10
    s_waitcnt lgkmcnt(0)
    """)
    k.srd(sXr, sX, 2048*1024); k.srd(sWr, sWQ, 512*3072)
    var_A(k, name, after, hooks)

def xdma(xbase, tag=None):
    G = []
    for m in range(4):
        ld = f"buffer_load_dwordx4 v{vXo if m & 1 else vXe}, s[{sXr}:{sXr+3}], s{sXo[m>>1]} offen lds"
        g = [f"s_add_u32 m0, s{sA}, {xbase + m*1024}", ("v", ld, tag) if tag else ld]
        if m & 1: g.append(f"s_add_u32 s{sXo[m>>1]}, s{sXo[m>>1]}, 128")
        G.append(g)
    return G
def itstamp(k):
    if OPT.get("it"): k(f"{'s_memtime' if K.diag == 'c' else 's_memrealtime'} s[98:99]\ns_waitcnt lgkmcnt(0)\nv_cmp_eq_u32 vcc, s{sI}, v0\nv_mov_b32 v254, s98\nv_cndmask_b32 v255, v255, v254, vcc")
def itfinish(k):
    if OPT.get("it0"):
        for i in range(7): k(f"v_readlane_b32 s{86+2*i}, v255, {i}\ns_mov_b32 s{87+2*i}, 0")
        k("s_mov_b32 s85, 0")
    elif OPT.get("it"):
        for i in range(8): k(f"v_readlane_b32 s{84+2*i}, v255, {i}\ns_mov_b32 s{85+2*i}, 0")
LOOP_TAIL = f"""
s_add_u32 s{sSt}, s{sSt}, s{sDelta}
s_add_u32 s{sI}, s{sI}, 1
s_cmp_lt_u32 s{sI}, 8
s_waitcnt lgkmcnt(0)
"""

def five(k, hooks, isA):
    k(f"global_load_dword v{vNon}, v{vZero}, s[{sDBG}:{sDBG+1}] sc1")
    f2.early(k)
    return 1
sPF = 59
def pf_sp():
    return [[f"s_mov_b64 exec, {'0xffffffff' if OPT.get('two') else '0xffff'}", f"buffer_load_dword v28, v{vPF}, s[{sPr}:{sPr+3}], s{sPF} offen", "s_mov_b64 exec, -1", f"s_add_u32 s{sPF}, s{sPF}, 128"]]

def var_A(k, name, after, hooks):
    lab = f"L_{name}_A"; pitch = 3072
    FR, XA = 256, 256 + 112
    k(f"s_lshl_b32 s{sWl}, s{sW}, 10")
    if OPT.get("it0"): k(("s_memtime" if K.diag == "c" else "s_memrealtime") + " s[84:85]\ns_waitcnt lgkmcnt(0)")
    k.stamp(0)
    def dma():
        W = []
        for q in range(6):
            imm = 64*(q & 1) + 1024*(q >> 1)
            g = [f"s_add_u32 m0, s{sB}, {XW + q*4096 - imm}", f"buffer_load_dwordx4 v{vWd}, s[{sWr}:{sWr+3}], s{sWo[0]} offen offset:{imm} lds"]
            if q == 5: g.append(f"s_add_u32 s{sWo[0]}, s{sWo[0]}, {64*pitch}")
            W.append(g)
        W.append([f"s_lshr_b32 s{sT}, s{sWl}, 1", f"s_add_u32 m0, s{sSt}, s{sT}", "s_mov_b64 exec, 0xffffffff",
                  f"buffer_load_dwordx4 v{vH}, s[{sXr}:{sXr+3}], s{sHo} offen lds", "s_mov_b64 exec, -1", f"s_add_u32 s{sHo}, s{sHo}, 128"])
        G = interleave(W, xdma(2048))
        G[0] = [f"s_add_u32 s{sA}, s{sSt}, s{sXl}", f"s_add_u32 s{sB}, s{sSt}, s{sWl}"] + G[0]
        return G
    def dma_now():
        for g in dma():
            for l in g: k(l)
    dma_now(); k(f"s_add_u32 s{sSt}, s{sSt}, {STG}")
    k(f"""
    s_or_b32 s{sT}, s2, s{sW}
    s_cmp_lg_u32 s{sT}, 0
    s_cbranch_scc1 {lab}_nn
    s_memrealtime s[{sT}:{sT+1}]
    v_mov_b32 v{T}, 0
    s_waitcnt lgkmcnt(0)
    s_or_b32 s{sT}, s{sT}, 1
    v_mov_b32 v{T+1}, s{sT}
    s_mov_b64 exec, 1
    global_store_dword v{T}, v{T+1}, s[{sDBG}:{sDBG+1}] sc1
    s_mov_b64 exec, -1
    {lab}_nn:
    """)
    lane_parts(k)
    vX = [8, 11]; vS = [9, 12]; vW = [10, 13]
    k(f"""
    v_mov_b32 v{vX[0]}, v{T}
    v_xor_b32 v{vX[1]}, 64, v{T}
    v_add_u32 v{vS[0]}, s{sXl}, v{vX[0]}
    v_add_u32 v{vS[1]}, s{sXl}, v{vX[1]}
    s_and_b32 s{sT}, s{sW}, 1
    s_lshl_b32 s{sT}, s{sT}, 5
    v_xor_b32 v{T+2}, s{sT}, v{T+2}
    s_lshr_b32 s{sT}, s{sW}, 1
    s_lshl_b32 s{sT}, s{sT}, 12
    s_add_u32 s{sT}, s{sT}, {XW}
    v_add_u32 v{vW[0]}, s{sT}, v{T+2}
    v_add_u32 v{vW[1]}, 2048, v{vW[0]}
    """)
    bases = [[8, 9, 10], [11, 12, 13]]
    dma_now(); k(f"s_add_u32 s{sSt}, s{sSt}, {STG}")
    fX = lambda sg, a: FR + sg*56 + a*4
    fW = lambda sg, j: FR + sg*56 + 36 + j*4
    fS = lambda sg, a: FR + sg*56 + 48 + a*4
    tG = lambda a: XA + a*8; tS = lambda a: XA + a*8 + 4
    tQ = lambda a: ACC + (a-1)*4; tK = lambda a: ACC + 32 + a*4; tV = lambda a: ACC + 68 + a*4
    tC = lambda j: XA + 24 + j*4
    for r in range(4): k(f"v_mov_b32 v{ONES+r}, 0x3f803f80")
    for r in range(104): k(f"v_mov_b32 v{ACC+r}, 0")
    for r in range(36): k(f"v_accvgpr_write_b32 {vr(XA+r, 1)}, 0")
    dma_now(); k(f"s_mov_b32 s{sSt}, 0")
    nb = bulk(k, name, lab, True, pitch, 3)
    def reads(sg):
        return ([f"ds_read_b64_tr_b16 {vr(fW(sg, j) + 2*j2, 2)}, v{vW[sg]} offset:{j*8192 + j2*256}" for j in range(3) for j2 in range(2)]
                + [f"ds_read_b128 {vr(fX(sg, a))}, v{vX[sg]} offset:{a*2048}" for a in range(9)]
                + [f"ds_read_b128 {vr(fS(sg, a))}, v{vS[sg]} offset:{2048 + a*2048}" for a in range(2)])
    def mfmas(sg):
        L = []
        for a in range(9):
            if a: L.append(mf(tQ(a), fW(sg, 0), fX(sg, a)))
            L.append(mf(tK(a), fW(sg, 1), fX(sg, a))); L.append(mf(tV(a), fX(sg, a), fW(sg, 2)))
        L += [mf(tG(2), fX(sg, 0), fX(sg, 0)), mf(tS(2), ONES, fX(sg, 0))]
        for a in range(2): L += [mf(tG(a), fS(sg, a), fS(sg, a)), mf(tS(a), ONES, fS(sg, a))]
        return L + [mf(tC(j), ONES, fW(sg, j)) for j in range(3)]
    adv = lambda sg: [f"v_add_u32 v{r}, s{sDelta}, v{r}" for r in bases[sg]]
    k(f"s_mov_b32 s{sI}, 0\ns_waitcnt vmcnt({22 + nb})\ns_barrier")
    k.stamp(1)
    for l in reads(0): k(l)
    k(f"s_waitcnt lgkmcnt(0)\n.p2align 6\n{lab}_loop:")
    for l in interleave(mfmas(0), reads(1) + [f"s_cmp_eq_u32 s{sSt}, {2*STG}\ns_cselect_b32 s{sDelta}, {-2*STG}, s{sSTG}"] + adv(0), per=1): k(l)
    k(f"s_cmp_ge_u32 s{sI}, 5\ns_cbranch_scc1 {lab}_nodma\ns_waitcnt vmcnt(15) lgkmcnt(0)\ns_barrier"); itstamp(k)
    def half2(G):
        M = mfmas(1); slots = [[] for _ in range(len(M) + 1)]
        for n, l in enumerate(reads(0) + adv(1)): slots[n + 1].append(l)
        if G: place_groups(slots, G, len(M))
        weave(k, M, slots)
        k(LOOP_TAIL + f"s_cbranch_scc1 {lab}_loop")
    half2(dma() + pf_xw(pitch, 6) + pf_sp())
    k(f"""
    {lab}_nodma:
    s_cmp_eq_u32 s{sI}, 5
    s_cbranch_scc1 {lab}_five
    s_waitcnt vmcnt(13) lgkmcnt(0)
    s_barrier
    s_branch {lab}_cont
    {lab}_five:
    s_waitcnt vmcnt(15) lgkmcnt(0)
    s_barrier
    """)
    kk = K("t"); five(kk, hooks, True)
    M = mfmas(1); slots = [[] for _ in range(len(M) + 1)]
    for n, l in enumerate(reads(0) + adv(1)): slots[n + 1].append(l)
    grp, cur = [], []
    for l in kk.L:
        cur.append(l)
        if not any("exec" in x for x in cur) or l == "s_mov_b64 exec, -1": grp.append(cur); cur = []
    nfv = len(M) - 20
    for n, g in enumerate(grp): slots[n*nfv//len(grp)] += g
    place_groups(slots, f2.land_groups(sSt, sXl, sA) + pf_sp(), len(M), first=nfv)
    itstamp(k)
    weave(k, M, slots)
    k(LOOP_TAIL + f"s_branch {lab}_loop")
    k(f"{lab}_cont:")
    itstamp(k)
    half2(f2.land_groups(sSt, sXl, sA) + pf_sp())
    itfinish(k)
    k.stamp(2)
    k("s_barrier")
    k.lg.q = []; k.vm.q = ["E0"]*8 + ["pf"] + ["E1"]*8 + ["pf"] + ["E2"]*8 + ["pf"]
    FILL.q, post = f2.stage_groups(k, STG)
    if OPT.get("burst"):
        k.stamp(10); k("s_waitcnt vmcnt(0)"); k.stamp(11); FILL(k, 32); k("s_waitcnt vmcnt(0)"); k.stamp(12)
    row_tables(k, 3, tG, tS,
               f"s_lshl_b32 s{sT}, s{sW}, 7\ns_add_u32 s{sT}, s{sT}, 64\ns_mul_i32 s{sT+1}, s{sW}, 192\nv_add_u32 v{T+4}, s{sT}, v{T+3}\nv_add_u32 v{T+5}, s{sT+1}, v{T+3}",
               "\n".join(f"ds_write_b32 v{T+5}, {vr(tC(j), 1)} offset:{TC + j*64}" for j in range(3)))
    FILL.flush(k); FILL.q = post
    nonce_check(k, lab)
    k(f"v_lshlrev_b32 v{T+7}, 4, v1\nv_add_u32 v{T+7}, {TOP}, v{T+7}\ns_waitcnt lgkmcnt(0)\ns_barrier")
    k.stamp(3)
    epi_attn(k, lab, "sc1", tQ, tK, tV)
    FILL.flush(k)
    k(f"""
    s_lshr_b32 s{sT}, s2, 5
    s_lshl_b32 s{sT}, s{sT}, 1
    s_bfe_u32 s{sT+1}, s2, 0x10003
    s_add_u32 s{sT}, s{sT}, s{sT+1}
    s_lshl_b32 s{sT}, s{sT}, 2
    s_add_u32 s{sT}, s{sT}, s{sW}
    """)
    hooks["pf3A"](k)
    after(k, "A")

def var_B(k, name, V, after, hooks):
    lab = f"L_{name}_{V}"; pitch = 3584
    n1 = 4 if V == "B43" else 3; n2 = 7 - n1
    FR, XA = 256, 256 + 64
    k(f"s_lshl_b32 s{sWl}, s{sW}, 10")
    if OPT.get("it0"): k(("s_memtime" if K.diag == "c" else "s_memrealtime") + " s[84:85]\ns_waitcnt lgkmcnt(0)")
    k.stamp(0)
    def dma(ps, tag=None, st=None):
        nw = n1 if ps == 0 else n2
        W = []
        for q in range(nw):
            ld = f"buffer_load_dwordx4 v{vWd}, s[{sWr}:{sWr+3}], s{sWo[ps]} offen offset:{64*q} lds"
            g = [f"s_add_u32 m0, s{sB}, {16384 + q*4096 - 64*q}", ("v", ld, tag) if tag else ld]
            if q == nw - 1: g.append(f"s_add_u32 s{sWo[ps]}, s{sWo[ps]}, {64*pitch}")
            W.append(g)
        sst = f"s{sSt}" if st is None else str(st)
        W[0] = [f"s_add_u32 s{sA}, s{sXl}, {sst}", f"s_add_u32 s{sB}, s{sWl}, {sst}"] + W[0]
        return W
    def dma_now(x=True):
        for g in dma(0) + (xdma(0) if x else []):
            for l in g: k(l)
    dma_now(); k(f"s_add_u32 s{sSt}, s{sSt}, {SB}")
    lane_parts(k)
    vX = [[8, 9], [12, 13]]; vW = [[10, 11], [14, 15]]
    k(f"""
    s_lshl_b32 s{sT}, s{sH}, 6
    v_xor_b32 v{T}, s{sT}, v{T}
    s_lshl_b32 s{sT}, s{sH}, 13
    s_lshl_b32 s{sT+1}, s{sE}, 12
    s_add_u32 s{sT+2}, s{sT}, s{sT+1}
    v_add_u32 v{vX[0][0]}, s{sT+2}, v{T}
    s_sub_u32 s{sT+2}, s{sT}, s{sT+1}
    v_add_u32 v{vX[0][1]}, s{sT+2}, v{T}
    v_xor_b32 v{vX[1][0]}, 64, v{vX[0][0]}
    v_xor_b32 v{vX[1][1]}, 64, v{vX[0][1]}
    s_lshl_b32 s{sT}, s{sH}, 11
    s_lshl_b32 s{sT+2}, s{sE}, 13
    s_add_u32 s{sT+3}, s{sT}, s{sT+2}
    s_add_u32 s{sT+3}, s{sT+3}, 16384
    v_add_u32 v{vW[0][0]}, s{sT+3}, v{T+2}
    v_xor_b32 v{vW[0][1]}, 32, v{vW[0][0]}
    s_lshl_b32 s{sT}, s{sH}, 12
    s_sub_u32 s{sT}, 2048, s{sT}
    v_add_u32 v{vW[1][0]}, s{sT}, v{vW[0][0]}
    v_add_u32 v{vW[1][1]}, s{sT}, v{vW[0][1]}
    """)
    def switch(to3):
        k(f"s_lshl_b32 s{sT+11}, s{sE}, 5")
        k(f"s_lshl_b32 s{sT+10}, s{sE}, 12")
        for sg in range(2):
            k(f"v_xor_b32 v{vW[sg][0]}, s{sT+11}, v{vW[sg][0]}\nv_xor_b32 v{vW[sg][1]}, s{sT+11}, v{vW[sg][1]}")
            k(f"v_subrev_u32 v{vW[sg][0]}, s{sT+10}, v{vW[sg][0]}" if to3 else f"v_add_u32 v{vW[sg][0]}, s{sT+10}, v{vW[sg][0]}")
    if n1 == 3: switch(True)
    bases = [[8, 9, 10, 11], [12, 13, 14, 15]]
    dma_now(); k(f"s_add_u32 s{sSt}, s{sSt}, {SB}")
    fX = lambda sg, a: FR + sg*32 + a*4
    fW = lambda sg, j: FR + sg*32 + 16 + j*4
    tG = lambda a: XA + a*8; tS = lambda a: XA + a*8 + 4
    tC = lambda ps, j: XA + 16 + ps*16 + j*4
    tZ = lambda ps, a, j: ACC + ((0 if ps == 0 else n1)*4 + j*4 + a)*4
    for r in range(4): k(f"v_mov_b32 v{ONES+r}, 0x3f803f80")
    for r in range(n1*16): k(f"v_mov_b32 v{ACC+r}, 0")
    for r in range(16 + n1*4): k(f"v_accvgpr_write_b32 {vr(XA+r, 1)}, 0")
    dma_now(False); k(f"s_mov_b32 s{sSt}, 0")
    nb = bulk(k, name, lab, False, pitch, 3)
    def reads(ps, sg, tag=None):
        L = ([f"ds_read_b128 {vr(fX(sg, a))}, v{vX[sg][a >> 1]} offset:{a*2048}" for a in range(4)]
             + [f"ds_read_b64_tr_b16 {vr(fW(sg, j) + 2*j2, 2)}, v{vW[sg][j & 1]} offset:{(j >> 1)*4096 + j2*256}" for j in range(n1 if ps == 0 else n2) for j2 in range(2)])
        return [("d", l, tag) for l in L] if tag else L
    def mfmas(ps, sg, first=False):
        z = lambda d, a, b: mf(d, a, b) if not first else f"v_mfma_f32_16x16x32_bf16 {vr(d)}, {vr(a)}, {vr(b)}, 0"
        nw = n1 if ps == 0 else n2
        L = [z(tZ(ps, a, j), fX(sg, a), fW(sg, j)) if ps == 0 else z(tZ(ps, a, j), fW(sg, j), fX(sg, a)) for j in range(nw) for a in range(4)]
        if ps == 0:
            for a in range(2): L += [mf(tG(a), fX(sg, a), fX(sg, a)), mf(tS(a), ONES, fX(sg, a))]
        if sg == 0: L += [z(tC(ps, j), ONES, fW(sg, j)) for j in range(nw)]
        return L
    adv = lambda sg, d=None: [f"v_add_u32 v{r}, {'s%d' % sDelta if d is None else d}, v{r}" for r in bases[sg]]
    nd1 = 4 + n1
    k(f"s_mov_b32 s{sI}, 0\ns_waitcnt vmcnt({nd1 + n1 + nb})\ns_barrier")
    k.stamp(1)
    for l in reads(0, 0): k(l)
    k(f"s_waitcnt lgkmcnt(0)\n.p2align 6\n{lab}_loop:")
    M = mfmas(0, 0); slots = [[] for _ in range(len(M) + 1)]
    for n, l in enumerate(reads(0, 1) + [f"s_cmp_eq_u32 s{sSt}, {2*SB}\ns_cselect_b32 s{sDelta}, {-2*SB}, s{sSTG}"] + adv(0)): slots[n + 1].append(l)
    place_groups(slots, xdma(0), len(M), first=0)
    weave(k, M, slots)
    k(f"s_cmp_ge_u32 s{sI}, 5\ns_waitcnt vmcnt(8) lgkmcnt(0)\ns_barrier\ns_cbranch_scc1 {lab}_d2"); itstamp(k)
    def half2(G):
        M = mfmas(0, 1); slots = [[] for _ in range(len(M) + 1)]
        for n, l in enumerate(reads(0, 0) + adv(1)): slots[min(n + 1, len(M))].append(l)
        place_groups(slots, G, len(M), first=0)
        weave(k, M, slots)
        k(LOOP_TAIL + f"s_cbranch_scc1 {lab}_loop")
    half2(dma(0) + pf_xw(pitch, 12))
    k(f"""
    {lab}_d2:
    s_cmp_eq_u32 s{sI}, 5
    s_cbranch_scc0 {lab}_cont
    s_sub_u32 s{sXo[0]}, s{sXo[0]}, 1024
    s_sub_u32 s{sXo[1]}, s{sXo[1]}, 1024
    global_load_dword v{vNon}, v{vZero}, s[{sDBG}:{sDBG+1}] sc1
    {lab}_cont:
    """)
    itstamp(k)
    half2(dma(1) + pf_xw(pitch, 12)[1:])
    itfinish(k)
    k.stamp(2)
    k.lg.q = []; k.vm.q = ["S9"]*(5 + n2) + ["S10"]*(1 + n2)
    XQ = xdma(0, "S10")
    hooks["stageB"](k)
    FILL.q = [[("i", x) if isinstance(x, str) else x for x in g[:1] + ["s_nop 0"] + g[1:]] for g in XQ] + FILL.q
    z4 = n1 == 4
    coff = lambda ps, j: (j*64 if (z4 == (ps == 0)) else 512 + j*64)
    pre = f"""
    s_lshl_b32 s{sT}, s{sH}, 8
    s_lshl_b32 s{sT+3}, s{sE}, 7
    s_add_u32 s{sT}, s{sT}, s{sT+3}
    s_add_u32 s{sT}, s{sT}, 64
    s_lshl_b32 s{sT+1}, s{sE}, 8
    s_mul_i32 s{sT+4}, s{sE}, 192
    s_lshl_b32 s{sT+5}, s{sH}, 10
    s_add_u32 s{sT+2}, s{sT+1 if z4 else sT+4}, s{sT+5}
    s_add_u32 s{sT+5}, s{sT+4 if z4 else sT+1}, s{sT+5}
    v_add_u32 v{T+4}, s{sT}, v{T+3}
    v_add_u32 v{T+5}, s{sT+2}, v{T+3}
    v_add_u32 v{T+6}, s{sT+5}, v{T+3}
    """
    row_tables(k, 2, tG, tS, pre, "\n".join(f"ds_write_b32 v{T+5}, {vr(tC(0, j), 1)} offset:{TC + coff(0, j)}" for j in range(n1)), TOPB)
    nonce_check(k, lab)
    k(f"v_lshlrev_b32 v{T+7}, 4, v1\nv_add_u32 v{T+7}, {TOPB}, v{T+7}\ns_waitcnt lgkmcnt(0)\ns_barrier")
    k.stamp(3)
    vI4, vG16 = T+3, T+7
    c = T; AR, BR = T+8, T+24; C2 = T+40; ST = T+48; tmp = T+80; AL = T+88; ad = T+96
    k(f"""
    s_lshl_b32 s{sT}, s{sH}, 8
    s_add_u32 s{sT}, s{sT}, 64
    s_add_u32 s{sT+2}, s{sT}, s{sT+3}
    s_sub_u32 s{sT+5}, s{sT}, s{sT+3}
    v_add_u32 v{ad}, s{sT+2}, v{vG16}
    v_add_u32 v{ad+1}, s{sT+5}, v{vG16}
    v_add_u32 v{ad+2}, s{sT+2}, v{vI4}
    v_add_u32 v{ad+3}, s{sT+5}, v{vI4}
    v_add_u32 v{ad+4}, s{sT+1 if z4 else sT+4}, v{vI4}
    v_add_u32 v{ad+5}, s{sT+4 if z4 else sT+1}, v{vG16}
    """)
    for a in range(4):
        k.ds(f"ds_read_b128 {vr(AR + a*4)}, v{ad + (a>>1)} offset:{TA + a*64}", "t")
        k.ds(f"ds_read_b128 {vr(BR + a*4)}, v{ad + (a>>1)} offset:{TB + a*64}", "t")
    for j in range(n1):
        for hh in range(2): k.ds(f"ds_read_b32 v{C2 + 2*j + hh}, v{ad+4} offset:{TC + hh*1024 + coff(0, j)}", "t")
    k(f"v_mov_b32 v{c}, {f2h(GC1)}\nv_mov_b32 v{c+1}, {f2h(GC2)}")
    k.wait(lg="t")
    for a in range(4):
        k.ds(f"ds_read_b32 v{AL + a}, v{ad + 2 + (a>>1)} offset:{TA + a*64}", "u")
        k.ds(f"ds_read_b32 v{AL + 4 + a}, v{ad + 2 + (a>>1)} offset:{TB + a*64}", "u")
    for j in range(n1): k(f"v_add_f32 v{C2+2*j}, v{C2+2*j}, v{C2+2*j+1}")
    NF2 = (1, 1, 1, 2) if n1 == 4 else (1, 2, 2, 2)
    prs = lambda ps, p, j: [tZ(ps, 2*p + (i >> 1), j) + 2*(i & 1) for i in range(4)]
    for j in range(n1):
        for p in range(2):
            ys = prs(0, p, j); ab = [(2*p + (i >> 1))*4 + 2*(i & 1) for i in range(4)]
            for i in range(4): k(pk("mul", tmp+2*i, [(BR+ab[i], 0), (C2+2*j, 1)]))
            for i in range(4): k(pk("fma", ys[i], [(AR+ab[i], 0), (ys[i], 0), (tmp+2*i, 0)]))
            gelu_pk(k, ys, c, tmp, NF2)
            for i in range(4):
                s_ = ST + (2*p + (i >> 1))*8 + 2*(i & 1); q_ = s_ + 4
                if j == 0: k(f"v_mov_b32 v{s_}, v{ys[i]}\nv_mov_b32 v{s_+1}, v{ys[i]+1}\n" + pk("mul", q_, [(ys[i], 0), (ys[i], 0)]))
                else: k(pk("add", s_, [(s_, 0), (ys[i], 0)]) + "\n" + pk("fma", q_, [(ys[i], 0), (ys[i], 0), (q_, 0)]))
    k.stamp(4)
    FILL(k, 2)
    for n in range(16): k(f"v_add_f32_dpp v{ST+n}, v{ST+n}, v{ST+n} row_mirror row_mask:0xf bank_mask:0x3")
    for n in range(16): k(f"v_add_f32_dpp v{ST+n}, v{ST+16+n}, v{ST+16+n} row_mirror row_mask:0xf bank_mask:0xc")
    for n in range(8): k(f"v_add_f32_dpp v{ST+n}, v{ST+n}, v{ST+n} row_half_mirror row_mask:0xf bank_mask:0x5")
    for n in range(8): k(f"v_add_f32_dpp v{ST+n}, v{ST+8+n}, v{ST+8+n} row_half_mirror row_mask:0xf bank_mask:0xa")
    for n in range(8): k(f"v_add_f32_dpp v{ST+n}, v{ST+n}, v{ST+n} quad_perm:[1,0,3,2] row_mask:0xf bank_mask:0xf")
    for n in range(8): k(f"v_add_f32_dpp v{ST+n}, v{ST+n}, v{ST+n} quad_perm:[2,3,0,1] row_mask:0xf bank_mask:0xf")
    k(f"""
    v_lshrrev_b32 v{tmp}, 2, v2
    s_lshl_b32 s{sT+6}, s{sE}, 1
    v_xor_b32 v{tmp}, s{sT+6}, v{tmp}
    v_lshl_add_u32 v{tmp}, v{tmp}, 6, v{vG16}
    s_lshl_b32 s{sT+6}, s{sE}, 10
    s_lshl_b32 s{sT+7}, s{sH}, 8
    s_add_u32 s{sT+6}, s{sT+6}, s{sT+7}
    v_add_u32 v{tmp}, s{sT+6}, v{tmp}
    """)
    k.ds(f"ds_write_b128 v{tmp}, {vr(ST)} offset:{PS}", "ps"); k.ds(f"ds_write_b128 v{tmp}, {vr(ST+4)} offset:{PS + 512}", "ps")
    k(f"""
    v_and_b32 v{tmp+1}, 31, v0
    s_lshl_b32 s{sT+6}, s{sW}, 7
    s_add_u32 s{sT+6}, s{sT+6}, {TOPB}
    v_lshl_add_u32 v{tmp+1}, v{tmp+1}, 2, s{sT+6}
    s_add_u32 s{sXs}, s{sWS}, {XS_OFF}
    s_addc_u32 s{sXs+1}, s{sWS+1}, 0
    s_mov_b32 s{sXs+2}, {XS_SZ}
    s_mov_b32 s{sXs+3}, 0x20000
    s_lshl_b32 s{sT+8}, s{sRB}, 14
    s_lshl_b32 s{sT+6}, s{sCQ}, 12
    s_add_u32 s{sT+6}, s{sT+6}, {0 if z4 else 2048}
    s_add_u32 s{sT+6}, s{sT+6}, s{sT+8}
    s_lshl_b32 s{sT+7}, s{sW}, 9
    s_add_u32 s{sT+6}, s{sT+6}, s{sT+7}
    v_mov_b32 v{ST+10}, s{sNON}
    v_mov_b32 v{ST+11}, s{sNON}
    """)
    switch(z4)
    k("s_waitcnt lgkmcnt(0)\ns_barrier"); k.lg.q = []
    for n, o in enumerate((0, 512, 1024, 1536)): k.ds(f"ds_read_b32 v{ST + (8, 9, 12, 13)[n]}, v{tmp+1} offset:{PS + o}", "pr")
    for it in reads(1, 0, "F0"): emit(k, it)
    k.wait(lg="pr")
    k(pk("add", ST+8, [(ST+8, 0), (ST+12, 0)]) + "\ns_mov_b64 exec, 0xffffffff")
    k.vmem(f"buffer_store_dwordx4 {vr(ST+8)}, v{vL16}, s[{sXs}:{sXs+3}], s{sT+6} offen sc1", "pub")
    k("s_mov_b64 exec, -1")
    FILL.flush(k)
    k(f"""
    s_lshl_b32 s{sT+6}, s{sH}, 10
    s_add_u32 s{sT+6}, s{sT+6}, s{sT+8}
    s_add_u32 s{sT+7}, s{sT+6}, 4096
    s_add_u32 s{sT+8}, s{sT+6}, 8192
    s_add_u32 s{sT+9}, s{sT+6}, 12288
    s_lshl_b32 s{sT}, s{sW}, 9
    s_add_u32 s{sT+2}, s{sT}, {TOPB}
    v_lshl_add_u32 v{ad+2}, v0, 2, s{sT+2}
    s_add_u32 s{sT+2}, s{sT}, s{sT+3}
    s_sub_u32 s{sT}, s{sT}, s{sT+3}
    v_add_u32 v{ad}, s{sT+2}, v{vG16}
    v_add_u32 v{ad+1}, s{sT}, v{vG16}
    s_mov_b32 s{sPr}, s{sWS}
    s_mov_b32 s{sPr+1}, s{sWS+1}
    s_mov_b32 s{sPr+2}, {Z2F_SZ}
    s_mov_b32 s{sPr+3}, 0x20000
    s_lshl_b32 s{sT}, s{sRB}, 1
    s_add_u32 s{sT}, s{sT}, s{sH}
    s_mul_i32 s{sT}, s{sT}, 112
    s_mul_i32 s{sT+2}, s{sCQ}, 14
    s_add_u32 s{sT}, s{sT}, s{sT+2}
    s_mul_i32 s{sT+2}, s{sE}, 56
    s_add_u32 s{sT+5}, s{sT}, s{sT+2}
    s_sub_u32 s{sT+10}, s{sT}, s{sT+2}
    s_add_u32 s{sT+10}, s{sT+10}, 56
    s_lshl_b32 s{sT+5}, s{sT+5}, 10
    s_lshl_b32 s{sT+10}, s{sT+10}, 10
    s_lshl_b32 s{sT+1}, s{sT+1}, 4                 ; 4e*1024
    s_lshl_b32 s{sT+4}, s{sT+4}, 4
    s_add_u32 s{sT+4}, s{sT+4}, 8192               ; (8+3e)*1024
    s_add_u32 s{sT}, s{sT+5}, s{sT+1 if z4 else sT+4}
    s_add_u32 s{sT+2}, s{sT+10}, s{sT+1 if z4 else sT+4}
    s_add_u32 s{sT+5}, s{sT+5}, s{sT+4 if z4 else sT+1}
    s_add_u32 s{sT+10}, s{sT+10}, s{sT+4 if z4 else sT+1}
    s_mov_b32 s{sT+11}, 0
    """)
    sZ2o, sZ1o = [sT, sT+2], [sT+5, sT+10]
    k.stamp(5)
    G = T+8; NR, NM = T+48, T+64
    polls = [f"buffer_load_dwordx4 {vr(G+4*x)}, v{vL16}, s[{sXs}:{sXs+3}], s{sT+6+(x>>1)} offen offset:{(x&1)*2048} sc1" for x in range(8)]
    chk = [f"v_xor_b32 v{G+4*x+3}, s{sNON}, v{G+4*x+2}" for x in range(8)] + [
        f"v_or3_b32 v{G+3}, v{G+3}, v{G+7}, v{G+11}", f"v_or3_b32 v{G+15}, v{G+15}, v{G+19}, v{G+23}",
        f"v_or3_b32 v{G+3}, v{G+3}, v{G+27}, v{G+31}", f"v_or_b32 v{G+3}, v{G+3}, v{G+15}", f"v_cmp_ne_u32 vcc, 0, v{G+3}"]
    rnd = lambda r: [f"v_cvt_pk_bf16_f32 v{r}, v{r}, v{r}", f"v_and_b32 v{r}, 0xffff0000, v{r}"]
    fin = ([f"v_add_f32 v{G+8*i+e}, v{G+8*i+e}, v{G+8*i+4+e}" for i in range(4) for e in range(2)]
           + [f"v_add_f32 v{G+16*i+e}, v{G+16*i+e}, v{G+16*i+8+e}" for i in range(2) for e in range(2)]
           + [f"v_add_f32 v{G+e}, v{G+e}, v{G+16+e}" for e in range(2)]
           + [f"v_mul_f32 v{G+e}, {f2h(1/896)}, v{G+e}" for e in range(2)]
           + [f"v_fma_f32 v{G+1}, -v{G}, v{G}, v{G+1}", f"v_max_f32 v{G+1}, 0, v{G+1}"] + rnd(G+1)
           + [f"v_add_f32 v{G+1}, {f2h(1e-5)}, v{G+1}"] + rnd(G+1) + [f"v_sqrt_f32 v{G+1}, v{G+1}"] + rnd(G) + rnd(G+1)
           + [f"v_rcp_f32 v{G+1}, v{G+1}", "s_nop 0", f"v_mul_f32 v{G}, -v{G}, v{G+1}",
              ("d", f"ds_write_b32 v{ad+2}, v{G+1} offset:{NT}", "nw"), ("d", f"ds_write_b32 v{ad+2}, v{G} offset:{NT + 256}", "nw")])
    nrd = [("d", f"ds_read_b128 {vr((NR, NM)[x] + a*4)}, v{ad + (a>>1)} offset:{NT + 256*x + a*64}", "nr") for a in range(4) for x in range(2)]
    norm = []
    for p in range(2):
        for j in range(n1):
            ys = prs(0, p, j); ab = [(2*p + (i >> 1))*4 + 2*(i & 1) for i in range(4)]
            norm += [pk("fma", ys[i], [(ys[i], 0), (NR+ab[i], 0), (NM+ab[i], 0)]) for i in range(4)]
            norm += [f"v_cvt_pk_bf16_f32 v{tZ(0, 2*p, j)+i}, v{ys[i]}, v{ys[i]+1}" for i in range(4)]
            norm.append(("v", f"buffer_store_dwordx4 {vr(tZ(0, 2*p, j))}, v{vL16}, s[{sPr}:{sPr+3}], s{sZ2o[p]} offen offset:{j*1024} sc1", "z2st"))
    TP, TC_ = OPT.get("tp", 0), OPT.get("tc", 3)
    work = []
    def spread(slots, nM, per, start=0):
        nonlocal work
        for i in range(start, nM + 1):
            for _ in range(per):
                if work: slots[i].append(work.pop(0))
    for t in range(8):
        st = (8 + t) % 3; dlt = SB if st < 2 else -2*SB
        M = mfmas(1, 0, first=(t == 0)); slots = [[] for _ in range(len(M) + 1)]
        slots[0].append(("w", None, "F0"))
        for n, it in enumerate(reads(1, 1, "F1") + (adv(0, dlt) if t < 7 else [])): slots[min(n + 1, len(M))].append(it)
        if 1 <= t <= 5: place_groups(slots, xdma(0, f"S{10+t}"), len(M), first=0)
        spread(slots, len(M), 2, 1)
        weave(k, M, slots)
        if t < 7:
            k.wait(vm=f"S{9+t}", lg="F1"); k("s_barrier")
        else: k.wait(lg="F1")
        if OPT.get("p2t"): k(f"s_memtime s[{84+2*t}:{85+2*t}]\ns_waitcnt lgkmcnt(0)"); k.lg.q = []
        if t == TC_:
            k.wait(vm="poll")
            for l in chk: k(l)
            k(f"s_nop 3\ns_cbranch_vccnz {lab}_slow\n{lab}_got:")
            work += fin
        if t == TC_ + 1: work += [("w", None, "nw")] + nrd
        if t == TC_ + 2:
            for it in work + [("w", None, "nr")] + norm: emit(k, it)
            work = []
        M = mfmas(1, 1); slots = [[] for _ in range(len(M) + 1)]
        if t < 7:
            for n, it in enumerate(reads(1, 0, "F0") + adv(1, dlt)): slots[min(n + 1, len(M))].append(it)
        G_ = dma(1, f"S{11+t}", st*SB) if t < 5 else []
        if G_: place_groups(slots, G_, len(M), first=0)
        if t in (TP, TP + 1):
            for n, l in enumerate(polls[4*(t - TP):4*(t - TP) + 4]): slots[2 + n*(len(M) - 2)//4].append(("v", l, "poll"))
        spread(slots, len(M), 2 if t >= 5 else 1, 1)
        weave(k, M, slots)
    for it in work: emit(k, it)
    k(f"s_branch {lab}_p2end\n{lab}_slow:\ns_sleep 2")
    for l in polls: k(l)
    k(f"s_add_u32 s{sT+11}, s{sT+11}, 1\ns_waitcnt vmcnt(0)")
    for l in chk: k(l)
    k(f"s_nop 3\ns_cmp_gt_u32 s{sT+11}, 100000\ns_cbranch_scc1 {lab}_got\ns_cbranch_vccnz {lab}_slow\ns_branch {lab}_got\n{lab}_p2end:")
    k.stamp(6)
    for j in range(n2): k.ds(f"ds_write_b32 v{T+6}, {vr(tC(1, j), 1)} offset:{TC + coff(1, j)}", "cw")
    k(f"s_add_u32 s{sOr}, s{sWS}, {Z1L_OFF}\ns_addc_u32 s{sOr+1}, s{sWS+1}, 0\ns_mov_b32 s{sOr+2}, {Z1L_SZ}\ns_mov_b32 s{sOr+3}, 0x20000")
    k("s_waitcnt lgkmcnt(0)\ns_barrier"); k.lg.q = []
    C1 = T+8
    for j in range(n2):
        for hh in range(2): k.ds(f"ds_read_b128 {vr(C1 + 8*j + 4*hh)}, v{ad+5} offset:{TC + hh*1024 + coff(1, j)}", f"c{j}")
    hooks["stageB2"](k)
    for j in range(n2):
        k.wait(lg=f"c{j}")
        for i in range(2): k(pk("add", C1+8*j+2*i, [(C1+8*j+2*i, 0), (C1+8*j+4+2*i, 0)]))
        for p in range(2):
            ys = prs(1, p, j)
            for i in range(4): k(pk("mul", tmp+2*i, [(C1+8*j+2*(i & 1), 0), (AL+4+2*p+(i >> 1), 1)]))
            for i in range(4): k(pk("fma", ys[i], [(ys[i], 0), (AL+2*p+(i >> 1), 1), (tmp+2*i, 0)]))
            gelu_pk(k, ys, c, tmp, (1, 1, 1, 1))
            for i in range(4): k(f"v_cvt_pk_bf16_f32 v{tZ(1, 2*p, j)+i}, v{ys[i]}, v{ys[i]+1}")
            k.vmem(f"buffer_store_dwordx4 {vr(tZ(1, 2*p, j))}, v{vL16}, s[{sOr}:{sOr+3}], s{sZ1o[p]} offen offset:{j*1024} sc1", "p1st")
            if j == 0 and p == OPT.get("zf", 0): hooks["z2flag"](k, V)
    FILL.flush(k)
    after(k, V)

def var_S(k, name, V, after, hooks):
    lab = f"L_{name}_{V}"; pitch = 3584
    z4 = V == "B43"
    n1 = 4 if z4 else 3; n2 = 7 - n1
    FR, XA = 256, 256 + 112
    s4, s3 = (sWo[0], sWo[1]) if z4 else (sWo[1], sWo[0])
    k(f"s_lshl_b32 s{sWl}, s{sW}, 10\ns_mov_b32 s{sSTG}, {STG}")
    if OPT.get("it0"): k(("s_memtime" if K.diag == "c" else "s_memrealtime") + " s[84:85]\ns_waitcnt lgkmcnt(0)")
    k.stamp(0)
    def dma():
        W = []
        for q in range(7):
            so, imm = (s4, 64*q) if q < 4 else (s3, 64*(q - 4))
            g = [f"s_add_u32 m0, s{sB}, {XW + q*4096 - imm}", f"buffer_load_dwordx4 v{vWd}, s[{sWr}:{sWr+3}], s{so} offen offset:{imm} lds"]
            if q in (3, 6): g.append(f"s_add_u32 s{so}, s{so}, {64*pitch}")
            W.append(g)
        G = interleave(W, xdma(2048))
        G[0] = [f"s_add_u32 s{sA}, s{sSt}, s{sXl}", f"s_add_u32 s{sB}, s{sSt}, s{sWl}"] + G[0]
        return G
    def dma_now():
        for g in dma():
            for l in g: k(l)
    dma_now(); k(f"s_add_u32 s{sSt}, s{sSt}, {STG}")
    lane_parts(k)
    vX = [[8, 9], [14, 15]]; vW = [[10, 11, 12, 13], [16, 17, 29, 30]]
    k(f"""
    s_lshl_b32 s{sT}, s{sH}, 6
    v_xor_b32 v{T}, s{sT}, v{T}
    s_lshl_b32 s{sT}, s{sH}, 13
    s_add_u32 s{sT}, s{sT}, 2048
    s_lshl_b32 s{sT+1}, s{sE}, 12
    s_add_u32 s{sT+2}, s{sT}, s{sT+1}
    v_add_u32 v{vX[0][0]}, s{sT+2}, v{T}
    s_sub_u32 s{sT+2}, s{sT}, s{sT+1}
    v_add_u32 v{vX[0][1]}, s{sT+2}, v{T}
    v_xor_b32 v{vX[1][0]}, 64, v{vX[0][0]}
    v_xor_b32 v{vX[1][1]}, 64, v{vX[0][1]}
    s_lshl_b32 s{sT}, s{sH}, 11
    s_add_u32 s{sT}, s{sT}, {XW}
    s_lshl_b32 s{sT+2}, s{sE}, 13
    s_add_u32 s{sT+3}, s{sT}, s{sT+2}
    v_add_u32 v{vW[0][0]}, s{sT+3}, v{T+2}
    v_xor_b32 v{vW[0][1]}, 32, v{vW[0][0]}
    s_lshl_b32 s{sT+4}, s{sE}, 5
    v_xor_b32 v{T+1}, s{sT+4}, v{T+2}
    s_add_u32 s{sT+5}, s{sT}, s{sT+1}
    v_add_u32 v{vW[0][2]}, s{sT+5}, v{T+1}
    v_xor_b32 v{T+1}, 32, v{T+1}
    v_add_u32 v{vW[0][3]}, s{sT+3}, v{T+1}
    s_lshl_b32 s{sT}, s{sH}, 12
    s_sub_u32 s{sT}, 2048, s{sT}
    """)
    for n in range(4): k(f"v_add_u32 v{vW[1][n]}, s{sT}, v{vW[0][n]}")
    bases = [vX[0] + vW[0], vX[1] + vW[1]]
    dma_now(); k(f"s_add_u32 s{sSt}, s{sSt}, {STG}")
    fX = lambda sg, a: FR + sg*56 + a*4
    fW = lambda sg, j: FR + sg*56 + 16 + j*4
    tG = lambda a: XA + a*8; tS = lambda a: XA + a*8 + 4
    tC = lambda j: XA + 16 + j*4
    tZ = lambda a, j: ACC + (j*4 + a)*4
    isz2 = (lambda j: j < 4) if z4 else (lambda j: j >= 4)
    J2 = [j for j in range(7) if isz2(j)]; J1 = [j for j in range(7) if not isz2(j)]
    for r in range(4): k(f"v_mov_b32 v{ONES+r}, 0x3f803f80")
    for r in range(112): k(f"v_mov_b32 v{ACC+r}, 0")
    for r in range(44): k(f"v_accvgpr_write_b32 {vr(XA+r, 1)}, 0")
    dma_now(); k(f"s_mov_b32 s{sSt}, 0")
    nb = bulk(k, name, lab, False, pitch, 3)
    def reads(sg):
        return ([f"ds_read_b128 {vr(fX(sg, a))}, v{vX[sg][a >> 1]} offset:{a*2048}" for a in range(4)]
                + [f"ds_read_b64_tr_b16 {vr(fW(sg, j) + 2*j2, 2)}, v{vW[sg][(j & 1) + (0 if j < 4 else 2)]} offset:{(j >> 1)*4096 + (0 if j < 4 else 8192) + j2*256}" for j in range(7) for j2 in range(2)])
    def mfmas(sg):
        L = [mf(tZ(a, j), fX(sg, a), fW(sg, j)) if isz2(j) else mf(tZ(a, j), fW(sg, j), fX(sg, a)) for j in range(7) for a in range(4)]
        for a in range(2): L += [mf(tG(a), fX(sg, a), fX(sg, a)), mf(tS(a), ONES, fX(sg, a))]
        return L + ([mf(tC(j), ONES, fW(sg, j)) for j in range(7)] if sg == 0 else [])
    adv = lambda sg: [f"v_add_u32 v{r}, s{sDelta}, v{r}" for r in bases[sg]]
    k(f"s_mov_b32 s{sI}, 0\ns_waitcnt vmcnt({22 + nb})\ns_barrier")
    k.stamp(1)
    for l in reads(0): k(l)
    k(f"s_waitcnt lgkmcnt(0)\n.p2align 6\n{lab}_loop:")
    for l in interleave(mfmas(0), reads(1) + [f"s_cmp_eq_u32 s{sSt}, {2*STG}\ns_cselect_b32 s{sDelta}, {-2*STG}, s{sSTG}"] + adv(0), per=1): k(l)
    k(f"s_cmp_ge_u32 s{sI}, 5\ns_cbranch_scc1 {lab}_nodma\ns_waitcnt vmcnt(15) lgkmcnt(0)\ns_barrier"); itstamp(k)
    def half2(G):
        M = mfmas(1); slots = [[] for _ in range(len(M) + 1)]
        for n, l in enumerate(reads(0) + adv(1)): slots[n + 1].append(l)
        if G: place_groups(slots, G, len(M))
        weave(k, M, slots)
        k(LOOP_TAIL + f"s_cbranch_scc1 {lab}_loop")
    half2(dma() + pf_xw(pitch, 12) + pf_sp())
    k(f"""
    {lab}_nodma:
    s_cmp_eq_u32 s{sI}, 5
    s_cbranch_scc1 {lab}_five
    s_waitcnt vmcnt(13) lgkmcnt(0)
    s_barrier
    s_branch {lab}_cont
    {lab}_five:
    s_waitcnt vmcnt(15) lgkmcnt(0)
    s_barrier
    """)
    kk = K("t"); five(kk, hooks, False)
    M = mfmas(1); slots = [[] for _ in range(len(M) + 1)]
    for n, l in enumerate(reads(0) + adv(1)): slots[n + 1].append(l)
    grp, cur = [], []
    for l in kk.L:
        cur.append(l)
        if not any("exec" in x for x in cur) or l == "s_mov_b64 exec, -1": grp.append(cur); cur = []
    nfv = len(M) - 20
    for n, g in enumerate(grp): slots[n*nfv//len(grp)] += g
    place_groups(slots, f2.land_groups(sSt, sXl, sA) + pf_sp(), len(M), first=nfv)
    itstamp(k)
    weave(k, M, slots)
    k(LOOP_TAIL + f"s_branch {lab}_loop")
    k(f"{lab}_cont:"); itstamp(k)
    half2(f2.land_groups(sSt, sXl, sA) + pf_sp())
    itfinish(k)
    k.stamp(2)
    k("s_barrier")
    k.lg.q = []; k.vm.q = ["E0"]*8 + ["pf"] + ["E1"]*8 + ["pf"] + ["E2"]*8 + ["pf"]
    FILL.q, post = f2.stage_groups(k, STG)
    if OPT.get("burst"):
        k.stamp(10); k("s_waitcnt vmcnt(0)"); k.stamp(11); FILL(k, 32); k("s_waitcnt vmcnt(0)"); k.stamp(12)
    coff = lambda j: (j*64 if j < 4 else 512 + (j - 4)*64)
    pre = f"""
    s_lshl_b32 s{sT}, s{sH}, 8
    s_lshl_b32 s{sT+3}, s{sE}, 7
    s_add_u32 s{sT}, s{sT}, s{sT+3}
    s_add_u32 s{sT}, s{sT}, 64
    s_lshl_b32 s{sT+1}, s{sE}, 8
    s_mul_i32 s{sT+4}, s{sE}, 192
    s_lshl_b32 s{sT+5}, s{sH}, 10
    s_add_u32 s{sT+2}, s{sT+1}, s{sT+5}
    s_add_u32 s{sT+5}, s{sT+4}, s{sT+5}
    v_add_u32 v{T+4}, s{sT}, v{T+3}
    v_add_u32 v{T+5}, s{sT+2}, v{T+3}
    v_add_u32 v{T+6}, s{sT+5}, v{T+3}
    """
    row_tables(k, 2, tG, tS, pre, "\n".join(f"ds_write_b32 v{T+5 if j < 4 else T+6}, {vr(tC(j), 1)} offset:{TC + coff(j)}" for j in range(7)))
    FILL.flush(k); FILL.q = post
    nonce_check(k, lab)
    k(f"v_lshlrev_b32 v{T+7}, 4, v1\nv_add_u32 v{T+7}, {TOP}, v{T+7}\ns_waitcnt lgkmcnt(0)\ns_barrier")
    k.lg.q = []
    k.stamp(3)
    vI4, vG16 = T+3, T+7
    c = T; AR, BR = T+8, T+24; C2 = T+40; ST = T+48; tmp = T+80; AL = T+88; ad = T+96
    k(f"""
    s_lshl_b32 s{sT}, s{sH}, 8
    s_add_u32 s{sT}, s{sT}, 64
    s_add_u32 s{sT+2}, s{sT}, s{sT+3}
    s_sub_u32 s{sT+5}, s{sT}, s{sT+3}
    v_add_u32 v{ad}, s{sT+2}, v{vG16}
    v_add_u32 v{ad+1}, s{sT+5}, v{vG16}
    v_add_u32 v{ad+2}, s{sT+2}, v{vI4}
    v_add_u32 v{ad+3}, s{sT+5}, v{vI4}
    v_add_u32 v{ad+4}, s{sT+1 if z4 else sT+4}, v{vI4}
    v_add_u32 v{ad+5}, s{sT+4 if z4 else sT+1}, v{vG16}
    """)
    for a in range(4):
        k.ds(f"ds_read_b128 {vr(AR + a*4)}, v{ad + (a>>1)} offset:{TA + a*64}", "t")
        k.ds(f"ds_read_b128 {vr(BR + a*4)}, v{ad + (a>>1)} offset:{TB + a*64}", "t")
    for n, j in enumerate(J2):
        for hh in range(2): k.ds(f"ds_read_b32 v{C2 + 2*n + hh}, v{ad+4} offset:{TC + hh*1024 + coff(j)}", "t")
    k(f"v_mov_b32 v{c}, {f2h(GC1)}\nv_mov_b32 v{c+1}, {f2h(GC2)}")
    k.wait(lg="t")
    for a in range(4):
        k.ds(f"ds_read_b32 v{AL + a}, v{ad + 2 + (a>>1)} offset:{TA + a*64}", "u")
        k.ds(f"ds_read_b32 v{AL + 4 + a}, v{ad + 2 + (a>>1)} offset:{TB + a*64}", "u")
    for n in range(n1): k(f"v_add_f32 v{C2+2*n}, v{C2+2*n}, v{C2+2*n+1}")
    prs = lambda p, j: [tZ(2*p + (i >> 1), j) + 2*(i & 1) for i in range(4)]
    NF = OPT.get("nf", (1, 1, 1, 0))
    for n, j in enumerate(J2):
        for p in range(2):
            ys = prs(p, j); ab = [(2*p + (i >> 1))*4 + 2*(i & 1) for i in range(4)]
            for i in range(4): k(pk("mul", tmp+2*i, [(BR+ab[i], 0), (C2+2*n, 1)]))
            for i in range(4): k(pk("fma", ys[i], [(AR+ab[i], 0), (ys[i], 0), (tmp+2*i, 0)]))
            gelu_pk(k, ys, c, tmp, NF)
            for i in range(4):
                s_ = ST + (2*p + (i >> 1))*8 + 2*(i & 1); q_ = s_ + 4
                if n == 0: k(f"v_mov_b32 v{s_}, v{ys[i]}\nv_mov_b32 v{s_+1}, v{ys[i]+1}\n" + pk("mul", q_, [(ys[i], 0), (ys[i], 0)]))
                else: k(pk("add", s_, [(s_, 0), (ys[i], 0)]) + "\n" + pk("fma", q_, [(ys[i], 0), (ys[i], 0), (q_, 0)]))
    k.stamp(4)
    C1 = T+8
    for n, j in enumerate(J1):
        for hh in range(2): k.ds(f"ds_read_b128 {vr(C1 + 8*n + 4*hh)}, v{ad+5} offset:{TC + hh*1024 + coff(j)}", "u")
    for n in range(16): k(f"v_add_f32_dpp v{ST+n}, v{ST+n}, v{ST+n} row_mirror row_mask:0xf bank_mask:0x3")
    for n in range(16): k(f"v_add_f32_dpp v{ST+n}, v{ST+16+n}, v{ST+16+n} row_mirror row_mask:0xf bank_mask:0xc")
    for n in range(8): k(f"v_add_f32_dpp v{ST+n}, v{ST+n}, v{ST+n} row_half_mirror row_mask:0xf bank_mask:0x5")
    for n in range(8): k(f"v_add_f32_dpp v{ST+n}, v{ST+8+n}, v{ST+8+n} row_half_mirror row_mask:0xf bank_mask:0xa")
    for n in range(8): k(f"v_add_f32_dpp v{ST+n}, v{ST+n}, v{ST+n} quad_perm:[1,0,3,2] row_mask:0xf bank_mask:0xf")
    for n in range(8): k(f"v_add_f32_dpp v{ST+n}, v{ST+n}, v{ST+n} quad_perm:[2,3,0,1] row_mask:0xf bank_mask:0xf")
    k(f"""
    v_lshrrev_b32 v{tmp}, 2, v2
    s_lshl_b32 s{sT+6}, s{sE}, 1
    v_xor_b32 v{tmp}, s{sT+6}, v{tmp}
    v_lshl_add_u32 v{tmp}, v{tmp}, 6, v{vG16}
    s_lshl_b32 s{sT+6}, s{sE}, 10
    s_lshl_b32 s{sT+7}, s{sH}, 8
    s_add_u32 s{sT+6}, s{sT+6}, s{sT+7}
    v_add_u32 v{tmp}, s{sT+6}, v{tmp}
    ds_write_b128 v{tmp}, {vr(ST)} offset:{PS}
    ds_write_b128 v{tmp}, {vr(ST+4)} offset:{PS + 512}
    v_and_b32 v{tmp+1}, 31, v0
    s_lshl_b32 s{sT+6}, s{sW}, 7
    s_add_u32 s{sT+6}, s{sT+6}, {TOP}
    v_lshl_add_u32 v{tmp+1}, v{tmp+1}, 2, s{sT+6}
    s_add_u32 s{sXs}, s{sWS}, {XS_OFF}
    s_addc_u32 s{sXs+1}, s{sWS+1}, 0
    s_mov_b32 s{sXs+2}, {XS_SZ}
    s_mov_b32 s{sXs+3}, 0x20000
    s_lshl_b32 s{sT+8}, s{sRB}, 14
    s_lshl_b32 s{sT+6}, s{sCQ}, 12
    s_add_u32 s{sT+6}, s{sT+6}, {0 if z4 else 2048}
    s_add_u32 s{sT+6}, s{sT+6}, s{sT+8}
    s_lshl_b32 s{sT+7}, s{sW}, 9
    s_add_u32 s{sT+6}, s{sT+6}, s{sT+7}
    v_mov_b32 v{ST+10}, s{sNON}
    v_mov_b32 v{ST+11}, s{sNON}
    s_waitcnt lgkmcnt(0)
    s_barrier
    """)
    k.lg.q = []
    for n, o in enumerate((0, 512, 1024, 1536)): k.ds(f"ds_read_b32 v{ST + (8, 9, 12, 13)[n]}, v{tmp+1} offset:{PS + o}", "pr")
    for n in range(n2):
        for i in range(2): k(pk("add", C1+8*n+2*i, [(C1+8*n+2*i, 0), (C1+8*n+4+2*i, 0)]))
    k.wait(lg="pr")
    k(pk("add", ST+8, [(ST+8, 0), (ST+12, 0)]) + "\ns_mov_b64 exec, 0xffffffff")
    k.vmem(f"buffer_store_dwordx4 {vr(ST+8)}, v{vL16}, s[{sXs}:{sXs+3}], s{sT+6} offen sc1", "pub")
    k("s_mov_b64 exec, -1")
    k(f"""
    s_lshl_b32 s{sT+6}, s{sH}, 10
    s_add_u32 s{sT+6}, s{sT+6}, s{sT+8}
    s_add_u32 s{sT+7}, s{sT+6}, 4096
    s_add_u32 s{sT+8}, s{sT+6}, 8192
    s_add_u32 s{sT+9}, s{sT+6}, 12288
    s_lshl_b32 s{sT}, s{sW}, 9
    s_add_u32 s{sT+2}, s{sT}, {TOP}
    v_lshl_add_u32 v{ad+2}, v0, 2, s{sT+2}
    s_add_u32 s{sT+2}, s{sT}, s{sT+3}
    s_sub_u32 s{sT}, s{sT}, s{sT+3}
    v_add_u32 v{ad}, s{sT+2}, v{vG16}
    v_add_u32 v{ad+1}, s{sT}, v{vG16}
    s_mov_b32 s{sPr}, s{sWS}
    s_mov_b32 s{sPr+1}, s{sWS+1}
    s_mov_b32 s{sPr+2}, {Z2F_SZ}
    s_mov_b32 s{sPr+3}, 0x20000
    s_add_u32 s{sOr}, s{sWS}, {Z1L_OFF}
    s_addc_u32 s{sOr+1}, s{sWS+1}, 0
    s_mov_b32 s{sOr+2}, {Z1L_SZ}
    s_mov_b32 s{sOr+3}, 0x20000
    s_lshl_b32 s{sT}, s{sRB}, 1
    s_add_u32 s{sT}, s{sT}, s{sH}
    s_mul_i32 s{sT}, s{sT}, 112
    s_mul_i32 s{sT+2}, s{sCQ}, 14
    s_add_u32 s{sT}, s{sT}, s{sT+2}
    s_mul_i32 s{sT+2}, s{sE}, 56
    s_add_u32 s{sT+5}, s{sT}, s{sT+2}
    s_sub_u32 s{sT+10}, s{sT}, s{sT+2}
    s_add_u32 s{sT+10}, s{sT+10}, 56
    s_lshl_b32 s{sT+5}, s{sT+5}, 10
    s_lshl_b32 s{sT+10}, s{sT+10}, 10
    s_lshl_b32 s{sT+1}, s{sT+1}, 4
    s_lshl_b32 s{sT+4}, s{sT+4}, 4
    s_add_u32 s{sT+4}, s{sT+4}, 8192
    s_add_u32 s{sT}, s{sT+5}, s{sT+1 if z4 else sT+4}
    s_add_u32 s{sT+2}, s{sT+10}, s{sT+1 if z4 else sT+4}
    s_add_u32 s{sT+5}, s{sT+5}, s{sT+4 if z4 else sT+1}
    s_add_u32 s{sT+10}, s{sT+10}, s{sT+4 if z4 else sT+1}
    s_mov_b32 s{sT+11}, 0
    """)
    sZ2o, sZ1o = [sT, sT+2], [sT+5, sT+10]
    def z1_block(n, p, nf):
        j = J1[n]; ys = prs(p, j)
        for i in range(4): k(pk("mul", tmp+2*i, [(C1+8*n+2*(i & 1), 0), (AL+4+2*p+(i >> 1), 1)]))
        for i in range(4): k(pk("fma", ys[i], [(ys[i], 0), (AL+2*p+(i >> 1), 1), (tmp+2*i, 0)]))
        gelu_pk(k, ys, c, tmp, nf)
        for i in range(4): k(f"v_cvt_pk_bf16_f32 v{tZ(2*p, j)+i}, v{ys[i]}, v{ys[i]+1}")
    blocks = [(n, p) for n in range(n2) for p in range(2)]
    NA, NB = OPT.get("za", 2), OPT.get("zb", 2)
    G = T+40; NR, NM = T+48, T+64
    polls = [f"buffer_load_dwordx4 {vr(G+4*x)}, v{vL16}, s[{sXs}:{sXs+3}], s{sT+6+(x>>1)} offen offset:{(x&1)*2048} sc1" for x in range(8)]
    chk = [f"v_xor_b32 v{G+4*x+3}, s{sNON}, v{G+4*x+2}" for x in range(8)] + [
        f"v_or3_b32 v{G+3}, v{G+3}, v{G+7}, v{G+11}", f"v_or3_b32 v{G+15}, v{G+15}, v{G+19}, v{G+23}",
        f"v_or3_b32 v{G+3}, v{G+3}, v{G+27}, v{G+31}", f"v_or_b32 v{G+3}, v{G+3}, v{G+15}", f"v_cmp_ne_u32 vcc, 0, v{G+3}"]
    for b_ in blocks[:NA]: z1_block(*b_, OPT.get("nfa", (1, 1, 1, 1)))
    for l in polls: k.vmem(l, "poll")
    z1st = lambda n, p: k.vmem(f"buffer_store_dwordx4 {vr(tZ(2*p, J1[n]))}, v{vL16}, s[{sOr}:{sOr+3}], s{sZ1o[p]} offen offset:{n*1024} sc1", "p1st")
    done = 0
    if OPT.get("es", 1):
        for b_ in blocks[:NA]: z1st(*b_)
        done = NA
    for b_ in blocks[NA:NA + NB]:
        z1_block(*b_, OPT.get("nfb", (1, 1, 1, 1)))
        if OPT.get("es", 1): z1st(*b_); done += 1
    k.stamp(5)
    k.wait(vm="poll")
    k(f"s_branch {lab}_chk\n{lab}_slow:")
    for l in polls: k(l)
    k(f"s_add_u32 s{sT+11}, s{sT+11}, 1\ns_waitcnt vmcnt(0)\n{lab}_chk:")
    for l in chk: k(l)
    k(f"s_nop 3\ns_cmp_gt_u32 s{sT+11}, 100000\ns_cbranch_scc1 {lab}_got\ns_cbranch_vccnz {lab}_slow\n{lab}_got:")
    for i in range(4): k(pk("add", G+8*i, [(G+8*i, 0), (G+8*i+4, 0)]))
    for i in range(2): k(pk("add", G+16*i, [(G+16*i, 0), (G+16*i+8, 0)]))
    k(pk("add", G, [(G, 0), (G+16, 0)]))
    k(f"v_mul_f32 v{G}, {f2h(1/896)}, v{G}\nv_mul_f32 v{G+1}, {f2h(1/896)}, v{G+1}\nv_fma_f32 v{G+1}, -v{G}, v{G}, v{G+1}\nv_max_f32 v{G+1}, 0, v{G+1}")
    bf16_round(k, G+1, G+1); k(f"v_add_f32 v{G+1}, {f2h(1e-5)}, v{G+1}"); bf16_round(k, G+1, G+1)
    k(f"v_sqrt_f32 v{G+1}, v{G+1}"); bf16_round(k, G, G); bf16_round(k, G+1, G+1)
    k(f"v_rcp_f32 v{G+1}, v{G+1}\nv_mul_f32 v{G}, -v{G}, v{G+1}")
    k.ds(f"ds_write_b32 v{ad+2}, v{G+1} offset:{NT}", "nw"); k.ds(f"ds_write_b32 v{ad+2}, v{G} offset:{NT + 256}", "nw")
    k.wait(lg="nw")
    for a in range(4):
        k.ds(f"ds_read_b128 {vr(NR + a*4)}, v{ad + (a>>1)} offset:{NT + a*64}", f"n{a>>1}")
        k.ds(f"ds_read_b128 {vr(NM + a*4)}, v{ad + (a>>1)} offset:{NT + 256 + a*64}", f"n{a>>1}")
    for p in range(2):
        k.wait(lg=f"n{p}")
        for n, j in enumerate(J2):
            ys = prs(p, j); ab = [(2*p + (i >> 1))*4 + 2*(i & 1) for i in range(4)]
            for i in range(4): k(pk("fma", ys[i], [(ys[i], 0), (NR+ab[i], 0), (NM+ab[i], 0)]))
            for i in range(4): k(f"v_cvt_pk_bf16_f32 v{tZ(2*p, j)+i}, v{ys[i]}, v{ys[i]+1}")
            k.vmem(f"buffer_store_dwordx4 {vr(tZ(2*p, j))}, v{vL16}, s[{sPr}:{sPr+3}], s{sZ2o[p]} offen offset:{n*1024} sc1", "z2st")
    k.stamp(6)
    for b_ in blocks[NA + NB:NA + NB + 2]: z1_block(*b_, OPT.get("nf2", (1, 1, 1, 1)))
    FILL(k, OPT.get("zc", 6))
    k.stamp(7)
    hooks["z2flag"](k, V)
    k.stamp(8)
    for b_ in blocks[NA + NB + 2:]: z1_block(*b_, (1, 1, 1, 1))
    for b_ in blocks[done:]: z1st(*b_)
    FILL.flush(k)
    after(k, V)
```

```python
import sys
sys.path.insert(0, "gen")
from build import *
from layout import *
import f1, f2, f3, g1
NAME = "parallel_sum__sliding_local_dilated__mixer_gmlp__prompt_kernel"
args = sys.argv[2:]
K.diag = "c" if "c" in args else "h" if "h" in args else ("d" in args)
kv = dict(a.split("=") for a in args if "=" in a)
for o in args:
    if o not in 'dch' and '=' not in o: f1.OPT[o] = 1
K.dbgslot = 0
pol = lambda n, d: kv.get(n, d).replace("_", " ").replace("-", "")
k = K(NAME); n = "F"
real_stamp = K.stamp
PH = {"p": 1}
MAP = {1: {0: 0, 2: 1}, 2: {3: 4}, 3: {6: 6}}
P1D = "p1" in args
if P1D: MAP = {1: {0: 0, 2: 1, 3: 2, 4: 3, 5: 4, 6: 5}}
if "it" in args or "p2t" in args: MAP = {}; P1D = True; PH["direct"] = None
if "p1b" in args: P1D = True; MAP = {1: {2: 0, 4: 1, 5: 2, 6: 3, 7: 4, 8: 5}}
if "burst" in args: P1D = True; MAP = {1: {2: 0, 10: 1, 11: 2, 12: 3, 3: 4, 4: 5}}
P3D = "p3" in args
if P3D: MAP = {2: {3: 0, 4: 1}, 3: {6: 4, 7: 6}}
_rs = real_stamp
def real_stamp(k, i):
    if P3D:
        if i in (5, 8, 9): _rs(k, {5: 2, 8: 3, 9: 5}[i])
        return
    if i > 7: return
    if PH.get("direct", 1) is None: return
    if P1D and PH.get("direct", True):
        if i == 2: _rs(k, 6)
        if i == 3: _rs(k, 7)
    else: _rs(k, i)
def stamp(self, i):
    m = MAP.get(PH["p"], {})
    if i in m: _rs(self, m[i])
K.stamp = stamp
sFl = sR4
def flag_srd(k, s):
    k(f"s_add_u32 s{s}, s{sWS}, {FL_OFF}\ns_addc_u32 s{s+1}, s{sWS+1}, 0\ns_mov_b32 s{s+2}, {FL_SZ}\ns_mov_b32 s{s+3}, 0x20000")
def set_flag(k, lab, soff_code, lanes, vstride_shift, tag=None, so=sT):
    if tag: k.wait(vm=tag)
    else: k("s_waitcnt vmcnt(0)"); k.vm.q = []
    flag_srd(k, sFl)
    k(soff_code)
    k(f"s_lshl_b32 s{so+1}, s{sW}, 6\ns_add_u32 s{so}, s{so}, s{so+1}")
    k(f"v_lshlrev_b32 v28, {vstride_shift}, v0\nv_mov_b32 v29, s{sNON}\ns_mov_b64 exec, {(1 << lanes) - 1}")
    k(f"buffer_store_dword v29, v28, s[{sFl}:{sFl+3}], s{so} offen sc1\ns_mov_b64 exec, -1")
    k.vm.issue("flag")
sFD = 59
def z2flag(k, V):
    code = f"s_lshl_b32 s{sT}, s{f1.sRB}, 2\ns_add_u32 s{sT}, s{sT}, s{f1.sCQ}\ns_lshl_b32 s{sT}, s{sT}, 9\ns_add_u32 s{sT}, s{sT}, {FZ2 + (0 if V == 'B43' else 256)}"
    set_flag(k, f"L_{n}_fz{V}", code, 1, 2, tag="z2st")
f1.OPT["z2flag"] = z2flag
def after1(k, V):
    real_stamp(k, 2)
    PH["V"] = V
    if V == "A":
        k(f"s_lshl_b32 s{sFD}, s{f1.sRB}, 4\ns_add_u32 s{sFD}, s{sFD}, s{f1.sSUB}\ns_lshl_b32 s{sFD}, s{sFD}, 8")
    else:
        k(f"s_lshl_b32 s{sFD}, s{f1.sRB}, 3\ns_add_u32 s{sFD}, s{sFD}, s{f1.sCQ}\ns_lshl_b32 s{sFD}, s{sFD}, 9\ns_add_u32 s{sFD}, s{sFD}, {2048 + (0 if V == 'B43' else 256)}")
    k(f"s_lshl_b32 s{sT}, s{sW}, 6\ns_add_u32 s{sFD}, s{sFD}, s{sT}\ns_add_u32 s{sFD}, s{sFD}, {FD}")
    if V != "A": k(f"s_branch L_{n}_p2")
def poll(k, lab, loads, nreg):
    flag_srd(k, sFl)
    loads(k, True)
    k(f"s_mov_b32 s{sT+10}, 0\n{lab}:")
    loads(k, False)
    k(f"s_add_u32 s{sT+10}, s{sT+10}, 1\ns_waitcnt vmcnt(0)")
    for r in range(nreg): k(f"v_xor_b32 v{28+r}, s{sNON}, v{28+r}")
    for r in range(1, nreg): k(f"v_or_b32 v28, v28, v{28+r}")
    k(f"v_cmp_ne_u32 vcc, 0, v28\ns_nop 3\ns_cmp_gt_u32 s{sT+10}, 100000\ns_cbranch_scc1 {lab}_go\ns_cbranch_vccnz {lab}\n{lab}_go:\ns_mov_b64 exec, -1")
    k.vm.q = []
def wait_z2(k):
    def loads(k, pre):
        if pre: k(f"s_lshl_b32 s{sT+8}, s{sW}, 13\ns_lshr_b32 s{sT+9}, s{f2.sCB}, 1\ns_lshl_b32 s{sT+9}, s{sT+9}, 9\ns_add_u32 s{sT+8}, s{sT+8}, s{sT+9}\nv_bfe_u32 v26, v0, 3, 2\nv_lshlrev_b32 v26, 11, v26\nv_and_b32 v27, 7, v0\nv_lshl_add_u32 v26, v27, 6, v26")
        else: k(f"s_mov_b64 exec, 0xffffffff\nbuffer_load_dword v28, v26, s[{sFl}:{sFl+3}], s{sT+8} offen offset:{FZ2} sc1")
    poll(k, f"L_{n}_pz", loads, 1)
    real_stamp(k, 3)
def mid_load(k):
    return [("i", f"""s_add_u32 s{sFl}, s{sWS}, {FL_OFF}
    s_addc_u32 s{sFl+1}, s{sWS+1}, 0
    s_mov_b32 s{sFl+2}, {FL_SZ}
    s_mov_b32 s{sFl+3}, 0x20000
    s_lshr_b32 s{sT+9}, s{f2.sRB2}, 1
    s_lshl_b32 s{sT+9}, s{sT+9}, 12
    s_add_u32 s{sT+9}, s{sT+9}, {FD}
    v_lshlrev_b32 v27, 6, v0
    s_mov_b32 s{sT+10}, 0"""), ("v", f"buffer_load_dword v28, v27, s[{sFl}:{sFl+3}], s{sT+9} offen sc1", "fz1")]
def mid_check(k):
    lab = f"L_{n}_pd"
    return [("i", f"""s_branch {lab}_chk
    {lab}:
    s_sleep 2
    buffer_load_dword v28, v27, s[{sFl}:{sFl+3}], s{sT+9} offen sc1
    s_add_u32 s{sT+10}, s{sT+10}, 1
    s_waitcnt vmcnt(0)
    {lab}_chk:
    v_cmp_ne_u32 vcc, s{sNON}, v28
    s_nop 3
    s_cmp_gt_u32 s{sT+10}, 100000
    s_cbranch_scc1 {lab}_go
    s_cbranch_vccnz {lab}
    {lab}_go:""")]
def done2(k): real_stamp(k, 5)
def flag2(k):
    code = f"s_lshl_b32 s{sT}, s{f2.sRB2}, 11\ns_lshl_b32 s{sT+1}, s{f2.sCB}, 8\ns_add_u32 s{sT}, s{sT}, s{sT+1}\ns_add_u32 s{sT}, s{sT}, {FH}"
    set_flag(k, f"L_{n}_flh", code, 1, 2, tag="hs")
    real_stamp(k, 8)
def wait_h(k):
    def loads(k, pre):
        if pre: k(f"s_lshl_b32 s{sT+8}, s{f2.sRB2}, 11\ns_lshl_b32 s{sT+9}, s{sW}, 9\ns_add_u32 s{sT+8}, s{sT+8}, s{sT+9}\ns_add_u32 s{sT+8}, s{sT+8}, {FH}\nv_lshlrev_b32 v27, 6, v0")
        else: k(f"s_mov_b64 exec, 0xff\nbuffer_load_dword v28, v27, s[{sFl}:{sFl+3}], s{sT+8} offen sc1")
    poll(k, f"L_{n}_ph", loads, 1)
    k.srd(f3.sOr3, sOUT, 2048*1024)
    real_stamp(k, 9)
f1.OPT["bulk"] = (pol("bulk", "-") or 1) if kv.get("bulk") != "0" else 0
def pre2(k):
    f3.early_setup(k)
    if int(kv.get('pf3', 2)) == 1: pf3_setup(k)
def pf3_setup(k):
    k(f"""
    s_lshr_b32 s{sT}, s2, 3
    s_lshl_b32 s{sT}, s{sT}, 2
    s_add_u32 s{sT}, s{sT}, s{sW}
    s_and_b32 s{sT+1}, s2, 1
    s_lshl_b32 s{sT+1}, s{sT+1}, 9
    v_lshrrev_b32 v23, 2, v0
    v_and_b32 v29, 3, v0
    v_lshlrev_b32 v29, 7, v29
    v_lshl_add_u32 v23, v23, 10, v29
    s_mul_i32 s{sT+5}, s{sT}, 7168
    s_add_u32 s{sT+5}, s{sT+5}, s{sT+1}
    s_lshl_b32 s{sT+6}, s{sT}, 12
    s_add_u32 s{sT+6}, s{sT+6}, s{sT+1}
    s_bfe_u32 s{sT+7}, s2, 0x20001
    s_lshl_b32 s{sT+7}, s{sT+7}, 19
    s_add_u32 s{sT+7}, s{sT+7}, s{sT+6}
    """)
def pf3(s):
    if s == 3:
        return [[("i", f"s_add_u32 s{sFl}, s{sWS}, {FL_OFF}\ns_addc_u32 s{sFl+1}, s{sWS+1}, 0\ns_mov_b32 s{sFl+2}, {FL_SZ}\ns_mov_b32 s{sFl+3}, 0x20000\nv_mov_b32 v29, s{sNON}\nv_mov_b32 v30, 0\ns_mov_b64 exec, 1"),
                 ("v", f"buffer_store_dword v29, v30, s[{sFl}:{sFl+3}], s{sFD} offen sc1", "fd"), ("i", "s_mov_b64 exec, -1")]]
    if s > 2 or int(kv.get("pf3", 2)) != 1: return []
    base, sz, so, ex = [(sWO, 512*1024, sT+6, 0xffff), (sWOUT, 896*1024, sT+5, 0xfffffff), (sX, 2048*1024, sT+7, 0xffff)][s]
    return [[("i", f"s_mov_b32 s{sR4}, s{base}\ns_mov_b32 s{sR4+1}, s{base+1}\ns_mov_b32 s{sR4+2}, {sz}\ns_mov_b32 s{sR4+3}, 0x20000\ns_mov_b64 exec, {ex}"),
             ("v", f"buffer_load_dword v31, v23, s[{sR4}:{sR4+3}], s{so} offen", "pf3"), ("i", "s_mov_b64 exec, -1")]]
if "nza" in kv: f1.OPT["nza"] = int(kv["nza"])
f1.prologue(k, n)
f2.REST = int(kv.get('rest', 0))
for o in ('nf', 'nf2', 'nfa', 'nfb'):
    if o in kv: f1.OPT[o] = tuple(int(c) for c in kv[o])
def hk(fn):
    def h(k): f1.FILL.q = fn(k)
    return h
for o in ("ne", "ns", "fp", "wl"):
    if o in kv: f3.P3O[o] = int(kv[o])
f1.OPT["pfm"] = 2
for o in ("tp", "tc", "zf", "pfm", "za", "zb", "zc", "es"):
    if o in kv: f1.OPT[o] = int(kv[o])
def pf3A(k):
    if int(kv.get("pf3", 2)) != 2: return 0
    k(f"""
    s_and_b32 s{sT+1}, s2, 1
    s_lshl_b32 s{sT+1}, s{sT+1}, 9
    v_lshrrev_b32 v146, 2, v0
    v_and_b32 v147, 3, v0
    v_lshlrev_b32 v147, 7, v147
    v_lshl_add_u32 v146, v146, 10, v147
    s_mul_i32 s{sT+5}, s{sT}, 14336
    s_add_u32 s{sT+5}, s{sT+5}, s{sT+1}
    s_lshl_b32 s{sT+6}, s{sT}, 13
    s_add_u32 s{sT+6}, s{sT+6}, s{sT+1}
    s_bfe_u32 s{sT+7}, s2, 0x20001
    s_lshl_b32 s{sT+7}, s{sT+7}, 19
    s_add_u32 s{sT+7}, s{sT+7}, s{sT+6}
    """)
    k.srd(sR4, sWOUT, 896*1024)
    k(f"s_mov_b32 exec_hi, 0xffffff\nbuffer_load_dword v28, v146, s[{sR4}:{sR4+3}], s{sT+5} offen")
    k.srd(sR4, sWO, 512*1024)
    k(f"s_mov_b32 exec_hi, 0\nbuffer_load_dword v28, v146, s[{sR4}:{sR4+3}], s{sT+6} offen")
    k.srd(sR4, sX, 2048*1024)
    k(f"buffer_load_dword v28, v146, s[{sR4}:{sR4+3}], s{sT+7} offen\ns_mov_b64 exec, -1")
    return 3
g1.gen_p1(k, n, after1, dict(pf3A=pf3A, stageB=hk(f2.stage_groups_B), stageB2=hk(f2.stage_groups_B2), z2flag=z2flag))
k(f"L_{n}_p2:")
PH["p"] = 2
k("s_waitcnt lgkmcnt(0)\ns_barrier")
k.vm.q = ["A4", "A5", "A6"]; k.lg.q = []
f2.gen_p2(k, n, wait_z2, done2, st_pol="sc1", h_pol=pol("h2", "sc1"), DB=int(kv.get("DB", 4)), pfb=int(kv.get("pfb", 0)), tail=f3.tail(pol("h3", "sc1")), pre=pre2, mid=(mid_load, mid_check, pf3), rest=[f2.gA(7, m) for m in range(8)] if f2.REST else [])
PH["p"] = 3
f3.gen_p3(k, n, flag2, wait_h, st_pol=pol("st3", "sc1"), h_pol=pol("h3", "sc1"))
K.stamp = (lambda self, i: None) if P1D else _rs
k.stamp_end(0, sWS, sW, 7)
k(f"L_{n}_end:\ns_endpgm")
txt = assemble([(k, 512, 256, f1.LDSF)]).replace(f"; @launch kernel={NAME} grid", "; @launch grid")
open(sys.argv[1], "w").write(txt)
check(sys.argv[1], NAME)
```

```python
from asmlib import *
from layout import *
from f1 import pk, P, vL16
NREST = 4
WREG = 33792
LDS2 = 4*WREG
RING = 1024
sAr, sZ2, sZ1, sA3, sBs = sR0, sR1, sR2, sR3, sR4
sRB2, sCB, sReg, sBo = 81, 82, 73, 11
sAo = [83, 27, 58, 72]
sLand = 101
sU = sT + 6
vAd = [23, 31]; vB1 = 6; vAr = [252, 253, 254, 255]; vRW = 12; vRR = [13, 14, 15]; BS = 18; vZ = 19
Z1 = 18
ACC = 32
RAW = 160
Z1 = 176
T = 192
BR = 256
AS = 256 + 112
def ASr(s): return 256 + 160 + 16*s if s < 6 else 256 + 128 + 16*(s - 6)

def setup_v(k):
    k(f"""
    v_and_b32 v3, 7, v0
    v_xor_b32 v3, v3, v1
    v_lshlrev_b32 v3, 4, v3
    v_lshrrev_b32 v7, 3, v0
    v_lshl_add_u32 v{vAd[0]}, v7, 12, v3
    v_xor_b32 v{vAd[1]}, 64, v{vAd[0]}
    v_add_u32 v{vAd[1]}, 0x8000, v{vAd[1]}
    """)
def ids(k, sRB2=sRB2, sCB=sCB):
    k(f"""
    s_and_b32 s{sU}, s2, 7
    s_lshr_b32 s{sU+1}, s2, 3
    s_lshr_b32 s{sRB2}, s{sU}, 1
    s_lshl_b32 s{sRB2}, s{sRB2}, 3
    s_lshr_b32 s{sU+2}, s{sU+1}, 2
    s_add_u32 s{sRB2}, s{sRB2}, s{sU+2}
    s_and_b32 s{sCB}, s{sU}, 1
    s_lshl_b32 s{sCB}, s{sCB}, 2
    s_and_b32 s{sU+2}, s{sU+1}, 3
    s_add_u32 s{sCB}, s{sCB}, s{sU+2}
    """)
def setup(k):
    sRB2 = sT + 4
    ids(k, sT + 4, sT + 5)
    for u in range(4):
        k(f"""
        s_xor_b32 s{sU}, s{sW}, {u}
        s_lshl_b32 s{sU+1}, s{sRB2}, 2
        s_add_u32 s{sU}, s{sU}, s{sU+1}
        s_lshl_b32 s{sU}, s{sU}, 16
        s_lshl_b32 s{sU+1}, s{sW}, 10
        s_add_u32 s{sAo[u]}, s{sU}, s{sU+1}
        """)

def gA(sl, m, a_pol="", sAr=sAr):
    return [("i", f"s_add_u32 m0, s{sReg}, {RING + (sl%4)*8192 + m*1024 - 128*sl}"), ("i", "s_nop 0"),
            ("v", f"buffer_load_dwordx4 v{vAd[m&1]}, s[{sAr}:{sAr+3}], s{sAo[m>>1]} offen offset:{128*sl} {a_pol} lds", f"A{sl}")]
def R(s, dst=None):
    d = RAW + (s&1)*16 if dst is None else dst
    return [("d", f"ds_read_b64 {vr(d + u*4 + 2*j2, 2)}, v{vAr[2*(s&1) + j2]} offset:{RING + ((s>>1)%4)*8192 + u*2048}", f"R{s}") for u in range(4) for j2 in range(2)]
def read_bases(k, sReg=sReg):
    k(f"""
    v_xor_b32 v3, v2, v1
    v_lshrrev_b32 v3, 1, v3                 ; (i>>1) ^ (g>>1)
    v_lshlrev_b32 v3, 4, v3
    v_lshl_add_u32 v3, v2, 7, v3
    v_and_b32 v7, 1, v1
    v_lshl_add_u32 v3, v7, 3, v3
    v_add_u32 v{vAr[0]}, s{sReg}, v3
    v_xor_b32 v{vAr[1]}, 32, v{vAr[0]}
    v_xor_b32 v{vAr[2]}, 64, v{vAr[0]}
    v_xor_b32 v{vAr[3]}, 96, v{vAr[0]}
    """)
def early(k):
    setup(k)
    k.srd(sAr, sWSP, 2048*4096)
def land_groups(sSt, sXl, sA):
    G = [[f"s_add_u32 m0, s{sA}, {m*1024}", f"buffer_load_dwordx4 v{vAd[m&1]}, s[{sAr}:{sAr+3}], s{sAo[m>>1]} offen lds"] + ([f"s_add_u32 s{sAo[m>>1]}, s{sAo[m>>1]}, 128"] if m & 1 else []) for m in range(8)]
    G[0] = [f"s_lshl_b32 s{sA}, s{sXl}, 1", f"s_add_u32 s{sA}, s{sA}, s{sSt}"] + G[0]
    return G
def stage_groups(k, STG):
    k(f"s_lshl_b32 s{sLand}, s{sW}, 13\ns_mul_i32 s{sReg}, s{sW}, {WREG}")
    read_bases(k, sLand)
    for u in range(4): k(f"s_sub_u32 s{sAo[u]}, s{sAo[u]}, 384")
    adv = lambda d: [("i", f"v_add_u32 v{r}, {d}, v{r}") for r in vAr]
    def rdl(sl, off):
        L = [("d", f"ds_read_b64 {vr(ASr(2*sl + sp) + u*4 + 2*j2, 2)}, v{vAr[2*sp + j2]} offset:{off + u*2048}", f"L{sl}") for sp in range(2) for u in range(4) for j2 in range(2)]
        return [[("w", f"E{sl}", None)] + L[:8], L[8:]]
    r1, r2, r0 = rdl(1, 0), rdl(2, STG), rdl(0, STG)
    pre = [adv(STG) + r0[0], r0[1] + adv(-STG), r1[0], r1[1], r2[0], r2[1] + [("i", f"s_sub_u32 s{sLand}, s{sReg}, s{sLand}")] + [("i", f"v_add_u32 v{r}, s{sLand}, v{r}") for r in vAr]]
    L3 = R(6, ASr(6)) + R(7, ASr(7))
    g7 = [gA(7, m) for m in range(8)]; g7[0] = [("w", None, "R7")] + g7[0]
    post = ([gA(3, m) for m in range(8)] + [gA(4, m) for m in range(8)] + [gA(5, m) for m in range(4)] + [[("w", "A3", None)] + L3[:8], L3[8:]]
            + [gA(5, m) for m in range(4, 8)] + [gA(6, m) for m in range(8)] + g7)
    return pre, post

def stage_groups_B(k):
    setup(k)
    k(f"s_mul_i32 s{sLand}, s{sW}, 14336\ns_add_u32 s{sLand}, s{sLand}, {98304 + 1024}\ns_mul_i32 s{sReg}, s{sW}, {WREG}")
    read_bases(k, sLand)
    k.srd(sR2, sWSP, 2048*4096)
    def dm(h):
        sl, hf, buf = h >> 1, h & 1, h % 3
        G = []
        for m in range(4*hf, 4*hf + 4):
            G.append([("i", f"s_add_u32 m0, s{sLand}, {buf*4096 + (m&3)*1024 - 128*sl}"), ("i", "s_nop 0"),
                      ("v", f"buffer_load_dwordx4 v{vAd[m&1]}, s[{sR2}:{sR2+3}], s{sAo[m>>1]} offen offset:{128*sl} lds", f"H{h}")])
        if h >= 3: G[0] = [("w", None, f"L{h-3}")] + G[0]
        return G
    def rd(h):
        sl, hf, buf = h >> 1, h & 1, h % 3
        return [("w", f"H{h}", None)] + [("d", f"ds_read_b64 {vr(ASr(2*sl + sp) + (2*hf + u)*4 + 2*j2, 2)}, v{vAr[2*sp + j2]} offset:{buf*4096 + u*2048}", f"L{h}")
                                         for sp in range(2) for u in range(2) for j2 in range(2)]
    G = dm(0) + dm(1) + dm(2)[:2] + [rd(0)] + dm(2)[2:]
    for h in range(1, 8):
        d = dm(h + 2) if h + 2 < 8 else []
        G += d[:2] + [rd(h)] + d[2:]
    G[-1] = G[-1] + [("i", f"s_sub_u32 s{sLand}, s{sReg}, s{sLand}")] + [("i", f"v_add_u32 v{r}, s{sLand}, v{r}") for r in vAr]
    return G
def stage_groups_B2(k):
    k.srd(sAr, sWSP, 2048*4096)
    return [gA(sl, m) for sl in range(4, 8 - NREST) for m in range(8)]

sFU = 74
def gen_p2(k, name, NJ, wait_z2, tail, mid, pre, rest, DB=4):
    NS = 16
    RAWv, Z1, ZU = RAW, 192, 208
    vB = [vL16, vB1]
    ids(k)
    k(f"""
    v_add_u32 v{vB1}, 4096, v{vL16}
    s_and_b32 s{sT}, s{sCB}, 3
    s_lshl_b32 s{sFU}, s{sT}, 3
    s_cmp_eq_u32 s{sT}, 3
    s_cselect_b32 s{sFU}, 22, s{sFU}
    s_lshr_b32 s{sT}, s{sCB}, 2
    s_mul_i32 s{sT}, s{sT}, 28
    s_add_u32 s{sFU}, s{sFU}, s{sT}
    s_mul_i32 s{sBo}, s{sW}, {16*56}
    s_add_u32 s{sBo}, s{sBo}, s{sFU}
    s_lshl_b32 s{sBo}, s{sBo}, 10
    """)
    k.srd(sZ2, sWS, Z2F_SZ)
    def gB(s, j):
        g = [("i", f"s_add_u32 s{sT}, s{sBo}, {s*57344}")] if j == 0 else []
        return g + [("v", f"buffer_load_dwordx4 {vr(BR + (s%DB)*4*NJ + j*4)}, v{vB[j//4]}, s[{sZ2}:{sZ2+3}], s{sT} offen offset:{(j%4)*1024} sc1", f"B{s}")]
    def emit(item):
        if item[0] == "i": k(item[1])
        elif item[0] == "v": k.vmem(item[1], item[2])
        elif item[0] == "d": k.ds(item[1], item[2])
        elif item[0] == "w": k.wait(vm=item[1], lg=item[2])
    def em(gs):
        for g in gs:
            for it in g: emit(it)
    k(f"""
    s_add_u32 s{sZ1}, s{sWS}, {Z1L_OFF}
    s_addc_u32 s{sZ1+1}, s{sWS+1}, 0
    s_mov_b32 s{sZ1+2}, {Z1L_SZ}
    s_mov_b32 s{sZ1+3}, 0x20000
    s_add_u32 s{sA3}, s{sWS}, {A3_OFF}
    s_addc_u32 s{sA3+1}, s{sWS+1}, 0
    s_mov_b32 s{sA3+2}, {A3_SZ}
    s_mov_b32 s{sA3+3}, 0x20000
    v_add_u32 v{vRW}, s{sReg}, v{vL16}
    """)
    k.srd(sBs, sBSP, 4096)
    for u in range(1, 4):
        k(f"""
        s_xor_b32 s{sT+1}, s{sW}, {u}
        s_mul_i32 s{sT+1}, s{sT+1}, {WREG}
        s_add_u32 s{sT+1}, s{sT+1}, {(u-1)*8192}
        v_add_u32 v{vRR[u-1]}, s{sT+1}, v{vL16}
        """)
    k(f"""
    s_lshl_b32 s{sT+4}, s{sRB2}, 1
    s_lshr_b32 s{sT+1}, s{sW}, 1
    s_add_u32 s{sT+4}, s{sT+4}, s{sT+1}
    s_mul_i32 s{sT+4}, s{sT+4}, 56
    s_add_u32 s{sT+4}, s{sT+4}, s{sFU}
    s_lshl_b32 s{sT+4}, s{sT+4}, 10
    s_and_b32 s{sT+1}, s{sW}, 1
    s_lshl_b32 s{sT+1}, s{sT+1}, 3
    s_add_u32 s{sT+2}, s{sT+4}, s{sT+1}
    s_lshl_b32 s{sT+3}, s{sRB2}, 2
    s_add_u32 s{sT+3}, s{sT+3}, s{sW}
    s_mul_i32 s{sT+4}, s{sT+3}, 44
    s_lshl_b32 s{sT+3}, s{sT+3}, 5
    s_lshr_b32 s{sT+1}, s{sFU}, 1
    s_add_u32 s{sT+4}, s{sT+4}, s{sT+1}
    s_add_u32 s{sT+4}, s{sT+4}, 16
    s_lshl_b32 s{sT+4}, s{sT+4}, 10
    v_lshlrev_b32 v{vZ}, 1, v2
    """)
    k.vmem(f"buffer_load_ushort v{BS}, v{vZ}, s[{sBs}:{sBs+3}], s{sT+3} offen", "bs")
    pre(k)
    wait_z2(k, name)
    em([gB(s, j) for s in range(DB - 1) for j in range(NJ)])
    Aop = lambda s: ASr(s) if s < 8 else RAWv + (s&1)*16
    NM = 4*NJ
    wr = lambda u, j: ("d", f"ds_write_b128 v{vRW}, {vr(ACC + (u*NJ+j)*4)} offset:{(u-1)*8192 + j*1024}", "rw")
    TG = []
    for s in range(NS):
        order = [(u, j) for j in range(NJ) for u in range(4)] if s < NS - 1 else [(u, j) for u in (3, 2, 1, 0) for j in range(NJ)]
        MF = [f"v_mfma_f32_16x16x32_bf16 {vr(ACC + (u*NJ+j)*4)}, {vr(BR + (s%DB)*NM + j*4)}, {vr(Aop(s) + u*4)}, {vr(ACC + (u*NJ+j)*4) if s else '0'}" for u, j in order]
        slots = [[] for _ in range(NM + 1)]
        slots[0].append(("w", f"B{s}", f"R{s}"))
        if 8 <= s + 1 < NS:
            slots[1].append(("w", f"A{(s+1)>>1}", None))
            for u, it in enumerate(R(s + 1)): slots[1 + u].append(it)
        G = [gB(s + DB - 1, j) for j in range(NJ)] if s + DB - 1 < NS else []
        if s < 8 and rest: G = interleave(G, rest[s*len(rest)//8:(s + 1)*len(rest)//8])
        G = G + mid[2](s)
        if s == 8: G = G + [mid[0](k)]
        if s == 13:
            slots[0] = [("w", "fz1", None)] + slots[0] + mid[1](k, name)
            G += [[("v", f"buffer_load_dwordx2 {vr(Z1 + 2*j, 2)}, v{vB[j//4]}, s[{sZ1}:{sZ1+3}], s{sT+2} offen offset:{(j%4)*1024} sc1", "z1")] for j in range(NJ)]
        if s == 14: TG = tail(k); G += TG[8:16]
        if s == 15:
            G += TG[:8]
            W_ = [wr(u, j) for u in (3, 2, 1) for j in range(NJ)]
            for n in range(NJ + 3, NM + 1): slots[n].append(W_.pop(0))
        for n, g in enumerate(G): slots[1 + n*(NM - 1)//max(1, len(G))] += g
        for i, m in enumerate(MF):
            for it in slots[i]: emit(it)
            k(m)
        for it in slots[NM]: emit(it)
    k.stamp(3)
    TG = TG[16:]
    k.wait(vm="z1")
    un = [f"v_lshlrev_b32 v{ZU + j*4 + 2*d}, 16, v{Z1 + 2*j + d}\nv_and_b32 v{ZU + j*4 + 2*d + 1}, 0xffff0000, v{Z1 + 2*j + d}" for j in range(NJ) for d in range(2)]
    for it in W_:
        emit(it)
        if TG: em([TG.pop(0)])
    for l in un: k(l)
    k(f"v_lshlrev_b32 v{BS}, 16, v{BS}")
    for j in range(NJ):
        for d in range(2): k(pk("add", ACC + j*4 + 2*d, [(ACC + j*4 + 2*d, 0), (BS, 1)]))
    k("s_waitcnt lgkmcnt(0)\ns_barrier"); k.lg.q = []
    k.stamp(4)
    Pp = ACC + NM
    for j in range(NJ):
        for u in range(3):
            k.ds(f"ds_read_b128 {vr(Pp + j*12 + u*4)}, v{vRR[u]} offset:{j*1024}", f"p{j}")
    H = Z1
    for j in range(NJ):
        em(TG[:2]); TG = TG[2:]
        k.wait(lg=f"p{j}")
        p = Pp + j*12; g = ACC + j*4
        for d in range(2): k(pk("add", g+2*d, [(g+2*d, 0), (p+2*d, 0)]))
        for d in range(2): k(pk("add", p+4+2*d, [(p+4+2*d, 0), (p+8+2*d, 0)]))
        for d in range(2): k(pk("add", g+2*d, [(g+2*d, 0), (p+4+2*d, 0)]))
        for d in range(2): k(pk("mul", g+2*d, [(g+2*d, 0), (ZU+j*4+2*d, 0)]))
        for d in range(2): k(f"v_cvt_pk_bf16_f32 v{H+2*j+d}, v{g+2*d}, v{g+2*d+1}")
        if j & 1: k.vmem(f"buffer_store_dwordx4 {vr(H+2*j-2)}, v{vL16}, s[{sA3}:{sA3+3}], s{sT+4} offen offset:{(j>>1)*1024} sc1", "hs")
```

```python
from asmlib import *
from layout import *
from f1 import pk, P, vL16, TOP
from f2 import WREG, sRB2, sCB, sReg, sA3
sWoR, sWuR, sXr3, sOr3 = sR0, sR1, sR2, sR4
vWd, vT, vRW, vRR, vX = 4, [5, 7], 8, [9, 10], 11
vA = [vL16, 6]
XD = 12
ACC = 32
BF = 96
AO = 256 + 128
AH = 256
sAo = [3, 10, 100, 78]; sXo = [79, 80]; sSo = [101, 75]; sTop = 76; sNB = 77


def stage(s):
    if s < 2: return (sReg, 24576 + s*4096)
    if s == 2: return (sTop, 0)
    if s < 9: return (sReg, (s - 3)*4096)
    return (sReg, 24576 + (s - 9)*4096)
def gW(s):
    srd = sWoR if s < 4 else sWuR
    b, o = stage(s)
    G = []
    for q in range(2):
        for m2 in range(2):
            G.append([("i", f"s_add_u32 m0, s{b}, {o + q*2048 + m2*1024 - 64*q}"), ("i", "s_nop 0"),
                      ("v", f"buffer_load_dwordx4 v{vWd}, s[{srd}:{srd+3}], s{sSo[m2]} offen offset:{64*q} lds", f"W{s}")])
    G[-1].append(("i", f"s_add_u32 s{sSo[0]}, s{sSo[0]}, 32768\ns_add_u32 s{sSo[1]}, s{sSo[1]}, 32768"))
    return G
def early_setup(k):
    k(f"""
    v_and_b32 v26, 1, v1
    v_lshlrev_b32 v26, 1, v26
    v_and_b32 v3, 3, v0
    v_xor_b32 v26, v3, v26
    v_lshlrev_b32 v26, 4, v26
    v_lshrrev_b32 v27, 2, v0
    v_lshl_add_u32 v{vWd}, v27, 10, v26
    s_lshl_b32 s{sNB}, s{sCB}, 7
    s_lshl_b32 s{sSo[0]}, s{sW}, 17
    s_add_u32 s{sSo[0]}, s{sSo[0]}, s{sNB}
    s_add_u32 s{sSo[1]}, s{sSo[0]}, 16384
    s_mul_i32 s{sTop}, s{sW}, 4096
    s_add_u32 s{sTop}, s{sTop}, {TOP}
    s_mul_i32 s{sAo[0]}, s{sRB2}, 176
    s_lshl_b32 s{sAo[1]}, s{sW}, 2
    s_add_u32 s{sAo[0]}, s{sAo[0]}, s{sAo[1]}
    s_lshl_b32 s{sAo[0]}, s{sAo[0]}, 10
    s_add_u32 s{sAo[1]}, s{sAo[0]}, {44*1024}
    s_add_u32 s{sAo[2]}, s{sAo[0]}, {88*1024}
    s_add_u32 s{sAo[3]}, s{sAo[0]}, {132*1024}
    """)
def tail(h_pol):
    def f(k):
        gO = lambda t: [[("v", f"buffer_load_dwordx4 {vr(AO + t*16 + u*4)}, v{vL16}, s[{sA3}:{sA3+3}], s{sAo[u]} offen offset:{t*1024} {h_pol}", f"A{t}")] for u in range(4)]
        k.srd(sWoR, sWO, 512*1024)
        return gW(0) + gW(1) + gO(0) + gO(1) + gW(2) + gO(2) + gO(3)
    return f

P3O = {}
def gen_p3(k, name, flag, wait_h, st_pol="sc1", h_pol="sc1"):
    def em(gs):
        for g in gs:
            for it in g:
                if it[0] == "i": k(it[1])
                else: k.vmem(it[1], it[2])
    k(f"""
    s_barrier
    """)
    em(gW(3))
    k(f"""
    s_mul_i32 s{sSo[0]}, s{sW}, {7*32768}
    s_add_u32 s{sSo[0]}, s{sSo[0]}, s{sNB}
    s_add_u32 s{sSo[1]}, s{sSo[0]}, 16384
    """)
    k.srd(sWuR, sWOUT, 896*1024)
    later = gW(4) + gW(5) + gW(6) + gW(7) + gW(8)
    NE, NS_, FP = P3O.get("ne", 0), P3O.get("ns", 1), P3O.get("fp", 3)
    em(later[:NE]); later = later[NE:]
    k(f"""
    v_and_b32 v12, 1, v1
    v_lshlrev_b32 v12, 1, v12
    v_bfe_u32 v13, v0, 1, 1
    v_xor_b32 v13, v13, v12
    v_lshlrev_b32 v13, 4, v13
    v_lshrrev_b32 v14, 2, v0
    v_lshl_add_u32 v13, v14, 6, v13
    v_and_b32 v15, 1, v0
    v_lshl_add_u32 v13, v15, 3, v13
    v_add_u32 v{vT[0]}, s{sReg}, v13
    v_xor_b32 v{vT[1]}, 32, v{vT[0]}
    v_add_u32 v22, s{sTop}, v13
    v_xor_b32 v23, 32, v22
    """)
    def step(s, A):
        b = BF + (s & 1)*16
        base = vT if s != 2 else [22, 23]
        for j in range(4):
            for j2 in range(2):
                k.ds(f"ds_read_b64_tr_b16 {vr(b + j*4 + j2*2, 2)}, v{base[j&1]} offset:{stage(s)[1] + (j>>1)*2048 + j2*1024}", f"b{s}_{j}")
        return [(f"b{s}_{j}", [f"v_mfma_f32_16x16x32_bf16 {vr(ACC + (u*4+j)*4)}, {vr(b + j*4)}, {vr(A + u*4)}, {vr(ACC + (u*4+j)*4) if s else '0'}" for u in range(4)]) for j in range(4)]
    k.wait(vm="A3")
    nxt = step(0, AO)
    for s in range(4):
        cur = nxt
        for n, (tag, M) in enumerate(cur):
            k.wait(lg=tag)
            for m in M: k(m)
            if n == 0 and s < 3:
                if s == 2: k.wait(vm="W3")
                nxt = step(s + 1, AO + (s + 1)*16)
            if n < (NS_ if s <= FP else 4) and later: em([later.pop(0)])
        if s == FP: flag(k)
    em(later + ([] if P3O.get('wl', 0) else gW(9) + gW(10)))
    k(f"""
    v_mul_u32_u24 v13, 272, v2
    v_lshl_add_u32 v13, v1, 4, v13
    v_add_u32 v{vRW}, s{sReg}, v13
    v_lshrrev_b32 v13, 3, v0
    v_and_b32 v14, 7, v0
    v_mul_u32_u24 v15, 272, v13
    v_lshl_add_u32 v15, v14, 5, v15
    s_mul_i32 s{sT+2}, s{sW}, 4352
    v_add_u32 v{vRR[0]}, s{sT+2}, v15
    v_add_u32 v{vRR[1]}, {2*WREG}, v{vRR[0]}
    v_lshlrev_b32 v14, 4, v14
    v_lshl_add_u32 v{vX}, v13, 10, v14
    s_lshl_b32 s{sT+1}, s{sRB2}, 2
    s_add_u32 s{sT+1}, s{sT+1}, s{sW}
    s_lshl_b32 s{sT+1}, s{sT+1}, 14
    s_add_u32 s{sXo[0]}, s{sT+1}, s{sNB}
    s_add_u32 s{sXo[1]}, s{sXo[0]}, 8192
    s_mul_i32 s{sT+1}, s{sW}, 3
    s_add_u32 s{sT+1}, s{sT+1}, 16
    s_lshl_b32 s{sT+1}, s{sT+1}, 10
    """)
    for u in range(4): k(f"s_add_u32 s{sAo[u]}, s{sAo[u]}, s{sT+1}")
    k.srd(sXr3, sX, 2048*1024)
    for i2 in range(2):
        k.vmem(f"buffer_load_dwordx4 {vr(XD + 4*i2)}, v{vX}, s[{sXr3}:{sXr3+3}], s{sXo[i2]} offen", "x")
    k.stamp(6)
    wait_h(k)
    for s in range(7):
        if s in (5, 6) and P3O.get('wl', 0): em(gW(4 + s))
        for u in range(4):
            k.vmem(f"buffer_load_dwordx4 {vr(AH + s*16 + u*4)}, v{vA[s//4]}, s[{sA3}:{sA3+3}], s{sAo[u]} offen offset:{(s%4)*1024} {h_pol}", f"H{s}")
    k.wait(vm="x")
    nxt = step(4, AH)
    for s in range(4, 11):
        cur = nxt
        k.wait(vm=f"H{s-4}")
        for n, (tag, M) in enumerate(cur):
            k.wait(lg=tag)
            for m in M: k(m)
            if n == 0 and s < 10:
                if s + 1 >= 9: k.wait(vm=f"W{s+1}")
                nxt = step(s + 1, AH + (s - 3)*16)
    k.stamp(7)
    for j in range(4):
        for u in range(4):
            k.ds(f"ds_write_b128 v{vRW}, {vr(ACC + (u*4+j)*4)} offset:{u*4352 + j*64}", "rw")
    XU = 128
    for i2 in range(2):
        for d in range(4):
            k(f"v_lshlrev_b32 v{XU + i2*8 + 2*d}, 16, v{XD + i2*4 + d}")
            k(f"v_and_b32 v{XU + i2*8 + 2*d + 1}, 0xffff0000, v{XD + i2*4 + d}")
    k("s_waitcnt lgkmcnt(0)\ns_barrier"); k.lg.q = []
    R = 32
    for i2 in range(2):
        for src in range(4):
            for hf in range(2):
                k.ds(f"ds_read_b128 {vr(R + i2*32 + src*8 + hf*4)}, v{vRR[src>>1]} offset:{(src&1)*WREG + i2*8*272 + hf*16}", f"r{i2}")
    for i2 in range(2):
        k.wait(lg=f"r{i2}")
        b = R + i2*32
        for e in range(0, 8, 2): k(pk("add", b+e, [(b+e, 0), (b+8+e, 0)]))
        for e in range(0, 8, 2): k(pk("add", b+16+e, [(b+16+e, 0), (b+24+e, 0)]))
        for e in range(0, 8, 2): k(pk("add", b+e, [(b+e, 0), (XU+i2*8+e, 0)]))
        for e in range(0, 8, 2): k(pk("add", b+e, [(b+e, 0), (b+16+e, 0)]))
        for d in range(4): k(f"v_cvt_pk_bf16_f32 v{XD + i2*4 + d}, v{b+2*d}, v{b+2*d+1}")
        k(f"buffer_store_dwordx4 {vr(XD + i2*4)}, v{vX}, s[{sOr3}:{sOr3+3}], s{sXo[i2]} offen {st_pol}")
```

```python
import sys
sys.path.insert(0, "gen")
from build import *
from layout import *
import f1, f2, f3, g1
NAME = "parallel_sum__sliding_local_dilated__mixer_gmlp__prompt_kernel"
args = sys.argv[2:]
K.diag = "c" if "c" in args else "h" if "h" in args else ("d" in args)
kv = dict(a.split("=") for a in args if "=" in a)
for o in args:
    if o not in 'dch' and '=' not in o: f1.OPT[o] = 1
K.dbgslot = 0
pol = lambda n, d: kv.get(n, d).replace("_", " ").replace("-", "")
k = K(NAME); n = "F"
real_stamp = K.stamp
PH = {"p": 1}
MAP = {1: {0: 0, 2: 1}, 2: {3: 4}, 3: {6: 6}}
P1D = "p1" in args
if P1D: MAP = {1: {0: 0, 2: 1, 3: 2, 4: 3, 5: 4, 6: 5}}
if "it" in args or "p2t" in args: MAP = {}; P1D = True; PH["direct"] = None
if "p1b" in args: P1D = True; MAP = {1: {2: 0, 4: 1, 5: 2, 6: 3, 7: 4, 8: 5}}
if "burst" in args: P1D = True; MAP = {1: {2: 0, 10: 1, 11: 2, 12: 3, 3: 4, 4: 5}}
P3D = "p3" in args
if P3D: MAP = {2: {3: 0, 4: 1}, 3: {6: 4, 7: 6}}
_rs = real_stamp
def real_stamp(k, i):
    if P3D:
        if i in (5, 8, 9): _rs(k, {5: 2, 8: 3, 9: 5}[i])
        return
    if i > 7: return
    if PH.get("direct", 1) is None: return
    if P1D and PH.get("direct", True):
        if i == 2: _rs(k, 6)
        if i == 3: _rs(k, 7)
    else: _rs(k, i)
def stamp(self, i):
    m = MAP.get(PH["p"], {})
    if i in m: _rs(self, m[i])
K.stamp = stamp
sFl = sR4
def flag_srd(k, s):
    k(f"s_add_u32 s{s}, s{sWS}, {FL_OFF}\ns_addc_u32 s{s+1}, s{sWS+1}, 0\ns_mov_b32 s{s+2}, {FL_SZ}\ns_mov_b32 s{s+3}, 0x20000")
def set_flag(k, lab, soff_code, lanes, vstride_shift, tag=None, so=sT):
    if tag: k.wait(vm=tag)
    else: k("s_waitcnt vmcnt(0)"); k.vm.q = []
    flag_srd(k, sFl)
    k(soff_code)
    k(f"s_lshl_b32 s{so+1}, s{sW}, 6\ns_add_u32 s{so}, s{so}, s{so+1}")
    k(f"v_lshlrev_b32 v28, {vstride_shift}, v0\nv_mov_b32 v29, s{sNON}\ns_mov_b64 exec, {(1 << lanes) - 1}")
    k(f"buffer_store_dword v29, v28, s[{sFl}:{sFl+3}], s{so} offen sc1\ns_mov_b64 exec, -1")
    k.vm.issue("flag")
sFD = 59
def z2flag(k, V):
    code = f"s_lshl_b32 s{sT}, s{f1.sRB}, 2\ns_add_u32 s{sT}, s{sT}, s{f1.sCQ}\ns_lshl_b32 s{sT}, s{sT}, 9\ns_add_u32 s{sT}, s{sT}, {FZ2 + (0 if V == 'B43' else 256)}"
    set_flag(k, f"L_{n}_fz{V}", code, 1, 2, tag="z2st")
f1.OPT["z2flag"] = z2flag
def after1(k, V):
    real_stamp(k, 2)
    PH["V"] = V
    if V == "A":
        k(f"s_lshl_b32 s{sFD}, s{f1.sRB}, 4\ns_add_u32 s{sFD}, s{sFD}, s{f1.sSUB}\ns_lshl_b32 s{sFD}, s{sFD}, 8")
    else:
        k(f"s_lshl_b32 s{sFD}, s{f1.sRB}, 3\ns_add_u32 s{sFD}, s{sFD}, s{f1.sCQ}\ns_lshl_b32 s{sFD}, s{sFD}, 9\ns_add_u32 s{sFD}, s{sFD}, {2048 + (0 if V == 'B43' else 256)}")
    k(f"s_lshl_b32 s{sT}, s{sW}, 6\ns_add_u32 s{sFD}, s{sFD}, s{sT}\ns_add_u32 s{sFD}, s{sFD}, {FD}")
    if V == "B43": k(f"s_branch L_{n}_p2B")
    if V == "B34": p2(6, "B", TWO)
    if V == "A": p2(8, "A", False)
def poll(k, lab, loads, nreg):
    flag_srd(k, sFl)
    loads(k, True)
    k(f"s_mov_b32 s{sT+10}, 0\n{lab}:")
    loads(k, False)
    k(f"s_add_u32 s{sT+10}, s{sT+10}, 1\ns_waitcnt vmcnt(0)")
    for r in range(nreg): k(f"v_xor_b32 v{28+r}, s{sNON}, v{28+r}")
    for r in range(1, nreg): k(f"v_or_b32 v28, v28, v{28+r}")
    k(f"v_cmp_ne_u32 vcc, 0, v28\ns_nop 3\ns_cmp_gt_u32 s{sT+10}, 100000\ns_cbranch_scc1 {lab}_go\ns_cbranch_vccnz {lab}\n{lab}_go:\ns_mov_b64 exec, -1")
    k.vm.q = []
def wait_z2(k, nm):
    def loads(k, pre):
        if pre: k(f"s_lshl_b32 s{sT+8}, s{sW}, 13\ns_lshr_b32 s{sT+9}, s{f2.sCB}, 2\ns_lshl_b32 s{sT+9}, s{sT+9}, 10\ns_add_u32 s{sT+8}, s{sT+8}, s{sT+9}\nv_lshlrev_b32 v26, 11, v1\nv_and_b32 v27, 15, v0\nv_lshl_add_u32 v26, v27, 6, v26")
        else: k(f"buffer_load_dword v28, v26, s[{sFl}:{sFl+3}], s{sT+8} offen offset:{FZ2} sc1")
    poll(k, f"L_{nm}_pz", loads, 1)
    real_stamp(k, 3)
def mid_load(k):
    return [("i", f"""s_add_u32 s{sFl}, s{sWS}, {FL_OFF}
    s_addc_u32 s{sFl+1}, s{sWS+1}, 0
    s_mov_b32 s{sFl+2}, {FL_SZ}
    s_mov_b32 s{sFl+3}, 0x20000
    s_lshr_b32 s{sT+9}, s{f2.sRB2}, 1
    s_lshl_b32 s{sT+9}, s{sT+9}, 12
    s_add_u32 s{sT+9}, s{sT+9}, {FD}
    v_lshlrev_b32 v27, 6, v0
    s_mov_b32 s{sT+10}, 0"""), ("v", f"buffer_load_dword v28, v27, s[{sFl}:{sFl+3}], s{sT+9} offen sc1", "fz1")]
def mid_check(k, nm):
    lab = f"L_{nm}_pd"
    return [("i", f"""s_branch {lab}_chk
    {lab}:
    s_sleep 2
    buffer_load_dword v28, v27, s[{sFl}:{sFl+3}], s{sT+9} offen sc1
    s_add_u32 s{sT+10}, s{sT+10}, 1
    s_waitcnt vmcnt(0)
    {lab}_chk:
    v_cmp_ne_u32 vcc, s{sNON}, v28
    s_nop 3
    s_cmp_gt_u32 s{sT+10}, 100000
    s_cbranch_scc1 {lab}_go
    s_cbranch_vccnz {lab}
    {lab}_go:""")]
def done2(k): real_stamp(k, 5)
def flag2(k):
    code = f"s_lshl_b32 s{sT}, s{f2.sRB2}, 11\ns_lshl_b32 s{sT+1}, s{f2.sCB}, 8\ns_add_u32 s{sT}, s{sT}, s{sT+1}\ns_add_u32 s{sT}, s{sT}, {FH}"
    set_flag(k, f"L_{n}_flh", code, 1, 2, tag="hs")
    real_stamp(k, 8)
def wait_h(k):
    def loads(k, pre):
        if pre: k(f"s_lshl_b32 s{sT+8}, s{f2.sRB2}, 11\ns_lshr_b32 s{sT+9}, s{sW}, 1\ns_lshl_b32 s{sT+9}, s{sT+9}, 10\ns_add_u32 s{sT+8}, s{sT+8}, s{sT+9}\ns_add_u32 s{sT+8}, s{sT+8}, {FH}\nv_lshlrev_b32 v27, 6, v0")
        else: k(f"s_mov_b64 exec, 0xffff\nbuffer_load_dword v28, v27, s[{sFl}:{sFl+3}], s{sT+8} offen sc1")
    poll(k, f"L_{n}_ph", loads, 1)
    k.srd(f3.sOr3, sOUT, 2048*1024)
    real_stamp(k, 9)
f1.OPT["bulk"] = (pol("bulk", "-") or 1) if kv.get("bulk") != "0" else 0
def pre2(k):
    f3.early_setup(k)
    if int(kv.get('pf3', 2)) == 1: pf3_setup(k)
def pf3_setup(k):
    k(f"""
    s_lshr_b32 s{sT}, s2, 3
    s_lshl_b32 s{sT}, s{sT}, 2
    s_add_u32 s{sT}, s{sT}, s{sW}
    s_and_b32 s{sT+1}, s2, 1
    s_lshl_b32 s{sT+1}, s{sT+1}, 9
    v_lshrrev_b32 v23, 2, v0
    v_and_b32 v29, 3, v0
    v_lshlrev_b32 v29, 7, v29
    v_lshl_add_u32 v23, v23, 10, v29
    s_mul_i32 s{sT+5}, s{sT}, 7168
    s_add_u32 s{sT+5}, s{sT+5}, s{sT+1}
    s_lshl_b32 s{sT+6}, s{sT}, 12
    s_add_u32 s{sT+6}, s{sT+6}, s{sT+1}
    s_bfe_u32 s{sT+7}, s2, 0x20001
    s_lshl_b32 s{sT+7}, s{sT+7}, 19
    s_add_u32 s{sT+7}, s{sT+7}, s{sT+6}
    """)
def pf3(s):
    if s == 3:
        return [[("i", f"s_add_u32 s{sFl}, s{sWS}, {FL_OFF}\ns_addc_u32 s{sFl+1}, s{sWS+1}, 0\ns_mov_b32 s{sFl+2}, {FL_SZ}\ns_mov_b32 s{sFl+3}, 0x20000\nv_mov_b32 v29, s{sNON}\nv_mov_b32 v30, 0\ns_mov_b64 exec, 1"),
                 ("v", f"buffer_store_dword v29, v30, s[{sFl}:{sFl+3}], s{sFD} offen sc1", "fd"), ("i", "s_mov_b64 exec, -1")]]
    if s > 2 or int(kv.get("pf3", 2)) != 1: return []
    base, sz, so, ex = [(sWO, 512*1024, sT+6, 0xffff), (sWOUT, 896*1024, sT+5, 0xfffffff), (sX, 2048*1024, sT+7, 0xffff)][s]
    return [[("i", f"s_mov_b32 s{sR4}, s{base}\ns_mov_b32 s{sR4+1}, s{base+1}\ns_mov_b32 s{sR4+2}, {sz}\ns_mov_b32 s{sR4+3}, 0x20000\ns_mov_b64 exec, {ex}"),
             ("v", f"buffer_load_dword v31, v23, s[{sR4}:{sR4+3}], s{so} offen", "pf3"), ("i", "s_mov_b64 exec, -1")]]
if "nza" in kv: f1.OPT["nza"] = int(kv["nza"])
f1.prologue(k, n)
f2.REST = int(kv.get('rest', 0))
for o in ('nf', 'nf2', 'nfa', 'nfb'):
    if o in kv: f1.OPT[o] = tuple(int(c) for c in kv[o])
def hk(fn):
    def h(k): f1.FILL.q = fn(k)
    return h
for o in ("ne", "ns", "fp", "wl"):
    if o in kv: f3.P3O[o] = int(kv[o])
f1.OPT["pfm"] = 2
for o in ("tp", "tc", "zf", "pfm", "za", "zb", "zc", "es"):
    if o in kv: f1.OPT[o] = int(kv[o])
def pf3A(k):
    if int(kv.get("pf3", 2)) != 2: return 0
    k(f"""
    s_and_b32 s{sT+1}, s2, 1
    s_lshl_b32 s{sT+1}, s{sT+1}, 9
    v_lshrrev_b32 v146, 2, v0
    v_and_b32 v147, 3, v0
    v_lshlrev_b32 v147, 7, v147
    v_lshl_add_u32 v146, v146, 10, v147
    s_mul_i32 s{sT+5}, s{sT}, 14336
    s_add_u32 s{sT+5}, s{sT+5}, s{sT+1}
    s_lshl_b32 s{sT+6}, s{sT}, 13
    s_add_u32 s{sT+6}, s{sT+6}, s{sT+1}
    s_bfe_u32 s{sT+7}, s2, 0x20001
    s_lshl_b32 s{sT+7}, s{sT+7}, 19
    s_add_u32 s{sT+7}, s{sT+7}, s{sT+6}
    """)
    k.srd(sR4, sWOUT, 896*1024)
    k(f"s_mov_b32 exec_hi, 0xffffff\nbuffer_load_dword v28, v146, s[{sR4}:{sR4+3}], s{sT+5} offen")
    k.srd(sR4, sWO, 512*1024)
    k(f"s_mov_b32 exec_hi, 0\nbuffer_load_dword v28, v146, s[{sR4}:{sR4+3}], s{sT+6} offen")
    k.srd(sR4, sX, 2048*1024)
    k(f"buffer_load_dword v28, v146, s[{sR4}:{sR4+3}], s{sT+7} offen\ns_mov_b64 exec, -1")
    return 3
TWO = bool(f1.OPT.get("two"))
def p2(NJ, t, two):
    k(f"L_{n}_p2{t}:")
    PH["p"] = 2
    k("s_waitcnt lgkmcnt(0)\ns_barrier")
    k.vm.q = ["A4", "A5", "A6", "A7"]; k.lg.q = []
    rest = [f2.gA(sl, m) for sl in range(8 - NREST, 8) for m in range(8)] if two else []
    f2.gen_p2(k, f"{n}{t}", NJ, wait_z2, f3.tail("sc1"), (mid_load, mid_check, pf3), pre2, rest)
    done2(k)
    if t == "B": k(f"s_branch L_{n}_p3")
    PH["p"] = 1
NREST = int(kv.get("nrest", 4)); f2.NREST = NREST
g1.gen_p1(k, n, after1, dict(pf3A=pf3A, stageB=hk(f2.stage_groups_B), stageB2=hk(f2.stage_groups_B2), z2flag=z2flag))
k(f"L_{n}_p3:")
k.vm.q = ["A3", "hs"]; k.lg.q = []
PH["p"] = 3
f3.gen_p3(k, n, flag2, wait_h, st_pol=pol("st3", "sc1"), h_pol=pol("h3", "sc1"))
K.stamp = (lambda self, i: None) if P1D else _rs
k.stamp_end(0, sWS, sW, 7)
k(f"L_{n}_end:\ns_endpgm")
txt = assemble([(k, 512, 256, f1.LDSF)]).replace(f"; @launch kernel={NAME} grid", "; @launch grid")
open(sys.argv[1], "w").write(txt)
check(sys.argv[1], NAME)
```

```python
from asmlib import *
from layout import *
import struct
def f2h(x): return hex(struct.unpack("<I", struct.pack("<f", x))[0])
OPT = {}
XW = 18432
STG = XW + 7*4096
LDS1 = 3*STG
TOP = 135168
TA, TB, TC, PS, OX, NT = 0, 1024, 2048, 4096, 8192, 6144
LDSF = 163840
LOG2E = 1.4426950408889634
GC1 = -2*0.7978845608028654*LOG2E
GC2 = GC1*0.044715
sXr, sWr, sOr, sPr, sXs = sR0, sR1, sR2, sR3, sR4
sRB, sCQ, sSUB, sH, sE = 76, 77, 78, 79, 80
sXo = [81, 82]; sWo = [83, 26]; sHo, sXl, sWl = 27, 3, 10
sSt, sDelta, sI, sA, sB, sSTG = 100, 101, 11, 74, 75, 73
vXe, vXo, vWd, vH = 4, 5, 6, 7
vL16, vNon, vZero = 20, 21, 22
ONES = 24
ACC = 32
T = 144
FR = 256
XA = 256 + 112

def bf16_round(k, dst, src):
    k(f"v_cvt_pk_bf16_f32 v{dst}, v{src}, v{src}\nv_and_b32 v{dst}, 0xffff0000, v{dst}")
def P(r): return f"v[{r}:{r+1}]"
def pk(op, d, srcs):
    ops, lo, hi = [], [], []
    for r, bc in srcs:
        if isinstance(r, str): ops.append(r); lo.append(0); hi.append(0)
        elif bc: ops.append(P(r & ~1)); lo.append(r & 1); hi.append(r & 1)
        else: ops.append(P(r)); lo.append(0); hi.append(1)
    m = ""
    if any(lo): m += " op_sel:[" + ",".join(map(str, lo)) + "]"
    if not all(hi): m += " op_sel_hi:[" + ",".join(map(str, hi)) + "]"
    return f"v_pk_{op}_f32 {P(d)}, " + ", ".join(ops) + m

def prologue(k, name):
    k(f"""
    L_{name}_code:
    s_cmp_ge_u32 s2, 256
    s_cbranch_scc1 L_{name}_end
    s_load_dwordx16 s[4:19], s[0:1], 0
    s_load_dwordx4 s[20:23], s[0:1], {KA_OUT}
    s_load_dwordx2 s[24:25], s[0:1], {KA_WS}
    s_getpc_b64 s[{sPr}:{sPr+1}]
    L_{name}_pc:
    s_mov_b32 s{sPr+2}, L_{name}_end - L_{name}_pc
    s_mov_b32 s{sPr+3}, 0x20000
    s_lshr_b32 s{sT}, s2, 3
    s_mul_i32 s{sT}, s{sT}, 2560
    v_lshlrev_b32 v3, 7, v0
    v_cmp_gt_u32 vcc, 20, v0
    s_and_saveexec_b64 s[{sM}:{sM+1}], vcc
    s_cbranch_execz L_{name}_nocpf
    buffer_load_dword v28, v3, s[{sPr}:{sPr+3}], s{sT} offen
    L_{name}_nocpf:
    s_mov_b64 exec, -1
    v_lshrrev_b32 v1, 6, v0
    v_and_b32 v0, 63, v0
    v_readfirstlane_b32 s{sW}, v1
    v_lshrrev_b32 v1, 4, v0                 ; g
    v_and_b32 v2, 15, v0                    ; i
    v_lshlrev_b32 v{vL16}, 4, v0
    """)

class Fill:
    def __init__(self, mk=None): self.mk = mk; self.q = []
    def start(self, k):
        self.q = self.mk(k) if self.mk else []
    def __call__(self, k, n):
        for _ in range(n):
            if self.q:
                for it in self.q.pop(0):
                    if it[0] == "i": k(it[1])
                    elif it[0] == "v": k.vmem(it[1], it[2])
                    elif it[0] == "d": k.ds(it[1], it[2])
                    else: k.wait(vm=it[1], lg=it[2])
    def flush(self, k): self(k, len(self.q))
FILL = Fill()

def gen_p1(k, name, after, st_pol="sc1", ld_pol="", pf_pol="", pf=True):
    k(f"""
    s_and_b32 s{sT}, s2, 7
    s_lshr_b32 s{sT+1}, s2, 3
    s_lshr_b32 s{sRB}, s{sT}, 2
    s_lshl_b32 s{sRB}, s{sRB}, 3
    s_lshr_b32 s{sT+2}, s{sT+1}, 2
    s_add_u32 s{sRB}, s{sRB}, s{sT+2}
    s_and_b32 s{sCQ}, s{sT}, 3
    s_and_b32 s{sSUB}, s{sT+1}, 3
    v_and_b32 v3, 7, v0
    v_xor_b32 v{T}, v3, v1
    v_lshlrev_b32 v{T}, 4, v{T}
    v_lshrrev_b32 v{T+1}, 3, v0
    v_lshl_add_u32 v{vXe}, v{T+1}, 10, v{T}
    v_xor_b32 v{vXo}, 64, v{vXe}
    v_add_u32 v{vXo}, 8192, v{vXo}
    v_lshrrev_b32 v{T}, 5, v0
    v_lshlrev_b32 v{T}, 1, v{T}
    v_and_b32 v{T+2}, 3, v0
    v_xor_b32 v{T}, v{T}, v{T+2}
    v_lshlrev_b32 v{T}, 4, v{T}
    v_lshrrev_b32 v{T+2}, 2, v0             ; l>>2
    s_lshl_b32 s{sXo[0]}, s{sRB}, 2
    s_add_u32 s{sXo[0]}, s{sXo[0]}, s{sW}
    s_lshl_b32 s{sXo[0]}, s{sXo[0]}, 15     ; (128rb+32w)*1024
    s_add_u32 s{sXo[1]}, s{sXo[0]}, 16384
    s_lshl_b32 s{sXl}, s{sW}, 12
    s_mov_b32 s{sSt}, 0
    s_mov_b32 s{sSTG}, {STG}
    s_cmp_ge_u32 s{sSUB}, 2
    s_cbranch_scc1 L_{name}_B
    v_mul_u32_u24 v{T+2}, 3072, v{T+2}
    v_add_u32 v{vWd}, v{T+2}, v{T}
    s_lshl_b32 s{sT+6}, s{sCQ}, 1
    s_add_u32 s{sSUB}, s{sSUB}, s{sT+6}
    s_mul_i32 s{sWo[0]}, s{sW}, {16*3072}
    s_lshl_b32 s{sT+6}, s{sSUB}, 7
    s_add_u32 s{sWo[0]}, s{sWo[0]}, s{sT+6}
    s_lshl_b32 s{sT+6}, s{sW}, 1
    v_add_u32 v{T}, s{sT+6}, v1
    v_xor_b32 v{T}, v{T}, v3
    v_lshlrev_b32 v{T}, 4, v{T}
    v_lshl_add_u32 v{vH}, v{T+1}, 10, v{T}
    s_lshl_b32 s{sHo}, s{sRB}, 7
    s_sub_u32 s{sHo}, s{sHo}, 16
    s_max_i32 s{sHo}, s{sHo}, 0
    s_lshl_b32 s{sT+6}, s{sW}, 2
    s_add_u32 s{sHo}, s{sHo}, s{sT+6}
    s_lshl_b32 s{sHo}, s{sHo}, 10
    s_waitcnt lgkmcnt(0)
    """)
    k.srd(sXr, sX, 2048*1024); k.srd(sWr, sWQ, 512*3072)
    variant(k, name, "A", after, st_pol, ld_pol, pf_pol, pf)
    k(f"""
    L_{name}_B:
    v_mul_u32_u24 v{T+2}, 3584, v{T+2}
    v_add_u32 v{vWd}, v{T+2}, v{T}
    s_mul_i32 s{sT+5}, s{sW}, {16*3584}
    s_mul_i32 s{sT+6}, s{sCQ}, 448
    s_add_u32 s{sT+5}, s{sT+5}, s{sT+6}
    s_add_u32 s{sT+6}, s{sT+5}, 1792
    s_and_b32 s{sH}, s{sW}, 1
    s_lshr_b32 s{sE}, s{sW}, 1
    s_cmp_eq_u32 s{sSUB}, 2
    s_cselect_b32 s{sT+7}, s{sT+6}, s{sT+5}
    s_cselect_b32 s{sT+8}, s{sT+5}, s{sT+6}
    s_waitcnt lgkmcnt(0)
    s_mov_b32 s{sWo[0]}, s{sT+7}
    s_mov_b32 s{sWo[1]}, s{sT+8}
    """)
    k.srd(sXr, sX, 2048*1024); k.srd(sWr, sWIN, 512*3584)
    k(f"s_cmp_eq_u32 s{sSUB}, 3\ns_cbranch_scc1 L_{name}_B34")
    variant(k, name, "B43", after, st_pol, ld_pol, pf_pol, pf)
    k(f"L_{name}_B34:")
    variant(k, name, "B34", after, st_pol, ld_pol, pf_pol, pf)

def variant(k, name, V, after, st_pol, ld_pol, pf_pol, pf):
    isA = V == "A"
    pitch = 3072 if isA else 3584
    ndma = 11
    lab = f"L_{name}_{V}"
    k(f"s_lshl_b32 s{sWl}, s{sW}, 10")
    k.stamp(0)
    def dma():
        G = []
        pre = [f"s_add_u32 s{sA}, s{sSt}, s{sXl}", f"s_add_u32 s{sB}, s{sSt}, s{sWl}"]
        for m in range(4):
            g = [f"s_add_u32 m0, s{sA}, {2048 + m*1024}", f"buffer_load_dwordx4 v{vXo if m & 1 else vXe}, s[{sXr}:{sXr+3}], s{sXo[m>>1]} offen {ld_pol} lds"]
            if m & 1: g.append(f"s_add_u32 s{sXo[m>>1]}, s{sXo[m>>1]}, 128")
            G.append(g)
        W = []
        for q in range(6 if isA else 7):
            imm = 64*(q & 1) + 1024*(q >> 1) if isA else 64*q
            so = sWo[0] if (isA or q < 4) else sWo[1]
            g = [f"s_add_u32 m0, s{sB}, {XW + q*4096 - imm}", f"buffer_load_dwordx4 v{vWd}, s[{sWr}:{sWr+3}], s{so} offen offset:{imm} {ld_pol} lds"]
            if q == (5 if isA else 3): g.append(f"s_add_u32 s{sWo[0]}, s{sWo[0]}, {64*pitch}")
            if q == 6: g.append(f"s_add_u32 s{sWo[1]}, s{sWo[1]}, {64*pitch}")
            W.append(g)
        if isA:
            W.append([f"s_lshr_b32 s{sT}, s{sWl}, 1", f"s_add_u32 m0, s{sSt}, s{sT}", "s_mov_b64 exec, 0xffffffff",
                      f"buffer_load_dwordx4 v{vH}, s[{sXr}:{sXr+3}], s{sHo} offen {ld_pol} lds", "s_mov_b64 exec, -1", f"s_add_u32 s{sHo}, s{sHo}, 128"])
        G = interleave(W, G)
        G[0] = pre + G[0]
        return G
    def dma_now():
        for g in dma():
            for l in g: k(l)
    dma_now(); k(f"s_add_u32 s{sSt}, s{sSt}, {STG}")
    if isA:
        k(f"""
        s_or_b32 s{sT}, s2, s{sW}
        s_cmp_lg_u32 s{sT}, 0
        s_cbranch_scc1 {lab}_nn
        s_memrealtime s[{sT}:{sT+1}]
        v_mov_b32 v{T}, 0
        s_waitcnt lgkmcnt(0)
        s_or_b32 s{sT}, s{sT}, 1
        v_mov_b32 v{T+1}, s{sT}
        s_mov_b64 exec, 1
        global_store_dword v{T}, v{T+1}, s[{sDBG}:{sDBG+1}] sc1
        s_mov_b64 exec, -1
        {lab}_nn:
        """)
    k(f"""
    v_lshrrev_b32 v{T}, 1, v2
    v_xor_b32 v{T}, v{T}, v1
    v_lshlrev_b32 v{T}, 4, v{T}
    v_lshl_add_u32 v{T}, v2, 7, v{T}        ; i*128 + (g^(i>>1))*16
    v_and_b32 v{T+2}, 1, v1
    v_lshlrev_b32 v{T+2}, 1, v{T+2}
    v_bfe_u32 v{T+1}, v0, 1, 1
    v_xor_b32 v{T+2}, v{T+2}, v{T+1}
    v_lshlrev_b32 v{T+2}, 4, v{T+2}
    v_bfe_u32 v{T+1}, v0, 2, 2
    v_lshl_add_u32 v{T+1}, v1, 3, v{T+1}
    v_lshl_add_u32 v{T+2}, v{T+1}, 6, v{T+2}
    v_and_b32 v{T+1}, 1, v0
    v_lshl_add_u32 v{T+2}, v{T+1}, 3, v{T+2}
    v_mov_b32 v{vZero}, 0
    """)
    if isA:
        vX = [[8], [11]]; vS = [9, 12]; vW = [[10], [13]]
        k(f"""
        v_mov_b32 v{vX[0][0]}, v{T}
        v_xor_b32 v{vX[1][0]}, 64, v{T}
        v_add_u32 v{vS[0]}, s{sXl}, v{vX[0][0]}
        v_add_u32 v{vS[1]}, s{sXl}, v{vX[1][0]}
        s_and_b32 s{sT}, s{sW}, 1
        s_lshl_b32 s{sT}, s{sT}, 5
        v_xor_b32 v{T+2}, s{sT}, v{T+2}
        s_lshr_b32 s{sT}, s{sW}, 1
        s_lshl_b32 s{sT}, s{sT}, 12
        s_add_u32 s{sT}, s{sT}, {XW}
        v_add_u32 v{vW[0][0]}, s{sT}, v{T+2}
        v_add_u32 v{vW[1][0]}, 2048, v{vW[0][0]}
        """)
        bases = [[8, 9, 10], [11, 12, 13]]
        nX, nW = 9, 3
        xaddr = lambda sg, a: (vX[sg][0], a*2048)
        waddr = lambda sg, j, j2: (vW[sg][0], j*8192 + j2*256)
    else:
        vX = [[8, 9], [14, 15]]; vW = [[10, 11, 12, 13], [16, 17, 18, 19]]
        k(f"""
        s_lshl_b32 s{sT}, s{sH}, 6
        v_xor_b32 v{T}, s{sT}, v{T}
        s_lshl_b32 s{sT}, s{sH}, 13
        s_add_u32 s{sT}, s{sT}, 2048
        s_lshl_b32 s{sT+1}, s{sE}, 12
        s_add_u32 s{sT+2}, s{sT}, s{sT+1}
        v_add_u32 v{vX[0][0]}, s{sT+2}, v{T}
        s_sub_u32 s{sT+2}, s{sT}, s{sT+1}
        v_add_u32 v{vX[0][1]}, s{sT+2}, v{T}
        v_xor_b32 v{vX[1][0]}, 64, v{vX[0][0]}
        v_xor_b32 v{vX[1][1]}, 64, v{vX[0][1]}
        s_lshl_b32 s{sT}, s{sH}, 11
        s_add_u32 s{sT}, s{sT}, {XW}
        s_lshl_b32 s{sT+2}, s{sE}, 13
        s_add_u32 s{sT+3}, s{sT}, s{sT+2}
        v_add_u32 v{vW[0][0]}, s{sT+3}, v{T+2}
        v_xor_b32 v{vW[0][1]}, 32, v{vW[0][0]}
        s_lshl_b32 s{sT+4}, s{sE}, 5
        v_xor_b32 v{T+1}, s{sT+4}, v{T+2}
        s_add_u32 s{sT+5}, s{sT}, s{sT+1}
        v_add_u32 v{vW[0][2]}, s{sT+5}, v{T+1}
        v_xor_b32 v{T+1}, 32, v{T+1}
        v_add_u32 v{vW[0][3]}, s{sT+3}, v{T+1}
        s_lshl_b32 s{sT}, s{sH}, 12
        s_sub_u32 s{sT}, 2048, s{sT}
        """)
        for n in range(4): k(f"v_add_u32 v{vW[1][n]}, s{sT}, v{vW[0][n]}")
        bases = [[8, 9, 10, 11, 12, 13], [14, 15, 16, 17, 18, 19]]
        nX, nW = 4, 7
        xaddr = lambda sg, a: (vX[sg][a >> 1], a*2048)
        def waddr(sg, j, j2):
            if j < 4: return vW[sg][j & 1], (j >> 1)*4096 + j2*256
            return vW[sg][2 + (j & 1)], 4*4096 + ((j - 4) >> 1)*4096 + j2*256
    dma_now(); k(f"s_add_u32 s{sSt}, s{sSt}, {STG}")
    fX = lambda sg, a: FR + sg*56 + a*4
    fW = lambda sg, j: FR + sg*56 + nX*4 + j*4
    fS = (lambda sg, a: FR + sg*56 + 48 + a*4) if isA else fX
    tG = lambda a: XA + a*8
    tS = lambda a: XA + a*8 + 4
    if isA:
        tQ = lambda a: ACC + (a-1)*4; tK = lambda a: ACC + 32 + a*4; tV = lambda a: ACC + 68 + a*4
        tC = lambda j: XA + 24 + j*4
        nacc, nxa = 104, 36
    else:
        tZ = lambda a, j: ACC + (j*4 + a)*4
        tC = lambda j: XA + 16 + j*4
        nacc, nxa = 112, 44
        isz2 = (lambda j: j < 4) if V == "B43" else (lambda j: j >= 4)
    for r in range(4): k(f"v_mov_b32 v{ONES+r}, 0x3f803f80")
    for r in range(nacc): k(f"v_mov_b32 v{ACC+r}, 0")
    for r in range(nxa): k(f"v_accvgpr_write_b32 {vr(XA+r, 1)}, 0")
    dma_now(); k(f"s_mov_b32 s{sSt}, 0")
    nbulk = 0
    if OPT.get("bulk"):
        bp = OPT["bulk"] if isinstance(OPT["bulk"], str) else ""
        nbulk = 3
        k(f"""
        s_getpc_b64 s[{sPr}:{sPr+1}]
        {lab}_pc:
        s_sub_u32 s{sPr}, s{sPr}, {lab}_pc - L_{name}_code
        s_subb_u32 s{sPr+1}, s{sPr+1}, 0
        s_mov_b32 s{sPr+2}, L_{name}_end - L_{name}_code
        s_mov_b32 s{sPr+3}, 0x20000
        s_lshr_b32 s{sT}, s2, 3
        s_lshl_b32 s{sT+1}, s{sT}, 2
        s_add_u32 s{sT+1}, s{sT+1}, s{sW}
        s_lshl_b32 s{sT+1}, s{sT+1}, 9
        v_lshlrev_b32 v{T}, 7, v0
        s_mov_b64 exec, 15
        buffer_load_dword v28, v{T}, s[{sPr}:{sPr+3}], s{sT+1} offen
        s_mov_b64 exec, -1
        s_and_b32 s{sT+1}, s{sT}, 3
        s_lshl_b32 s{sT+1}, s{sT+1}, 2
        s_add_u32 s{sT+1}, s{sT+1}, s{sW}
        s_lshl_b32 s{sT+1}, s{sT+1}, 13
        s_lshl_b32 s{sT+2}, s{sRB}, 17
        s_add_u32 s{sT+1}, s{sT+1}, s{sT+2}
        s_mov_b32 exec_lo, 0xf8f8f8f8
        s_mov_b32 exec_hi, 0xf8f8f8f8
        buffer_load_dword v28, v{T}, s[{sXr}:{sXr+3}], s{sT+1} offen {bp}
        s_mov_b64 exec, -1
        v_mul_u32_u24 v{T+1}, 52, v0
        v_lshrrev_b32 v{T+1}, 8, v{T+1}
        v_mul_u32_u24 v{T+2}, 5, v{T+1}
        v_sub_u32 v{T+2}, v0, v{T+2}
        v_mul_u32_u24 v{T+1}, {pitch}, v{T+1}
        s_and_b32 s{sT+1}, s{sRB}, 7
        s_mul_i32 s{sT+1}, s{sT+1}, 40
        s_mul_i32 s{sT+2}, s{sW}, -6
        s_add_u32 s{sT+1}, s{sT+1}, s{sT+2}
        s_mul_i32 s{sT+1}, s{sT+1}, {pitch}
        s_add_u32 s{sT+2}, s{sT+1}, s{sWo[0]}
        """)
        if isA:
            k(f"""
            v_lshl_add_u32 v{T+1}, v{T+2}, 10, v{T+1}
            v_cmp_gt_u32 vcc, 3, v{T+2}
            s_and_b64 exec, vcc, 0x3ffffffffffff
            """.replace("s_and_b64 exec, vcc, 0x3ffffffffffff", f"s_mov_b32 s{sT+5}, 0x3ffff\ns_and_b32 exec_hi, vcc_hi, s{sT+5}\ns_mov_b32 exec_lo, vcc_lo"))
        else:
            k(f"""
            s_sub_u32 s{sT+3}, s{sWo[1]}, s{sWo[0]}
            s_sub_u32 s{sT+3}, s{sT+3}, 128
            v_lshlrev_b32 v{T+3}, 7, v{T+2}
            v_min_u32 v{T+4}, 192, v{T+3}
            v_add_u32 v{T+3}, s{sT+3}, v{T+3}
            v_cmp_gt_u32 vcc, 3, v{T+2}
            v_cndmask_b32 v{T+3}, v{T+3}, v{T+4}, vcc
            v_add_u32 v{T+1}, v{T+1}, v{T+3}
            v_add_u32 v{T+1}, s{sT+2}, v{T+1}
            s_mov_b32 s{sT+2}, 0
            s_mov_b32 exec_hi, 0x3ffff
            """)
        k(f"buffer_load_dword v28, v{T+1}, s[{sWr}:{sWr+3}], s{sT+2} offen {bp}\ns_mov_b64 exec, -1")
    def reads(sg):
        X = [f"ds_read_b128 {vr(fX(sg, a))}, v{xaddr(sg, a)[0]} offset:{xaddr(sg, a)[1]}" for a in range(nX)]
        Wl = [f"ds_read_b64_tr_b16 {vr(fW(sg, j) + 2*j2, 2)}, v{waddr(sg, j, j2)[0]} offset:{waddr(sg, j, j2)[1]}" for j in range(nW) for j2 in range(2)]
        if isA:
            if OPT.get("noread"): return []
            return Wl + X + [f"ds_read_b128 {vr(fS(sg, a))}, v{vS[sg]} offset:{2048 + a*2048}" for a in range(2)]
        if OPT.get("noread"): return []
        return X + Wl
    def mf(d, a, b): return f"v_mfma_f32_16x16x32_bf16 {vr(d)}, {vr(a)}, {vr(b)}, {vr(d)}"
    def mfmas(sg):
        L = []
        if isA:
            for a in range(9):
                if a: L.append(mf(tQ(a), fW(sg, 0), fX(sg, a)))
                L.append(mf(tK(a), fW(sg, 1), fX(sg, a)))
                L.append(mf(tV(a), fX(sg, a), fW(sg, 2)))
            L += [mf(tG(2), fX(sg, 0), fX(sg, 0)), mf(tS(2), ONES, fX(sg, 0))]
        else:
            for j in range(7):
                for a in range(4):
                    L.append(mf(tZ(a, j), fX(sg, a), fW(sg, j)) if isz2(j) else mf(tZ(a, j), fW(sg, j), fX(sg, a)))
        for a in range(2): L += [mf(tG(a), fS(sg, a), fS(sg, a)), mf(tS(a), ONES, fS(sg, a))]
        if sg == 0 or isA:
            for j in range(nW): L.append(mf(tC(j), ONES, fW(sg, j)))
        if OPT.get("noextra"): return L[:26 if isA else 28]
        return L
    adv = lambda sg: [f"v_add_u32 v{r}, s{sDelta}, v{r}" for r in bases[sg]]
    k(f"s_mov_b32 s{sI}, 0\ns_waitcnt vmcnt({2*ndma + nbulk})\ns_barrier")
    k.stamp(1)
    for l in reads(0): k(l)
    k("s_waitcnt lgkmcnt(0)")
    k(f".p2align 6\n{lab}_loop:")
    for l in interleave(mfmas(0), reads(1) + [f"s_cmp_eq_u32 s{sSt}, {2*STG}\ns_cselect_b32 s{sDelta}, {-2*STG}, s{sSTG}"] + adv(0), per=1): k(l)
    npf = (3 if pf else 1) + (3 if OPT.get("pf3") else 0)
    k(f"s_cmp_ge_u32 s{sI}, 5\ns_cbranch_scc1 {lab}_nodma")
    k(f"s_waitcnt vmcnt({ndma}) lgkmcnt(0)\ns_barrier")
    def half2(with_dma):
        M = mfmas(1)
        slots = [[] for _ in range(len(M) + 1)]
        R = reads(0)
        for n, l in enumerate(R): slots[n + 1].append(l)
        for n, l in enumerate(adv(1)): slots[len(R) + 1 + n].append(l)
        if with_dma and not OPT.get("nodma"):
            G = dma()
            for n, g in enumerate(G):
                pos = 1 + n*(len(M) - 2)//len(G)
                cut = max(i for i, l in enumerate(g) if " m0," in l) + 1
                slots[pos] += g[:cut]; slots[pos + 1] = g[cut:] + slots[pos + 1]
        for i, m in enumerate(M):
            for l in slots[i]: k(l)
            k(m)
        for l in slots[len(M)]: k(l)
        k(f"""
        s_add_u32 s{sSt}, s{sSt}, s{sDelta}
        s_add_u32 s{sI}, s{sI}, 1
        s_cmp_lt_u32 s{sI}, 8
        s_waitcnt lgkmcnt(0)
        s_cbranch_scc1 {lab}_loop
        """)
    half2(True)
    k(f"{lab}_nodma:\ns_cmp_eq_u32 s{sI}, 5\ns_cbranch_scc1 {lab}_five\ns_waitcnt vmcnt({npf}) lgkmcnt(0)\ns_barrier\ns_branch {lab}_cont")
    k(f"{lab}_five:\ns_waitcnt vmcnt({ndma}) lgkmcnt(0)\ns_barrier")
    k.srd(sPr, sWSP, 2048*4096)
    k(f"""
    s_and_b32 s{sT}, s2, 7
    s_lshr_b32 s{sT}, s{sT}, 1
    s_lshl_b32 s{sT}, s{sT}, 21
    s_lshr_b32 s{sT+1}, s2, 3
    s_lshl_b32 s{sT+1}, s{sT+1}, 2
    s_add_u32 s{sT+1}, s{sT+1}, s{sW}
    s_lshl_b32 s{sT+2}, s{sT+1}, 14
    s_add_u32 s{sT}, s{sT}, s{sT+2}
    s_add_u32 s{sT+1}, s{sT}, 8192
    v_lshlrev_b32 v23, 7, v0
    s_mov_b32 s{sT+3}, 0x7fffffff
    global_load_dword v{vNon}, v{vZero}, s[{sDBG}:{sDBG+1}] sc1
    """)
    for n in range(1, 3 if pf else 1): k(f"buffer_load_dword v28, v23, s[{sPr}:{sPr+3}], s{sT+n-1} offen {pf_pol}")
    if OPT.get("pf3"): OPT["pf3"](k)
    k(f"{lab}_cont:")
    half2(False)
    k.stamp(2)
    cI, cE = T, T+1
    X = T + 16
    k(f"""
    s_barrier
    v_mov_b32 v{cI}, {f2h(1/512)}
    v_mov_b32 v{cE}, {f2h(1e-5)}
    v_and_b32 v{T+2}, 1, v0
    v_cmp_eq_u32 s[{sM}:{sM+1}], 1, v{T+2}
    v_and_b32 v{T+2}, 2, v0
    v_cmp_eq_u32 s[{sM+2}:{sM+3}], 2, v{T+2}
    v_lshrrev_b32 v{T+2}, 2, v2
    v_cmp_eq_u32 s[{sM+4}:{sM+5}], v1, v{T+2}
    v_lshlrev_b32 v{T+3}, 2, v2
    v_add_u32 v{T+3}, {TOP}, v{T+3}
    """)
    ns = 3 if isA else 2
    for a in range(ns):
        for r in range(4): k(f"v_accvgpr_read_b32 v{X+a*8+r}, {vr(tG(a)+r, 1)}")
        k(f"v_accvgpr_read_b32 v{X+a*8+4}, {vr(tS(a), 1)}")
    A_ = range(ns)
    for a in A_: k(f"v_cndmask_b32 v{X+a*8}, v{X+a*8}, v{X+a*8+1}, s[{sM}:{sM+1}]\nv_cndmask_b32 v{X+a*8+2}, v{X+a*8+2}, v{X+a*8+3}, s[{sM}:{sM+1}]")
    for a in A_: k(f"v_mul_f32 v{X+a*8+4}, v{X+a*8+4}, v{cI}\nv_cndmask_b32 v{X+a*8}, v{X+a*8}, v{X+a*8+2}, s[{sM+2}:{sM+3}]")
    for a in A_: k(f"v_mul_f32 v{X+a*8}, v{X+a*8}, v{cI}")
    for a in A_: k(f"v_fma_f32 v{X+a*8}, -v{X+a*8+4}, v{X+a*8+4}, v{X+a*8}")
    for a in A_: k(f"v_max_f32 v{X+a*8}, 0, v{X+a*8}")
    for a in A_: bf16_round(k, X+a*8, X+a*8)
    for a in A_: k(f"v_add_f32 v{X+a*8}, v{X+a*8}, v{cE}")
    for a in A_: bf16_round(k, X+a*8, X+a*8)
    for a in A_: k(f"v_sqrt_f32 v{X+a*8}, v{X+a*8}")
    for a in A_: bf16_round(k, X+a*8+4, X+a*8+4)
    for a in A_: bf16_round(k, X+a*8, X+a*8)
    for a in A_: k(f"v_rcp_f32 v{X+a*8}, v{X+a*8}")
    if isA: k(f"s_lshl_b32 s{sT}, s{sW}, 7\ns_add_u32 s{sT}, s{sT}, 64\ns_mul_i32 s{sT+1}, s{sW}, 192\ns_mov_b32 s{sT+2}, s{sT+1}")
    else:
        k(f"""
        s_lshl_b32 s{sT}, s{sH}, 8
        s_lshl_b32 s{sT+3}, s{sE}, 7
        s_add_u32 s{sT}, s{sT}, s{sT+3}
        s_add_u32 s{sT}, s{sT}, 64
        s_lshl_b32 s{sT+1}, s{sE}, 8
        s_mul_i32 s{sT+4}, s{sE}, 192
        s_lshl_b32 s{sT+5}, s{sH}, 10
        s_add_u32 s{sT+2}, s{sT+1}, s{sT+5}
        s_add_u32 s{sT+5}, s{sT+4}, s{sT+5}
        """)
    k(f"v_add_u32 v{T+4}, s{sT}, v{T+3}\nv_add_u32 v{T+5}, s{sT+2}, v{T+3}")
    if not isA: k(f"v_add_u32 v{T+6}, s{sT+5}, v{T+3}")
    for a in A_: k(f"v_mul_f32 v{X+a*8+4}, -v{X+a*8+4}, v{X+a*8}")
    for j in range(nW):
        k(f"ds_write_b32 v{T+5 if j < 4 else T+6}, {vr(tC(j), 1)} offset:{TC + (j*64 if j < 4 else 512 + (j-4)*64)}")
    k(f"s_mov_b64 exec, s[{sM+4}:{sM+5}]")
    for a in A_:
        ad, o = (T+4, a*64) if a < 2 else (T+3, 0)
        k(f"ds_write_b32 v{ad}, v{X+a*8} offset:{TA + o}\nds_write_b32 v{ad}, v{X+a*8+4} offset:{TB + o}")
    k("s_mov_b64 exec, -1")
    k(f"""
    s_waitcnt vmcnt({npf-1})
    v_readfirstlane_b32 s{sNON}, v{vNon}
    s_cmp_lg_u32 s{sNON}, 0
    s_cbranch_scc1 {lab}_non
    s_mov_b32 s{sT+6}, 0
    {lab}_nspin:
    s_sleep 4
    global_load_dword v{vNon}, v{vZero}, s[{sDBG}:{sDBG+1}] sc1
    s_add_u32 s{sT+6}, s{sT+6}, 1
    s_waitcnt vmcnt(0)
    v_readfirstlane_b32 s{sNON}, v{vNon}
    s_cmp_gt_u32 s{sT+6}, 100000
    s_cbranch_scc1 {lab}_non
    s_cmp_eq_u32 s{sNON}, 0
    s_cbranch_scc1 {lab}_nspin
    {lab}_non:
    v_lshlrev_b32 v{T+7}, 4, v1
    v_add_u32 v{T+7}, {TOP}, v{T+7}
    s_waitcnt lgkmcnt(0)
    s_barrier
    """)
    k.stamp(3)
    k.lg.q = []; k.vm.q = []
    FILL.start(k)
    if isA: epi_attn(k, lab, st_pol, tQ, tK, tV)
    else: epi_B(k, lab, V, st_pol, tZ, isz2)
    after(k, V)

def gelu_pk(k, ys, c, t, nf=(0, 0, 0, 0)):
    n = range(len(ys))
    for i in n: k(pk("mul", t+2*i, [(ys[i], 0), (ys[i], 0)]))
    for i in n: k(pk("fma", t+2*i, [(t+2*i, 0), (c+1, 1), (c, 1)]))
    for i in n: k(pk("mul", t+2*i, [(t+2*i, 0), (ys[i], 0)]))
    FILL(k, nf[0])
    for i in range(2*len(ys)): k(f"v_exp_f32 v{t+i}, v{t+i}")
    FILL(k, nf[1])
    for i in n: k(pk("add", t+2*i, [(t+2*i, 0), ("1.0", 1)]))
    for i in range(2*len(ys)): k(f"v_rcp_f32 v{t+i}, v{t+i}")
    FILL(k, nf[2])
    for i in n: k(pk("mul", ys[i], [(ys[i], 0), (t+2*i, 0)]))
    FILL(k, nf[3])

def epi_B(k, lab, V, st_pol, tZ, isz2):
    z2flag = OPT.get('z2flag', lambda k, V: None)
    J2 = [j for j in range(7) if isz2(j)]; J1 = [j for j in range(7) if not isz2(j)]
    vI4, vG16 = T+3, T+7
    c = T
    AR, BR = T+8, T+24
    C2 = T+40
    ST = T+48
    tmp = T+80
    AL = T+88
    ad = T+96
    coff = lambda j: (j*64 if j < 4 else 512 + (j-4)*64)
    k(f"""
    s_lshl_b32 s{sT}, s{sH}, 8
    s_add_u32 s{sT}, s{sT}, 64
    s_add_u32 s{sT+2}, s{sT}, s{sT+3}
    s_sub_u32 s{sT+5}, s{sT}, s{sT+3}
    v_add_u32 v{ad}, s{sT+2}, v{vG16}
    v_add_u32 v{ad+1}, s{sT+5}, v{vG16}
    v_add_u32 v{ad+2}, s{sT+2}, v{vI4}
    v_add_u32 v{ad+3}, s{sT+5}, v{vI4}
    v_add_u32 v{ad+4}, s{sT+1 if V == "B43" else sT+4}, v{vI4}
    v_add_u32 v{ad+5}, s{sT+4 if V == "B43" else sT+1}, v{vG16}
    """)
    for a in range(4):
        k.ds(f"ds_read_b128 {vr(AR + a*4)}, v{ad + (a>>1)} offset:{TA + a*64}", "t")
        k.ds(f"ds_read_b128 {vr(BR + a*4)}, v{ad + (a>>1)} offset:{TB + a*64}", "t")
    for n, j in enumerate(J2):
        for hh in range(2): k.ds(f"ds_read_b32 v{C2 + 2*n + hh}, v{ad+4} offset:{TC + hh*1024 + coff(j)}", "t")
    k(f"v_mov_b32 v{c}, {f2h(GC1)}\nv_mov_b32 v{c+1}, {f2h(GC2)}")
    k.wait(lg="t")
    for a in range(4):
        k.ds(f"ds_read_b32 v{AL + a}, v{ad + 2 + (a>>1)} offset:{TA + a*64}", "u")
        k.ds(f"ds_read_b32 v{AL + 4 + a}, v{ad + 2 + (a>>1)} offset:{TB + a*64}", "u")
    for n in range(len(J2)): k(f"v_add_f32 v{C2+2*n}, v{C2+2*n}, v{C2+2*n+1}")
    for n, j in enumerate(J2):
        for p in range(2):
            ys = [tZ(2*p + (i >> 1), j) + 2*(i & 1) for i in range(4)]
            ab = [(2*p + (i >> 1))*4 + 2*(i & 1) for i in range(4)]
            for i in range(4): k(pk("mul", tmp+2*i, [(BR+ab[i], 0), (C2+2*n, 1)]))
            for i in range(4): k(pk("fma", ys[i], [(AR+ab[i], 0), (ys[i], 0), (tmp+2*i, 0)]))
            gelu_pk(k, ys, c, tmp)
            for i in range(4):
                s_ = ST + (2*p + (i >> 1))*8 + 2*(i & 1); q_ = s_ + 4
                if n == 0: k(f"v_mov_b32 v{s_}, v{ys[i]}\nv_mov_b32 v{s_+1}, v{ys[i]+1}\n" + pk("mul", q_, [(ys[i], 0), (ys[i], 0)]))
                else: k(pk("add", s_, [(s_, 0), (ys[i], 0)]) + "\n" + pk("fma", q_, [(ys[i], 0), (ys[i], 0), (q_, 0)]))
            FILL(k, 4 if len(J2) == 4 else 5)
    k.stamp(4)
    C1 = T+8
    for n, j in enumerate(J1):
        for hh in range(2): k.ds(f"ds_read_b128 {vr(C1 + 8*n + 4*hh)}, v{ad+5} offset:{TC + hh*1024 + coff(j)}", "u")
    for n in range(16): k(f"v_add_f32_dpp v{ST+n}, v{ST+n}, v{ST+n} row_mirror row_mask:0xf bank_mask:0x3")
    for n in range(16): k(f"v_add_f32_dpp v{ST+n}, v{ST+16+n}, v{ST+16+n} row_mirror row_mask:0xf bank_mask:0xc")
    FILL(k, 32 - 8*(4 if len(J2) == 4 else 0) - 6*(5 if len(J2) == 3 else 0) + 4)
    for n in range(8): k(f"v_add_f32_dpp v{ST+n}, v{ST+n}, v{ST+n} row_half_mirror row_mask:0xf bank_mask:0x5")
    for n in range(8): k(f"v_add_f32_dpp v{ST+n}, v{ST+8+n}, v{ST+8+n} row_half_mirror row_mask:0xf bank_mask:0xa")
    for n in range(8): k(f"v_add_f32_dpp v{ST+n}, v{ST+n}, v{ST+n} quad_perm:[1,0,3,2] row_mask:0xf bank_mask:0xf")
    for n in range(8): k(f"v_add_f32_dpp v{ST+n}, v{ST+n}, v{ST+n} quad_perm:[2,3,0,1] row_mask:0xf bank_mask:0xf")
    k(f"""
    v_lshrrev_b32 v{tmp}, 2, v2
    s_lshl_b32 s{sT+6}, s{sE}, 1
    v_xor_b32 v{tmp}, s{sT+6}, v{tmp}
    v_lshl_add_u32 v{tmp}, v{tmp}, 6, v{vG16}
    s_lshl_b32 s{sT+6}, s{sE}, 10
    s_lshl_b32 s{sT+7}, s{sH}, 8
    s_add_u32 s{sT+6}, s{sT+6}, s{sT+7}
    v_add_u32 v{tmp}, s{sT+6}, v{tmp}
    ds_write_b128 v{tmp}, {vr(ST)} offset:{PS}
    ds_write_b128 v{tmp}, {vr(ST+4)} offset:{PS + 512}
    v_and_b32 v{tmp+1}, 31, v0
    s_lshl_b32 s{sT+6}, s{sW}, 7
    s_add_u32 s{sT+6}, s{sT+6}, {TOP}
    v_lshl_add_u32 v{tmp+1}, v{tmp+1}, 2, s{sT+6}
    s_add_u32 s{sXs}, s{sWS}, {XS_OFF}
    s_addc_u32 s{sXs+1}, s{sWS+1}, 0
    s_mov_b32 s{sXs+2}, {XS_SZ}
    s_mov_b32 s{sXs+3}, 0x20000
    s_lshl_b32 s{sT+8}, s{sRB}, 14                 ; rb*16384
    s_lshl_b32 s{sT+6}, s{sCQ}, 12
    s_add_u32 s{sT+6}, s{sT+6}, {0 if V == "B43" else 2048}
    s_add_u32 s{sT+6}, s{sT+6}, s{sT+8}
    s_lshl_b32 s{sT+7}, s{sW}, 9
    s_add_u32 s{sT+6}, s{sT+6}, s{sT+7}
    v_mov_b32 v{ST+10}, s{sNON}
    v_mov_b32 v{ST+11}, s{sNON}
    s_waitcnt lgkmcnt(0)
    s_barrier
    ds_read_b32 v{ST+8}, v{tmp+1} offset:{PS}
    ds_read_b32 v{ST+9}, v{tmp+1} offset:{PS + 512}
    ds_read_b32 v{ST+12}, v{tmp+1} offset:{PS + 1024}
    ds_read_b32 v{ST+13}, v{tmp+1} offset:{PS + 1536}
    """)
    k.lg.q = []
    for n in range(len(J1)):
        for i in range(2): k(pk("add", C1+8*n+2*i, [(C1+8*n+2*i, 0), (C1+8*n+4+2*i, 0)]))
    k(f"""
    s_waitcnt lgkmcnt(0)
    {pk("add", ST+8, [(ST+8, 0), (ST+12, 0)])}
    s_mov_b64 exec, 0xffffffff
    buffer_store_dwordx4 {vr(ST+8)}, v{vL16}, s[{sXs}:{sXs+3}], s{sT+6} offen sc1
    s_mov_b64 exec, -1
    """)
    k.lg.q = []; k.vm.issue("pub")
    def z1_unit(n, j):
        for p in range(2):
            ys = [tZ(2*p + (i >> 1), j) + 2*(i & 1) for i in range(4)]
            for i in range(4): k(pk("mul", tmp+2*i, [(C1+8*n+2*(i & 1), 0), (AL+4+2*p+(i >> 1), 1)]))
            for i in range(4): k(pk("fma", ys[i], [(ys[i], 0), (AL+2*p+(i >> 1), 1), (tmp+2*i, 0)]))
            gelu_pk(k, ys, c, tmp)
            for i in range(4): k(f"v_cvt_pk_bf16_f32 v{tZ(2*p, j)+i}, v{ys[i]}, v{ys[i]+1}")
            FILL(k, 7)
    NZA = OPT.get("nza", 2)
    for n, j in list(enumerate(J1))[:NZA]: z1_unit(n, j)
    k.stamp(5)
    G = T+40
    k(f"""
    s_lshl_b32 s{sT+6}, s{sH}, 10
    s_add_u32 s{sT+6}, s{sT+6}, s{sT+8}
    s_add_u32 s{sT+7}, s{sT+6}, 4096
    s_add_u32 s{sT+8}, s{sT+6}, 8192
    s_add_u32 s{sT+9}, s{sT+6}, 12288
    s_mov_b32 s{sT+10}, 0
    {lab}_poll:
    """)
    for cidx in range(8): k(f"buffer_load_dwordx4 {vr(G+4*cidx)}, v{vL16}, s[{sXs}:{sXs+3}], s{sT+6+(cidx>>1)} offen offset:{(cidx&1)*2048} sc1")
    k(f"s_add_u32 s{sT+10}, s{sT+10}, 1\ns_waitcnt vmcnt(0)")
    for cidx in range(8): k(f"v_xor_b32 v{G+4*cidx+3}, s{sNON}, v{G+4*cidx+2}")
    k(f"""
    v_or3_b32 v{G+3}, v{G+3}, v{G+7}, v{G+11}
    v_or3_b32 v{G+15}, v{G+15}, v{G+19}, v{G+23}
    v_or3_b32 v{G+3}, v{G+3}, v{G+27}, v{G+31}
    v_or_b32 v{G+3}, v{G+3}, v{G+15}
    v_cmp_ne_u32 vcc, 0, v{G+3}
    s_nop 3
    s_cmp_gt_u32 s{sT+10}, 100000
    s_cbranch_scc1 {lab}_got
    s_cbranch_vccnz {lab}_poll
    {lab}_got:
    """)
    k(f"""
    s_add_u32 s{sOr}, s{sWS}, {Z1L_OFF}
    s_addc_u32 s{sOr+1}, s{sWS+1}, 0
    s_mov_b32 s{sOr+2}, {Z1L_SZ}
    s_mov_b32 s{sOr+3}, 0x20000
    s_mov_b32 s{sPr}, s{sWS}
    s_mov_b32 s{sPr+1}, s{sWS+1}
    s_mov_b32 s{sPr+2}, {Z2F_SZ}
    s_mov_b32 s{sPr+3}, 0x20000
    s_lshl_b32 s{sT}, s{sRB}, 1
    s_add_u32 s{sT}, s{sT}, s{sH}
    s_mul_i32 s{sT}, s{sT}, 112
    s_mul_i32 s{sT+2}, s{sCQ}, 14
    s_add_u32 s{sT}, s{sT}, s{sT+2}
    s_mul_i32 s{sT+2}, s{sE}, 56
    s_add_u32 s{sT+5}, s{sT}, s{sT+2}
    s_sub_u32 s{sT+6}, s{sT}, s{sT+2}
    s_add_u32 s{sT+6}, s{sT+6}, 56
    s_lshl_b32 s{sT+5}, s{sT+5}, 10
    s_lshl_b32 s{sT+6}, s{sT+6}, 10
    s_lshl_b32 s{sT+1}, s{sT+1}, 4                 ; 4e*1024
    s_lshl_b32 s{sT+4}, s{sT+4}, 4
    s_add_u32 s{sT+4}, s{sT+4}, 8192               ; (8+3e)*1024
    s_add_u32 s{sT+7}, s{sT+5}, s{sT+1}
    s_add_u32 s{sT+8}, s{sT+6}, s{sT+1}
    s_add_u32 s{sT+9}, s{sT+5}, s{sT+4}
    s_add_u32 s{sT+10}, s{sT+6}, s{sT+4}
    """)
    so = lambda j, p: (sT+7+p if j < 4 else sT+9+p, (j if j < 4 else j-4)*1024)
    for i in range(4): k(pk("add", G+8*i, [(G+8*i, 0), (G+8*i+4, 0)]))
    for i in range(2): k(pk("add", G+16*i, [(G+16*i, 0), (G+16*i+8, 0)]))
    k(pk("add", G, [(G, 0), (G+16, 0)]))
    k(f"""
    v_mov_b32 v{G+2}, {f2h(1/896)}
    v_mul_f32 v{G}, v{G}, v{G+2}
    v_mul_f32 v{G+1}, v{G+1}, v{G+2}
    v_fma_f32 v{G+1}, -v{G}, v{G}, v{G+1}
    v_max_f32 v{G+1}, 0, v{G+1}
    """)
    bf16_round(k, G+1, G+1); k(f"v_add_f32 v{G+1}, {f2h(1e-5)}, v{G+1}"); bf16_round(k, G+1, G+1)
    k(f"v_sqrt_f32 v{G+1}, v{G+1}"); bf16_round(k, G, G); bf16_round(k, G+1, G+1)
    k(f"""
    v_rcp_f32 v{G+1}, v{G+1}
    s_lshl_b32 s{sT}, s{sW}, 9
    s_add_u32 s{sT+2}, s{sT}, {TOP}
    v_lshl_add_u32 v{G+2}, v0, 2, s{sT+2}
    v_mul_f32 v{G}, -v{G}, v{G+1}
    ds_write_b32 v{G+2}, v{G+1} offset:{NT}
    ds_write_b32 v{G+2}, v{G} offset:{NT + 256}
    s_add_u32 s{sT+2}, s{sT}, s{sT+3}
    s_sub_u32 s{sT}, s{sT}, s{sT+3}
    v_add_u32 v{ad}, s{sT+2}, v{vG16}
    v_add_u32 v{ad+1}, s{sT}, v{vG16}
    """)
    k("s_waitcnt lgkmcnt(0)"); k.lg.q = []; k.vm.q = []
    NR, NM = T+48, T+64
    for a in range(4):
        k.ds(f"ds_read_b128 {vr(NR + a*4)}, v{ad + (a>>1)} offset:{NT + a*64}", f"n{a>>1}")
        k.ds(f"ds_read_b128 {vr(NM + a*4)}, v{ad + (a>>1)} offset:{NT + 256 + a*64}", f"n{a>>1}")
    for p in range(2):
        k.wait(lg=f"n{p}")
        for j in J2:
            ys = [tZ(2*p + (i >> 1), j) + 2*(i & 1) for i in range(4)]
            ab = [(2*p + (i >> 1))*4 + 2*(i & 1) for i in range(4)]
            for i in range(4): k(pk("fma", ys[i], [(ys[i], 0), (NR+ab[i], 0), (NM+ab[i], 0)]))
            for i in range(4): k(f"v_cvt_pk_bf16_f32 v{tZ(2*p, j)+i}, v{ys[i]}, v{ys[i]+1}")
            k(f"buffer_store_dwordx4 {vr(tZ(2*p, j))}, v{vL16}, s[{sPr}:{sPr+3}], s{so(j,p)[0]} offen offset:{so(j,p)[1]} {st_pol}")
    for n, j in list(enumerate(J1))[NZA:]: z1_unit(n, j)
    z2flag(k, V)
    for j in J1:
        for p in range(2): k.vmem(f"buffer_store_dwordx4 {vr(tZ(2*p, j))}, v{vL16}, s[{sOr}:{sOr+3}], s{so(j,p)[0]} offen offset:{so(j,p)[1]} {st_pol}", "p1st")

def epi_attn(k, lab, st_pol, tQ, tK, tV, Z):
    vI4, vG16 = T+3, T+7
    AL, BL = T+8, T+18
    CQ, CK, CV = T+28, T+32, T+27
    QP, KP, VP = T+36, T+52, T+70
    tmp = T+88
    MC, MP = T+96, T+98
    cS, cN = T, T+1
    RA = T+100
    k(f"v_add_u32 v{T+4}, s{sT+1}, v{vG16}\nv_add_u32 v{T+5}, s{sT+1}, v{vI4}")
    k.ds(f"ds_read_b128 {vr(CQ)}, v{T+4} offset:{TC}", "t")
    k.ds(f"ds_read_b128 {vr(CK)}, v{T+4} offset:{TC + 64}", "t")
    k.ds(f"ds_read_b32 v{CV}, v{T+5} offset:{TC + 128}", "t")
    for a in range(9):
        k.ds(f"ds_read_b32 v{AL+a}, v{vI4} offset:{TA + a*64}", f"l{a}")
        k.ds(f"ds_read_b32 v{BL+a}, v{vI4} offset:{TB + a*64}", f"l{a}")
    CZ, gc, gt = T+36, T+40, T+44
    k.ds(f"ds_read_b128 {vr(CZ)}, v{T+4} offset:{TC + 192}", "l8")
    k(f"""
    v_mov_b32 v{gc}, {f2h(GC1)}
    v_mov_b32 v{gc+1}, {f2h(GC2)}
    s_add_u32 s{sOr}, s{sWS}, {Z1L_OFF}
    s_addc_u32 s{sOr+1}, s{sWS+1}, 0
    s_mov_b32 s{sOr+2}, {Z1L_SZ}
    s_mov_b32 s{sOr+3}, 0x20000
    s_mul_i32 s{sT+2}, s{sRB}, 224
    s_mul_i32 s{sT+3}, s{sCQ}, 14
    s_add_u32 s{sT+2}, s{sT+2}, s{sT+3}
    s_and_b32 s{sT+3}, s{sSUB}, 1
    s_lshl_b32 s{sT+3}, s{sT+3}, 2
    s_add_u32 s{sT+2}, s{sT+2}, s{sT+3}
    s_add_u32 s{sT+2}, s{sT+2}, s{sW}
    s_lshl_b32 s{sT+2}, s{sT+2}, 10
    """)
    k.wait(lg="l8")
    for p in range(4):
        ys = [Z + 8*p + 2*i for i in range(4)]
        for i in range(4): k(pk("mul", gt+2*i, [(CZ+2*(i & 1), 0), (BL+1+2*p+(i >> 1), 1)]))
        for i in range(4): k(pk("fma", ys[i], [(ys[i], 0), (AL+1+2*p+(i >> 1), 1), (gt+2*i, 0)]))
        gelu_pk(k, ys, gc, gt, (1, 1, 1, 0))
        for i in range(4): k(f"v_cvt_pk_bf16_f32 v{Z+8*p+i}, v{ys[i]}, v{ys[i]+1}")
        k.vmem(f"buffer_store_dwordx4 {vr(Z+8*p)}, v{vL16}, s[{sOr}:{sOr+3}], s{sT+2} offen sc1", "p1st")
        k(f"s_add_u32 s{sT+2}, s{sT+2}, {56*1024}")
    k(f"""
    v_and_b32 v{tmp}, 1, v2
    v_lshl_add_u32 v{tmp+1}, v1, 2, v{tmp}
    v_cmp_le_u32 s[{sM+2}:{sM+3}], v{tmp+1}, v2
    v_add_u32 v{tmp+1}, 2, v{tmp+1}
    v_cmp_le_u32 s[{sM+4}:{sM+5}], v{tmp+1}, v2
    v_lshlrev_b32 v{tmp}, 4, v{tmp}
    v_mov_b32 v{tmp+1}, 0xffff
    v_lshlrev_b32 v{tmp}, v{tmp}, v{tmp+1}
    v_cndmask_b32 v{MC}, 0, v{tmp}, s[{sM+2}:{sM+3}]
    v_cndmask_b32 v{MP}, v{tmp}, 0, s[{sM+2}:{sM+3}]
    v_cndmask_b32 v{MC+1}, 0, v{tmp}, s[{sM+4}:{sM+5}]
    v_cndmask_b32 v{MP+1}, v{tmp}, 0, s[{sM+4}:{sM+5}]
    v_mov_b32 v{cS}, {f2h(0.25*LOG2E)}
    v_mov_b32 v{cN}, {f2h(-1e30)}
    s_cmp_eq_u32 s{sRB}, 0
    s_cselect_b64 s[{sM+6}:{sM+7}], -1, 0
    """)
    for a in range(9):
        k.wait(lg=f"l{a}")
        tiles = [(tK(a), CK, KP+2*a)] + ([(tQ(a), CQ, QP+2*(a-1))] if a else [])
        for n, (y, cs, d) in enumerate(tiles):
            for i in range(2): k(pk("mul", tmp+4*n+2*i, [(cs+2*i, 0), (BL+a, 1)]))
        for n, (y, cs, d) in enumerate(tiles):
            for i in range(2): k(pk("fma", y+2*i, [(y+2*i, 0), (AL+a, 1), (tmp+4*n+2*i, 0)]))
        for n, (y, cs, d) in enumerate(tiles):
            for i in range(2): k(f"v_cvt_pk_bf16_f32 v{d+i}, v{y+2*i}, v{y+2*i+1}")
        FILL(k, 1)
    Sc = lambda a: tQ(a); Sp = lambda a: tK(a)
    RV = 256
    buf = [T+8, T+16, T+100]
    def rd(a):
        b = buf[a % 3]
        k.ds(f"ds_read_b128 {vr(b)}, v{vG16} offset:{TA + a*64}", f"v{a}")
        k.ds(f"ds_read_b128 {vr(b+4)}, v{vG16} offset:{TB + a*64}", f"v{a}")
    rd(0); rd(1)
    for a in range(1, 9):
        k(f"v_mfma_f32_16x16x16_bf16 {vr(Sc(a))}, {vr(KP+2*a, 2)}, {vr(QP+2*(a-1), 2)}, 0")
        k(f"v_mfma_f32_16x16x16_bf16 {vr(Sp(a))}, {vr(KP+2*(a-1), 2)}, {vr(QP+2*(a-1), 2)}, 0")
    for a in range(9):
        if a + 2 < 9: rd(a + 2)
        k.wait(lg=f"v{a}")
        b = buf[a % 3]; y = tV(a)
        for i in range(2): k(pk("mul", tmp+2*i, [(b+4+2*i, 0), (CV, 1)]))
        for i in range(2): k(pk("fma", y+2*i, [(b+2*i, 0), (y+2*i, 0), (tmp+2*i, 0)]))
        for i in range(2): k(f"v_cvt_pk_bf16_f32 v{VP+2*a+i}, v{y+2*i}, v{y+2*i+1}")
        FILL(k, 1)
    U = range(1, 9)
    X = lambda a: tV(a)
    for a in U:
        for v in range(2):
            k(f"v_cndmask_b32 v{X(a)+v}, v{Sc(a)+2*v}, v{Sc(a)+2*v+1}, s[{sM}:{sM+1}]")
            k(f"v_cndmask_b32 v{X(a)+2+v}, v{Sp(a)+2*v}, v{Sp(a)+2*v+1}, s[{sM}:{sM+1}]")
    for v in range(2): k(f"v_cndmask_b32 v{X(1)+2+v}, v{X(1)+2+v}, v{cN}, s[{sM+6}:{sM+7}]")
    for a in U:
        for v in range(2): k(f"v_cndmask_b32 v{X(a)+v}, v{X(a)+2+v}, v{X(a)+v}, s[{sM+2+2*v}:{sM+3+2*v}]")
    def allred(op):
        for sw in ("v_permlane16_swap_b32", "v_permlane32_swap_b32"):
            for a in U: k(f"v_mov_b32 v{X(a)+3}, v{X(a)+2}")
            for a in U: k(f"{sw} v{X(a)+2}, v{X(a)+3}")
            for a in U: k(f"{op} v{X(a)+2}, v{X(a)+2}, v{X(a)+3}")
            FILL(k, 4)
    FILL(k, 6)
    for a in U: k(f"v_max_f32 v{X(a)+2}, v{X(a)}, v{X(a)+1}")
    allred("v_max_f32")
    for a in U: k(f"v_pk_add_f32 {P(X(a))}, {P(X(a))}, {P(X(a)+2)} op_sel_hi:[1,0] neg_lo:[0,1] neg_hi:[0,1]")
    for a in U: k(pk("mul", X(a), [(X(a), 0), (cS, 1)]))
    for a in U:
        for v in range(2): k(f"v_exp_f32 v{X(a)+v}, v{X(a)+v}")
    for a in U: k(f"v_add_f32 v{X(a)+2}, v{X(a)}, v{X(a)+1}")
    allred("v_add_f32")
    for a in U: k(f"v_rcp_f32 v{X(a)+2}, v{X(a)+2}")
    for a in U: k(pk("mul", X(a), [(X(a), 0), (X(a)+2, 1)]))
    for a in U:
        for v in range(2): k(f"v_cvt_pk_bf16_f32 v{X(a)+v}, v{X(a)+v}, v{X(a)+v}")
    for a in U:
        for v in range(2): k(f"v_and_b32 v{Sc(a)+v}, v{X(a)+v}, v{MP+v}\nv_and_b32 v{Sc(a)+2+v}, v{X(a)+v}, v{MC+v}")
    for a in U: k(f"v_mfma_f32_16x16x32_bf16 {vr(Sp(a))}, {vr(VP+2*(a-1))}, {vr(Sc(a))}, 0")
    FILL(k, 6)
    OP = T+8
    k(f"""
    s_lshl_b32 s{sT}, s{sW}, 12
    s_add_u32 s{sT}, s{sT}, {TOP}
    v_add_u32 v{tmp}, s{sT}, v{vL16}
    s_and_b32 s{sT+1}, s{sW}, 2
    s_lshl_b32 s{sT+1}, s{sT+1}, 12
    s_and_b32 s{sT+2}, s{sW}, 1
    s_lshl_b32 s{sT+3}, s{sT+2}, 11
    s_add_u32 s{sT+1}, s{sT+1}, s{sT+3}
    s_add_u32 s{sT+1}, s{sT+1}, {TOP}
    v_add_u32 v{tmp+1}, s{sT+1}, v{vL16}
    s_add_u32 s{sOr}, s{sWS}, {A3_OFF}
    s_addc_u32 s{sOr+1}, s{sWS+1}, 0
    s_mov_b32 s{sOr+2}, {A3_SZ}
    s_mov_b32 s{sOr+3}, 0x20000
    s_lshl_b32 s{sT}, s{sRB}, 1
    s_add_u32 s{sT}, s{sT}, s{sT+2}
    s_mul_i32 s{sT}, s{sT}, 176
    s_lshl_b32 s{sT+1}, s{sSUB}, 1
    s_add_u32 s{sT}, s{sT}, s{sT+1}
    s_lshr_b32 s{sT+1}, s{sW}, 1
    s_add_u32 s{sT}, s{sT}, s{sT+1}
    s_lshl_b32 s{sT}, s{sT}, 10
    s_add_u32 s{sT+1}, s{sT}, {44*1024}
    s_add_u32 s{sT+2}, s{sT}, {88*1024}
    s_add_u32 s{sT+3}, s{sT}, {132*1024}
    """)
    for a in U:
        for d in range(2): k(f"v_cvt_pk_bf16_f32 v{OP+2*(a-1)+d}, v{Sp(a)+2*d}, v{Sp(a)+2*d+1}")
    k.stamp(4)
    for n in range(4): k.ds(f"ds_write_b128 v{tmp}, {vr(OP+4*n)} offset:{OX + n*1024}", "ow")
    k("s_waitcnt lgkmcnt(0)\ns_barrier"); k.lg.q = []
    for n in range(4):
        o = OX + (n >> 1)*1024 + (n & 1)*8
        k.ds(f"ds_read_b64 {vr(OP+16+4*n, 2)}, v{tmp+1} offset:{o}", f"o{n}")
        k.ds(f"ds_read_b64 {vr(OP+18+4*n, 2)}, v{tmp+1} offset:{o + 4096}", f"o{n}")
    for n in range(4):
        k.wait(lg=f"o{n}")
        k.vmem(f"buffer_store_dwordx4 {vr(OP+16+4*n)}, v{vL16}, s[{sOr}:{sOr+3}], s{sT+n} offen {st_pol}", "p1st")
    k.stamp(5)
```

```python
from asmlib import *
from layout import *
from f1 import pk, P, vL16
NREST = 4
NJA = 8
WREG = 33792
LDS2 = 4*WREG
RING = 1024
sAr, sZ2, sZ1, sA3, sBs = sR0, sR1, sR2, sR3, sR4
sRB2, sCB, sReg, sBo = 81, 82, 73, 11
sAo = [83, 27, 58, 72]
sLand = 101
sU = sT + 6
vAd = [23, 31]; vB1 = 6; vAr = [252, 253, 254, 255]; vRW = 12; vRR = [13, 14, 15]; BS = 18; vZ = 19
Z1 = 18
ACC = 32
RAW = 160
Z1 = 176
T = 192
BR = 256
AS = 256 + 112
def ASr(s): return 256 + 160 + 16*s if s < 6 else 256 + 128 + 16*(s - 6)

def setup_v(k):
    k(f"""
    v_and_b32 v3, 7, v0
    v_xor_b32 v3, v3, v1
    v_lshlrev_b32 v3, 4, v3
    v_lshrrev_b32 v7, 3, v0
    v_lshl_add_u32 v{vAd[0]}, v7, 12, v3
    v_xor_b32 v{vAd[1]}, 64, v{vAd[0]}
    v_add_u32 v{vAd[1]}, 0x8000, v{vAd[1]}
    """)
def ids(k, sRB2=sRB2, sCB=sCB):
    k(f"""
    s_and_b32 s{sU}, s2, 7
    s_lshr_b32 s{sU+1}, s2, 3
    s_lshr_b32 s{sRB2}, s{sU}, 1
    s_lshl_b32 s{sRB2}, s{sRB2}, 3
    s_lshr_b32 s{sU+2}, s{sU+1}, 2
    s_add_u32 s{sRB2}, s{sRB2}, s{sU+2}
    s_and_b32 s{sCB}, s{sU}, 1
    s_lshl_b32 s{sCB}, s{sCB}, 2
    s_and_b32 s{sU+2}, s{sU+1}, 3
    s_add_u32 s{sCB}, s{sCB}, s{sU+2}
    """)
def setup(k):
    sRB2 = sT + 4
    ids(k, sT + 4, sT + 5)
    for u in range(4):
        k(f"""
        s_xor_b32 s{sU}, s{sW}, {u}
        s_lshl_b32 s{sU+1}, s{sRB2}, 2
        s_add_u32 s{sU}, s{sU}, s{sU+1}
        s_lshl_b32 s{sU}, s{sU}, 16
        s_lshl_b32 s{sU+1}, s{sW}, 10
        s_add_u32 s{sAo[u]}, s{sU}, s{sU+1}
        """)

def gA(sl, m, a_pol="", sAr=sAr):
    return [("i", f"s_add_u32 m0, s{sReg}, {RING + (sl%4)*8192 + m*1024 - 128*sl}"), ("i", "s_nop 0"),
            ("v", f"buffer_load_dwordx4 v{vAd[m&1]}, s[{sAr}:{sAr+3}], s{sAo[m>>1]} offen offset:{128*sl} {a_pol} lds", f"A{sl}")]
def R(s, dst=None):
    d = RAW + (s&1)*16 if dst is None else dst
    return [("d", f"ds_read_b64 {vr(d + u*4 + 2*j2, 2)}, v{vAr[2*(s&1) + j2]} offset:{RING + ((s>>1)%4)*8192 + u*2048}", f"R{s}") for u in range(4) for j2 in range(2)]
def read_bases(k, sReg=sReg):
    k(f"""
    v_xor_b32 v3, v2, v1
    v_lshrrev_b32 v3, 1, v3                 ; (i>>1) ^ (g>>1)
    v_lshlrev_b32 v3, 4, v3
    v_lshl_add_u32 v3, v2, 7, v3
    v_and_b32 v7, 1, v1
    v_lshl_add_u32 v3, v7, 3, v3
    v_add_u32 v{vAr[0]}, s{sReg}, v3
    v_xor_b32 v{vAr[1]}, 32, v{vAr[0]}
    v_xor_b32 v{vAr[2]}, 64, v{vAr[0]}
    v_xor_b32 v{vAr[3]}, 96, v{vAr[0]}
    """)
def early(k):
    setup(k)
    k.srd(sAr, sWSP, 2048*4096)
def land_groups(sSt, sXl, sA):
    G = [[f"s_add_u32 m0, s{sA}, {m*1024}", f"buffer_load_dwordx4 v{vAd[m&1]}, s[{sAr}:{sAr+3}], s{sAo[m>>1]} offen lds"] + ([f"s_add_u32 s{sAo[m>>1]}, s{sAo[m>>1]}, 128"] if m & 1 else []) for m in range(8)]
    G[0] = [f"s_lshl_b32 s{sA}, s{sXl}, 1", f"s_add_u32 s{sA}, s{sA}, s{sSt}"] + G[0]
    return G
def stage_groups(k, STG):
    k(f"s_lshl_b32 s{sLand}, s{sW}, 13\ns_mul_i32 s{sReg}, s{sW}, {WREG}")
    read_bases(k, sLand)
    for u in range(4): k(f"s_sub_u32 s{sAo[u]}, s{sAo[u]}, 384")
    adv = lambda d: [("i", f"v_add_u32 v{r}, {d}, v{r}") for r in vAr]
    def rdl(sl, off):
        L = [("d", f"ds_read_b64 {vr(ASr(2*sl + sp) + u*4 + 2*j2, 2)}, v{vAr[2*sp + j2]} offset:{off + u*2048}", f"L{sl}") for sp in range(2) for u in range(4) for j2 in range(2)]
        return [[("w", f"E{sl}", None)] + L[:8], L[8:]]
    r1, r2, r0 = rdl(1, 0), rdl(2, STG), rdl(0, STG)
    pre = [adv(STG) + r0[0], r0[1] + adv(-STG), r1[0], r1[1], r2[0], r2[1] + [("i", f"s_sub_u32 s{sLand}, s{sReg}, s{sLand}")] + [("i", f"v_add_u32 v{r}, s{sLand}, v{r}") for r in vAr]]
    L3 = R(6, ASr(6)) + R(7, ASr(7))
    g7 = [gA(7, m) for m in range(8)]; g7[0] = [("w", None, "R7")] + g7[0]
    post = ([gA(3, m) for m in range(8)] + [gA(4, m) for m in range(8)] + [gA(5, m) for m in range(4)] + [[("w", "A3", None)] + L3[:8], L3[8:]]
            + [gA(5, m) for m in range(4, 8)] + [gA(6, m) for m in range(8)] + g7)
    return pre, post

def stage_groups_B(k):
    setup(k)
    k(f"s_mul_i32 s{sLand}, s{sW}, 14336\ns_add_u32 s{sLand}, s{sLand}, {98304 + 1024}\ns_mul_i32 s{sReg}, s{sW}, {WREG}")
    read_bases(k, sLand)
    k.srd(sR2, sWSP, 2048*4096)
    def dm(h):
        sl, hf, buf = h >> 1, h & 1, h % 3
        G = []
        for m in range(4*hf, 4*hf + 4):
            G.append([("i", f"s_add_u32 m0, s{sLand}, {buf*4096 + (m&3)*1024 - 128*sl}"), ("i", "s_nop 0"),
                      ("v", f"buffer_load_dwordx4 v{vAd[m&1]}, s[{sR2}:{sR2+3}], s{sAo[m>>1]} offen offset:{128*sl} lds", f"H{h}")])
        if h >= 3: G[0] = [("w", None, f"L{h-3}")] + G[0]
        return G
    def rd(h):
        sl, hf, buf = h >> 1, h & 1, h % 3
        return [("w", f"H{h}", None)] + [("d", f"ds_read_b64 {vr(ASr(2*sl + sp) + (2*hf + u)*4 + 2*j2, 2)}, v{vAr[2*sp + j2]} offset:{buf*4096 + u*2048}", f"L{h}")
                                         for sp in range(2) for u in range(2) for j2 in range(2)]
    G = dm(0) + dm(1) + dm(2)[:2] + [rd(0)] + dm(2)[2:]
    for h in range(1, 8):
        d = dm(h + 2) if h + 2 < 8 else []
        G += d[:2] + [rd(h)] + d[2:]
    G[-1] = G[-1] + [("i", f"s_sub_u32 s{sLand}, s{sReg}, s{sLand}")] + [("i", f"v_add_u32 v{r}, s{sLand}, v{r}") for r in vAr]
    return G
def nostage_B(k):
    setup(k)
    k(f"s_mul_i32 s{sReg}, s{sW}, {WREG}")
    read_bases(k)
    return []
def nostage_B2(k):
    k.srd(sAr, sWSP, 2048*4096)
    return [gA(sl, m) for sl in range(4) for m in range(8)]
def stage_groups_B2(k):
    k.srd(sAr, sWSP, 2048*4096)
    return [gA(sl, m) for sl in range(4, 8 - NREST) for m in range(8)]

sFU = 74
def gen_p2(k, name, NJ, wait_z2, tail, mid, pre, rest, DB=4, staged=True):
    NS = 16
    RAWv, Z1, ZU = RAW, 192, 208
    vB = [vL16, vB1]
    ids(k)
    k(f"""
    v_add_u32 v{vB1}, 4096, v{vL16}
    s_and_b32 s{sT}, s{sCB}, 3
    s_mul_i32 s{sFU}, s{sT}, {NJA}
    s_cmp_eq_u32 s{sT}, 3
    s_cselect_b32 s{sFU}, {2*NJA + 14 - NJA}, s{sFU}
    s_lshr_b32 s{sT}, s{sCB}, 2
    s_mul_i32 s{sT}, s{sT}, 28
    s_add_u32 s{sFU}, s{sFU}, s{sT}
    s_mul_i32 s{sBo}, s{sW}, {16*56}
    s_add_u32 s{sBo}, s{sBo}, s{sFU}
    s_lshl_b32 s{sBo}, s{sBo}, 10
    """)
    k.srd(sZ2, sWS, Z2F_SZ)
    def gB(s, j):
        g = [("i", f"s_add_u32 s{sT}, s{sBo}, {s*57344}")] if j == 0 else []
        return g + [("v", f"buffer_load_dwordx4 {vr(BR + (s%DB)*4*NJ + j*4)}, v{vB[j//4]}, s[{sZ2}:{sZ2+3}], s{sT} offen offset:{(j%4)*1024} sc1", f"B{s}")]
    def emit(item):
        if item[0] == "i": k(item[1])
        elif item[0] == "v": k.vmem(item[1], item[2])
        elif item[0] == "d": k.ds(item[1], item[2])
        elif item[0] == "w": k.wait(vm=item[1], lg=item[2])
    def em(gs):
        for g in gs:
            for it in g: emit(it)
    k(f"""
    s_add_u32 s{sZ1}, s{sWS}, {Z1L_OFF}
    s_addc_u32 s{sZ1+1}, s{sWS+1}, 0
    s_mov_b32 s{sZ1+2}, {Z1L_SZ}
    s_mov_b32 s{sZ1+3}, 0x20000
    s_add_u32 s{sA3}, s{sWS}, {A3_OFF}
    s_addc_u32 s{sA3+1}, s{sWS+1}, 0
    s_mov_b32 s{sA3+2}, {A3_SZ}
    s_mov_b32 s{sA3+3}, 0x20000
    v_add_u32 v{vRW}, s{sReg}, v{vL16}
    """)
    k.srd(sBs, sBSP, 4096)
    for u in range(1, 4):
        k(f"""
        s_xor_b32 s{sT+1}, s{sW}, {u}
        s_mul_i32 s{sT+1}, s{sT+1}, {WREG}
        s_add_u32 s{sT+1}, s{sT+1}, {(u-1)*8192}
        v_add_u32 v{vRR[u-1]}, s{sT+1}, v{vL16}
        """)
    k(f"""
    s_lshl_b32 s{sT+4}, s{sRB2}, 1
    s_lshr_b32 s{sT+1}, s{sW}, 1
    s_add_u32 s{sT+4}, s{sT+4}, s{sT+1}
    s_mul_i32 s{sT+4}, s{sT+4}, 56
    s_add_u32 s{sT+4}, s{sT+4}, s{sFU}
    s_lshl_b32 s{sT+4}, s{sT+4}, 10
    s_and_b32 s{sT+1}, s{sW}, 1
    s_lshl_b32 s{sT+1}, s{sT+1}, 3
    s_add_u32 s{sT+2}, s{sT+4}, s{sT+1}
    s_lshl_b32 s{sT+3}, s{sRB2}, 2
    s_add_u32 s{sT+3}, s{sT+3}, s{sW}
    s_mul_i32 s{sT+4}, s{sT+3}, 44
    s_lshl_b32 s{sT+3}, s{sT+3}, 5
    s_lshr_b32 s{sT+1}, s{sFU}, 1
    s_add_u32 s{sT+4}, s{sT+4}, s{sT+1}
    s_add_u32 s{sT+4}, s{sT+4}, 16
    s_lshl_b32 s{sT+4}, s{sT+4}, 10
    v_lshlrev_b32 v{vZ}, 1, v2
    """)
    k.vmem(f"buffer_load_ushort v{BS}, v{vZ}, s[{sBs}:{sBs+3}], s{sT+3} offen", "bs")
    pre(k)
    wait_z2(k, name)
    em([gB(s, j) for s in range(DB - 1) for j in range(NJ)])
    Aop = lambda s: ASr(s) if (s < 8 and staged) else RAWv + (s&1)*16
    if not staged:
        for it in R(0): emit(it)
    NM = 4*NJ
    wr = lambda u, j: ("d", f"ds_write_b128 v{vRW}, {vr(ACC + (u*NJ+j)*4)} offset:{(u-1)*8192 + j*1024}", "rw")
    TG = []
    for s in range(NS):
        order = [(u, j) for j in range(NJ) for u in range(4)] if s < NS - 1 else [(u, j) for u in (3, 2, 1, 0) for j in range(NJ)]
        MF = [f"v_mfma_f32_16x16x32_bf16 {vr(ACC + (u*NJ+j)*4)}, {vr(BR + (s%DB)*NM + j*4)}, {vr(Aop(s) + u*4)}, {vr(ACC + (u*NJ+j)*4) if s else '0'}" for u, j in order]
        slots = [[] for _ in range(NM + 1)]
        slots[0].append(("w", f"B{s}", f"R{s}"))
        if (8 if staged else 1) <= s + 1 < NS:
            slots[1].append(("w", f"A{(s+1)>>1}", None))
            for u, it in enumerate(R(s + 1)): slots[1 + u].append(it)
        G = [gB(s + DB - 1, j) for j in range(NJ)] if s + DB - 1 < NS else []
        if not staged and 1 <= s <= 8: G = interleave(G, [gA(((s+1)>>1) + 3, m) for m in range(4*((s+1)&1), 4*((s+1)&1) + 4)])
        if s < 8 and rest: G = interleave(G, rest[s*len(rest)//8:(s + 1)*len(rest)//8])
        G = G + mid[2](s)
        if s == 8: G = G + [mid[0](k)]
        if s == 13:
            slots[0] = [("w", "fz1", None)] + slots[0] + mid[1](k, name)
            G += [[("v", f"buffer_load_dwordx2 {vr(Z1 + 2*j, 2)}, v{vB[j//4]}, s[{sZ1}:{sZ1+3}], s{sT+2} offen offset:{(j%4)*1024} sc1", "z1")] for j in range(NJ)]
        if s == 14: TG = tail(k); G += TG[8:16]
        if s == 15:
            G += TG[:8]
            W_ = [wr(u, j) for u in (3, 2, 1) for j in range(NJ)]
            for n in range(NJ + 3, NM + 1): slots[n].append(W_.pop(0))
        for n, g in enumerate(G): slots[1 + n*(NM - 1)//max(1, len(G))] += g
        for i, m in enumerate(MF):
            for it in slots[i]: emit(it)
            k(m)
        for it in slots[NM]: emit(it)
    k.stamp(3)
    TG = TG[16:]
    k.wait(vm="z1")
    un = [f"v_lshlrev_b32 v{ZU + j*4 + 2*d}, 16, v{Z1 + 2*j + d}\nv_and_b32 v{ZU + j*4 + 2*d + 1}, 0xffff0000, v{Z1 + 2*j + d}" for j in range(NJ) for d in range(2)]
    for it in W_:
        emit(it)
        if TG: em([TG.pop(0)])
    for l in un: k(l)
    k(f"v_lshlrev_b32 v{BS}, 16, v{BS}")
    for j in range(NJ):
        for d in range(2): k(pk("add", ACC + j*4 + 2*d, [(ACC + j*4 + 2*d, 0), (BS, 1)]))
    k("s_waitcnt lgkmcnt(0)\ns_barrier"); k.lg.q = []
    k.stamp(4)
    Pp = ACC + NM
    for j in range(NJ):
        for u in range(3):
            k.ds(f"ds_read_b128 {vr(Pp + j*12 + u*4)}, v{vRR[u]} offset:{j*1024}", f"p{j}")
    H = Z1
    for j in range(NJ):
        em(TG[:2]); TG = TG[2:]
        k.wait(lg=f"p{j}")
        p = Pp + j*12; g = ACC + j*4
        for d in range(2): k(pk("add", g+2*d, [(g+2*d, 0), (p+2*d, 0)]))
        for d in range(2): k(pk("add", p+4+2*d, [(p+4+2*d, 0), (p+8+2*d, 0)]))
        for d in range(2): k(pk("add", g+2*d, [(g+2*d, 0), (p+4+2*d, 0)]))
        for d in range(2): k(pk("mul", g+2*d, [(g+2*d, 0), (ZU+j*4+2*d, 0)]))
        for d in range(2): k(f"v_cvt_pk_bf16_f32 v{H+2*j+d}, v{g+2*d}, v{g+2*d+1}")
        if j & 1: k.vmem(f"buffer_store_dwordx4 {vr(H+2*j-2)}, v{vL16}, s[{sA3}:{sA3+3}], s{sT+4} offen offset:{(j>>1)*1024} sc1", "hs")
```

```python
from asmlib import *
from layout import *
import f1, f2
from f1 import (f2h, pk, P, bf16_round, gelu_pk, prologue, epi_attn, FILL, OPT, XW, STG, TOP, TA, TB, TC, PS, OX, NT, LDSF, GC1, GC2,
                sXr, sWr, sOr, sPr, sXs, sRB, sCQ, sSUB, sH, sE, sXo, sWo, sHo, sXl, sWl, sSt, sDelta, sI, sA, sB, sSTG,
                vXe, vXo, vWd, vH, vL16, vNon, vZero, ONES, ACC, T)
SB = 32768
STGA = XW + 8*4096
TOPB = 155648
vPF = 3
def emit(k, it):
    if isinstance(it, str): k(it)
    elif it[0] == "i": k(it[1])
    elif it[0] == "v": k.vmem(it[1], it[2])
    elif it[0] == "d": k.ds(it[1], it[2])
    else: k.wait(vm=it[1], lg=it[2])
def weave(k, M, slots):
    for i, m in enumerate(M):
        for it in slots[i]: emit(k, it)
        k(m)
    for it in slots[len(M)]: emit(k, it)
def place_groups(slots, G, nM, first=1):
    assert len(G) <= nM - first - 1
    for n, g in enumerate(G):
        pos = first + n*(nM - first - 1)//len(G)
        txt = [x if isinstance(x, str) else x[1] for x in g]
        c = [i for i, l in enumerate(txt) if " m0," in l]
        cut = c[-1] + 1 if c else 0
        slots[pos] += g[:cut]; slots[pos + 1] = g[cut:] + slots[pos + 1]
def mf(d, a, b): return f"v_mfma_f32_16x16x32_bf16 {vr(d)}, {vr(a)}, {vr(b)}, {vr(d)}"
vPX, vPW, sPX, sPW = 18, 19, 58, 72
def pf_xw(pitch, lanesW):
    if OPT.get('bk'): return []
    if OPT.get('noxw'): return [[f'buffer_load_dword v28, v{vZero}, s[{sXr}:{sXr+3}], 0 offen']]*2
    return [["s_mov_b64 exec, 0xff", f"buffer_load_dword v28, v{vPX}, s[{sXr}:{sXr+3}], s{sPX} offen", "s_mov_b64 exec, -1", f"s_add_u32 s{sPX}, s{sPX}, 128"],
            [f"s_mov_b64 exec, {(1 << lanesW) - 1}", f"buffer_load_dword v28, v{vPW}, s[{sWr}:{sWr+3}], s{sPW} offen", "s_mov_b64 exec, -1", f"s_add_u32 s{sPW}, s{sPW}, {64*pitch}"]]
def bulk(k, name, lab, isA, pitch, wadv, g2=0):
    k(f"""
    s_lshr_b32 s{sT}, s2, 3
    s_lshl_b32 s{sT+1}, s{sT}, 2
    s_add_u32 s{sT+6}, s{sT+1}, s{sW}
    v_lshlrev_b32 v{vPX}, 10, v0
    s_and_b32 s{sT+1}, s{sT+6}, 15
    s_lshl_b32 s{sT+1}, s{sT+1}, 13
    s_lshl_b32 s{sPX}, s{sRB}, 17
    s_add_u32 s{sPX}, s{sPX}, s{sT+1}
    s_add_u32 s{sPX}, s{sPX}, {128*wadv}
    v_mul_u32_u24 v{T+1}, 86, v0
    v_lshrrev_b32 v{T+1}, 8, v{T+1}            ; l/3
    v_mul_u32_u24 v{T+2}, 3, v{T+1}
    v_sub_u32 v{T+2}, v0, v{T+2}               ; l%3
    v_and_b32 v{T+3}, 1, v{T+1}
    v_mul_u32_u24 v{T+3}, {pitch}, v{T+3}
    s_and_b32 s{sT+1}, s{sRB}, 7
    s_lshl_b32 s{sT+1}, s{sT+1}, 3
    s_mul_i32 s{sT+2}, s{sW}, -14
    s_add_u32 s{sT+1}, s{sT+1}, s{sT+2}        ; 8*(rb&7) + 2w - 16w
    s_mul_i32 s{sT+1}, s{sT+1}, {pitch}
    """)
    if OPT.get("bk"):
        k(f"""
        v_lshlrev_b32 v{T}, 7, v0
        s_sub_u32 s{sPX}, s{sPX}, {128*wadv}
        s_mov_b32 exec_lo, 0xf8f8f8f8
        s_mov_b32 exec_hi, 0xf8f8f8f8
        buffer_load_dword v28, v{T}, s[{sXr}:{sXr+3}], s{sPX} offen
        s_mov_b64 exec, -1
        s_and_b32 s{sT+1}, s{sRB}, 7
        """)
        if isA:
            k(f"""
            v_mul_u32_u24 v{T+1}, {pitch}, v{T+1}
            v_lshl_add_u32 v{T+1}, v{T+2}, 10, v{T+1}
            s_mul_i32 s{sT+1}, s{sT+1}, 40
            s_mul_i32 s{sT+2}, s{sW}, -6
            s_add_u32 s{sT+1}, s{sT+1}, s{sT+2}
            s_mul_i32 s{sT+1}, s{sT+1}, {pitch}
            s_add_u32 s{sT+2}, s{sT+1}, s{sWo[0]}
            s_mov_b64 exec, 0x3fffffff
            buffer_load_dword v28, v{T+1}, s[{sWr}:{sWr+3}], s{sT+2} offen
            s_mov_b64 exec, -1
            """)
        else:
            k(f"""
            v_lshrrev_b32 v{T+1}, 2, v0
            v_mul_u32_u24 v{T+1}, {pitch}, v{T+1}
            v_and_b32 v{T+2}, 3, v0
            v_lshlrev_b32 v{T+2}, 6, v{T+2}
            v_add_u32 v{T+1}, v{T+1}, v{T+2}
            s_mul_i32 s{sT+2}, s{sT+1}, {64*pitch}
            s_add_u32 s{sT+2}, s{sT+2}, s{sWo[1]}
            s_mul_i32 s{sT+3}, s{sT+1}, {32*pitch}
            s_mul_i32 s{sT+4}, s{sW}, {-8*pitch}
            s_add_u32 s{sT+3}, s{sT+3}, s{sT+4}
            s_add_u32 s{sT+3}, s{sT+3}, s{sWo[0]}
            s_mov_b32 exec_lo, 0xdddddddd
            s_mov_b32 exec_hi, 0
            buffer_load_dword v28, v{T+1}, s[{sWr}:{sWr+3}], s{sT+3} offen
            s_mov_b32 exec_hi, 0xdddddddd
            buffer_load_dword v28, v{T+1}, s[{sWr}:{sWr+3}], s{sT+2} offen
            s_mov_b64 exec, -1
            """)
    elif isA:
        k(f"v_lshl_add_u32 v{vPW}, v{T+2}, 10, v{T+3}\ns_add_u32 s{sPW}, s{sT+1}, s{sWo[0]}")
    else:
        k(f"""
        v_lshlrev_b32 v{T+2}, 7, v{T+2}
        v_min_u32 v{T+2}, 192, v{T+2}
        v_add_u32 v{T+3}, v{T+3}, v{T+2}
        s_add_u32 s{sT+2}, s{sT+1}, s{sWo[0]}
        s_add_u32 s{sT+3}, s{sT+1}, s{sWo[1]}
        s_sub_u32 s{sT+3}, s{sT+3}, {g2}
        v_mov_b32 v{T+2}, s{sT+3}
        v_mov_b32 v{T+4}, s{sT+2}
        v_cmp_gt_u32 vcc, 6, v0
        v_cndmask_b32 v{T+2}, v{T+2}, v{T+4}, vcc
        v_add_u32 v{vPW}, v{T+3}, v{T+2}
        s_mov_b32 s{sPW}, 0
        """)
    for r in range(0 if OPT.get("bk") else 2):
        for g in pf_xw(pitch, 6 if isA else 12):
            for l in g: k(l)
    k.srd(sPr, sWSP, 2048*4096)
    k(f"""
    v_lshrrev_b32 v{vPF}, 2, v0
    v_and_b32 v{T+1}, 3, v0
    v_lshlrev_b32 v{T+1}, 10, v{T+1}
    v_lshl_add_u32 v{vPF}, v{vPF}, 12, v{T+1}
    s_bfe_u32 s59, s2, 0x20001
    s_lshl_b32 s59, s59, 21
    """)
    if OPT.get("two") or OPT.get("pfa"):
        k(f"s_lshr_b32 s{sT}, s2, 5\ns_lshl_b32 s{sT}, s{sT}, 1\ns_bfe_u32 s{sT+1}, s2, 0x10003\ns_add_u32 s{sT}, s{sT}, s{sT+1}\ns_lshl_b32 s{sT}, s{sT}, 2\ns_add_u32 s{sT+6}, s{sT}, s{sW}\ns_lshl_b32 s{sT+6}, s{sT+6}, 15")
    else: k(f"s_lshl_b32 s{sT+6}, s{sT+6}, 14")
    k(f"s_add_u32 s59, s59, s{sT+6}")
    return (2 if isA else 3) if OPT.get('bk') else 4

def lane_parts(k):
    k(f"""
    v_lshrrev_b32 v{T}, 1, v2
    v_xor_b32 v{T}, v{T}, v1
    v_lshlrev_b32 v{T}, 4, v{T}
    v_lshl_add_u32 v{T}, v2, 7, v{T}        ; i*128 + (g^(i>>1))*16
    v_and_b32 v{T+2}, 1, v1
    v_lshlrev_b32 v{T+2}, 1, v{T+2}
    v_bfe_u32 v{T+1}, v0, 1, 1
    v_xor_b32 v{T+2}, v{T+2}, v{T+1}
    v_lshlrev_b32 v{T+2}, 4, v{T+2}
    v_bfe_u32 v{T+1}, v0, 2, 2
    v_lshl_add_u32 v{T+1}, v1, 3, v{T+1}
    v_lshl_add_u32 v{T+2}, v{T+1}, 6, v{T+2}
    v_and_b32 v{T+1}, 1, v0
    v_lshl_add_u32 v{T+2}, v{T+1}, 3, v{T+2}
    v_mov_b32 v{vZero}, 0
    """)
    kk = K("t"); f2.setup_v(kk)
    for l in kk.L: k(l.replace("v3,", f"v{T+4},").replace("v3 ", f"v{T+4} ").replace("v7,", f"v{T+5},") .replace(", v3", f", v{T+4}").replace(f"v{T+4}1", "v31"))

def row_tables(k, ns, tG, tS, pre, writes, TOP=TOP):
    cI, cE = T, T+1
    X = T + 16
    k(f"""
    v_mov_b32 v{cI}, {f2h(1/512)}
    v_mov_b32 v{cE}, {f2h(1e-5)}
    v_and_b32 v{T+2}, 1, v0
    v_cmp_eq_u32 s[{sM}:{sM+1}], 1, v{T+2}
    v_and_b32 v{T+2}, 2, v0
    v_cmp_eq_u32 s[{sM+2}:{sM+3}], 2, v{T+2}
    v_lshrrev_b32 v{T+2}, 2, v2
    v_cmp_eq_u32 s[{sM+4}:{sM+5}], v1, v{T+2}
    v_lshlrev_b32 v{T+3}, 2, v2
    v_add_u32 v{T+3}, {TOP}, v{T+3}
    """)
    A_ = range(ns)
    FILL(k, 1)
    for a in A_:
        for r in range(4): k(f"v_accvgpr_read_b32 v{X+a*8+r}, {vr(tG(a)+r, 1)}")
        k(f"v_accvgpr_read_b32 v{X+a*8+4}, {vr(tS(a), 1)}")
    for a in A_: k(f"v_cndmask_b32 v{X+a*8}, v{X+a*8}, v{X+a*8+1}, s[{sM}:{sM+1}]\nv_cndmask_b32 v{X+a*8+2}, v{X+a*8+2}, v{X+a*8+3}, s[{sM}:{sM+1}]")
    for a in A_: k(f"v_mul_f32 v{X+a*8+4}, v{X+a*8+4}, v{cI}\nv_cndmask_b32 v{X+a*8}, v{X+a*8}, v{X+a*8+2}, s[{sM+2}:{sM+3}]")
    FILL(k, 1)
    for a in A_: k(f"v_mul_f32 v{X+a*8}, v{X+a*8}, v{cI}")
    for a in A_: k(f"v_fma_f32 v{X+a*8}, -v{X+a*8+4}, v{X+a*8+4}, v{X+a*8}")
    for a in A_: k(f"v_max_f32 v{X+a*8}, 0, v{X+a*8}")
    for a in A_: bf16_round(k, X+a*8, X+a*8)
    FILL(k, 1)
    for a in A_: k(f"v_add_f32 v{X+a*8}, v{X+a*8}, v{cE}")
    for a in A_: bf16_round(k, X+a*8, X+a*8)
    for a in A_: k(f"v_sqrt_f32 v{X+a*8}, v{X+a*8}")
    FILL(k, 1)
    for a in A_: bf16_round(k, X+a*8+4, X+a*8+4)
    for a in A_: bf16_round(k, X+a*8, X+a*8)
    for a in A_: k(f"v_rcp_f32 v{X+a*8}, v{X+a*8}")
    FILL(k, 1)
    k(pre)
    for a in A_: k(f"v_mul_f32 v{X+a*8+4}, -v{X+a*8+4}, v{X+a*8}")
    k(writes)
    k(f"s_mov_b64 exec, s[{sM+4}:{sM+5}]")
    for a in A_:
        ad, o = (T+4, a*64) if a < 2 else (T+3, 0)
        k(f"ds_write_b32 v{ad}, v{X+a*8} offset:{TA + o}\nds_write_b32 v{ad}, v{X+a*8+4} offset:{TB + o}")
    k("s_mov_b64 exec, -1")

def nonce_check(k, lab):
    k(f"""
    v_readfirstlane_b32 s{sNON}, v{vNon}
    s_cmp_lg_u32 s{sNON}, 0
    s_cbranch_scc1 {lab}_non
    s_mov_b32 s{sT+6}, 0
    {lab}_nspin:
    s_sleep 4
    global_load_dword v{vNon}, v{vZero}, s[{sDBG}:{sDBG+1}] sc1
    s_add_u32 s{sT+6}, s{sT+6}, 1
    s_waitcnt vmcnt(0)
    v_readfirstlane_b32 s{sNON}, v{vNon}
    s_cmp_gt_u32 s{sT+6}, 100000
    s_cbranch_scc1 {lab}_non
    s_cmp_eq_u32 s{sNON}, 0
    s_cbranch_scc1 {lab}_nspin
    {lab}_non:
    """)

def gen_p1(k, name, after, hooks):
    k(f"""
    s_and_b32 s{sT}, s2, 7
    s_lshr_b32 s{sT+1}, s2, 3
    s_lshr_b32 s{sRB}, s{sT}, 2
    s_lshl_b32 s{sRB}, s{sRB}, 3
    s_lshr_b32 s{sT+2}, s{sT+1}, 2
    s_add_u32 s{sRB}, s{sRB}, s{sT+2}
    s_and_b32 s{sCQ}, s{sT}, 3
    s_and_b32 s{sSUB}, s{sT+1}, 3
    v_and_b32 v3, 7, v0
    v_xor_b32 v{T}, v3, v1
    v_lshlrev_b32 v{T}, 4, v{T}
    v_lshrrev_b32 v{T+1}, 3, v0
    v_lshl_add_u32 v{vXe}, v{T+1}, 10, v{T}
    v_xor_b32 v{vXo}, 64, v{vXe}
    v_add_u32 v{vXo}, 8192, v{vXo}
    v_lshrrev_b32 v{T}, 5, v0
    v_lshlrev_b32 v{T}, 1, v{T}
    v_and_b32 v{T+2}, 3, v0
    v_xor_b32 v{T}, v{T}, v{T+2}
    v_lshlrev_b32 v{T}, 4, v{T}
    v_lshrrev_b32 v{T+2}, 2, v0             ; l>>2
    s_lshl_b32 s{sXo[0]}, s{sRB}, 2
    s_add_u32 s{sXo[0]}, s{sXo[0]}, s{sW}
    s_lshl_b32 s{sXo[0]}, s{sXo[0]}, 15     ; (128rb+32w)*1024
    s_add_u32 s{sXo[1]}, s{sXo[0]}, 16384
    s_lshl_b32 s{sXl}, s{sW}, 12
    s_mov_b32 s{sSt}, 0
    s_cmp_lt_u32 s{sSUB}, 2
    s_cbranch_scc1 L_{name}_A
    v_mul_u32_u24 v{T+2}, 3584, v{T+2}
    v_add_u32 v{vWd}, v{T+2}, v{T}
    s_mul_i32 s{sT+5}, s{sW}, {16*3584}
    s_mul_i32 s{sT+6}, s{sCQ}, 448
    s_add_u32 s{sT+5}, s{sT+5}, s{sT+6}
    s_and_b32 s{sH}, s{sW}, 1
    s_lshr_b32 s{sE}, s{sW}, 1
    s_mov_b32 s{sSTG}, {SB}
    s_cmp_eq_u32 s{sSUB}, 2
    s_cselect_b32 s{sT+7}, 0, 256
    s_add_u32 s{sWo[0]}, s{sT+5}, s{sT+7}
    s_add_u32 s{sWo[0]}, s{sWo[0]}, 1792
    s_cmp_eq_u32 s{sSUB}, 2
    s_cselect_b32 s{sT+8}, 1, 0
    s_mul_i32 s{sT+7}, s{sT+8}, {256 - (320 if OPT.get('s2') else 0)}
    s_add_u32 s{sT+7}, s{sT+7}, {320 if OPT.get('s2') else 0}
    s_add_u32 s{sWo[1]}, s{sT+5}, s{sT+7}    ; z1 group
    s_waitcnt lgkmcnt(0)
    """)
    k.srd(sXr, sX, 2048*1024); k.srd(sWr, sWIN, 512*3584)
    k(f"s_cmp_eq_u32 s{sSUB}, 3\ns_cbranch_scc1 L_{name}_B34")
    vb = var_B if OPT.get("two") else var_S
    vb(k, name, "B43", after, hooks)
    k(f"L_{name}_B34:")
    vb(k, name, "B34", after, hooks)
    k(f"""
    L_{name}_A:
    v_mul_u32_u24 v14, 3584, v{T+2}
    v_add_u32 v14, v14, v{T}
    v_mul_u32_u24 v{T+2}, 3072, v{T+2}
    v_add_u32 v{vWd}, v{T+2}, v{T}
    s_mov_b32 s{sSTG}, {STGA}
    s_mul_i32 s26, s{sW}, {16*3584}
    s_mul_i32 s{sT+6}, s{sCQ}, 448
    s_add_u32 s26, s26, s{sT+6}
    s_lshl_b32 s{sT+6}, s{sSUB}, 7
    s_add_u32 s26, s26, s{sT+6}
    s_lshl_b32 s{sT+6}, s{sCQ}, 1
    s_add_u32 s{sSUB}, s{sSUB}, s{sT+6}
    s_mul_i32 s{sWo[0]}, s{sW}, {16*3072}
    s_lshl_b32 s{sT+6}, s{sSUB}, 7
    s_add_u32 s{sWo[0]}, s{sWo[0]}, s{sT+6}
    s_lshl_b32 s{sT+6}, s{sW}, 1
    v_add_u32 v{T}, s{sT+6}, v1
    v_xor_b32 v{T}, v{T}, v3
    v_lshlrev_b32 v{T}, 4, v{T}
    v_lshl_add_u32 v{vH}, v{T+1}, 10, v{T}
    s_lshl_b32 s{sHo}, s{sRB}, 7
    s_sub_u32 s{sHo}, s{sHo}, 16
    s_max_i32 s{sHo}, s{sHo}, 0
    s_lshl_b32 s{sT+6}, s{sW}, 2
    s_add_u32 s{sHo}, s{sHo}, s{sT+6}
    s_lshl_b32 s{sHo}, s{sHo}, 10
    s_waitcnt lgkmcnt(0)
    """)
    k.srd(sXr, sX, 2048*1024); k.srd(sWr, sWQ, 512*3072); k.srd(sR2, sWIN, 512*3584)
    var_A(k, name, after, hooks)

def xdma(xbase, tag=None):
    G = []
    for m in range(4):
        ld = f"buffer_load_dwordx4 v{vXo if m & 1 else vXe}, s[{sXr}:{sXr+3}], s{sXo[m>>1]} offen lds"
        g = [f"s_add_u32 m0, s{sA}, {xbase + m*1024}", ("v", ld, tag) if tag else ld]
        if m & 1: g.append(f"s_add_u32 s{sXo[m>>1]}, s{sXo[m>>1]}, 128")
        G.append(g)
    return G
def itstamp(k):
    if OPT.get("it"): k(f"{'s_memtime' if K.diag == 'c' else 's_memrealtime'} s[98:99]\ns_waitcnt lgkmcnt(0)\nv_cmp_eq_u32 vcc, s{sI}, v0\nv_mov_b32 v254, s98\nv_cndmask_b32 v255, v255, v254, vcc")
def itfinish(k):
    if OPT.get("it0"):
        for i in range(7): k(f"v_readlane_b32 s{86+2*i}, v255, {i}\ns_mov_b32 s{87+2*i}, 0")
        k("s_mov_b32 s85, 0")
    elif OPT.get("it"):
        for i in range(8): k(f"v_readlane_b32 s{84+2*i}, v255, {i}\ns_mov_b32 s{85+2*i}, 0")
LOOP_TAIL = f"""
s_add_u32 s{sSt}, s{sSt}, s{sDelta}
s_add_u32 s{sI}, s{sI}, 1
s_cmp_lt_u32 s{sI}, 8
s_waitcnt lgkmcnt(0)
"""

def five(k, hooks, isA):
    k(f"global_load_dword v{vNon}, v{vZero}, s[{sDBG}:{sDBG+1}] sc1")
    f2.early(k)
    return 1
sPF = 59
def pf_sp(gate=False):
    ex = f"s_mov_b64 exec, {'0xffffffff' if OPT.get('two') or OPT.get('pfa') else '0xffff'}"
    D = OPT.get("pfd", 0)
    if gate and D:
        return [[f"s_cmp_lt_u32 s{sI}, {D}", f"s_cselect_b32 s{sT+1}, 0x7fff0000, s{sPF}", f"s_cselect_b32 s{sT+2}, 0, 128", ex,
                 f"buffer_load_dword v28, v{vPF}, s[{sPr}:{sPr+3}], s{sT+1} offen", "s_mov_b64 exec, -1", f"s_add_u32 s{sPF}, s{sPF}, s{sT+2}"]]
    return [[ex, f"buffer_load_dword v28, v{vPF}, s[{sPr}:{sPr+3}], s{sPF} offen", "s_mov_b64 exec, -1", f"s_add_u32 s{sPF}, s{sPF}, 128"]]

def loop1(k, lab, hooks, isA, STG, mfmas, reads, adv, part1, part2, n_lo, n_six, pfs):
    def sig0(G):
        M = mfmas(0); slots = [[] for _ in range(len(M) + 1)]
        for n, l in enumerate(reads(1) + [f"s_cmp_eq_u32 s{sSt}, {2*STG}\ns_cselect_b32 s{sDelta}, {-2*STG}, s{sSTG}"] + adv(0)): slots[min(n + 1, len(M))].append(l)
        if G: place_groups(slots, G, len(M), first=0)
        weave(k, M, slots)
    def sig1(G, pre=None):
        M = mfmas(1); slots = [[] for _ in range(len(M) + 1)]
        for n, l in enumerate(reads(0) + adv(1)): slots[min(n + 1, len(M))].append(l)
        first = 0
        if pre:
            first = len(M) - 2*len(G) if len(M) > 30 else len(M) - len(G) - 3
            for n, l in enumerate(pre): slots[n*first//len(pre)].append(l)
        place_groups(slots, G, len(M), first=first)
        itstamp(k)
        weave(k, M, slots)
        k(LOOP_TAIL)
    k(f".p2align 6\n{lab}_loop:")
    sig0(part2())
    k(f"s_cmp_eq_u32 s{sI}, 5\ns_waitcnt vmcnt({n_lo}) lgkmcnt(0)\ns_barrier\ns_cbranch_scc1 {lab}_five")
    sig1(part1())
    k(f"s_branch {lab}_loop\n{lab}_five:")
    kk = K("t"); five(kk, hooks, isA)
    sig1(f2.land_groups(sSt, sXl, sA) + pfs, kk.L)
    k(f"{lab}_tail:")
    sig0([])
    k(f"s_waitcnt vmcnt({n_six}) lgkmcnt(0)\ns_barrier")
    sig1(f2.land_groups(sSt, sXl, sA) + pfs)
    k(f"s_cbranch_scc1 {lab}_tail")
    itfinish(k)

def var_A(k, name, after, hooks):
    lab = f"L_{name}_A"; pitch = 3072
    FR, XA = 256, 256 + 120
    STG = STGA
    vWz, sWz, sZr = 14, 26, sR2
    Z = T + 76
    k(f"s_lshl_b32 s{sWl}, s{sW}, 10")
    if OPT.get("it0"): k(("s_memtime" if K.diag == "c" else "s_memrealtime") + " s[84:85]\ns_waitcnt lgkmcnt(0)")
    k.stamp(0)
    def part1():
        W = []
        for q in range(6):
            imm = 64*(q & 1) + 1024*(q >> 1)
            g = [f"s_add_u32 m0, s{sB}, {XW + q*4096 - imm}", f"buffer_load_dwordx4 v{vWd}, s[{sWr}:{sWr+3}], s{sWo[0]} offen offset:{imm} lds"]
            if q == 5: g.append(f"s_add_u32 s{sWo[0]}, s{sWo[0]}, {64*pitch}")
            W.append(g)
        W[0] = [f"s_add_u32 s{sA}, s{sSt}, s{sXl}", f"s_add_u32 s{sB}, s{sSt}, s{sWl}"] + W[0]
        return W
    def part2():
        W = [[f"s_add_u32 m0, s{sB}, {XW + (6 + q)*4096 - 64*q}", f"buffer_load_dwordx4 v{vWz}, s[{sZr}:{sZr+3}], s{sWz} offen offset:{64*q} lds"]
             + ([f"s_add_u32 s{sWz}, s{sWz}, {64*3584}"] if q else []) for q in range(2)]
        W.append([f"s_lshr_b32 s{sT}, s{sWl}, 1", f"s_sub_u32 m0, s{sB}, s{sT}", "s_mov_b64 exec, 0xffffffff",
                  f"buffer_load_dwordx4 v{vH}, s[{sXr}:{sXr+3}], s{sHo} offen lds", "s_mov_b64 exec, -1", f"s_add_u32 s{sHo}, s{sHo}, 128"])
        return interleave(xdma(2048), W)
    def dma_now(both=True):
        for g in part1() + (part2() if both else []):
            for l in g: k(l)
    dma_now(); k(f"s_add_u32 s{sSt}, s{sSt}, {STG}")
    k(f"""
    s_or_b32 s{sT}, s2, s{sW}
    s_cmp_lg_u32 s{sT}, 0
    s_cbranch_scc1 {lab}_nn
    s_memrealtime s[{sT}:{sT+1}]
    v_mov_b32 v{T}, 0
    s_waitcnt lgkmcnt(0)
    s_or_b32 s{sT}, s{sT}, 1
    v_mov_b32 v{T+1}, s{sT}
    s_mov_b64 exec, 1
    global_store_dword v{T}, v{T+1}, s[{sDBG}:{sDBG+1}] sc1
    s_mov_b64 exec, -1
    {lab}_nn:
    """)
    lane_parts(k)
    vX = [8, 11]; vS = [9, 12]; vW = [10, 13]
    k(f"""
    v_mov_b32 v{vX[0]}, v{T}
    v_xor_b32 v{vX[1]}, 64, v{T}
    v_add_u32 v{vS[0]}, s{sXl}, v{vX[0]}
    v_add_u32 v{vS[1]}, s{sXl}, v{vX[1]}
    s_and_b32 s{sT}, s{sW}, 1
    s_lshl_b32 s{sT}, s{sT}, 5
    v_xor_b32 v{T+2}, s{sT}, v{T+2}
    s_lshr_b32 s{sT}, s{sW}, 1
    s_lshl_b32 s{sT}, s{sT}, 12
    s_add_u32 s{sT}, s{sT}, {XW}
    v_add_u32 v{vW[0]}, s{sT}, v{T+2}
    v_add_u32 v{vW[1]}, 2048, v{vW[0]}
    """)
    bases = [[8, 9, 10], [11, 12, 13]]
    dma_now(); k(f"s_add_u32 s{sSt}, s{sSt}, {STG}")
    fX = lambda sg, a: FR + sg*60 + a*4
    fW = lambda sg, j: FR + sg*60 + 36 + j*4
    fS = lambda sg, a: FR + sg*60 + 52 + a*4
    tG = lambda a: XA + a*8; tS = lambda a: XA + a*8 + 4
    tQ = lambda a: ACC + (a-1)*4; tK = lambda a: ACC + 32 + a*4; tV = lambda a: ACC + 68 + a*4
    tC = lambda j: XA + 24 + j*4
    for r in range(4): k(f"v_mov_b32 v{ONES+r}, 0x3f803f80")
    for r in range(104): k(f"v_mov_b32 v{ACC+r}, 0")
    for r in range(32): k(f"v_mov_b32 v{Z+r}, 0")
    for r in range(40): k(f"v_accvgpr_write_b32 {vr(XA+r, 1)}, 0")
    dma_now(False); k(f"s_mov_b32 s{sSt}, 0")
    nb = bulk(k, name, lab, True, pitch, 3)
    def reads(sg):
        return ([f"ds_read_b64_tr_b16 {vr(fW(sg, j) + 2*j2, 2)}, v{vW[sg]} offset:{j*8192 + j2*256}" for j in range(4) for j2 in range(2)]
                + [f"ds_read_b128 {vr(fX(sg, a))}, v{vX[sg]} offset:{a*2048}" for a in range(9)]
                + [f"ds_read_b128 {vr(fS(sg, a))}, v{vS[sg]} offset:{2048 + a*2048}" for a in range(2)])
    def mfmas(sg):
        L = []
        for a in range(9):
            if a: L.append(mf(tQ(a), fW(sg, 0), fX(sg, a)))
            L.append(mf(tK(a), fW(sg, 1), fX(sg, a))); L.append(mf(tV(a), fX(sg, a), fW(sg, 2)))
            if a: L.append(mf(Z + 4*(a-1), fW(sg, 3), fX(sg, a)))
        L += [mf(tG(2), fX(sg, 0), fX(sg, 0)), mf(tS(2), ONES, fX(sg, 0))]
        for a in range(2): L += [mf(tG(a), fS(sg, a), fS(sg, a)), mf(tS(a), ONES, fS(sg, a))]
        return L + [mf(tC(j), ONES, fW(sg, j)) for j in range(4)]
    adv = lambda sg: [f"v_add_u32 v{r}, s{sDelta}, v{r}" for r in bases[sg]]
    k(f"s_mov_b32 s{sI}, 0\ns_waitcnt vmcnt({19 + nb})\ns_barrier")
    k.stamp(1)
    for l in reads(0): k(l)
    k("s_waitcnt lgkmcnt(0)")
    loop1(k, lab, hooks, True, STG, mfmas, reads, adv, lambda: part1() + pf_xw(pitch, 6) + pf_sp(True), part2, 16, 10, pf_sp())
    k.stamp(2)
    k("s_barrier")
    k.lg.q = []; k.vm.q = ["E0"]*8 + ["pf"] + ["E1"]*8 + ["pf"] + ["E2"]*8 + ["pf"]
    for _ in range(OPT.get("pfd", 0)):
        for l in pf_sp()[0]: k(l)
        k.vm.issue("pf")
    FILL.q, post = f2.stage_groups(k, STG)
    if OPT.get("burst"):
        k.stamp(10); k("s_waitcnt vmcnt(0)"); k.stamp(11); FILL(k, 32); k("s_waitcnt vmcnt(0)"); k.stamp(12)
    row_tables(k, 3, tG, tS,
               f"s_lshl_b32 s{sT}, s{sW}, 7\ns_add_u32 s{sT}, s{sT}, 64\ns_lshl_b32 s{sT+1}, s{sW}, 8\nv_add_u32 v{T+4}, s{sT}, v{T+3}\nv_add_u32 v{T+5}, s{sT+1}, v{T+3}",
               "\n".join(f"ds_write_b32 v{T+5}, {vr(tC(j), 1)} offset:{TC + j*64}" for j in range(4)))
    FILL.flush(k); FILL.q = post
    nonce_check(k, lab)
    k(f"v_lshlrev_b32 v{T+7}, 4, v1\nv_add_u32 v{T+7}, {TOP}, v{T+7}\ns_waitcnt lgkmcnt(0)\ns_barrier")
    k.stamp(3)
    epi_attn(k, lab, "sc1", tQ, tK, tV, Z)
    FILL.flush(k)
    if OPT["pf3"] == 2: hooks["pf3A"](k)
    after(k, "A")

def var_B(k, name, V, after, hooks):
    lab = f"L_{name}_{V}"; pitch = 3584
    n1 = 4 if V == "B43" else 3; n2 = 7 - n1
    FR, XA = 256, 256 + 64
    k(f"s_lshl_b32 s{sWl}, s{sW}, 10")
    if OPT.get("it0"): k(("s_memtime" if K.diag == "c" else "s_memrealtime") + " s[84:85]\ns_waitcnt lgkmcnt(0)")
    k.stamp(0)
    def dma(ps, tag=None, st=None):
        nw = n1 if ps == 0 else n2
        W = []
        for q in range(nw):
            ld = f"buffer_load_dwordx4 v{vWd}, s[{sWr}:{sWr+3}], s{sWo[ps]} offen offset:{64*q} lds"
            g = [f"s_add_u32 m0, s{sB}, {16384 + q*4096 - 64*q}", ("v", ld, tag) if tag else ld]
            if q == nw - 1: g.append(f"s_add_u32 s{sWo[ps]}, s{sWo[ps]}, {64*pitch}")
            W.append(g)
        sst = f"s{sSt}" if st is None else str(st)
        W[0] = [f"s_add_u32 s{sA}, s{sXl}, {sst}", f"s_add_u32 s{sB}, s{sWl}, {sst}"] + W[0]
        return W
    def dma_now(x=True):
        for g in dma(0) + (xdma(0) if x else []):
            for l in g: k(l)
    dma_now(); k(f"s_add_u32 s{sSt}, s{sSt}, {SB}")
    lane_parts(k)
    vX = [[8, 9], [12, 13]]; vW = [[10, 11], [14, 15]]
    k(f"""
    s_lshl_b32 s{sT}, s{sH}, 6
    v_xor_b32 v{T}, s{sT}, v{T}
    s_lshl_b32 s{sT}, s{sH}, 13
    s_lshl_b32 s{sT+1}, s{sE}, 12
    s_add_u32 s{sT+2}, s{sT}, s{sT+1}
    v_add_u32 v{vX[0][0]}, s{sT+2}, v{T}
    s_sub_u32 s{sT+2}, s{sT}, s{sT+1}
    v_add_u32 v{vX[0][1]}, s{sT+2}, v{T}
    v_xor_b32 v{vX[1][0]}, 64, v{vX[0][0]}
    v_xor_b32 v{vX[1][1]}, 64, v{vX[0][1]}
    s_lshl_b32 s{sT}, s{sH}, 11
    s_lshl_b32 s{sT+2}, s{sE}, 13
    s_add_u32 s{sT+3}, s{sT}, s{sT+2}
    s_add_u32 s{sT+3}, s{sT+3}, 16384
    v_add_u32 v{vW[0][0]}, s{sT+3}, v{T+2}
    v_xor_b32 v{vW[0][1]}, 32, v{vW[0][0]}
    s_lshl_b32 s{sT}, s{sH}, 12
    s_sub_u32 s{sT}, 2048, s{sT}
    v_add_u32 v{vW[1][0]}, s{sT}, v{vW[0][0]}
    v_add_u32 v{vW[1][1]}, s{sT}, v{vW[0][1]}
    """)
    def switch(to3):
        k(f"s_lshl_b32 s{sT+11}, s{sE}, 5")
        k(f"s_lshl_b32 s{sT+10}, s{sE}, 12")
        for sg in range(2):
            k(f"v_xor_b32 v{vW[sg][0]}, s{sT+11}, v{vW[sg][0]}\nv_xor_b32 v{vW[sg][1]}, s{sT+11}, v{vW[sg][1]}")
            k(f"v_subrev_u32 v{vW[sg][0]}, s{sT+10}, v{vW[sg][0]}" if to3 else f"v_add_u32 v{vW[sg][0]}, s{sT+10}, v{vW[sg][0]}")
    if n1 == 3: switch(True)
    bases = [[8, 9, 10, 11], [12, 13, 14, 15]]
    dma_now(); k(f"s_add_u32 s{sSt}, s{sSt}, {SB}")
    fX = lambda sg, a: FR + sg*32 + a*4
    fW = lambda sg, j: FR + sg*32 + 16 + j*4
    tG = lambda a: XA + a*8; tS = lambda a: XA + a*8 + 4
    tC = lambda ps, j: XA + 16 + ps*16 + j*4
    tZ = lambda ps, a, j: ACC + ((0 if ps == 0 else n1)*4 + j*4 + a)*4
    for r in range(4): k(f"v_mov_b32 v{ONES+r}, 0x3f803f80")
    for r in range(n1*16): k(f"v_mov_b32 v{ACC+r}, 0")
    for r in range(16 + n1*4): k(f"v_accvgpr_write_b32 {vr(XA+r, 1)}, 0")
    dma_now(); k(f"s_add_u32 s{sSt}, s{sSt}, {SB}")
    dma_now(False); k(f"s_mov_b32 s{sSt}, 0")
    nb = bulk(k, name, lab, False, pitch, 4)
    def reads(ps, sg, tag=None):
        L = ([f"ds_read_b128 {vr(fX(sg, a))}, v{vX[sg][a >> 1]} offset:{a*2048}" for a in range(4)]
             + [f"ds_read_b64_tr_b16 {vr(fW(sg, j) + 2*j2, 2)}, v{vW[sg][j & 1]} offset:{(j >> 1)*4096 + j2*256}" for j in range(n1 if ps == 0 else n2) for j2 in range(2)])
        return [("d", l, tag) for l in L] if tag else L
    def mfmas(ps, sg, first=False):
        z = lambda d, a, b: mf(d, a, b) if not first else f"v_mfma_f32_16x16x32_bf16 {vr(d)}, {vr(a)}, {vr(b)}, 0"
        nw = n1 if ps == 0 else n2
        L = [z(tZ(ps, a, j), fX(sg, a), fW(sg, j)) if ps == 0 else z(tZ(ps, a, j), fW(sg, j), fX(sg, a)) for j in range(nw) for a in range(4)]
        if ps == 0:
            for a in range(2): L += [mf(tG(a), fX(sg, a), fX(sg, a)), mf(tS(a), ONES, fX(sg, a))]
        if sg == 0: L += [z(tC(ps, j), ONES, fW(sg, j)) for j in range(nw)]
        return L
    adv = lambda sg, d=None: [f"v_add_u32 v{r}, {'s%d' % sDelta if d is None else d}, v{r}" for r in bases[sg]]
    nd1 = 4 + n1
    k(f"s_mov_b32 s{sI}, 0\ns_waitcnt vmcnt({2*nd1 + n1 + nb})\ns_barrier")
    k.stamp(1)
    for l in reads(0, 0): k(l)
    k(f"s_waitcnt lgkmcnt(0)\n.p2align 6\n{lab}_loop:")
    M = mfmas(0, 0); slots = [[] for _ in range(len(M) + 1)]
    for n, l in enumerate(reads(0, 1) + [f"s_cmp_eq_u32 s{sSt}, {3*SB}\ns_cselect_b32 s{sDelta}, {-3*SB}, s{sSTG}"] + adv(0)): slots[n + 1].append(l)
    place_groups(slots, xdma(0), len(M), first=0)
    weave(k, M, slots)
    k(f"s_cmp_ge_u32 s{sI}, 4\ns_waitcnt vmcnt({14 if OPT.get('bk') else 16}) lgkmcnt(0)\ns_barrier\ns_cbranch_scc1 {lab}_d2"); itstamp(k)
    def half2(G):
        M = mfmas(0, 1); slots = [[] for _ in range(len(M) + 1)]
        for n, l in enumerate(reads(0, 0) + adv(1)): slots[min(n + 1, len(M))].append(l)
        place_groups(slots, G, len(M), first=0)
        weave(k, M, slots)
        k(LOOP_TAIL + f"s_cbranch_scc1 {lab}_loop")
    half2(dma(0) + pf_xw(pitch, 12))
    k(f"""
    {lab}_d2:
    s_cmp_eq_u32 s{sI}, 7
    s_cbranch_scc1 {lab}_last
    s_cmp_eq_u32 s{sI}, 4
    s_cbranch_scc0 {lab}_cont
    s_sub_u32 s{sXo[0]}, s{sXo[0]}, 1024
    s_sub_u32 s{sXo[1]}, s{sXo[1]}, 1024
    global_load_dword v{vNon}, v{vZero}, s[{sDBG}:{sDBG+1}] sc1
    {lab}_cont:
    """)
    itstamp(k)
    half2(dma(1) + pf_xw(pitch, 12)[1:])
    k(f"{lab}_last:"); itstamp(k)
    for m in mfmas(0, 1): k(m)
    for l in adv(1): k(l)
    itfinish(k)
    k.stamp(2)
    k.lg.q = []; k.vm.q = ["S9"]*(4 + n2) + ["S10"]*(4 + n2)
    hooks["stageB"](k)

    z4 = n1 == 4
    coff = lambda ps, j: (j*64 if (z4 == (ps == 0)) else 512 + j*64)
    pre = f"""
    s_lshl_b32 s{sT}, s{sH}, 8
    s_lshl_b32 s{sT+3}, s{sE}, 7
    s_add_u32 s{sT}, s{sT}, s{sT+3}
    s_add_u32 s{sT}, s{sT}, 64
    s_lshl_b32 s{sT+1}, s{sE}, 8
    s_mul_i32 s{sT+4}, s{sE}, 192
    s_lshl_b32 s{sT+5}, s{sH}, 10
    s_add_u32 s{sT+2}, s{sT+1 if z4 else sT+4}, s{sT+5}
    s_add_u32 s{sT+5}, s{sT+4 if z4 else sT+1}, s{sT+5}
    v_add_u32 v{T+4}, s{sT}, v{T+3}
    v_add_u32 v{T+5}, s{sT+2}, v{T+3}
    v_add_u32 v{T+6}, s{sT+5}, v{T+3}
    """
    row_tables(k, 2, tG, tS, pre, "\n".join(f"ds_write_b32 v{T+5}, {vr(tC(0, j), 1)} offset:{TC + coff(0, j)}" for j in range(n1)), TOPB)
    nonce_check(k, lab)
    k(f"v_lshlrev_b32 v{T+7}, 4, v1\nv_add_u32 v{T+7}, {TOPB}, v{T+7}\ns_waitcnt lgkmcnt(0)\ns_barrier")
    k.stamp(3)
    vI4, vG16 = T+3, T+7
    c = T; AR, BR = T+8, T+24; C2 = T+40; ST = T+48; tmp = T+80; AL = T+88; ad = T+96
    k(f"""
    s_lshl_b32 s{sT}, s{sH}, 8
    s_add_u32 s{sT}, s{sT}, 64
    s_add_u32 s{sT+2}, s{sT}, s{sT+3}
    s_sub_u32 s{sT+5}, s{sT}, s{sT+3}
    v_add_u32 v{ad}, s{sT+2}, v{vG16}
    v_add_u32 v{ad+1}, s{sT+5}, v{vG16}
    v_add_u32 v{ad+2}, s{sT+2}, v{vI4}
    v_add_u32 v{ad+3}, s{sT+5}, v{vI4}
    v_add_u32 v{ad+4}, s{sT+1 if z4 else sT+4}, v{vI4}
    v_add_u32 v{ad+5}, s{sT+4 if z4 else sT+1}, v{vG16}
    """)
    for a in range(4):
        k.ds(f"ds_read_b128 {vr(AR + a*4)}, v{ad + (a>>1)} offset:{TA + a*64}", "t")
        k.ds(f"ds_read_b128 {vr(BR + a*4)}, v{ad + (a>>1)} offset:{TB + a*64}", "t")
    for j in range(n1):
        for hh in range(2): k.ds(f"ds_read_b32 v{C2 + 2*j + hh}, v{ad+4} offset:{TC + hh*1024 + coff(0, j)}", "t")
    k(f"v_mov_b32 v{c}, {f2h(GC1)}\nv_mov_b32 v{c+1}, {f2h(GC2)}")
    k.wait(lg="t")
    for a in range(4):
        k.ds(f"ds_read_b32 v{AL + a}, v{ad + 2 + (a>>1)} offset:{TA + a*64}", "u")
        k.ds(f"ds_read_b32 v{AL + 4 + a}, v{ad + 2 + (a>>1)} offset:{TB + a*64}", "u")
    for j in range(n1): k(f"v_add_f32 v{C2+2*j}, v{C2+2*j}, v{C2+2*j+1}")
    NF2 = (1, 1, 1, 2) if n1 == 4 else (1, 2, 2, 2)
    prs = lambda ps, p, j: [tZ(ps, 2*p + (i >> 1), j) + 2*(i & 1) for i in range(4)]
    for j in range(n1):
        for p in range(2):
            ys = prs(0, p, j); ab = [(2*p + (i >> 1))*4 + 2*(i & 1) for i in range(4)]
            for i in range(4): k(pk("mul", tmp+2*i, [(BR+ab[i], 0), (C2+2*j, 1)]))
            for i in range(4): k(pk("fma", ys[i], [(AR+ab[i], 0), (ys[i], 0), (tmp+2*i, 0)]))
            gelu_pk(k, ys, c, tmp, NF2)
            for i in range(4):
                s_ = ST + (2*p + (i >> 1))*8 + 2*(i & 1); q_ = s_ + 4
                if j == 0: k(f"v_mov_b32 v{s_}, v{ys[i]}\nv_mov_b32 v{s_+1}, v{ys[i]+1}\n" + pk("mul", q_, [(ys[i], 0), (ys[i], 0)]))
                else: k(pk("add", s_, [(s_, 0), (ys[i], 0)]) + "\n" + pk("fma", q_, [(ys[i], 0), (ys[i], 0), (q_, 0)]))
    k.stamp(4)
    FILL(k, 2)
    for n in range(16): k(f"v_add_f32_dpp v{ST+n}, v{ST+n}, v{ST+n} row_mirror row_mask:0xf bank_mask:0x3")
    for n in range(16): k(f"v_add_f32_dpp v{ST+n}, v{ST+16+n}, v{ST+16+n} row_mirror row_mask:0xf bank_mask:0xc")
    for n in range(8): k(f"v_add_f32_dpp v{ST+n}, v{ST+n}, v{ST+n} row_half_mirror row_mask:0xf bank_mask:0x5")
    for n in range(8): k(f"v_add_f32_dpp v{ST+n}, v{ST+8+n}, v{ST+8+n} row_half_mirror row_mask:0xf bank_mask:0xa")
    for n in range(8): k(f"v_add_f32_dpp v{ST+n}, v{ST+n}, v{ST+n} quad_perm:[1,0,3,2] row_mask:0xf bank_mask:0xf")
    for n in range(8): k(f"v_add_f32_dpp v{ST+n}, v{ST+n}, v{ST+n} quad_perm:[2,3,0,1] row_mask:0xf bank_mask:0xf")
    k(f"""
    v_lshrrev_b32 v{tmp}, 2, v2
    s_lshl_b32 s{sT+6}, s{sE}, 1
    v_xor_b32 v{tmp}, s{sT+6}, v{tmp}
    v_lshl_add_u32 v{tmp}, v{tmp}, 6, v{vG16}
    s_lshl_b32 s{sT+6}, s{sE}, 10
    s_lshl_b32 s{sT+7}, s{sH}, 8
    s_add_u32 s{sT+6}, s{sT+6}, s{sT+7}
    v_add_u32 v{tmp}, s{sT+6}, v{tmp}
    """)
    k.ds(f"ds_write_b128 v{tmp}, {vr(ST)} offset:{PS}", "ps"); k.ds(f"ds_write_b128 v{tmp}, {vr(ST+4)} offset:{PS + 512}", "ps")
    k(f"""
    v_and_b32 v{tmp+1}, 31, v0
    s_lshl_b32 s{sT+6}, s{sW}, 7
    s_add_u32 s{sT+6}, s{sT+6}, {TOPB}
    v_lshl_add_u32 v{tmp+1}, v{tmp+1}, 2, s{sT+6}
    s_add_u32 s{sXs}, s{sWS}, {XS_OFF}
    s_addc_u32 s{sXs+1}, s{sWS+1}, 0
    s_mov_b32 s{sXs+2}, {XS_SZ}
    s_mov_b32 s{sXs+3}, 0x20000
    s_lshl_b32 s{sT+8}, s{sRB}, 14
    s_lshl_b32 s{sT+6}, s{sCQ}, 12
    s_add_u32 s{sT+6}, s{sT+6}, {0 if z4 else 2048}
    s_add_u32 s{sT+6}, s{sT+6}, s{sT+8}
    s_lshl_b32 s{sT+7}, s{sW}, 9
    s_add_u32 s{sT+6}, s{sT+6}, s{sT+7}
    v_mov_b32 v{ST+10}, s{sNON}
    v_mov_b32 v{ST+11}, s{sNON}
    """)
    switch(z4)
    FILL.flush(k)
    k("s_waitcnt lgkmcnt(0)\ns_barrier"); k.lg.q = []
    for n, o in enumerate((0, 512, 1024, 1536)): k.ds(f"ds_read_b32 v{ST + (8, 9, 12, 13)[n]}, v{tmp+1} offset:{PS + o}", "pr")
    for it in reads(1, 0, "F0"): emit(k, it)
    k.wait(lg="pr")
    k(pk("add", ST+8, [(ST+8, 0), (ST+12, 0)]) + "\ns_mov_b64 exec, 0xffffffff")
    k.vmem(f"buffer_store_dwordx4 {vr(ST+8)}, v{vL16}, s[{sXs}:{sXs+3}], s{sT+6} offen sc1", "pub")
    k("s_mov_b64 exec, -1")
    k(f"""
    s_lshl_b32 s{sT+6}, s{sH}, 10
    s_add_u32 s{sT+6}, s{sT+6}, s{sT+8}
    s_add_u32 s{sT+7}, s{sT+6}, 4096
    s_add_u32 s{sT+8}, s{sT+6}, 8192
    s_add_u32 s{sT+9}, s{sT+6}, 12288
    s_lshl_b32 s{sT}, s{sW}, 9
    s_add_u32 s{sT+2}, s{sT}, {TOPB}
    v_lshl_add_u32 v{ad+2}, v0, 2, s{sT+2}
    s_add_u32 s{sT+2}, s{sT}, s{sT+3}
    s_sub_u32 s{sT}, s{sT}, s{sT+3}
    v_add_u32 v{ad}, s{sT+2}, v{vG16}
    v_add_u32 v{ad+1}, s{sT}, v{vG16}
    s_mov_b32 s{sPr}, s{sWS}
    s_mov_b32 s{sPr+1}, s{sWS+1}
    s_mov_b32 s{sPr+2}, {Z2F_SZ}
    s_mov_b32 s{sPr+3}, 0x20000
    s_lshl_b32 s{sT}, s{sRB}, 1
    s_add_u32 s{sT}, s{sT}, s{sH}
    s_mul_i32 s{sT}, s{sT}, 112
    s_mul_i32 s{sT+2}, s{sCQ}, 14
    s_add_u32 s{sT}, s{sT}, s{sT+2}
    s_mul_i32 s{sT+2}, s{sE}, 56
    s_add_u32 s{sT+5}, s{sT}, s{sT+2}
    s_sub_u32 s{sT+10}, s{sT}, s{sT+2}
    s_add_u32 s{sT+10}, s{sT+10}, 56
    s_lshl_b32 s{sT+5}, s{sT+5}, 10
    s_lshl_b32 s{sT+10}, s{sT+10}, 10
    s_lshl_b32 s{sT+1}, s{sT+1}, 4                 ; 4e*1024
    s_lshl_b32 s{sT+4}, s{sT+4}, 4
    s_add_u32 s{sT+4}, s{sT+4}, 8192               ; (8+3e)*1024
    s_add_u32 s{sT}, s{sT+5}, s{sT+1 if z4 else sT+4}
    s_add_u32 s{sT+2}, s{sT+10}, s{sT+1 if z4 else sT+4}
    s_add_u32 s{sT+5}, s{sT+5}, s{sT+4 if z4 else sT+1}
    s_add_u32 s{sT+10}, s{sT+10}, s{sT+4 if z4 else sT+1}
    s_mov_b32 s{sT+11}, 0
    """)
    sZ2o, sZ1o = [sT, sT+2], [sT+5, sT+10]
    k.stamp(5)
    G = T+8; NR, NM = T+48, T+64
    polls = [f"buffer_load_dwordx4 {vr(G+4*x)}, v{vL16}, s[{sXs}:{sXs+3}], s{sT+6+(x>>1)} offen offset:{(x&1)*2048} sc1" for x in range(8)]
    chk = [f"v_xor_b32 v{G+4*x+3}, s{sNON}, v{G+4*x+2}" for x in range(8)] + [
        f"v_or3_b32 v{G+3}, v{G+3}, v{G+7}, v{G+11}", f"v_or3_b32 v{G+15}, v{G+15}, v{G+19}, v{G+23}",
        f"v_or3_b32 v{G+3}, v{G+3}, v{G+27}, v{G+31}", f"v_or_b32 v{G+3}, v{G+3}, v{G+15}", f"v_cmp_ne_u32 vcc, 0, v{G+3}"]
    rnd = lambda r: [f"v_cvt_pk_bf16_f32 v{r}, v{r}, v{r}", f"v_and_b32 v{r}, 0xffff0000, v{r}"]
    fin = ([f"v_add_f32 v{G+8*i+e}, v{G+8*i+e}, v{G+8*i+4+e}" for i in range(4) for e in range(2)]
           + [f"v_add_f32 v{G+16*i+e}, v{G+16*i+e}, v{G+16*i+8+e}" for i in range(2) for e in range(2)]
           + [f"v_add_f32 v{G+e}, v{G+e}, v{G+16+e}" for e in range(2)]
           + [f"v_mul_f32 v{G+e}, {f2h(1/896)}, v{G+e}" for e in range(2)]
           + [f"v_fma_f32 v{G+1}, -v{G}, v{G}, v{G+1}", f"v_max_f32 v{G+1}, 0, v{G+1}"] + rnd(G+1)
           + [f"v_add_f32 v{G+1}, {f2h(1e-5)}, v{G+1}"] + rnd(G+1) + [f"v_sqrt_f32 v{G+1}, v{G+1}"] + rnd(G) + rnd(G+1)
           + [f"v_rcp_f32 v{G+1}, v{G+1}", "s_nop 0", f"v_mul_f32 v{G}, -v{G}, v{G+1}",
              ("d", f"ds_write_b32 v{ad+2}, v{G+1} offset:{NT}", "nw"), ("d", f"ds_write_b32 v{ad+2}, v{G} offset:{NT + 256}", "nw")])
    nrd = [("d", f"ds_read_b128 {vr((NR, NM)[x] + a*4)}, v{ad + (a>>1)} offset:{NT + 256*x + a*64}", "nr") for a in range(4) for x in range(2)]
    norm = []
    for p in range(2):
        for j in range(n1):
            ys = prs(0, p, j); ab = [(2*p + (i >> 1))*4 + 2*(i & 1) for i in range(4)]
            norm += [pk("fma", ys[i], [(ys[i], 0), (NR+ab[i], 0), (NM+ab[i], 0)]) for i in range(4)]
            norm += [f"v_cvt_pk_bf16_f32 v{tZ(0, 2*p, j)+i}, v{ys[i]}, v{ys[i]+1}" for i in range(4)]
            norm.append(("v", f"buffer_store_dwordx4 {vr(tZ(0, 2*p, j))}, v{vL16}, s[{sPr}:{sPr+3}], s{sZ2o[p]} offen offset:{j*1024} sc1", "z2st"))
    TP, TC_ = OPT.get("tp", 0), OPT.get("tc", 3)
    work = []
    def spread(slots, nM, per, start=0):
        nonlocal work
        for i in range(start, nM + 1):
            for _ in range(per):
                if work: slots[i].append(work.pop(0))
    for t in range(8):
        st = t % 4; dlt = SB if st < 3 else -3*SB
        M = mfmas(1, 0, first=(t == 0)); slots = [[] for _ in range(len(M) + 1)]
        slots[0].append(("w", None, "F0"))
        for n, it in enumerate(reads(1, 1, "F1") + (adv(0, dlt) if t < 7 else [])): slots[min(n + 1, len(M))].append(it)
        if t == 0: place_groups(slots, dma(1, "S11", 3*SB) + xdma(0, "S11"), len(M), first=0)
        if 1 <= t <= 4: place_groups(slots, xdma(0, f"S{11+t}"), len(M), first=0)
        spread(slots, len(M), 2, 1)
        weave(k, M, slots)
        if t < 7:
            k.wait(vm=f"S{9+t}", lg="F1"); k("s_barrier")
        else: k.wait(lg="F1")
        if OPT.get("p2t"): k(f"s_memtime s[{84+2*t}:{85+2*t}]\ns_waitcnt lgkmcnt(0)"); k.lg.q = []
        if t == OPT.get("zt", 99): hooks["z2flag"](k, V)
        if t == TC_:
            k.wait(vm="poll")
            for l in chk: k(l)
            k(f"s_nop 3\ns_cbranch_vccnz {lab}_slow\n{lab}_got:")
            work += fin
        if t == TC_ + 1 and not OPT.get("nq"): work += [("w", None, "nw")] + nrd
        if t == TC_ + 1 and OPT.get("nq"):
            for it in work + [("w", None, "nw")] + nrd + [("w", None, "nr")] + norm: emit(k, it)
            work = []
        if t == TC_ + 2 and not OPT.get("nq"):
            for it in work + [("w", None, "nr")] + norm: emit(k, it)
            work = []
        M = mfmas(1, 1); slots = [[] for _ in range(len(M) + 1)]
        if t < 7:
            for n, it in enumerate(reads(1, 0, "F0") + adv(1, dlt)): slots[min(n + 1, len(M))].append(it)
        G_ = dma(1, f"S{12+t}", st*SB) if t < 4 else []
        if G_: place_groups(slots, G_, len(M), first=0)
        if t in (TP, TP + 1):
            for n, l in enumerate(polls[4*(t - TP):4*(t - TP) + 4]): slots[2 + n*(len(M) - 2)//4].append(("v", l, "poll"))
        spread(slots, len(M), 2 if t >= 5 else 1, 1)
        weave(k, M, slots)
    for it in work: emit(k, it)
    k(f"s_branch {lab}_p2end\n{lab}_slow:\ns_sleep 2")
    for l in polls: k(l)
    k(f"s_add_u32 s{sT+11}, s{sT+11}, 1\ns_waitcnt vmcnt(0)")
    for l in chk: k(l)
    k(f"s_nop 3\ns_cmp_gt_u32 s{sT+11}, 100000\ns_cbranch_scc1 {lab}_got\ns_cbranch_vccnz {lab}_slow\ns_branch {lab}_got\n{lab}_p2end:")
    k.stamp(6)
    for j in range(n2): k.ds(f"ds_write_b32 v{T+6}, {vr(tC(1, j), 1)} offset:{TC + coff(1, j)}", "cw")
    k(f"s_add_u32 s{sOr}, s{sWS}, {Z1L_OFF}\ns_addc_u32 s{sOr+1}, s{sWS+1}, 0\ns_mov_b32 s{sOr+2}, {Z1L_SZ}\ns_mov_b32 s{sOr+3}, 0x20000")
    k("s_waitcnt lgkmcnt(0)\ns_barrier"); k.lg.q = []
    C1 = T+8
    for j in range(n2):
        for hh in range(2): k.ds(f"ds_read_b128 {vr(C1 + 8*j + 4*hh)}, v{ad+5} offset:{TC + hh*1024 + coff(1, j)}", f"c{j}")
    hooks["stageB2"](k)
    for j in range(n2):
        k.wait(lg=f"c{j}")
        for i in range(2): k(pk("add", C1+8*j+2*i, [(C1+8*j+2*i, 0), (C1+8*j+4+2*i, 0)]))
        for p in range(2):
            ys = prs(1, p, j)
            for i in range(4): k(pk("mul", tmp+2*i, [(C1+8*j+2*(i & 1), 0), (AL+4+2*p+(i >> 1), 1)]))
            for i in range(4): k(pk("fma", ys[i], [(ys[i], 0), (AL+2*p+(i >> 1), 1), (tmp+2*i, 0)]))
            gelu_pk(k, ys, c, tmp, OPT.get('nf3', (1, 1, 1, 1)))
            for i in range(4): k(f"v_cvt_pk_bf16_f32 v{tZ(1, 2*p, j)+i}, v{ys[i]}, v{ys[i]+1}")
            k.vmem(f"buffer_store_dwordx4 {vr(tZ(1, 2*p, j))}, v{vL16}, s[{sOr}:{sOr+3}], s{sZ1o[p]} offen offset:{j*1024} sc1", "p1st")
            if j == 0 and p == OPT.get("zf", 0) and OPT.get("zt", 99) > 7: hooks["z2flag"](k, V)
    FILL.flush(k)
    after(k, V)

def var_S(k, name, V, after, hooks):
    lab = f"L_{name}_{V}"; pitch = 3584
    z4 = V == "B43"
    n1 = 4 if z4 else 3; n2 = 5 - n1
    NU = 5
    PFA = OPT.get('pfa')
    pf_sp = (lambda: []) if PFA else globals()['pf_sp']
    FR, XA = 256, 256 + 112
    k(f"s_lshl_b32 s{sWl}, s{sW}, 10\ns_mov_b32 s{sSTG}, {STG}")
    if OPT.get("it0"): k(("s_memtime" if K.diag == "c" else "s_memrealtime") + " s[84:85]\ns_waitcnt lgkmcnt(0)")
    k.stamp(0)
    def dma():
        W = []
        for q in range(5):
            so, imm = (sWo[0], 64*q) if q < n1 else (sWo[1], 64*(q - n1))
            g = [f"s_add_u32 m0, s{sB}, {XW + q*4096 - imm}", f"buffer_load_dwordx4 v{vWd}, s[{sWr}:{sWr+3}], s{so} offen offset:{imm} lds"]
            if q in (n1 - 1, 4): g.append(f"s_add_u32 s{so}, s{so}, {64*pitch}")
            W.append(g)
        W[0] = [f"s_add_u32 s{sA}, s{sSt}, s{sXl}", f"s_add_u32 s{sB}, s{sSt}, s{sWl}"] + W[0]
        return W
    def dma_now(both=True):
        for g in dma() + (xdma(2048) if both else []):
            for l in g: k(l)
    dma_now(); k(f"s_add_u32 s{sSt}, s{sSt}, {STG}")
    lane_parts(k)
    vX = [[8, 9], [14, 15]]; vW = [[10, 11, 12, 13], [16, 17, 29, 30]]
    k(f"""
    s_lshl_b32 s{sT}, s{sH}, 6
    v_xor_b32 v{T}, s{sT}, v{T}
    s_lshl_b32 s{sT}, s{sH}, 13
    s_add_u32 s{sT}, s{sT}, 2048
    s_lshl_b32 s{sT+1}, s{sE}, 12
    s_add_u32 s{sT+2}, s{sT}, s{sT+1}
    v_add_u32 v{vX[0][0]}, s{sT+2}, v{T}
    s_sub_u32 s{sT+2}, s{sT}, s{sT+1}
    v_add_u32 v{vX[0][1]}, s{sT+2}, v{T}
    v_xor_b32 v{vX[1][0]}, 64, v{vX[0][0]}
    v_xor_b32 v{vX[1][1]}, 64, v{vX[0][1]}
    s_lshl_b32 s{sT}, s{sH}, 11
    s_add_u32 s{sT}, s{sT}, {XW}
    s_lshl_b32 s{sT+2}, s{sE}, 13
    s_add_u32 s{sT+3}, s{sT}, s{sT+2}            ; + 2e strips
    s_add_u32 s{sT+5}, s{sT}, s{sT+1}            ; + e strips
    s_lshl_b32 s{sT+4}, s{sE}, 5
    v_xor_b32 v{T+1}, s{sT+4}, v{T+2}
    """)
    if z4: k(f"v_add_u32 v{vW[0][0]}, s{sT+3}, v{T+2}\nv_xor_b32 v{vW[0][1]}, 32, v{vW[0][0]}\nv_add_u32 v{vW[0][2]}, s{sT}, v{T+1}\nv_mov_b32 v{vW[0][3]}, v{vW[0][2]}")
    else: k(f"v_add_u32 v{vW[0][0]}, s{sT+5}, v{T+1}\nv_xor_b32 v{T+1}, 32, v{T+1}\nv_add_u32 v{vW[0][1]}, s{sT+3}, v{T+1}\nv_add_u32 v{vW[0][2]}, s{sT+5}, v{T+2}\nv_xor_b32 v{vW[0][3]}, 32, v{vW[0][2]}")
    k(f"""
    s_lshl_b32 s{sT}, s{sH}, 12
    s_sub_u32 s{sT}, 2048, s{sT}
    """)
    for n in range(4): k(f"v_add_u32 v{vW[1][n]}, s{sT}, v{vW[0][n]}")
    bases = [vX[0] + vW[0], vX[1] + vW[1]]
    dma_now(); k(f"s_add_u32 s{sSt}, s{sSt}, {STG}")
    fX = lambda sg, a: FR + sg*56 + a*4
    fW = lambda sg, j: FR + sg*56 + 16 + j*4
    tG = lambda a: XA + a*8; tS = lambda a: XA + a*8 + 4
    tC = lambda j: XA + 16 + j*4
    tZ = lambda a, j: ACC + (j*4 + a)*4
    isz2 = lambda j: j < n1
    J2 = list(range(n1)); J1 = list(range(n1, 5))
    wad = lambda sg, j: (vW[sg][j & 1], (j >> 1)*4096) if j < n1 else (vW[sg][2 + j - n1], n1*4096)
    for r in range(4): k(f"v_mov_b32 v{ONES+r}, 0x3f803f80")
    for r in range(80): k(f"v_mov_b32 v{ACC+r}, 0")
    for r in range(36): k(f"v_accvgpr_write_b32 {vr(XA+r, 1)}, 0")
    dma_now(False); k(f"s_mov_b32 s{sSt}, 0")
    nb = bulk(k, name, lab, False, pitch, 3, 0 if z4 else 320)
    def reads(sg):
        return ([f"ds_read_b128 {vr(fX(sg, a))}, v{vX[sg][a >> 1]} offset:{a*2048}" for a in range(4)]
                + [f"ds_read_b64_tr_b16 {vr(fW(sg, j) + 2*j2, 2)}, v{wad(sg, j)[0]} offset:{wad(sg, j)[1] + j2*256}" for j in range(5) for j2 in range(2)])
    def mfmas(sg):
        L = [mf(tZ(a, j), fX(sg, a), fW(sg, j)) if isz2(j) else mf(tZ(a, j), fW(sg, j), fX(sg, a)) for j in range(5) for a in range(4)]
        for a in range(2): L += [mf(tG(a), fX(sg, a), fX(sg, a)), mf(tS(a), ONES, fX(sg, a))]
        return L + ([mf(tC(j), ONES, fW(sg, j)) for j in range(5)] if sg == 0 else [])
    adv = lambda sg: [f"v_add_u32 v{r}, s{sDelta}, v{r}" for r in bases[sg]]
    k(f"s_mov_b32 s{sI}, 0\ns_waitcnt vmcnt({14 + nb})\ns_barrier")
    k.stamp(1)
    for l in reads(0): k(l)
    k("s_waitcnt lgkmcnt(0)")
    loop1(k, lab, hooks, False, STG, mfmas, reads, adv, lambda: dma() + pf_xw(pitch, 12), lambda: xdma(2048), 11, 9, [])
    k.stamp(2)
    k("s_barrier")
    k.lg.q = []; k.vm.q = ["E0"]*8 + ["E1"]*8 + ["E2"]*8
    FILL.q, post = f2.stage_groups(k, STG)
    if OPT.get("burst"):
        k.stamp(10); k("s_waitcnt vmcnt(0)"); k.stamp(11); FILL(k, 32); k("s_waitcnt vmcnt(0)"); k.stamp(12)
    coff = lambda j: (j*64 if j < n1 else 512 + (j - n1)*64)
    pre = f"""
    s_lshl_b32 s{sT}, s{sH}, 8
    s_lshl_b32 s{sT+3}, s{sE}, 7
    s_add_u32 s{sT}, s{sT}, s{sT+3}
    s_add_u32 s{sT}, s{sT}, 64
    s_mul_i32 s{sT+1}, s{sE}, {64*n1}
    s_mul_i32 s{sT+4}, s{sE}, {64*n2}
    s_lshl_b32 s{sT+5}, s{sH}, 10
    s_add_u32 s{sT+2}, s{sT+1}, s{sT+5}
    s_add_u32 s{sT+5}, s{sT+4}, s{sT+5}
    v_add_u32 v{T+4}, s{sT}, v{T+3}
    v_add_u32 v{T+5}, s{sT+2}, v{T+3}
    v_add_u32 v{T+6}, s{sT+5}, v{T+3}
    """
    row_tables(k, 2, tG, tS, pre, "\n".join(f"ds_write_b32 v{T+5 if j < n1 else T+6}, {vr(tC(j), 1)} offset:{TC + coff(j)}" for j in range(5)))
    FILL.flush(k); FILL.q = post
    nonce_check(k, lab)
    k(f"v_lshlrev_b32 v{T+7}, 4, v1\nv_add_u32 v{T+7}, {TOP}, v{T+7}\ns_waitcnt lgkmcnt(0)\ns_barrier")
    k.lg.q = []
    k.stamp(3)
    vI4, vG16 = T+3, T+7
    c = T; AR, BR = T+8, T+24; C2 = T+40; ST = T+48; tmp = T+80; AL = T+88; ad = T+96
    k(f"""
    s_lshl_b32 s{sT}, s{sH}, 8
    s_add_u32 s{sT}, s{sT}, 64
    s_add_u32 s{sT+2}, s{sT}, s{sT+3}
    s_sub_u32 s{sT+5}, s{sT}, s{sT+3}
    v_add_u32 v{ad}, s{sT+2}, v{vG16}
    v_add_u32 v{ad+1}, s{sT+5}, v{vG16}
    v_add_u32 v{ad+2}, s{sT+2}, v{vI4}
    v_add_u32 v{ad+3}, s{sT+5}, v{vI4}
    v_add_u32 v{ad+4}, s{sT+1}, v{vI4}
    v_add_u32 v{ad+5}, s{sT+4}, v{vG16}
    """)
    for a in range(4):
        k.ds(f"ds_read_b128 {vr(AR + a*4)}, v{ad + (a>>1)} offset:{TA + a*64}", "t")
        k.ds(f"ds_read_b128 {vr(BR + a*4)}, v{ad + (a>>1)} offset:{TB + a*64}", "t")
    for n, j in enumerate(J2):
        for hh in range(2): k.ds(f"ds_read_b32 v{C2 + 2*n + hh}, v{ad+4} offset:{TC + hh*1024 + coff(j)}", "t")
    k(f"v_mov_b32 v{c}, {f2h(GC1)}\nv_mov_b32 v{c+1}, {f2h(GC2)}")
    k.wait(lg="t")
    for a in range(4):
        k.ds(f"ds_read_b32 v{AL + a}, v{ad + 2 + (a>>1)} offset:{TA + a*64}", "u")
        k.ds(f"ds_read_b32 v{AL + 4 + a}, v{ad + 2 + (a>>1)} offset:{TB + a*64}", "u")
    for n in range(n1): k(f"v_add_f32 v{C2+2*n}, v{C2+2*n}, v{C2+2*n+1}")
    prs = lambda p, j: [tZ(2*p + (i >> 1), j) + 2*(i & 1) for i in range(4)]
    NF = OPT.get("nf", (1, 1, 1, 0))
    for n, j in enumerate(J2):
        for p in range(2):
            ys = prs(p, j); ab = [(2*p + (i >> 1))*4 + 2*(i & 1) for i in range(4)]
            for i in range(4): k(pk("mul", tmp+2*i, [(BR+ab[i], 0), (C2+2*n, 1)]))
            for i in range(4): k(pk("fma", ys[i], [(AR+ab[i], 0), (ys[i], 0), (tmp+2*i, 0)]))
            gelu_pk(k, ys, c, tmp, NF)
            for i in range(4):
                s_ = ST + (2*p + (i >> 1))*8 + 2*(i & 1); q_ = s_ + 4
                if n == 0: k(f"v_mov_b32 v{s_}, v{ys[i]}\nv_mov_b32 v{s_+1}, v{ys[i]+1}\n" + pk("mul", q_, [(ys[i], 0), (ys[i], 0)]))
                else: k(pk("add", s_, [(s_, 0), (ys[i], 0)]) + "\n" + pk("fma", q_, [(ys[i], 0), (ys[i], 0), (q_, 0)]))
    k.stamp(4)
    C1 = T+8
    for n, j in enumerate(J1):
        for hh in range(2): k.ds(f"ds_read_b128 {vr(C1 + 8*n + 4*hh)}, v{ad+5} offset:{TC + hh*1024 + coff(j)}", "u")
    for n in range(16): k(f"v_add_f32_dpp v{ST+n}, v{ST+n}, v{ST+n} row_mirror row_mask:0xf bank_mask:0x3")
    for n in range(16): k(f"v_add_f32_dpp v{ST+n}, v{ST+16+n}, v{ST+16+n} row_mirror row_mask:0xf bank_mask:0xc")
    for n in range(8): k(f"v_add_f32_dpp v{ST+n}, v{ST+n}, v{ST+n} row_half_mirror row_mask:0xf bank_mask:0x5")
    for n in range(8): k(f"v_add_f32_dpp v{ST+n}, v{ST+8+n}, v{ST+8+n} row_half_mirror row_mask:0xf bank_mask:0xa")
    for n in range(8): k(f"v_add_f32_dpp v{ST+n}, v{ST+n}, v{ST+n} quad_perm:[1,0,3,2] row_mask:0xf bank_mask:0xf")
    for n in range(8): k(f"v_add_f32_dpp v{ST+n}, v{ST+n}, v{ST+n} quad_perm:[2,3,0,1] row_mask:0xf bank_mask:0xf")
    k(f"""
    v_lshrrev_b32 v{tmp}, 2, v2
    s_lshl_b32 s{sT+6}, s{sE}, 1
    v_xor_b32 v{tmp}, s{sT+6}, v{tmp}
    v_lshl_add_u32 v{tmp}, v{tmp}, 6, v{vG16}
    s_lshl_b32 s{sT+6}, s{sE}, 10
    s_lshl_b32 s{sT+7}, s{sH}, 8
    s_add_u32 s{sT+6}, s{sT+6}, s{sT+7}
    v_add_u32 v{tmp}, s{sT+6}, v{tmp}
    ds_write_b128 v{tmp}, {vr(ST)} offset:{PS}
    ds_write_b128 v{tmp}, {vr(ST+4)} offset:{PS + 512}
    v_and_b32 v{tmp+1}, 31, v0
    s_lshl_b32 s{sT+6}, s{sW}, 7
    s_add_u32 s{sT+6}, s{sT+6}, {TOP}
    v_lshl_add_u32 v{tmp+1}, v{tmp+1}, 2, s{sT+6}
    s_add_u32 s{sXs}, s{sWS}, {XS_OFF}
    s_addc_u32 s{sXs+1}, s{sWS+1}, 0
    s_mov_b32 s{sXs+2}, {XS_SZ}
    s_mov_b32 s{sXs+3}, 0x20000
    s_lshl_b32 s{sT+8}, s{sRB}, 14
    s_lshl_b32 s{sT+6}, s{sCQ}, 12
    s_add_u32 s{sT+6}, s{sT+6}, {0 if z4 else 2048}
    s_add_u32 s{sT+6}, s{sT+6}, s{sT+8}
    s_lshl_b32 s{sT+7}, s{sW}, 9
    s_add_u32 s{sT+6}, s{sT+6}, s{sT+7}
    v_mov_b32 v{ST+10}, s{sNON}
    v_mov_b32 v{ST+11}, s{sNON}
    s_waitcnt lgkmcnt(0)
    s_barrier
    """)
    k.lg.q = []
    for n, o in enumerate((0, 512, 1024, 1536)): k.ds(f"ds_read_b32 v{ST + (8, 9, 12, 13)[n]}, v{tmp+1} offset:{PS + o}", "pr")
    for n in range(n2):
        for i in range(2): k(pk("add", C1+8*n+2*i, [(C1+8*n+2*i, 0), (C1+8*n+4+2*i, 0)]))
    k.wait(lg="pr")
    k(pk("add", ST+8, [(ST+8, 0), (ST+12, 0)]) + "\ns_mov_b64 exec, 0xffffffff")
    k.vmem(f"buffer_store_dwordx4 {vr(ST+8)}, v{vL16}, s[{sXs}:{sXs+3}], s{sT+6} offen sc1", "pub")
    k("s_mov_b64 exec, -1")
    k(f"""
    s_lshl_b32 s{sT+6}, s{sH}, 10
    s_add_u32 s{sT+6}, s{sT+6}, s{sT+8}
    s_add_u32 s{sT+7}, s{sT+6}, 4096
    s_add_u32 s{sT+8}, s{sT+6}, 8192
    s_add_u32 s{sT+9}, s{sT+6}, 12288
    s_lshl_b32 s{sT}, s{sW}, 9
    s_add_u32 s{sT+2}, s{sT}, {TOP}
    v_lshl_add_u32 v{ad+2}, v0, 2, s{sT+2}
    s_add_u32 s{sT+2}, s{sT}, s{sT+3}
    s_sub_u32 s{sT}, s{sT}, s{sT+3}
    v_add_u32 v{ad}, s{sT+2}, v{vG16}
    v_add_u32 v{ad+1}, s{sT}, v{vG16}
    s_mov_b32 s{sPr}, s{sWS}
    s_mov_b32 s{sPr+1}, s{sWS+1}
    s_mov_b32 s{sPr+2}, {Z2F_SZ}
    s_mov_b32 s{sPr+3}, 0x20000
    s_add_u32 s{sOr}, s{sWS}, {Z1L_OFF}
    s_addc_u32 s{sOr+1}, s{sWS+1}, 0
    s_mov_b32 s{sOr+2}, {Z1L_SZ}
    s_mov_b32 s{sOr+3}, 0x20000
    s_lshl_b32 s{sT}, s{sRB}, 1
    s_add_u32 s{sT}, s{sT}, s{sH}
    s_mul_i32 s{sT}, s{sT}, 112
    s_mul_i32 s{sT+2}, s{sCQ}, 14
    s_add_u32 s{sT}, s{sT}, s{sT+2}
    s_mul_i32 s{sT+2}, s{sE}, 56
    s_add_u32 s{sT+5}, s{sT}, s{sT+2}
    s_sub_u32 s{sT+10}, s{sT}, s{sT+2}
    s_add_u32 s{sT+10}, s{sT+10}, 56
    s_lshl_b32 s{sT+5}, s{sT+5}, 10
    s_lshl_b32 s{sT+10}, s{sT+10}, 10
    s_lshl_b32 s{sT+1}, s{sT+1}, 4
    s_lshl_b32 s{sT+4}, s{sT+4}, 4
    s_add_u32 s{sT+1}, s{sT+1}, {0 if z4 else 8192}
    s_add_u32 s{sT+4}, s{sT+4}, {8192 if z4 else 10240}
    s_add_u32 s{sT}, s{sT+5}, s{sT+1}
    s_add_u32 s{sT+2}, s{sT+10}, s{sT+1}
    s_add_u32 s{sT+5}, s{sT+5}, s{sT+4}
    s_add_u32 s{sT+10}, s{sT+10}, s{sT+4}
    s_mov_b32 s{sT+11}, 0
    """)
    sZ2o, sZ1o = [sT, sT+2], [sT+5, sT+10]
    def z1_block(n, p, nf):
        j = J1[n]; ys = prs(p, j)
        for i in range(4): k(pk("mul", tmp+2*i, [(C1+8*n+2*(i & 1), 0), (AL+4+2*p+(i >> 1), 1)]))
        for i in range(4): k(pk("fma", ys[i], [(ys[i], 0), (AL+2*p+(i >> 1), 1), (tmp+2*i, 0)]))
        gelu_pk(k, ys, c, tmp, nf)
        for i in range(4): k(f"v_cvt_pk_bf16_f32 v{tZ(2*p, j)+i}, v{ys[i]}, v{ys[i]+1}")
    blocks = [(n, p) for n in range(n2) for p in range(2)]
    NA, NB = min(OPT.get("za", 2), len(blocks)), OPT.get("zb", 2)
    G = T+40; NR, NM = T+48, T+64
    polls = [f"buffer_load_dwordx4 {vr(G+4*x)}, v{vL16}, s[{sXs}:{sXs+3}], s{sT+6+(x>>1)} offen offset:{(x&1)*2048} sc1" for x in range(8)]
    chk = [f"v_xor_b32 v{G+4*x+3}, s{sNON}, v{G+4*x+2}" for x in range(8)] + [
        f"v_or3_b32 v{G+3}, v{G+3}, v{G+7}, v{G+11}", f"v_or3_b32 v{G+15}, v{G+15}, v{G+19}, v{G+23}",
        f"v_or3_b32 v{G+3}, v{G+3}, v{G+27}, v{G+31}", f"v_or_b32 v{G+3}, v{G+3}, v{G+15}", f"v_cmp_ne_u32 vcc, 0, v{G+3}"]
    for b_ in blocks[:NA]: z1_block(*b_, OPT.get("nfa", (1, 1, 1, 1)))
    FILL(k, OPT.get("zp", 8))
    for l in polls: k.vmem(l, "poll")
    z1st = lambda n, p: k.vmem(f"buffer_store_dwordx4 {vr(tZ(2*p, J1[n]))}, v{vL16}, s[{sOr}:{sOr+3}], s{sZ1o[p]} offen offset:{n*1024} sc1", "p1st")
    done = 0
    if OPT.get("es", 1):
        for b_ in blocks[:NA]: z1st(*b_)
        done = NA
    for b_ in blocks[NA:NA + NB]:
        z1_block(*b_, OPT.get("nfb", (1, 1, 1, 1)))
        if OPT.get("es", 1): z1st(*b_); done += 1
    FILL(k, OPT.get("zq", 8))
    k.stamp(5)
    k.wait(vm="poll")
    k(f"s_branch {lab}_chk\n{lab}_slow:")
    for l in polls: k(l)
    k(f"s_add_u32 s{sT+11}, s{sT+11}, 1\ns_waitcnt vmcnt(0)\n{lab}_chk:")
    for l in chk: k(l)
    k(f"s_nop 3\ns_cmp_gt_u32 s{sT+11}, 100000\ns_cbranch_scc1 {lab}_got\ns_cbranch_vccnz {lab}_slow\n{lab}_got:")
    for i in range(4): k(pk("add", G+8*i, [(G+8*i, 0), (G+8*i+4, 0)]))
    for i in range(2): k(pk("add", G+16*i, [(G+16*i, 0), (G+16*i+8, 0)]))
    k(pk("add", G, [(G, 0), (G+16, 0)]))
    k(f"v_mul_f32 v{G}, {f2h(1/896)}, v{G}\nv_mul_f32 v{G+1}, {f2h(1/896)}, v{G+1}\nv_fma_f32 v{G+1}, -v{G}, v{G}, v{G+1}\nv_max_f32 v{G+1}, 0, v{G+1}")
    bf16_round(k, G+1, G+1); k(f"v_add_f32 v{G+1}, {f2h(1e-5)}, v{G+1}"); bf16_round(k, G+1, G+1)
    k(f"v_sqrt_f32 v{G+1}, v{G+1}"); bf16_round(k, G, G); bf16_round(k, G+1, G+1)
    k(f"v_rcp_f32 v{G+1}, v{G+1}\nv_mul_f32 v{G}, -v{G}, v{G+1}")
    k.ds(f"ds_write_b32 v{ad+2}, v{G+1} offset:{NT}", "nw"); k.ds(f"ds_write_b32 v{ad+2}, v{G} offset:{NT + 256}", "nw")
    k.wait(lg="nw")
    for a in range(4):
        k.ds(f"ds_read_b128 {vr(NR + a*4)}, v{ad + (a>>1)} offset:{NT + a*64}", f"n{a>>1}")
        k.ds(f"ds_read_b128 {vr(NM + a*4)}, v{ad + (a>>1)} offset:{NT + 256 + a*64}", f"n{a>>1}")
    for p in range(2):
        k.wait(lg=f"n{p}")
        for n, j in enumerate(J2):
            ys = prs(p, j); ab = [(2*p + (i >> 1))*4 + 2*(i & 1) for i in range(4)]
            for i in range(4): k(pk("fma", ys[i], [(ys[i], 0), (NR+ab[i], 0), (NM+ab[i], 0)]))
            for i in range(4): k(f"v_cvt_pk_bf16_f32 v{tZ(2*p, j)+i}, v{ys[i]}, v{ys[i]+1}")
            k.vmem(f"buffer_store_dwordx4 {vr(tZ(2*p, j))}, v{vL16}, s[{sPr}:{sPr+3}], s{sZ2o[p]} offen offset:{n*1024} sc1", "z2st")
    k.stamp(6)
    for b_ in blocks[NA + NB:NA + NB + 2]: z1_block(*b_, OPT.get("nf2", (1, 1, 1, 1)))
    FILL(k, OPT.get("zc", 6))
    if OPT["pf3"] == 4: kk = K("t"); hooks["pf3A"](kk); [k(l.replace(f"s{sT+5}", "s90").replace(f"s{sT+6}", "s91").replace(f"s{sT+7}", "s92").replace(f"s{sT+1}", "s93").replace(f"s{sT}", "s94")) for l in kk.L]; [k.vm.issue("pf3") for _ in range(3)]
    k.stamp(7)
    hooks["z2flag"](k, V)
    k.stamp(8)
    for b_ in blocks[NA + NB + 2:]: z1_block(*b_, (1, 1, 1, 1))
    for b_ in blocks[done:]: z1st(*b_)
    FILL.flush(k)
    if OPT["pf3"] == 3: hooks["pf3A"](k)
    after(k, V)
```

```python
import sys
sys.path.insert(0, "gen")
from build import *
from layout import *
import f1, f2, f3, g1
NAME = "parallel_sum__sliding_local_dilated__mixer_gmlp__prompt_kernel"
args = sys.argv[2:]
K.diag = "c" if "c" in args else "h" if "h" in args else ("d" in args)
kv = dict(a.split("=") for a in args if "=" in a)
for o in args:
    if o not in 'dch' and '=' not in o: f1.OPT[o] = 1
K.dbgslot = 0
pol = lambda n, d: kv.get(n, d).replace("_", " ").replace("-", "")
k = K(NAME); n = "F"
real_stamp = K.stamp
PH = {"p": 1}
MAP = {1: {0: 0, 2: 1}, 2: {3: 4}, 3: {6: 6}}
P1D = "p1" in args
if P1D: MAP = {1: {0: 0, 2: 1, 3: 2, 4: 3, 5: 4, 6: 5}}
if "it" in args or "p2t" in args: MAP = {}; P1D = True; PH["direct"] = None
if "p1b" in args: P1D = True; MAP = {1: {2: 0, 4: 1, 5: 2, 6: 3, 7: 4, 8: 5}}
if "burst" in args: P1D = True; MAP = {1: {2: 0, 10: 1, 11: 2, 12: 3, 3: 4, 4: 5}}
P3D = "p3" in args
if P3D: MAP = {2: {3: 0, 4: 1}, 3: {6: 4, 7: 6}}
_rs = real_stamp
def real_stamp(k, i):
    if P3D:
        if i in (5, 8, 9): _rs(k, {5: 2, 8: 3, 9: 5}[i])
        return
    if i > 7: return
    if PH.get("direct", 1) is None: return
    if P1D and PH.get("direct", True):
        if i == 2: _rs(k, 6)
        if i == 3: _rs(k, 7)
    else: _rs(k, i)
def stamp(self, i):
    m = MAP.get(PH["p"], {})
    if i in m: _rs(self, m[i])
K.stamp = stamp
sFl = sR4
def flag_srd(k, s):
    k(f"s_add_u32 s{s}, s{sWS}, {FL_OFF}\ns_addc_u32 s{s+1}, s{sWS+1}, 0\ns_mov_b32 s{s+2}, {FL_SZ}\ns_mov_b32 s{s+3}, 0x20000")
def set_flag(k, lab, soff_code, lanes, vstride_shift, tag=None, so=sT):
    if tag: k.wait(vm=tag)
    else: k("s_waitcnt vmcnt(0)"); k.vm.q = []
    flag_srd(k, sFl)
    k(soff_code)
    k(f"s_lshl_b32 s{so+1}, s{sW}, 6\ns_add_u32 s{so}, s{so}, s{so+1}")
    k(f"v_lshlrev_b32 v28, {vstride_shift}, v0\nv_mov_b32 v29, s{sNON}\ns_mov_b64 exec, {(1 << lanes) - 1}")
    k(f"buffer_store_dword v29, v28, s[{sFl}:{sFl+3}], s{so} offen sc1\ns_mov_b64 exec, -1")
    k.vm.issue("flag")
sFD = 59
def z2flag(k, V):
    code = f"s_lshl_b32 s{sT}, s{f1.sRB}, 2\ns_add_u32 s{sT}, s{sT}, s{f1.sCQ}\ns_lshl_b32 s{sT}, s{sT}, 9\ns_add_u32 s{sT}, s{sT}, {FZ2 + (0 if V == 'B43' else 256)}"
    set_flag(k, f"L_{n}_fz{V}", code, 1, 2, tag="z2st")
f1.OPT["z2flag"] = z2flag
def after1(k, V):
    real_stamp(k, 2)
    PH["V"] = V
    if V == "A":
        k(f"s_lshl_b32 s{sFD}, s{f1.sRB}, 4\ns_add_u32 s{sFD}, s{sFD}, s{f1.sSUB}\ns_lshl_b32 s{sFD}, s{sFD}, 8")
    else:
        k(f"s_lshl_b32 s{sFD}, s{f1.sRB}, 3\ns_add_u32 s{sFD}, s{sFD}, s{f1.sCQ}\ns_lshl_b32 s{sFD}, s{sFD}, 9\ns_add_u32 s{sFD}, s{sFD}, {2048 + (0 if V == 'B43' else 256)}")
    k(f"s_lshl_b32 s{sT}, s{sW}, 6\ns_add_u32 s{sFD}, s{sFD}, s{sT}\ns_add_u32 s{sFD}, s{sFD}, {FD}")
    if V == "B43": k(f"s_branch L_{n}_p2B")
    if V == "B34": p2(14 - f2.NJA, "B", TWO)
    if V == "A": p2(f2.NJA, "A", False)
def poll(k, lab, loads, nreg):
    flag_srd(k, sFl)
    loads(k, True)
    k(f"s_mov_b32 s{sT+10}, 0\n{lab}:")
    loads(k, False)
    k(f"s_add_u32 s{sT+10}, s{sT+10}, 1\ns_waitcnt vmcnt(0)")
    for r in range(nreg): k(f"v_xor_b32 v{28+r}, s{sNON}, v{28+r}")
    for r in range(1, nreg): k(f"v_or_b32 v28, v28, v{28+r}")
    k(f"v_cmp_ne_u32 vcc, 0, v28\ns_nop 3\ns_cmp_gt_u32 s{sT+10}, 100000\ns_cbranch_scc1 {lab}_go\ns_cbranch_vccnz {lab}\n{lab}_go:\ns_mov_b64 exec, -1")
    k.vm.q = []
def wait_z2(k, nm):
    def loads(k, pre):
        if pre: k(f"s_lshl_b32 s{sT+8}, s{sW}, 13\ns_lshr_b32 s{sT+9}, s{f2.sCB}, 2\ns_lshl_b32 s{sT+9}, s{sT+9}, 10\ns_add_u32 s{sT+8}, s{sT+8}, s{sT+9}\nv_lshlrev_b32 v26, 11, v1\nv_and_b32 v27, 15, v0\nv_lshl_add_u32 v26, v27, 6, v26")
        else: k(f"buffer_load_dword v28, v26, s[{sFl}:{sFl+3}], s{sT+8} offen offset:{FZ2} sc1")
    poll(k, f"L_{nm}_pz", loads, 1)
    real_stamp(k, 3)
def mid_load(k):
    return [("i", f"""s_add_u32 s{sFl}, s{sWS}, {FL_OFF}
    s_addc_u32 s{sFl+1}, s{sWS+1}, 0
    s_mov_b32 s{sFl+2}, {FL_SZ}
    s_mov_b32 s{sFl+3}, 0x20000
    s_lshr_b32 s{sT+9}, s{f2.sRB2}, 1
    s_lshl_b32 s{sT+9}, s{sT+9}, 12
    s_add_u32 s{sT+9}, s{sT+9}, {FD}
    v_lshlrev_b32 v27, 6, v0
    s_mov_b32 s{sT+10}, 0"""), ("v", f"buffer_load_dword v28, v27, s[{sFl}:{sFl+3}], s{sT+9} offen sc1", "fz1")]
def mid_check(k, nm):
    lab = f"L_{nm}_pd"
    return [("i", f"""s_branch {lab}_chk
    {lab}:
    s_sleep 2
    buffer_load_dword v28, v27, s[{sFl}:{sFl+3}], s{sT+9} offen sc1
    s_add_u32 s{sT+10}, s{sT+10}, 1
    s_waitcnt vmcnt(0)
    {lab}_chk:
    v_cmp_ne_u32 vcc, s{sNON}, v28
    s_nop 3
    s_cmp_gt_u32 s{sT+10}, 100000
    s_cbranch_scc1 {lab}_go
    s_cbranch_vccnz {lab}
    {lab}_go:""")]
def done2(k): real_stamp(k, 5)
def flag2(k):
    code = f"s_lshl_b32 s{sT}, s{f2.sRB2}, 11\ns_lshl_b32 s{sT+1}, s{f2.sCB}, 8\ns_add_u32 s{sT}, s{sT}, s{sT+1}\ns_add_u32 s{sT}, s{sT}, {FH}"
    set_flag(k, f"L_{n}_flh", code, 1, 2, tag="hs")
    real_stamp(k, 8)
def wait_h(k):
    def loads(k, pre):
        if pre: k(f"s_lshl_b32 s{sT+8}, s{f2.sRB2}, 11\ns_lshr_b32 s{sT+9}, s{sW}, 1\ns_lshl_b32 s{sT+9}, s{sT+9}, 10\ns_add_u32 s{sT+8}, s{sT+8}, s{sT+9}\ns_add_u32 s{sT+8}, s{sT+8}, {FH}\nv_lshlrev_b32 v27, 6, v0")
        else: k(f"s_mov_b64 exec, 0xffff\nbuffer_load_dword v28, v27, s[{sFl}:{sFl+3}], s{sT+8} offen sc1")
    poll(k, f"L_{n}_ph", loads, 1)
    k.srd(f3.sOr3, sOUT, 2048*1024)
    real_stamp(k, 9)
f1.OPT["bulk"] = (pol("bulk", "-") or 1) if kv.get("bulk") != "0" else 0
def pre2(k):
    f3.early_setup(k)
    if int(kv.get('pf3', 2)) == 1: pf3_setup(k)
def pf3_setup(k):
    k(f"""
    s_lshr_b32 s{sT}, s2, 3
    s_lshl_b32 s{sT}, s{sT}, 2
    s_add_u32 s{sT}, s{sT}, s{sW}
    s_and_b32 s{sT+1}, s2, 1
    s_lshl_b32 s{sT+1}, s{sT+1}, 9
    v_lshrrev_b32 v24, 2, v0
    v_and_b32 v29, 3, v0
    v_lshlrev_b32 v29, 7, v29
    v_lshl_add_u32 v24, v24, 10, v29
    s_mul_i32 s{sT+5}, s{sT}, 7168
    s_add_u32 s{sT+5}, s{sT+5}, s{sT+1}
    s_lshl_b32 s{sT+6}, s{sT}, 12
    s_add_u32 s{sT+6}, s{sT+6}, s{sT+1}
    s_bfe_u32 s{sT+7}, s2, 0x20001
    s_lshl_b32 s{sT+7}, s{sT+7}, 19
    s_add_u32 s{sT+7}, s{sT+7}, s{sT+6}
    """)
def pf3(s):
    if s == 3:
        return [[("i", f"s_add_u32 s{sFl}, s{sWS}, {FL_OFF}\ns_addc_u32 s{sFl+1}, s{sWS+1}, 0\ns_mov_b32 s{sFl+2}, {FL_SZ}\ns_mov_b32 s{sFl+3}, 0x20000\nv_mov_b32 v29, s{sNON}\nv_mov_b32 v30, 0\ns_mov_b64 exec, 1"),
                 ("v", f"buffer_store_dword v29, v30, s[{sFl}:{sFl+3}], s{sFD} offen sc1", "fd"), ("i", "s_mov_b64 exec, -1")]]
    if s > 2 or int(kv.get("pf3", 2)) != 1: return []
    base, sz, so, ex = [(sWO, 512*1024, sT+6, 0xffff), (sWOUT, 896*1024, sT+5, 0xfffffff), (sX, 2048*1024, sT+7, 0xffff)][s]
    return [[("i", f"s_mov_b32 s{sR4}, s{base}\ns_mov_b32 s{sR4+1}, s{base+1}\ns_mov_b32 s{sR4+2}, {sz}\ns_mov_b32 s{sR4+3}, 0x20000\ns_mov_b64 exec, {ex}"),
             ("v", f"buffer_load_dword v25, v24, s[{sR4}:{sR4+3}], s{so} offen", "pf3"), ("i", "s_mov_b64 exec, -1")]]
if "nza" in kv: f1.OPT["nza"] = int(kv["nza"])
f1.prologue(k, n)
f2.REST = int(kv.get('rest', 0))
for o in ('nf', 'nf2', 'nfa', 'nfb', 'nf3'):
    if o in kv: f1.OPT[o] = tuple(int(c) for c in kv[o])
def hk(fn):
    def h(k): f1.FILL.q = fn(k)
    return h
for o in ("ne", "ns", "fp", "wl"):
    if o in kv: f3.P3O[o] = int(kv[o])
f1.OPT["pfm"] = 2
for o in ("tp", "tc", "zf", "pfm", "za", "zb", "zc", "es", "pfd", "zt", "nq", "zp", "zq"):
    if o in kv: f1.OPT[o] = int(kv[o])
def pf3A(k):
    k(f"""
    s_lshr_b32 s{sT}, s2, 5
    s_lshl_b32 s{sT}, s{sT}, 1
    s_bfe_u32 s{sT+1}, s2, 0x10003
    s_add_u32 s{sT}, s{sT}, s{sT+1}
    s_lshl_b32 s{sT}, s{sT}, 2
    s_add_u32 s{sT}, s{sT}, s{sW}
    s_and_b32 s{sT+1}, s2, 1
    s_lshl_b32 s{sT+1}, s{sT+1}, 9
    v_lshrrev_b32 v146, 2, v0
    v_and_b32 v147, 3, v0
    v_lshlrev_b32 v147, 7, v147
    v_lshl_add_u32 v146, v146, 10, v147
    s_mul_i32 s{sT+5}, s{sT}, 14336
    s_add_u32 s{sT+5}, s{sT+5}, s{sT+1}
    s_lshl_b32 s{sT+6}, s{sT}, 13
    s_add_u32 s{sT+6}, s{sT+6}, s{sT+1}
    s_bfe_u32 s{sT+7}, s2, 0x20001
    s_lshl_b32 s{sT+7}, s{sT+7}, 19
    s_add_u32 s{sT+7}, s{sT+7}, s{sT+6}
    """)
    k.srd(sR4, sWOUT, 896*1024)
    k(f"s_mov_b32 exec_hi, 0xffffff\nbuffer_load_dword v28, v146, s[{sR4}:{sR4+3}], s{sT+5} offen")
    k.srd(sR4, sWO, 512*1024)
    k(f"s_mov_b32 exec_hi, 0\nbuffer_load_dword v28, v146, s[{sR4}:{sR4+3}], s{sT+6} offen")
    k.srd(sR4, sX, 2048*1024)
    k(f"buffer_load_dword v28, v146, s[{sR4}:{sR4+3}], s{sT+7} offen\ns_mov_b64 exec, -1")
    return 3
TWO = bool(f1.OPT.get("two"))
def p2(NJ, t, two):
    k(f"L_{n}_p2{t}:")
    PH["p"] = 2
    k("s_waitcnt lgkmcnt(0)\ns_barrier")
    k.vm.q = ["A4", "A5", "A6", "A7"]; k.lg.q = []
    rest = [f2.gA(sl, m) for sl in range(8 - NREST, 8) for m in range(8)] if two and not NOS else []
    f2.gen_p2(k, f"{n}{t}", NJ, wait_z2, f3.tail("sc1"), (mid_load, mid_check, pf3), pre2, rest, staged=not (two and NOS))
    done2(k)
    if t == "B": k(f"s_branch L_{n}_p3")
    PH["p"] = 1
NOS = "nos" in args
f1.OPT["pf3"] = int(kv.get("pf3", 2)); f1.OPT["s2"] = 1; f1.OPT["pfa"] = 1
f2.NJA = int(kv.get("nja", 6))
NREST = int(kv.get("nrest", 4)); f2.NREST = NREST
g1.gen_p1(k, n, after1, dict(pf3A=pf3A, stageB=hk(f2.nostage_B if NOS else f2.stage_groups_B), stageB2=hk(f2.nostage_B2 if NOS else f2.stage_groups_B2), z2flag=z2flag))
k(f"L_{n}_p3:")
k.vm.q = ["A3", "hs"]; k.lg.q = []
PH["p"] = 3
f3.gen_p3(k, n, flag2, wait_h, st_pol=pol("st3", "sc1"), h_pol=pol("h3", "sc1"))
K.stamp = (lambda self, i: None) if P1D else _rs
k.stamp_end(0, sWS, sW, 7)
k(f"L_{n}_end:\ns_endpgm")
txt = assemble([(k, 512, 256, f1.LDSF)]).replace(f"; @launch kernel={NAME} grid", "; @launch grid")
open(sys.argv[1], "w").write(txt)
check(sys.argv[1], NAME)
```

```python
from asmlib import *
from layout import *
from f1 import pk, P, vL16
NREST = 4
NJA = 8
T14, T15 = 8, 16
WREG = 33792
LDS2 = 4*WREG
RING = 1024
sAr, sZ2, sZ1, sA3, sBs = sR0, sR1, sR2, sR3, sR4
sRB2, sCB, sReg, sBo = 81, 82, 73, 11
sAo = [83, 27, 58, 72]
sLand = 101
sU = sT + 6
vAd = [23, 31]; vB1 = 6; vAr = [252, 253, 254, 255]; vRW = 12; vRR = [13, 14, 15]; BS = 18; vZ = 19
Z1 = 18
ACC = 32
RAW = 160
Z1 = 176
T = 192
BR = 256
AS = 256 + 112
def ASr(s): return 256 + 160 + 16*s if s < 6 else 256 + 128 + 16*(s - 6)

def setup_v(k):
    k(f"""
    v_and_b32 v3, 7, v0
    v_xor_b32 v3, v3, v1
    v_lshlrev_b32 v3, 4, v3
    v_lshrrev_b32 v7, 3, v0
    v_lshl_add_u32 v{vAd[0]}, v7, 12, v3
    v_xor_b32 v{vAd[1]}, 64, v{vAd[0]}
    v_add_u32 v{vAd[1]}, 0x8000, v{vAd[1]}
    """)
def ids(k, sRB2=sRB2, sCB=sCB):
    k(f"""
    s_and_b32 s{sU}, s2, 7
    s_lshr_b32 s{sU+1}, s2, 3
    s_lshr_b32 s{sRB2}, s{sU}, 1
    s_lshl_b32 s{sRB2}, s{sRB2}, 3
    s_lshr_b32 s{sU+2}, s{sU+1}, 2
    s_add_u32 s{sRB2}, s{sRB2}, s{sU+2}
    s_and_b32 s{sCB}, s{sU}, 1
    s_lshl_b32 s{sCB}, s{sCB}, 2
    s_and_b32 s{sU+2}, s{sU+1}, 3
    s_add_u32 s{sCB}, s{sCB}, s{sU+2}
    """)
def setup(k):
    sRB2 = sT + 4
    ids(k, sT + 4, sT + 5)
    for u in range(4):
        k(f"""
        s_xor_b32 s{sU}, s{sW}, {u}
        s_lshl_b32 s{sU+1}, s{sRB2}, 2
        s_add_u32 s{sU}, s{sU}, s{sU+1}
        s_lshl_b32 s{sU}, s{sU}, 16
        s_lshl_b32 s{sU+1}, s{sW}, 10
        s_add_u32 s{sAo[u]}, s{sU}, s{sU+1}
        """)

def gA(sl, m, a_pol="", sAr=sAr):
    return [("i", f"s_add_u32 m0, s{sReg}, {RING + (sl%4)*8192 + m*1024 - 128*sl}"), ("i", "s_nop 0"),
            ("v", f"buffer_load_dwordx4 v{vAd[m&1]}, s[{sAr}:{sAr+3}], s{sAo[m>>1]} offen offset:{128*sl} {a_pol} lds", f"A{sl}")]
def R(s, dst=None):
    d = RAW + (s&1)*16 if dst is None else dst
    return [("d", f"ds_read_b64 {vr(d + u*4 + 2*j2, 2)}, v{vAr[2*(s&1) + j2]} offset:{RING + ((s>>1)%4)*8192 + u*2048}", f"R{s}") for u in range(4) for j2 in range(2)]
def read_bases(k, sReg=sReg):
    k(f"""
    v_xor_b32 v3, v2, v1
    v_lshrrev_b32 v3, 1, v3                 ; (i>>1) ^ (g>>1)
    v_lshlrev_b32 v3, 4, v3
    v_lshl_add_u32 v3, v2, 7, v3
    v_and_b32 v7, 1, v1
    v_lshl_add_u32 v3, v7, 3, v3
    v_add_u32 v{vAr[0]}, s{sReg}, v3
    v_xor_b32 v{vAr[1]}, 32, v{vAr[0]}
    v_xor_b32 v{vAr[2]}, 64, v{vAr[0]}
    v_xor_b32 v{vAr[3]}, 96, v{vAr[0]}
    """)
def early(k):
    setup(k)
    k.srd(sAr, sWSP, 2048*4096)
def land_groups(sSt, sXl, sA):
    G = [[f"s_add_u32 m0, s{sA}, {m*1024}", f"buffer_load_dwordx4 v{vAd[m&1]}, s[{sAr}:{sAr+3}], s{sAo[m>>1]} offen lds"] + ([f"s_add_u32 s{sAo[m>>1]}, s{sAo[m>>1]}, 128"] if m & 1 else []) for m in range(8)]
    G[0] = [f"s_lshl_b32 s{sA}, s{sXl}, 1", f"s_add_u32 s{sA}, s{sA}, s{sSt}"] + G[0]
    return G
def stage_groups(k, STG):
    k(f"s_lshl_b32 s{sLand}, s{sW}, 13\ns_mul_i32 s{sReg}, s{sW}, {WREG}")
    read_bases(k, sLand)
    for u in range(4): k(f"s_sub_u32 s{sAo[u]}, s{sAo[u]}, 384")
    adv = lambda d: [("i", f"v_add_u32 v{r}, {d}, v{r}") for r in vAr]
    def rdl(sl, off):
        L = [("d", f"ds_read_b64 {vr(ASr(2*sl + sp) + u*4 + 2*j2, 2)}, v{vAr[2*sp + j2]} offset:{off + u*2048}", f"L{sl}") for sp in range(2) for u in range(4) for j2 in range(2)]
        return [[("w", f"E{sl}", None)] + L[:8], L[8:]]
    r1, r2, r0 = rdl(1, 0), rdl(2, STG), rdl(0, STG)
    pre = [adv(STG) + r0[0], r0[1] + adv(-STG), r1[0], r1[1], r2[0], r2[1] + [("i", f"s_sub_u32 s{sLand}, s{sReg}, s{sLand}")] + [("i", f"v_add_u32 v{r}, s{sLand}, v{r}") for r in vAr]]
    L3 = R(6, ASr(6)) + R(7, ASr(7))
    g7 = [gA(7, m) for m in range(8)]; g7[0] = [("w", None, "R7")] + g7[0]
    post = ([gA(3, m) for m in range(8)] + [gA(4, m) for m in range(8)] + [gA(5, m) for m in range(4)] + [[("w", "A3", None)] + L3[:8], L3[8:]]
            + [gA(5, m) for m in range(4, 8)] + [gA(6, m) for m in range(8)] + g7)
    return pre, post

def stage_late(k):
    setup(k)
    k(f"s_mul_i32 s{sReg}, s{sW}, {WREG}")
    read_bases(k)
    k.srd(sAr, sWSP, 2048*4096)
    G = [gA(sl, m) for sl in range(4) for m in range(8)]
    def rd(sl):
        L = R(2*sl, ASr(2*sl)) + R(2*sl + 1, ASr(2*sl + 1))
        return [[("w", f"A{sl}", None)] + L[:8], L[8:]]
    def dm(sl):
        g = [gA(sl, m) for m in range(8)]
        g[0] = [("w", None, f"R{2*(sl-4)+1}")] + g[0]
        return g
    return G + rd(0) + rd(1) + dm(4) + rd(2) + dm(5) + rd(3) + dm(6) + dm(7)
def stage_groups_B(k):
    setup(k)
    k(f"s_mul_i32 s{sLand}, s{sW}, 14336\ns_add_u32 s{sLand}, s{sLand}, {98304 + 1024}\ns_mul_i32 s{sReg}, s{sW}, {WREG}")
    read_bases(k, sLand)
    k.srd(sR2, sWSP, 2048*4096)
    def dm(h):
        sl, hf, buf = h >> 1, h & 1, h % 3
        G = []
        for m in range(4*hf, 4*hf + 4):
            G.append([("i", f"s_add_u32 m0, s{sLand}, {buf*4096 + (m&3)*1024 - 128*sl}"), ("i", "s_nop 0"),
                      ("v", f"buffer_load_dwordx4 v{vAd[m&1]}, s[{sR2}:{sR2+3}], s{sAo[m>>1]} offen offset:{128*sl} lds", f"H{h}")])
        if h >= 3: G[0] = [("w", None, f"L{h-3}")] + G[0]
        return G
    def rd(h):
        sl, hf, buf = h >> 1, h & 1, h % 3
        return [("w", f"H{h}", None)] + [("d", f"ds_read_b64 {vr(ASr(2*sl + sp) + (2*hf + u)*4 + 2*j2, 2)}, v{vAr[2*sp + j2]} offset:{buf*4096 + u*2048}", f"L{h}")
                                         for sp in range(2) for u in range(2) for j2 in range(2)]
    G = dm(0) + dm(1) + dm(2)[:2] + [rd(0)] + dm(2)[2:]
    for h in range(1, 8):
        d = dm(h + 2) if h + 2 < 8 else []
        G += d[:2] + [rd(h)] + d[2:]
    G[-1] = G[-1] + [("i", f"s_sub_u32 s{sLand}, s{sReg}, s{sLand}")] + [("i", f"v_add_u32 v{r}, s{sLand}, v{r}") for r in vAr]
    return G
def nostage_B(k):
    setup(k)
    k(f"s_mul_i32 s{sReg}, s{sW}, {WREG}")
    read_bases(k)
    return []
def nostage_B2(k):
    k.srd(sAr, sWSP, 2048*4096)
    return [gA(sl, m) for sl in range(4) for m in range(8)]
def stage_groups_B2(k):
    k.srd(sAr, sWSP, 2048*4096)
    return [gA(sl, m) for sl in range(4, 8 - NREST) for m in range(8)]

sFU = 74
def gen_p2(k, name, NJ, wait_z2, tail, mid, pre, rest, DB=4, staged=True):
    NS = 16
    RAWv, Z1, ZU = RAW, 192, 208
    vB = [vL16, vB1]
    ids(k)
    k(f"""
    v_add_u32 v{vB1}, 4096, v{vL16}
    s_and_b32 s{sT}, s{sCB}, 3
    s_mul_i32 s{sFU}, s{sT}, {NJA}
    s_cmp_eq_u32 s{sT}, 3
    s_cselect_b32 s{sFU}, {2*NJA + 14 - NJA}, s{sFU}
    s_lshr_b32 s{sT}, s{sCB}, 2
    s_mul_i32 s{sT}, s{sT}, 28
    s_add_u32 s{sFU}, s{sFU}, s{sT}
    s_mul_i32 s{sBo}, s{sW}, {16*56}
    s_add_u32 s{sBo}, s{sBo}, s{sFU}
    s_lshl_b32 s{sBo}, s{sBo}, 10
    """)
    k.srd(sZ2, sWS, Z2F_SZ)
    def gB(s, j):
        g = [("i", f"s_add_u32 s{sT}, s{sBo}, {s*57344}")] if j == 0 else []
        return g + [("v", f"buffer_load_dwordx4 {vr(BR + (s%DB)*4*NJ + j*4)}, v{vB[j//4]}, s[{sZ2}:{sZ2+3}], s{sT} offen offset:{(j%4)*1024} sc1", f"B{s}")]
    def emit(item):
        if item[0] == "i": k(item[1])
        elif item[0] == "v": k.vmem(item[1], item[2])
        elif item[0] == "d": k.ds(item[1], item[2])
        elif item[0] == "w": k.wait(vm=item[1], lg=item[2])
    def em(gs):
        for g in gs:
            for it in g: emit(it)
    k(f"""
    s_add_u32 s{sZ1}, s{sWS}, {Z1L_OFF}
    s_addc_u32 s{sZ1+1}, s{sWS+1}, 0
    s_mov_b32 s{sZ1+2}, {Z1L_SZ}
    s_mov_b32 s{sZ1+3}, 0x20000
    s_add_u32 s{sA3}, s{sWS}, {A3_OFF}
    s_addc_u32 s{sA3+1}, s{sWS+1}, 0
    s_mov_b32 s{sA3+2}, {A3_SZ}
    s_mov_b32 s{sA3+3}, 0x20000
    v_add_u32 v{vRW}, s{sReg}, v{vL16}
    """)
    k.srd(sBs, sBSP, 4096)
    for u in range(1, 4):
        k(f"""
        s_xor_b32 s{sT+1}, s{sW}, {u}
        s_mul_i32 s{sT+1}, s{sT+1}, {WREG}
        s_add_u32 s{sT+1}, s{sT+1}, {(u-1)*8192}
        v_add_u32 v{vRR[u-1]}, s{sT+1}, v{vL16}
        """)
    k(f"""
    s_lshl_b32 s{sT+4}, s{sRB2}, 1
    s_lshr_b32 s{sT+1}, s{sW}, 1
    s_add_u32 s{sT+4}, s{sT+4}, s{sT+1}
    s_mul_i32 s{sT+4}, s{sT+4}, 56
    s_add_u32 s{sT+4}, s{sT+4}, s{sFU}
    s_lshl_b32 s{sT+4}, s{sT+4}, 10
    s_and_b32 s{sT+1}, s{sW}, 1
    s_lshl_b32 s{sT+1}, s{sT+1}, 3
    s_add_u32 s{sT+2}, s{sT+4}, s{sT+1}
    s_lshl_b32 s{sT+3}, s{sRB2}, 2
    s_add_u32 s{sT+3}, s{sT+3}, s{sW}
    s_mul_i32 s{sT+4}, s{sT+3}, 44
    s_lshl_b32 s{sT+3}, s{sT+3}, 5
    s_lshr_b32 s{sT+1}, s{sFU}, 1
    s_add_u32 s{sT+4}, s{sT+4}, s{sT+1}
    s_add_u32 s{sT+4}, s{sT+4}, 16
    s_lshl_b32 s{sT+4}, s{sT+4}, 10
    v_lshlrev_b32 v{vZ}, 1, v2
    """)
    k.vmem(f"buffer_load_ushort v{BS}, v{vZ}, s[{sBs}:{sBs+3}], s{sT+3} offen", "bs")
    pre(k)
    wait_z2(k, name)
    em([gB(s, j) for s in range(DB - 1) for j in range(NJ)])
    Aop = lambda s: ASr(s) if (s < 8 and staged) else RAWv + (s&1)*16
    if not staged:
        for it in R(0): emit(it)
    NM = 4*NJ
    wr = lambda u, j: ("d", f"ds_write_b128 v{vRW}, {vr(ACC + (u*NJ+j)*4)} offset:{(u-1)*8192 + j*1024}", "rw")
    TG = []
    for s in range(NS):
        order = [(u, j) for j in range(NJ) for u in range(4)] if s < NS - 1 else [(u, j) for u in (3, 2, 1, 0) for j in range(NJ)]
        MF = [f"v_mfma_f32_16x16x32_bf16 {vr(ACC + (u*NJ+j)*4)}, {vr(BR + (s%DB)*NM + j*4)}, {vr(Aop(s) + u*4)}, {vr(ACC + (u*NJ+j)*4) if s else '0'}" for u, j in order]
        slots = [[] for _ in range(NM + 1)]
        slots[0].append(("w", f"B{s}", f"R{s}"))
        if (8 if staged else 1) <= s + 1 < NS:
            slots[1].append(("w", f"A{(s+1)>>1}", None))
            for u, it in enumerate(R(s + 1)): slots[1 + u].append(it)
        G = [gB(s + DB - 1, j) for j in range(NJ)] if s + DB - 1 < NS else []
        if not staged and 1 <= s <= 8: G = interleave(G, [gA(((s+1)>>1) + 3, m) for m in range(4*((s+1)&1), 4*((s+1)&1) + 4)])
        if s < 8 and rest: G = interleave(G, rest[s*len(rest)//8:(s + 1)*len(rest)//8])
        G = G + mid[2](s)
        if s == 8: G = G + [mid[0](k)]
        if s == 13:
            slots[0] = [("w", "fz1", None)] + slots[0] + mid[1](k, name)
            G += [[("v", f"buffer_load_dwordx2 {vr(Z1 + 2*j, 2)}, v{vB[j//4]}, s[{sZ1}:{sZ1+3}], s{sT+2} offen offset:{(j%4)*1024} sc1", "z1")] for j in range(NJ)]
        if s == 14: TG = tail(k); G += TG[:T14]
        if s == 15:
            G += TG[T14:T15]
            W_ = [wr(u, j) for u in (3, 2, 1) for j in range(NJ)]
            for n in range(NJ + 3, NM + 1): slots[n].append(W_.pop(0))
        for n, g in enumerate(G): slots[1 + n*(NM - 1)//max(1, len(G))] += g
        for i, m in enumerate(MF):
            for it in slots[i]: emit(it)
            k(m)
        for it in slots[NM]: emit(it)
    k.stamp(3)
    TG = TG[T15:]
    k.wait(vm="z1")
    un = [f"v_lshlrev_b32 v{ZU + j*4 + 2*d}, 16, v{Z1 + 2*j + d}\nv_and_b32 v{ZU + j*4 + 2*d + 1}, 0xffff0000, v{Z1 + 2*j + d}" for j in range(NJ) for d in range(2)]
    for it in W_:
        emit(it)
        if TG: em([TG.pop(0)])
    for l in un: k(l)
    k(f"v_lshlrev_b32 v{BS}, 16, v{BS}")
    for j in range(NJ):
        for d in range(2): k(pk("add", ACC + j*4 + 2*d, [(ACC + j*4 + 2*d, 0), (BS, 1)]))
    k("s_waitcnt lgkmcnt(0)\ns_barrier"); k.lg.q = []
    k.stamp(4)
    Pp = ACC + NM
    for j in range(NJ):
        for u in range(3):
            k.ds(f"ds_read_b128 {vr(Pp + j*12 + u*4)}, v{vRR[u]} offset:{j*1024}", f"p{j}")
    H = Z1
    for j in range(NJ):
        nn = -(-len(TG)//(NJ - 1 - j)) if j < NJ - 1 else 0
        em(TG[:nn]); TG = TG[nn:]
        k.wait(lg=f"p{j}")
        p = Pp + j*12; g = ACC + j*4
        for d in range(2): k(pk("add", g+2*d, [(g+2*d, 0), (p+2*d, 0)]))
        for d in range(2): k(pk("add", p+4+2*d, [(p+4+2*d, 0), (p+8+2*d, 0)]))
        for d in range(2): k(pk("add", g+2*d, [(g+2*d, 0), (p+4+2*d, 0)]))
        for d in range(2): k(pk("mul", g+2*d, [(g+2*d, 0), (ZU+j*4+2*d, 0)]))
        for d in range(2): k(f"v_cvt_pk_bf16_f32 v{H+2*j+d}, v{g+2*d}, v{g+2*d+1}")
        if j & 1 and NJ != 7: k.vmem(f"buffer_store_dwordx4 {vr(H+2*j-2)}, v{vL16}, s[{sA3}:{sA3+3}], s{sT+4} offen offset:{(j>>1)*1024} sc1", "hs")
    if NJ == 7:
        st = lambda r, n, o: k(f"buffer_store_dwordx{n} {vr(r, n)}, v{vL16}, s[{sA3}:{sA3+3}], s{sT+4} offen offset:{o} sc1")
        k(f"s_bitcmp1_b32 s{sFU}, 0\ns_cbranch_scc1 L_{name}_odd")
        for q in range(3): st(H + 4*q, 4, q*1024)
        st(H + 12, 2, 3072)
        k(f"s_branch L_{name}_hd\nL_{name}_odd:")
        st(H, 2, 8)
        for q in range(3): st(H + 2 + 4*q, 4, (q + 1)*1024)
        k(f"L_{name}_hd:")
```

```python
from asmlib import *
from layout import *
import f1, f2, h3
from f1 import (f2h, pk, P, bf16_round, gelu_pk, prologue, epi_attn, FILL, OPT, XW, STG, TOP, TA, TB, TC, PS, OX, NT, LDSF, GC1, GC2,
                sXr, sWr, sOr, sPr, sXs, sRB, sCQ, sSUB, sH, sE, sXo, sWo, sHo, sXl, sWl, sSt, sDelta, sI, sA, sB, sSTG,
                vXe, vXo, vWd, vH, vL16, vNon, vZero, ONES, ACC, T)
SB = 32768
STGA = XW + 8*4096
TOPB = 155648
vPF = 3
def emit(k, it):
    if isinstance(it, str): k(it)
    elif it[0] == "i": k(it[1])
    elif it[0] == "v": k.vmem(it[1], it[2])
    elif it[0] == "d": k.ds(it[1], it[2])
    else: k.wait(vm=it[1], lg=it[2])
def weave(k, M, slots):
    for i, m in enumerate(M):
        for it in slots[i]: emit(k, it)
        k(m)
    for it in slots[len(M)]: emit(k, it)
def place_groups(slots, G, nM, first=1):
    assert len(G) <= nM - first - 1
    for n, g in enumerate(G):
        pos = first + n*(nM - first - 1)//len(G)
        txt = [x if isinstance(x, str) else x[1] for x in g]
        c = [i for i, l in enumerate(txt) if " m0," in l]
        cut = c[-1] + 1 if c else 0
        slots[pos] += g[:cut]; slots[pos + 1] = g[cut:] + slots[pos + 1]
def mf(d, a, b): return f"v_mfma_f32_16x16x32_bf16 {vr(d)}, {vr(a)}, {vr(b)}, {vr(d)}"
vPX, vPW, sPX, sPW = 18, 19, 58, 72
def pf_xw(pitch, lanesW):
    if OPT.get('bk'): return []
    if OPT.get('noxw'): return [[f'buffer_load_dword v28, v{vZero}, s[{sXr}:{sXr+3}], 0 offen']]*2
    return [["s_mov_b64 exec, 0xff", f"buffer_load_dword v28, v{vPX}, s[{sXr}:{sXr+3}], s{sPX} offen", "s_mov_b64 exec, -1", f"s_add_u32 s{sPX}, s{sPX}, 128"],
            [f"s_mov_b64 exec, {(1 << lanesW) - 1}", f"buffer_load_dword v28, v{vPW}, s[{sWr}:{sWr+3}], s{sPW} offen", "s_mov_b64 exec, -1", f"s_add_u32 s{sPW}, s{sPW}, {64*pitch}"]]
def bulk(k, name, lab, isA, pitch, wadv, g2=0):
    k(f"""
    s_lshr_b32 s{sT}, s2, 3
    s_lshl_b32 s{sT+1}, s{sT}, 2
    s_add_u32 s{sT+6}, s{sT+1}, s{sW}
    v_lshlrev_b32 v{vPX}, 10, v0
    s_and_b32 s{sT+1}, s{sT+6}, 15
    s_lshl_b32 s{sT+1}, s{sT+1}, 13
    s_lshl_b32 s{sPX}, s{sRB}, 17
    s_add_u32 s{sPX}, s{sPX}, s{sT+1}
    s_add_u32 s{sPX}, s{sPX}, {128*wadv}
    v_mul_u32_u24 v{T+1}, 86, v0
    v_lshrrev_b32 v{T+1}, 8, v{T+1}            ; l/3
    v_mul_u32_u24 v{T+2}, 3, v{T+1}
    v_sub_u32 v{T+2}, v0, v{T+2}               ; l%3
    v_and_b32 v{T+3}, 1, v{T+1}
    v_mul_u32_u24 v{T+3}, {pitch}, v{T+3}
    s_and_b32 s{sT+1}, s{sRB}, 7
    s_lshl_b32 s{sT+1}, s{sT+1}, 3
    s_mul_i32 s{sT+2}, s{sW}, -14
    s_add_u32 s{sT+1}, s{sT+1}, s{sT+2}        ; 8*(rb&7) + 2w - 16w
    s_mul_i32 s{sT+1}, s{sT+1}, {pitch}
    """)
    if OPT.get("bk"):
        k(f"""
        v_lshlrev_b32 v{T}, 7, v0
        s_sub_u32 s{sPX}, s{sPX}, {128*wadv}
        s_mov_b32 exec_lo, 0xf8f8f8f8
        s_mov_b32 exec_hi, 0xf8f8f8f8
        buffer_load_dword v28, v{T}, s[{sXr}:{sXr+3}], s{sPX} offen
        s_mov_b64 exec, -1
        s_and_b32 s{sT+1}, s{sRB}, 7
        """)
        if isA:
            k(f"""
            v_mul_u32_u24 v{T+1}, {pitch}, v{T+1}
            v_lshl_add_u32 v{T+1}, v{T+2}, 10, v{T+1}
            s_mul_i32 s{sT+1}, s{sT+1}, 40
            s_mul_i32 s{sT+2}, s{sW}, -6
            s_add_u32 s{sT+1}, s{sT+1}, s{sT+2}
            s_mul_i32 s{sT+1}, s{sT+1}, {pitch}
            s_add_u32 s{sT+2}, s{sT+1}, s{sWo[0]}
            s_mov_b64 exec, 0x3fffffff
            buffer_load_dword v28, v{T+1}, s[{sWr}:{sWr+3}], s{sT+2} offen
            s_mov_b64 exec, -1
            """)
        else:
            k(f"""
            v_lshrrev_b32 v{T+1}, 2, v0
            v_mul_u32_u24 v{T+1}, {pitch}, v{T+1}
            v_and_b32 v{T+2}, 3, v0
            v_lshlrev_b32 v{T+2}, 6, v{T+2}
            v_add_u32 v{T+1}, v{T+1}, v{T+2}
            s_mul_i32 s{sT+2}, s{sT+1}, {64*pitch}
            s_add_u32 s{sT+2}, s{sT+2}, s{sWo[1]}
            s_mul_i32 s{sT+3}, s{sT+1}, {32*pitch}
            s_mul_i32 s{sT+4}, s{sW}, {-8*pitch}
            s_add_u32 s{sT+3}, s{sT+3}, s{sT+4}
            s_add_u32 s{sT+3}, s{sT+3}, s{sWo[0]}
            s_mov_b32 exec_lo, 0xdddddddd
            s_mov_b32 exec_hi, 0
            buffer_load_dword v28, v{T+1}, s[{sWr}:{sWr+3}], s{sT+3} offen
            s_mov_b32 exec_hi, 0xdddddddd
            buffer_load_dword v28, v{T+1}, s[{sWr}:{sWr+3}], s{sT+2} offen
            s_mov_b64 exec, -1
            """)
    elif isA:
        k(f"v_lshl_add_u32 v{vPW}, v{T+2}, 10, v{T+3}\ns_add_u32 s{sPW}, s{sT+1}, s{sWo[0]}")
    else:
        k(f"""
        v_lshlrev_b32 v{T+2}, 7, v{T+2}
        v_min_u32 v{T+2}, 192, v{T+2}
        v_add_u32 v{T+3}, v{T+3}, v{T+2}
        s_add_u32 s{sT+2}, s{sT+1}, s{sWo[0]}
        s_add_u32 s{sT+3}, s{sT+1}, s{sWo[1]}
        s_sub_u32 s{sT+3}, s{sT+3}, {g2}
        v_mov_b32 v{T+2}, s{sT+3}
        v_mov_b32 v{T+4}, s{sT+2}
        v_cmp_gt_u32 vcc, 6, v0
        v_cndmask_b32 v{T+2}, v{T+2}, v{T+4}, vcc
        v_add_u32 v{vPW}, v{T+3}, v{T+2}
        s_mov_b32 s{sPW}, 0
        """)
    for r in range(0 if OPT.get("bk") else 2):
        for g in pf_xw(pitch, 6 if isA else 12):
            for l in g: k(l)
    k.srd(sPr, sWSP, 2048*4096)
    k(f"""
    v_lshrrev_b32 v{vPF}, 2, v0
    v_and_b32 v{T+1}, 3, v0
    v_lshlrev_b32 v{T+1}, 10, v{T+1}
    v_lshl_add_u32 v{vPF}, v{vPF}, 12, v{T+1}
    s_bfe_u32 s59, s2, 0x20001
    s_lshl_b32 s59, s59, 21
    """)
    if OPT.get("two") or OPT.get("pfa"):
        k(f"s_lshr_b32 s{sT}, s2, 5\ns_lshl_b32 s{sT}, s{sT}, 1\ns_bfe_u32 s{sT+1}, s2, 0x10003\ns_add_u32 s{sT}, s{sT}, s{sT+1}\ns_lshl_b32 s{sT}, s{sT}, 2\ns_add_u32 s{sT+6}, s{sT}, s{sW}\ns_lshl_b32 s{sT+6}, s{sT+6}, 15")
    else: k(f"s_lshl_b32 s{sT+6}, s{sT+6}, 14")
    k(f"s_add_u32 s59, s59, s{sT+6}")
    if OPT["pf3"] == 7:
        k(f"s_lshl_b32 s{sT}, s2, 2\ns_add_u32 s{sT}, s{sT}, s{sW}\ns_lshl_b32 s{sT+1}, s{sT}, 9\ns_mul_i32 s{sT+2}, s{sT}, 896\nv_lshlrev_b32 v{T}, 7, v0")
        k.srd(sR4, sWO, 512*1024)
        k(f"s_mov_b64 exec, 15\nbuffer_load_dword v28, v{T}, s[{sR4}:{sR4+3}], s{sT+1} offen")
        k.srd(sR4, sWOUT, 896*1024)
        k(f"s_mov_b64 exec, 127\nbuffer_load_dword v28, v{T}, s[{sR4}:{sR4+3}], s{sT+2} offen\ns_mov_b64 exec, -1")
        return 6
    return (2 if isA else 3) if OPT.get('bk') else 4

def lane_parts(k):
    k(f"""
    v_lshrrev_b32 v{T}, 1, v2
    v_xor_b32 v{T}, v{T}, v1
    v_lshlrev_b32 v{T}, 4, v{T}
    v_lshl_add_u32 v{T}, v2, 7, v{T}        ; i*128 + (g^(i>>1))*16
    v_and_b32 v{T+2}, 1, v1
    v_lshlrev_b32 v{T+2}, 1, v{T+2}
    v_bfe_u32 v{T+1}, v0, 1, 1
    v_xor_b32 v{T+2}, v{T+2}, v{T+1}
    v_lshlrev_b32 v{T+2}, 4, v{T+2}
    v_bfe_u32 v{T+1}, v0, 2, 2
    v_lshl_add_u32 v{T+1}, v1, 3, v{T+1}
    v_lshl_add_u32 v{T+2}, v{T+1}, 6, v{T+2}
    v_and_b32 v{T+1}, 1, v0
    v_lshl_add_u32 v{T+2}, v{T+1}, 3, v{T+2}
    v_mov_b32 v{vZero}, 0
    """)
    kk = K("t"); f2.setup_v(kk)
    for l in kk.L: k(l.replace("v3,", f"v{T+4},").replace("v3 ", f"v{T+4} ").replace("v7,", f"v{T+5},") .replace(", v3", f", v{T+4}").replace(f"v{T+4}1", "v31"))

def row_tables(k, ns, tG, tS, pre, writes, TOP=TOP):
    cI, cE = T, T+1
    X = T + 16
    k(f"""
    v_mov_b32 v{cI}, {f2h(1/512)}
    v_mov_b32 v{cE}, {f2h(1e-5)}
    v_and_b32 v{T+2}, 1, v0
    v_cmp_eq_u32 s[{sM}:{sM+1}], 1, v{T+2}
    v_and_b32 v{T+2}, 2, v0
    v_cmp_eq_u32 s[{sM+2}:{sM+3}], 2, v{T+2}
    v_lshrrev_b32 v{T+2}, 2, v2
    v_cmp_eq_u32 s[{sM+4}:{sM+5}], v1, v{T+2}
    v_lshlrev_b32 v{T+3}, 2, v2
    v_add_u32 v{T+3}, {TOP}, v{T+3}
    """)
    A_ = range(ns)
    FILL(k, 1)
    for a in A_:
        for r in range(4): k(f"v_accvgpr_read_b32 v{X+a*8+r}, {vr(tG(a)+r, 1)}")
        k(f"v_accvgpr_read_b32 v{X+a*8+4}, {vr(tS(a), 1)}")
    for a in A_: k(f"v_cndmask_b32 v{X+a*8}, v{X+a*8}, v{X+a*8+1}, s[{sM}:{sM+1}]\nv_cndmask_b32 v{X+a*8+2}, v{X+a*8+2}, v{X+a*8+3}, s[{sM}:{sM+1}]")
    for a in A_: k(f"v_mul_f32 v{X+a*8+4}, v{X+a*8+4}, v{cI}\nv_cndmask_b32 v{X+a*8}, v{X+a*8}, v{X+a*8+2}, s[{sM+2}:{sM+3}]")
    FILL(k, 1)
    for a in A_: k(f"v_mul_f32 v{X+a*8}, v{X+a*8}, v{cI}")
    for a in A_: k(f"v_fma_f32 v{X+a*8}, -v{X+a*8+4}, v{X+a*8+4}, v{X+a*8}")
    for a in A_: k(f"v_max_f32 v{X+a*8}, 0, v{X+a*8}")
    for a in A_: bf16_round(k, X+a*8, X+a*8)
    FILL(k, 1)
    for a in A_: k(f"v_add_f32 v{X+a*8}, v{X+a*8}, v{cE}")
    for a in A_: bf16_round(k, X+a*8, X+a*8)
    for a in A_: k(f"v_sqrt_f32 v{X+a*8}, v{X+a*8}")
    FILL(k, 1)
    for a in A_: bf16_round(k, X+a*8+4, X+a*8+4)
    for a in A_: bf16_round(k, X+a*8, X+a*8)
    for a in A_: k(f"v_rcp_f32 v{X+a*8}, v{X+a*8}")
    FILL(k, 1)
    k(pre)
    for a in A_: k(f"v_mul_f32 v{X+a*8+4}, -v{X+a*8+4}, v{X+a*8}")
    k(writes)
    k(f"s_mov_b64 exec, s[{sM+4}:{sM+5}]")
    for a in A_:
        ad, o = (T+4, a*64) if a < 2 else (T+3, 0)
        k(f"ds_write_b32 v{ad}, v{X+a*8} offset:{TA + o}\nds_write_b32 v{ad}, v{X+a*8+4} offset:{TB + o}")
    k("s_mov_b64 exec, -1")

def nonce_check(k, lab):
    k(f"""
    v_readfirstlane_b32 s{sNON}, v{vNon}
    s_cmp_lg_u32 s{sNON}, 0
    s_cbranch_scc1 {lab}_non
    s_mov_b32 s{sT+6}, 0
    {lab}_nspin:
    s_sleep 4
    global_load_dword v{vNon}, v{vZero}, s[{sDBG}:{sDBG+1}] sc1
    s_add_u32 s{sT+6}, s{sT+6}, 1
    s_waitcnt vmcnt(0)
    v_readfirstlane_b32 s{sNON}, v{vNon}
    s_cmp_gt_u32 s{sT+6}, 100000
    s_cbranch_scc1 {lab}_non
    s_cmp_eq_u32 s{sNON}, 0
    s_cbranch_scc1 {lab}_nspin
    {lab}_non:
    """)

def gen_p1(k, name, after, hooks):
    k(f"""
    s_and_b32 s{sT}, s2, 7
    s_lshr_b32 s{sT+1}, s2, 3
    s_lshr_b32 s{sRB}, s{sT}, 2
    s_lshl_b32 s{sRB}, s{sRB}, 3
    s_lshr_b32 s{sT+2}, s{sT+1}, 2
    s_add_u32 s{sRB}, s{sRB}, s{sT+2}
    s_and_b32 s{sCQ}, s{sT}, 3
    s_and_b32 s{sSUB}, s{sT+1}, 3
    v_and_b32 v3, 7, v0
    v_xor_b32 v{T}, v3, v1
    v_lshlrev_b32 v{T}, 4, v{T}
    v_lshrrev_b32 v{T+1}, 3, v0
    v_lshl_add_u32 v{vXe}, v{T+1}, 10, v{T}
    v_xor_b32 v{vXo}, 64, v{vXe}
    v_add_u32 v{vXo}, 8192, v{vXo}
    v_lshrrev_b32 v{T}, 5, v0
    v_lshlrev_b32 v{T}, 1, v{T}
    v_and_b32 v{T+2}, 3, v0
    v_xor_b32 v{T}, v{T}, v{T+2}
    v_lshlrev_b32 v{T}, 4, v{T}
    v_lshrrev_b32 v{T+2}, 2, v0             ; l>>2
    s_lshl_b32 s{sXo[0]}, s{sRB}, 2
    s_add_u32 s{sXo[0]}, s{sXo[0]}, s{sW}
    s_lshl_b32 s{sXo[0]}, s{sXo[0]}, 15     ; (128rb+32w)*1024
    s_add_u32 s{sXo[1]}, s{sXo[0]}, 16384
    s_lshl_b32 s{sXl}, s{sW}, 12
    s_mov_b32 s{sSt}, 0
    s_cmp_lt_u32 s{sSUB}, 2
    s_cbranch_scc1 L_{name}_A
    v_mul_u32_u24 v{T+2}, 3584, v{T+2}
    v_add_u32 v{vWd}, v{T+2}, v{T}
    s_mul_i32 s{sT+5}, s{sW}, {16*3584}
    s_mul_i32 s{sT+6}, s{sCQ}, 448
    s_add_u32 s{sT+5}, s{sT+5}, s{sT+6}
    s_and_b32 s{sH}, s{sW}, 1
    s_lshr_b32 s{sE}, s{sW}, 1
    s_mov_b32 s{sSTG}, {SB}
    s_cmp_eq_u32 s{sSUB}, 2
    s_cselect_b32 s{sT+7}, 0, 256
    s_add_u32 s{sWo[0]}, s{sT+5}, s{sT+7}
    s_add_u32 s{sWo[0]}, s{sWo[0]}, 1792
    s_cmp_eq_u32 s{sSUB}, 2
    s_cselect_b32 s{sT+8}, 1, 0
    s_mul_i32 s{sT+7}, s{sT+8}, {256 - (320 if OPT.get('s2') else 0)}
    s_add_u32 s{sT+7}, s{sT+7}, {320 if OPT.get('s2') else 0}
    s_add_u32 s{sWo[1]}, s{sT+5}, s{sT+7}    ; z1 group
    s_waitcnt lgkmcnt(0)
    """)
    k.srd(sXr, sX, 2048*1024); k.srd(sWr, sWIN, 512*3584)
    k(f"s_cmp_eq_u32 s{sSUB}, 3\ns_cbranch_scc1 L_{name}_B34")
    vb = var_B if OPT.get("two") else var_S
    vb(k, name, "B43", after, hooks)
    k(f"L_{name}_B34:")
    vb(k, name, "B34", after, hooks)
    k(f"""
    L_{name}_A:
    v_mul_u32_u24 v14, 3584, v{T+2}
    v_add_u32 v14, v14, v{T}
    v_mul_u32_u24 v{T+2}, 3072, v{T+2}
    v_add_u32 v{vWd}, v{T+2}, v{T}
    s_mov_b32 s{sSTG}, {STGA}
    s_mul_i32 s26, s{sW}, {16*3584}
    s_mul_i32 s{sT+6}, s{sCQ}, 448
    s_add_u32 s26, s26, s{sT+6}
    s_lshl_b32 s{sT+6}, s{sSUB}, 7
    s_add_u32 s26, s26, s{sT+6}
    s_lshl_b32 s{sT+6}, s{sCQ}, 1
    s_add_u32 s{sSUB}, s{sSUB}, s{sT+6}
    s_mul_i32 s{sWo[0]}, s{sW}, {16*3072}
    s_lshl_b32 s{sT+6}, s{sSUB}, 7
    s_add_u32 s{sWo[0]}, s{sWo[0]}, s{sT+6}
    s_lshl_b32 s{sT+6}, s{sW}, 1
    v_add_u32 v{T}, s{sT+6}, v1
    v_xor_b32 v{T}, v{T}, v3
    v_lshlrev_b32 v{T}, 4, v{T}
    v_lshl_add_u32 v{vH}, v{T+1}, 10, v{T}
    s_lshl_b32 s{sHo}, s{sRB}, 7
    s_sub_u32 s{sHo}, s{sHo}, 16
    s_max_i32 s{sHo}, s{sHo}, 0
    s_lshl_b32 s{sT+6}, s{sW}, 2
    s_add_u32 s{sHo}, s{sHo}, s{sT+6}
    s_lshl_b32 s{sHo}, s{sHo}, 10
    s_waitcnt lgkmcnt(0)
    """)
    k.srd(sXr, sX, 2048*1024); k.srd(sWr, sWQ, 512*3072); k.srd(sR2, sWIN, 512*3584)
    var_A(k, name, after, hooks)

def xdma(xbase, tag=None):
    G = []
    for m in range(4):
        ld = f"buffer_load_dwordx4 v{vXo if m & 1 else vXe}, s[{sXr}:{sXr+3}], s{sXo[m>>1]} offen lds"
        g = [f"s_add_u32 m0, s{sA}, {xbase + m*1024}", ("v", ld, tag) if tag else ld]
        if m & 1: g.append(f"s_add_u32 s{sXo[m>>1]}, s{sXo[m>>1]}, 128")
        G.append(g)
    return G
def itstamp(k):
    if OPT.get("it"): k(f"{'s_memtime' if K.diag == 'c' else 's_memrealtime'} s[98:99]\ns_waitcnt lgkmcnt(0)\nv_cmp_eq_u32 vcc, s{sI}, v0\nv_mov_b32 v254, s98\nv_cndmask_b32 v255, v255, v254, vcc")
def itfinish(k):
    if OPT.get("it0"):
        for i in range(7): k(f"v_readlane_b32 s{86+2*i}, v255, {i}\ns_mov_b32 s{87+2*i}, 0")
        k("s_mov_b32 s85, 0")
    elif OPT.get("it"):
        for i in range(8): k(f"v_readlane_b32 s{84+2*i}, v255, {i}\ns_mov_b32 s{85+2*i}, 0")
LOOP_TAIL = f"""
s_add_u32 s{sSt}, s{sSt}, s{sDelta}
s_add_u32 s{sI}, s{sI}, 1
s_cmp_lt_u32 s{sI}, 8
s_waitcnt lgkmcnt(0)
"""

def five(k, hooks, isA):
    k(f"global_load_dword v{vNon}, v{vZero}, s[{sDBG}:{sDBG+1}] sc1")
    f2.early(k)
    return 1
sPF = 59
def pf_sp(gate=False):
    ex = f"s_mov_b64 exec, {'0xffffffff' if OPT.get('two') or OPT.get('pfa') else '0xffff'}"
    D = OPT.get("pfd", 0)
    if gate and D:
        return [[f"s_cmp_lt_u32 s{sI}, {D}", f"s_cselect_b32 s{sT+1}, 0x7fff0000, s{sPF}", f"s_cselect_b32 s{sT+2}, 0, 128", ex,
                 f"buffer_load_dword v28, v{vPF}, s[{sPr}:{sPr+3}], s{sT+1} offen", "s_mov_b64 exec, -1", f"s_add_u32 s{sPF}, s{sPF}, s{sT+2}"]]
    return [[ex, f"buffer_load_dword v28, v{vPF}, s[{sPr}:{sPr+3}], s{sPF} offen", "s_mov_b64 exec, -1", f"s_add_u32 s{sPF}, s{sPF}, 128"]]

def loop1(k, lab, hooks, isA, STG, mfmas, reads, adv, part1, part2, n_lo, n_six, pfs, land=True, extra=None):
    def sig0(G):
        M = mfmas(0); slots = [[] for _ in range(len(M) + 1)]
        for n, l in enumerate(reads(1) + [f"s_cmp_eq_u32 s{sSt}, {2*STG}\ns_cselect_b32 s{sDelta}, {-2*STG}, s{sSTG}"] + adv(0)): slots[min(n + 1, len(M))].append(l)
        if G: place_groups(slots, G, len(M), first=0)
        weave(k, M, slots)
    def sig1(G, pre=None):
        M = mfmas(1); slots = [[] for _ in range(len(M) + 1)]
        for n, l in enumerate(reads(0) + adv(1)): slots[min(n + 1, len(M))].append(l)
        first = 0
        if pre:
            first = len(M) - 2*len(G) if len(M) > 30 else len(M) - len(G) - 3
            for n, l in enumerate(pre): slots[n*first//len(pre)].append(l)
        if G: place_groups(slots, G, len(M), first=first)
        itstamp(k)
        weave(k, M, slots)
        k(LOOP_TAIL)
    k(f".p2align 6\n{lab}_loop:")
    sig0(part2())
    k(f"s_cmp_eq_u32 s{sI}, 5\ns_waitcnt vmcnt({n_lo}) lgkmcnt(0)\ns_barrier\ns_cbranch_scc1 {lab}_five")
    sig1(part1())
    k(f"s_branch {lab}_loop\n{lab}_five:")
    kk = K("t"); five(kk, hooks, isA)
    LG = f2.land_groups(sSt, sXl, sA) if land else []
    if extra:
        k2 = K("t"); G5 = extra(k2)
        sig1([[x[1] for x in g if x[1] != "s_nop 0"] for g in G5], kk.L[:1] + k2.L)
    else: sig1(LG + pfs, kk.L if land else kk.L[:1])
    k(f"{lab}_tail:")
    sig0([])
    k(f"s_waitcnt vmcnt({n_six}) lgkmcnt(0)\ns_barrier")
    sig1(LG + pfs)
    k(f"s_cbranch_scc1 {lab}_tail")
    itfinish(k)

def var_A(k, name, after, hooks):
    lab = f"L_{name}_A"; pitch = 3072
    FR, XA = 256, 256 + 120
    STG = STGA
    vWz, sWz, sZr = 14, 26, sR2
    Z = T + 76
    k(f"s_lshl_b32 s{sWl}, s{sW}, 10")
    if OPT.get("it0"): k(("s_memtime" if K.diag == "c" else "s_memrealtime") + " s[84:85]\ns_waitcnt lgkmcnt(0)")
    k.stamp(0)
    def part1():
        W = []
        for q in range(6):
            imm = 64*(q & 1) + 1024*(q >> 1)
            g = [f"s_add_u32 m0, s{sB}, {XW + q*4096 - imm}", f"buffer_load_dwordx4 v{vWd}, s[{sWr}:{sWr+3}], s{sWo[0]} offen offset:{imm} lds"]
            if q == 5: g.append(f"s_add_u32 s{sWo[0]}, s{sWo[0]}, {64*pitch}")
            W.append(g)
        W[0] = [f"s_add_u32 s{sA}, s{sSt}, s{sXl}", f"s_add_u32 s{sB}, s{sSt}, s{sWl}"] + W[0]
        return W
    def part2():
        W = [[f"s_add_u32 m0, s{sB}, {XW + (6 + q)*4096 - 64*q}", f"buffer_load_dwordx4 v{vWz}, s[{sZr}:{sZr+3}], s{sWz} offen offset:{64*q} lds"]
             + ([f"s_add_u32 s{sWz}, s{sWz}, {64*3584}"] if q else []) for q in range(2)]
        W.append([f"s_lshr_b32 s{sT}, s{sWl}, 1", f"s_sub_u32 m0, s{sB}, s{sT}", "s_mov_b64 exec, 0xffffffff",
                  f"buffer_load_dwordx4 v{vH}, s[{sXr}:{sXr+3}], s{sHo} offen lds", "s_mov_b64 exec, -1", f"s_add_u32 s{sHo}, s{sHo}, 128"])
        return interleave(xdma(2048), W)
    def dma_now(both=True):
        for g in part1() + (part2() if both else []):
            for l in g: k(l)
    dma_now(); k(f"s_add_u32 s{sSt}, s{sSt}, {STG}")
    k(f"""
    s_or_b32 s{sT}, s2, s{sW}
    s_cmp_lg_u32 s{sT}, 0
    s_cbranch_scc1 {lab}_nn
    s_memrealtime s[{sT}:{sT+1}]
    v_mov_b32 v{T}, 0
    s_waitcnt lgkmcnt(0)
    s_or_b32 s{sT}, s{sT}, 1
    v_mov_b32 v{T+1}, s{sT}
    s_mov_b64 exec, 1
    global_store_dword v{T}, v{T+1}, s[{sDBG}:{sDBG+1}] sc1
    s_mov_b64 exec, -1
    {lab}_nn:
    """)
    lane_parts(k)
    vX = [8, 11]; vS = [9, 12]; vW = [10, 13]
    k(f"""
    v_mov_b32 v{vX[0]}, v{T}
    v_xor_b32 v{vX[1]}, 64, v{T}
    v_add_u32 v{vS[0]}, s{sXl}, v{vX[0]}
    v_add_u32 v{vS[1]}, s{sXl}, v{vX[1]}
    s_and_b32 s{sT}, s{sW}, 1
    s_lshl_b32 s{sT}, s{sT}, 5
    v_xor_b32 v{T+2}, s{sT}, v{T+2}
    s_lshr_b32 s{sT}, s{sW}, 1
    s_lshl_b32 s{sT}, s{sT}, 12
    s_add_u32 s{sT}, s{sT}, {XW}
    v_add_u32 v{vW[0]}, s{sT}, v{T+2}
    v_add_u32 v{vW[1]}, 2048, v{vW[0]}
    """)
    bases = [[8, 9, 10], [11, 12, 13]]
    dma_now(); k(f"s_add_u32 s{sSt}, s{sSt}, {STG}")
    fX = lambda sg, a: FR + sg*60 + a*4
    fW = lambda sg, j: FR + sg*60 + 36 + j*4
    fS = lambda sg, a: FR + sg*60 + 52 + a*4
    tG = lambda a: XA + a*8; tS = lambda a: XA + a*8 + 4
    tQ = lambda a: ACC + (a-1)*4; tK = lambda a: ACC + 32 + a*4; tV = lambda a: ACC + 68 + a*4
    tC = lambda j: XA + 24 + j*4
    for r in range(4): k(f"v_mov_b32 v{ONES+r}, 0x3f803f80")
    for r in range(104): k(f"v_mov_b32 v{ACC+r}, 0")
    for r in range(32): k(f"v_mov_b32 v{Z+r}, 0")
    for r in range(40): k(f"v_accvgpr_write_b32 {vr(XA+r, 1)}, 0")
    dma_now(False); k(f"s_mov_b32 s{sSt}, 0")
    nb = bulk(k, name, lab, True, pitch, 3)
    def reads(sg):
        return ([f"ds_read_b64_tr_b16 {vr(fW(sg, j) + 2*j2, 2)}, v{vW[sg]} offset:{j*8192 + j2*256}" for j in range(4) for j2 in range(2)]
                + [f"ds_read_b128 {vr(fX(sg, a))}, v{vX[sg]} offset:{a*2048}" for a in range(9)]
                + [f"ds_read_b128 {vr(fS(sg, a))}, v{vS[sg]} offset:{2048 + a*2048}" for a in range(2)])
    def mfmas(sg):
        L = []
        for a in range(9):
            if a: L.append(mf(tQ(a), fW(sg, 0), fX(sg, a)))
            L.append(mf(tK(a), fW(sg, 1), fX(sg, a))); L.append(mf(tV(a), fX(sg, a), fW(sg, 2)))
            if a: L.append(mf(Z + 4*(a-1), fW(sg, 3), fX(sg, a)))
        L += [mf(tG(2), fX(sg, 0), fX(sg, 0)), mf(tS(2), ONES, fX(sg, 0))]
        for a in range(2): L += [mf(tG(a), fS(sg, a), fS(sg, a)), mf(tS(a), ONES, fS(sg, a))]
        return L + [mf(tC(j), ONES, fW(sg, j)) for j in range(4)]
    adv = lambda sg: [f"v_add_u32 v{r}, s{sDelta}, v{r}" for r in bases[sg]]
    k(f"s_mov_b32 s{sI}, 0\ns_waitcnt vmcnt({19 + nb})\ns_barrier")
    k.stamp(1)
    for l in reads(0): k(l)
    k("s_waitcnt lgkmcnt(0)")
    loop1(k, lab, hooks, True, STG, mfmas, reads, adv, lambda: part1() + pf_xw(pitch, 6) + pf_sp(True), part2, 16, 10, pf_sp())
    k.stamp(2)
    k("s_barrier")
    k.lg.q = []; k.vm.q = ["E0"]*8 + ["pf"] + ["E1"]*8 + ["pf"] + ["E2"]*8 + ["pf"]
    for _ in range(OPT.get("pfd", 0)):
        for l in pf_sp()[0]: k(l)
        k.vm.issue("pf")
    if OPT["pf3"] == 5:
        hooks["pf3A"](k)
        for _ in range(3): k.vm.issue("pf")
    FILL.q, post = f2.stage_groups(k, STG)
    if OPT.get("burst"):
        k.stamp(10); k("s_waitcnt vmcnt(0)"); k.stamp(11); FILL(k, 32); k("s_waitcnt vmcnt(0)"); k.stamp(12)
    row_tables(k, 3, tG, tS,
               f"s_lshl_b32 s{sT}, s{sW}, 7\ns_add_u32 s{sT}, s{sT}, 64\ns_lshl_b32 s{sT+1}, s{sW}, 8\nv_add_u32 v{T+4}, s{sT}, v{T+3}\nv_add_u32 v{T+5}, s{sT+1}, v{T+3}",
               "\n".join(f"ds_write_b32 v{T+5}, {vr(tC(j), 1)} offset:{TC + j*64}" for j in range(4)))
    FILL.flush(k); FILL.q = post
    nonce_check(k, lab)
    k(f"v_lshlrev_b32 v{T+7}, 4, v1\nv_add_u32 v{T+7}, {TOP}, v{T+7}\ns_waitcnt lgkmcnt(0)\ns_barrier")
    k.stamp(3)
    if OPT["pf3"] == 6:
        kk = K("t"); hooks["pf3A"](kk)
        for l in kk.L: k(l.replace(f"s{sT+1}", f"s{sT+9}").replace("v146", "v29").replace("v147", "v30"))
        for _ in range(3): k.vm.issue("pf")
    epi_attn(k, lab, "sc1", tQ, tK, tV, Z)
    FILL.flush(k)
    if OPT["pf3"] == 2: hooks["pf3A"](k)
    after(k, "A")

def var_B(k, name, V, after, hooks):
    lab = f"L_{name}_{V}"; pitch = 3584
    n1 = 4 if V == "B43" else 3; n2 = 7 - n1
    FR, XA = 256, 256 + 64
    k(f"s_lshl_b32 s{sWl}, s{sW}, 10")
    if OPT.get("it0"): k(("s_memtime" if K.diag == "c" else "s_memrealtime") + " s[84:85]\ns_waitcnt lgkmcnt(0)")
    k.stamp(0)
    def dma(ps, tag=None, st=None):
        nw = n1 if ps == 0 else n2
        W = []
        for q in range(nw):
            ld = f"buffer_load_dwordx4 v{vWd}, s[{sWr}:{sWr+3}], s{sWo[ps]} offen offset:{64*q} lds"
            g = [f"s_add_u32 m0, s{sB}, {16384 + q*4096 - 64*q}", ("v", ld, tag) if tag else ld]
            if q == nw - 1: g.append(f"s_add_u32 s{sWo[ps]}, s{sWo[ps]}, {64*pitch}")
            W.append(g)
        sst = f"s{sSt}" if st is None else str(st)
        W[0] = [f"s_add_u32 s{sA}, s{sXl}, {sst}", f"s_add_u32 s{sB}, s{sWl}, {sst}"] + W[0]
        return W
    def dma_now(x=True):
        for g in dma(0) + (xdma(0) if x else []):
            for l in g: k(l)
    dma_now(); k(f"s_add_u32 s{sSt}, s{sSt}, {SB}")
    lane_parts(k)
    vX = [[8, 9], [12, 13]]; vW = [[10, 11], [14, 15]]
    k(f"""
    s_lshl_b32 s{sT}, s{sH}, 6
    v_xor_b32 v{T}, s{sT}, v{T}
    s_lshl_b32 s{sT}, s{sH}, 13
    s_lshl_b32 s{sT+1}, s{sE}, 12
    s_add_u32 s{sT+2}, s{sT}, s{sT+1}
    v_add_u32 v{vX[0][0]}, s{sT+2}, v{T}
    s_sub_u32 s{sT+2}, s{sT}, s{sT+1}
    v_add_u32 v{vX[0][1]}, s{sT+2}, v{T}
    v_xor_b32 v{vX[1][0]}, 64, v{vX[0][0]}
    v_xor_b32 v{vX[1][1]}, 64, v{vX[0][1]}
    s_lshl_b32 s{sT}, s{sH}, 11
    s_lshl_b32 s{sT+2}, s{sE}, 13
    s_add_u32 s{sT+3}, s{sT}, s{sT+2}
    s_add_u32 s{sT+3}, s{sT+3}, 16384
    v_add_u32 v{vW[0][0]}, s{sT+3}, v{T+2}
    v_xor_b32 v{vW[0][1]}, 32, v{vW[0][0]}
    s_lshl_b32 s{sT}, s{sH}, 12
    s_sub_u32 s{sT}, 2048, s{sT}
    v_add_u32 v{vW[1][0]}, s{sT}, v{vW[0][0]}
    v_add_u32 v{vW[1][1]}, s{sT}, v{vW[0][1]}
    """)
    def switch(to3):
        k(f"s_lshl_b32 s{sT+11}, s{sE}, 5")
        k(f"s_lshl_b32 s{sT+10}, s{sE}, 12")
        for sg in range(2):
            k(f"v_xor_b32 v{vW[sg][0]}, s{sT+11}, v{vW[sg][0]}\nv_xor_b32 v{vW[sg][1]}, s{sT+11}, v{vW[sg][1]}")
            k(f"v_subrev_u32 v{vW[sg][0]}, s{sT+10}, v{vW[sg][0]}" if to3 else f"v_add_u32 v{vW[sg][0]}, s{sT+10}, v{vW[sg][0]}")
    if n1 == 3: switch(True)
    bases = [[8, 9, 10, 11], [12, 13, 14, 15]]
    dma_now(); k(f"s_add_u32 s{sSt}, s{sSt}, {SB}")
    fX = lambda sg, a: FR + sg*32 + a*4
    fW = lambda sg, j: FR + sg*32 + 16 + j*4
    tG = lambda a: XA + a*8; tS = lambda a: XA + a*8 + 4
    tC = lambda ps, j: XA + 16 + ps*16 + j*4
    tZ = lambda ps, a, j: ACC + ((0 if ps == 0 else n1)*4 + j*4 + a)*4
    for r in range(4): k(f"v_mov_b32 v{ONES+r}, 0x3f803f80")
    for r in range(n1*16): k(f"v_mov_b32 v{ACC+r}, 0")
    for r in range(16 + n1*4): k(f"v_accvgpr_write_b32 {vr(XA+r, 1)}, 0")
    dma_now(); k(f"s_add_u32 s{sSt}, s{sSt}, {SB}")
    dma_now(False); k(f"s_mov_b32 s{sSt}, 0")
    nb = bulk(k, name, lab, False, pitch, 4)
    def reads(ps, sg, tag=None):
        L = ([f"ds_read_b128 {vr(fX(sg, a))}, v{vX[sg][a >> 1]} offset:{a*2048}" for a in range(4)]
             + [f"ds_read_b64_tr_b16 {vr(fW(sg, j) + 2*j2, 2)}, v{vW[sg][j & 1]} offset:{(j >> 1)*4096 + j2*256}" for j in range(n1 if ps == 0 else n2) for j2 in range(2)])
        return [("d", l, tag) for l in L] if tag else L
    def mfmas(ps, sg, first=False):
        z = lambda d, a, b: mf(d, a, b) if not first else f"v_mfma_f32_16x16x32_bf16 {vr(d)}, {vr(a)}, {vr(b)}, 0"
        nw = n1 if ps == 0 else n2
        L = [z(tZ(ps, a, j), fX(sg, a), fW(sg, j)) if ps == 0 else z(tZ(ps, a, j), fW(sg, j), fX(sg, a)) for j in range(nw) for a in range(4)]
        if ps == 0:
            for a in range(2): L += [mf(tG(a), fX(sg, a), fX(sg, a)), mf(tS(a), ONES, fX(sg, a))]
        if sg == 0: L += [z(tC(ps, j), ONES, fW(sg, j)) for j in range(nw)]
        return L
    adv = lambda sg, d=None: [f"v_add_u32 v{r}, {'s%d' % sDelta if d is None else d}, v{r}" for r in bases[sg]]
    nd1 = 4 + n1
    k(f"s_mov_b32 s{sI}, 0\ns_waitcnt vmcnt({2*nd1 + n1 + nb})\ns_barrier")
    k.stamp(1)
    for l in reads(0, 0): k(l)
    k(f"s_waitcnt lgkmcnt(0)\n.p2align 6\n{lab}_loop:")
    M = mfmas(0, 0); slots = [[] for _ in range(len(M) + 1)]
    for n, l in enumerate(reads(0, 1) + [f"s_cmp_eq_u32 s{sSt}, {3*SB}\ns_cselect_b32 s{sDelta}, {-3*SB}, s{sSTG}"] + adv(0)): slots[n + 1].append(l)
    place_groups(slots, xdma(0), len(M), first=0)
    weave(k, M, slots)
    k(f"s_cmp_ge_u32 s{sI}, 4\ns_waitcnt vmcnt({14 if OPT.get('bk') else 16}) lgkmcnt(0)\ns_barrier\ns_cbranch_scc1 {lab}_d2"); itstamp(k)
    def half2(G):
        M = mfmas(0, 1); slots = [[] for _ in range(len(M) + 1)]
        for n, l in enumerate(reads(0, 0) + adv(1)): slots[min(n + 1, len(M))].append(l)
        place_groups(slots, G, len(M), first=0)
        weave(k, M, slots)
        k(LOOP_TAIL + f"s_cbranch_scc1 {lab}_loop")
    half2(dma(0) + pf_xw(pitch, 12))
    k(f"""
    {lab}_d2:
    s_cmp_eq_u32 s{sI}, 7
    s_cbranch_scc1 {lab}_last
    s_cmp_eq_u32 s{sI}, 4
    s_cbranch_scc0 {lab}_cont
    s_sub_u32 s{sXo[0]}, s{sXo[0]}, 1024
    s_sub_u32 s{sXo[1]}, s{sXo[1]}, 1024
    global_load_dword v{vNon}, v{vZero}, s[{sDBG}:{sDBG+1}] sc1
    {lab}_cont:
    """)
    itstamp(k)
    half2(dma(1) + pf_xw(pitch, 12)[1:])
    k(f"{lab}_last:"); itstamp(k)
    for m in mfmas(0, 1): k(m)
    for l in adv(1): k(l)
    itfinish(k)
    k.stamp(2)
    k.lg.q = []; k.vm.q = ["S9"]*(4 + n2) + ["S10"]*(4 + n2)
    hooks["stageB"](k)

    z4 = n1 == 4
    coff = lambda ps, j: (j*64 if (z4 == (ps == 0)) else 512 + j*64)
    pre = f"""
    s_lshl_b32 s{sT}, s{sH}, 8
    s_lshl_b32 s{sT+3}, s{sE}, 7
    s_add_u32 s{sT}, s{sT}, s{sT+3}
    s_add_u32 s{sT}, s{sT}, 64
    s_lshl_b32 s{sT+1}, s{sE}, 8
    s_mul_i32 s{sT+4}, s{sE}, 192
    s_lshl_b32 s{sT+5}, s{sH}, 10
    s_add_u32 s{sT+2}, s{sT+1 if z4 else sT+4}, s{sT+5}
    s_add_u32 s{sT+5}, s{sT+4 if z4 else sT+1}, s{sT+5}
    v_add_u32 v{T+4}, s{sT}, v{T+3}
    v_add_u32 v{T+5}, s{sT+2}, v{T+3}
    v_add_u32 v{T+6}, s{sT+5}, v{T+3}
    """
    row_tables(k, 2, tG, tS, pre, "\n".join(f"ds_write_b32 v{T+5}, {vr(tC(0, j), 1)} offset:{TC + coff(0, j)}" for j in range(n1)), TOPB)
    nonce_check(k, lab)
    k(f"v_lshlrev_b32 v{T+7}, 4, v1\nv_add_u32 v{T+7}, {TOPB}, v{T+7}\ns_waitcnt lgkmcnt(0)\ns_barrier")
    k.stamp(3)
    vI4, vG16 = T+3, T+7
    c = T; AR, BR = T+8, T+24; C2 = T+40; ST = T+48; tmp = T+80; AL = T+88; ad = T+96
    k(f"""
    s_lshl_b32 s{sT}, s{sH}, 8
    s_add_u32 s{sT}, s{sT}, 64
    s_add_u32 s{sT+2}, s{sT}, s{sT+3}
    s_sub_u32 s{sT+5}, s{sT}, s{sT+3}
    v_add_u32 v{ad}, s{sT+2}, v{vG16}
    v_add_u32 v{ad+1}, s{sT+5}, v{vG16}
    v_add_u32 v{ad+2}, s{sT+2}, v{vI4}
    v_add_u32 v{ad+3}, s{sT+5}, v{vI4}
    v_add_u32 v{ad+4}, s{sT+1 if z4 else sT+4}, v{vI4}
    v_add_u32 v{ad+5}, s{sT+4 if z4 else sT+1}, v{vG16}
    """)
    for a in range(4):
        k.ds(f"ds_read_b128 {vr(AR + a*4)}, v{ad + (a>>1)} offset:{TA + a*64}", "t")
        k.ds(f"ds_read_b128 {vr(BR + a*4)}, v{ad + (a>>1)} offset:{TB + a*64}", "t")
    for j in range(n1):
        for hh in range(2): k.ds(f"ds_read_b32 v{C2 + 2*j + hh}, v{ad+4} offset:{TC + hh*1024 + coff(0, j)}", "t")
    k(f"v_mov_b32 v{c}, {f2h(GC1)}\nv_mov_b32 v{c+1}, {f2h(GC2)}")
    k.wait(lg="t")
    for a in range(4):
        k.ds(f"ds_read_b32 v{AL + a}, v{ad + 2 + (a>>1)} offset:{TA + a*64}", "u")
        k.ds(f"ds_read_b32 v{AL + 4 + a}, v{ad + 2 + (a>>1)} offset:{TB + a*64}", "u")
    for j in range(n1): k(f"v_add_f32 v{C2+2*j}, v{C2+2*j}, v{C2+2*j+1}")
    NF2 = (1, 1, 1, 2) if n1 == 4 else (1, 2, 2, 2)
    prs = lambda ps, p, j: [tZ(ps, 2*p + (i >> 1), j) + 2*(i & 1) for i in range(4)]
    for j in range(n1):
        for p in range(2):
            ys = prs(0, p, j); ab = [(2*p + (i >> 1))*4 + 2*(i & 1) for i in range(4)]
            for i in range(4): k(pk("mul", tmp+2*i, [(BR+ab[i], 0), (C2+2*j, 1)]))
            for i in range(4): k(pk("fma", ys[i], [(AR+ab[i], 0), (ys[i], 0), (tmp+2*i, 0)]))
            gelu_pk(k, ys, c, tmp, NF2)
            for i in range(4):
                s_ = ST + (2*p + (i >> 1))*8 + 2*(i & 1); q_ = s_ + 4
                if j == 0: k(f"v_mov_b32 v{s_}, v{ys[i]}\nv_mov_b32 v{s_+1}, v{ys[i]+1}\n" + pk("mul", q_, [(ys[i], 0), (ys[i], 0)]))
                else: k(pk("add", s_, [(s_, 0), (ys[i], 0)]) + "\n" + pk("fma", q_, [(ys[i], 0), (ys[i], 0), (q_, 0)]))
    k.stamp(4)
    FILL(k, 2)
    for n in range(16): k(f"v_add_f32_dpp v{ST+n}, v{ST+n}, v{ST+n} row_mirror row_mask:0xf bank_mask:0x3")
    for n in range(16): k(f"v_add_f32_dpp v{ST+n}, v{ST+16+n}, v{ST+16+n} row_mirror row_mask:0xf bank_mask:0xc")
    for n in range(8): k(f"v_add_f32_dpp v{ST+n}, v{ST+n}, v{ST+n} row_half_mirror row_mask:0xf bank_mask:0x5")
    for n in range(8): k(f"v_add_f32_dpp v{ST+n}, v{ST+8+n}, v{ST+8+n} row_half_mirror row_mask:0xf bank_mask:0xa")
    for n in range(8): k(f"v_add_f32_dpp v{ST+n}, v{ST+n}, v{ST+n} quad_perm:[1,0,3,2] row_mask:0xf bank_mask:0xf")
    for n in range(8): k(f"v_add_f32_dpp v{ST+n}, v{ST+n}, v{ST+n} quad_perm:[2,3,0,1] row_mask:0xf bank_mask:0xf")
    k(f"""
    v_lshrrev_b32 v{tmp}, 2, v2
    s_lshl_b32 s{sT+6}, s{sE}, 1
    v_xor_b32 v{tmp}, s{sT+6}, v{tmp}
    v_lshl_add_u32 v{tmp}, v{tmp}, 6, v{vG16}
    s_lshl_b32 s{sT+6}, s{sE}, 10
    s_lshl_b32 s{sT+7}, s{sH}, 8
    s_add_u32 s{sT+6}, s{sT+6}, s{sT+7}
    v_add_u32 v{tmp}, s{sT+6}, v{tmp}
    """)
    k.ds(f"ds_write_b128 v{tmp}, {vr(ST)} offset:{PS}", "ps"); k.ds(f"ds_write_b128 v{tmp}, {vr(ST+4)} offset:{PS + 512}", "ps")
    k(f"""
    v_and_b32 v{tmp+1}, 31, v0
    s_lshl_b32 s{sT+6}, s{sW}, 7
    s_add_u32 s{sT+6}, s{sT+6}, {TOPB}
    v_lshl_add_u32 v{tmp+1}, v{tmp+1}, 2, s{sT+6}
    s_add_u32 s{sXs}, s{sWS}, {XS_OFF}
    s_addc_u32 s{sXs+1}, s{sWS+1}, 0
    s_mov_b32 s{sXs+2}, {XS_SZ}
    s_mov_b32 s{sXs+3}, 0x20000
    s_lshl_b32 s{sT+8}, s{sRB}, 14
    s_lshl_b32 s{sT+6}, s{sCQ}, 12
    s_add_u32 s{sT+6}, s{sT+6}, {0 if z4 else 2048}
    s_add_u32 s{sT+6}, s{sT+6}, s{sT+8}
    s_lshl_b32 s{sT+7}, s{sW}, 9
    s_add_u32 s{sT+6}, s{sT+6}, s{sT+7}
    v_mov_b32 v{ST+10}, s{sNON}
    v_mov_b32 v{ST+11}, s{sNON}
    """)
    switch(z4)
    FILL.flush(k)
    k("s_waitcnt lgkmcnt(0)\ns_barrier"); k.lg.q = []
    for n, o in enumerate((0, 512, 1024, 1536)): k.ds(f"ds_read_b32 v{ST + (8, 9, 12, 13)[n]}, v{tmp+1} offset:{PS + o}", "pr")
    for it in reads(1, 0, "F0"): emit(k, it)
    k.wait(lg="pr")
    k(pk("add", ST+8, [(ST+8, 0), (ST+12, 0)]) + "\ns_mov_b64 exec, 0xffffffff")
    k.vmem(f"buffer_store_dwordx4 {vr(ST+8)}, v{vL16}, s[{sXs}:{sXs+3}], s{sT+6} offen sc1", "pub")
    k("s_mov_b64 exec, -1")
    k(f"""
    s_lshl_b32 s{sT+6}, s{sH}, 10
    s_add_u32 s{sT+6}, s{sT+6}, s{sT+8}
    s_add_u32 s{sT+7}, s{sT+6}, 4096
    s_add_u32 s{sT+8}, s{sT+6}, 8192
    s_add_u32 s{sT+9}, s{sT+6}, 12288
    s_lshl_b32 s{sT}, s{sW}, 9
    s_add_u32 s{sT+2}, s{sT}, {TOPB}
    v_lshl_add_u32 v{ad+2}, v0, 2, s{sT+2}
    s_add_u32 s{sT+2}, s{sT}, s{sT+3}
    s_sub_u32 s{sT}, s{sT}, s{sT+3}
    v_add_u32 v{ad}, s{sT+2}, v{vG16}
    v_add_u32 v{ad+1}, s{sT}, v{vG16}
    s_mov_b32 s{sPr}, s{sWS}
    s_mov_b32 s{sPr+1}, s{sWS+1}
    s_mov_b32 s{sPr+2}, {Z2F_SZ}
    s_mov_b32 s{sPr+3}, 0x20000
    s_lshl_b32 s{sT}, s{sRB}, 1
    s_add_u32 s{sT}, s{sT}, s{sH}
    s_mul_i32 s{sT}, s{sT}, 112
    s_mul_i32 s{sT+2}, s{sCQ}, 14
    s_add_u32 s{sT}, s{sT}, s{sT+2}
    s_mul_i32 s{sT+2}, s{sE}, 56
    s_add_u32 s{sT+5}, s{sT}, s{sT+2}
    s_sub_u32 s{sT+10}, s{sT}, s{sT+2}
    s_add_u32 s{sT+10}, s{sT+10}, 56
    s_lshl_b32 s{sT+5}, s{sT+5}, 10
    s_lshl_b32 s{sT+10}, s{sT+10}, 10
    s_lshl_b32 s{sT+1}, s{sT+1}, 4                 ; 4e*1024
    s_lshl_b32 s{sT+4}, s{sT+4}, 4
    s_add_u32 s{sT+4}, s{sT+4}, 8192               ; (8+3e)*1024
    s_add_u32 s{sT}, s{sT+5}, s{sT+1 if z4 else sT+4}
    s_add_u32 s{sT+2}, s{sT+10}, s{sT+1 if z4 else sT+4}
    s_add_u32 s{sT+5}, s{sT+5}, s{sT+4 if z4 else sT+1}
    s_add_u32 s{sT+10}, s{sT+10}, s{sT+4 if z4 else sT+1}
    s_mov_b32 s{sT+11}, 0
    """)
    sZ2o, sZ1o = [sT, sT+2], [sT+5, sT+10]
    k.stamp(5)
    G = T+8; NR, NM = T+48, T+64
    polls = [f"buffer_load_dwordx4 {vr(G+4*x)}, v{vL16}, s[{sXs}:{sXs+3}], s{sT+6+(x>>1)} offen offset:{(x&1)*2048} sc1" for x in range(8)]
    chk = [f"v_xor_b32 v{G+4*x+3}, s{sNON}, v{G+4*x+2}" for x in range(8)] + [
        f"v_or3_b32 v{G+3}, v{G+3}, v{G+7}, v{G+11}", f"v_or3_b32 v{G+15}, v{G+15}, v{G+19}, v{G+23}",
        f"v_or3_b32 v{G+3}, v{G+3}, v{G+27}, v{G+31}", f"v_or_b32 v{G+3}, v{G+3}, v{G+15}", f"v_cmp_ne_u32 vcc, 0, v{G+3}"]
    rnd = lambda r: [f"v_cvt_pk_bf16_f32 v{r}, v{r}, v{r}", f"v_and_b32 v{r}, 0xffff0000, v{r}"]
    fin = ([f"v_add_f32 v{G+8*i+e}, v{G+8*i+e}, v{G+8*i+4+e}" for i in range(4) for e in range(2)]
           + [f"v_add_f32 v{G+16*i+e}, v{G+16*i+e}, v{G+16*i+8+e}" for i in range(2) for e in range(2)]
           + [f"v_add_f32 v{G+e}, v{G+e}, v{G+16+e}" for e in range(2)]
           + [f"v_mul_f32 v{G+e}, {f2h(1/896)}, v{G+e}" for e in range(2)]
           + [f"v_fma_f32 v{G+1}, -v{G}, v{G}, v{G+1}", f"v_max_f32 v{G+1}, 0, v{G+1}"] + rnd(G+1)
           + [f"v_add_f32 v{G+1}, {f2h(1e-5)}, v{G+1}"] + rnd(G+1) + [f"v_sqrt_f32 v{G+1}, v{G+1}"] + rnd(G) + rnd(G+1)
           + [f"v_rcp_f32 v{G+1}, v{G+1}", "s_nop 0", f"v_mul_f32 v{G}, -v{G}, v{G+1}",
              ("d", f"ds_write_b32 v{ad+2}, v{G+1} offset:{NT}", "nw"), ("d", f"ds_write_b32 v{ad+2}, v{G} offset:{NT + 256}", "nw")])
    nrd = [("d", f"ds_read_b128 {vr((NR, NM)[x] + a*4)}, v{ad + (a>>1)} offset:{NT + 256*x + a*64}", "nr") for a in range(4) for x in range(2)]
    norm = []
    for p in range(2):
        for j in range(n1):
            ys = prs(0, p, j); ab = [(2*p + (i >> 1))*4 + 2*(i & 1) for i in range(4)]
            norm += [pk("fma", ys[i], [(ys[i], 0), (NR+ab[i], 0), (NM+ab[i], 0)]) for i in range(4)]
            norm += [f"v_cvt_pk_bf16_f32 v{tZ(0, 2*p, j)+i}, v{ys[i]}, v{ys[i]+1}" for i in range(4)]
            norm.append(("v", f"buffer_store_dwordx4 {vr(tZ(0, 2*p, j))}, v{vL16}, s[{sPr}:{sPr+3}], s{sZ2o[p]} offen offset:{j*1024} sc1", "z2st"))
    TP, TC_ = OPT.get("tp", 0), OPT.get("tc", 3)
    work = []
    def spread(slots, nM, per, start=0):
        nonlocal work
        for i in range(start, nM + 1):
            for _ in range(per):
                if work: slots[i].append(work.pop(0))
    for t in range(8):
        st = t % 4; dlt = SB if st < 3 else -3*SB
        M = mfmas(1, 0, first=(t == 0)); slots = [[] for _ in range(len(M) + 1)]
        slots[0].append(("w", None, "F0"))
        for n, it in enumerate(reads(1, 1, "F1") + (adv(0, dlt) if t < 7 else [])): slots[min(n + 1, len(M))].append(it)
        if t == 0: place_groups(slots, dma(1, "S11", 3*SB) + xdma(0, "S11"), len(M), first=0)
        if 1 <= t <= 4: place_groups(slots, xdma(0, f"S{11+t}"), len(M), first=0)
        spread(slots, len(M), 2, 1)
        weave(k, M, slots)
        if t < 7:
            k.wait(vm=f"S{9+t}", lg="F1"); k("s_barrier")
        else: k.wait(lg="F1")
        if OPT.get("p2t"): k(f"s_memtime s[{84+2*t}:{85+2*t}]\ns_waitcnt lgkmcnt(0)"); k.lg.q = []
        if t == OPT.get("zt", 99): hooks["z2flag"](k, V)
        if t == TC_:
            k.wait(vm="poll")
            for l in chk: k(l)
            k(f"s_nop 3\ns_cbranch_vccnz {lab}_slow\n{lab}_got:")
            work += fin
        if t == TC_ + 1 and not OPT.get("nq"): work += [("w", None, "nw")] + nrd
        if t == TC_ + 1 and OPT.get("nq"):
            for it in work + [("w", None, "nw")] + nrd + [("w", None, "nr")] + norm: emit(k, it)
            work = []
        if t == TC_ + 2 and not OPT.get("nq"):
            for it in work + [("w", None, "nr")] + norm: emit(k, it)
            work = []
        M = mfmas(1, 1); slots = [[] for _ in range(len(M) + 1)]
        if t < 7:
            for n, it in enumerate(reads(1, 0, "F0") + adv(1, dlt)): slots[min(n + 1, len(M))].append(it)
        G_ = dma(1, f"S{12+t}", st*SB) if t < 4 else []
        if G_: place_groups(slots, G_, len(M), first=0)
        if t in (TP, TP + 1):
            for n, l in enumerate(polls[4*(t - TP):4*(t - TP) + 4]): slots[2 + n*(len(M) - 2)//4].append(("v", l, "poll"))
        spread(slots, len(M), 2 if t >= 5 else 1, 1)
        weave(k, M, slots)
    for it in work: emit(k, it)
    k(f"s_branch {lab}_p2end\n{lab}_slow:\ns_sleep 2")
    for l in polls: k(l)
    k(f"s_add_u32 s{sT+11}, s{sT+11}, 1\ns_waitcnt vmcnt(0)")
    for l in chk: k(l)
    k(f"s_nop 3\ns_cmp_gt_u32 s{sT+11}, 100000\ns_cbranch_scc1 {lab}_got\ns_cbranch_vccnz {lab}_slow\ns_branch {lab}_got\n{lab}_p2end:")
    k.stamp(6)
    for j in range(n2): k.ds(f"ds_write_b32 v{T+6}, {vr(tC(1, j), 1)} offset:{TC + coff(1, j)}", "cw")
    k(f"s_add_u32 s{sOr}, s{sWS}, {Z1L_OFF}\ns_addc_u32 s{sOr+1}, s{sWS+1}, 0\ns_mov_b32 s{sOr+2}, {Z1L_SZ}\ns_mov_b32 s{sOr+3}, 0x20000")
    k("s_waitcnt lgkmcnt(0)\ns_barrier"); k.lg.q = []
    C1 = T+8
    for j in range(n2):
        for hh in range(2): k.ds(f"ds_read_b128 {vr(C1 + 8*j + 4*hh)}, v{ad+5} offset:{TC + hh*1024 + coff(1, j)}", f"c{j}")
    hooks["stageB2"](k)
    for j in range(n2):
        k.wait(lg=f"c{j}")
        for i in range(2): k(pk("add", C1+8*j+2*i, [(C1+8*j+2*i, 0), (C1+8*j+4+2*i, 0)]))
        for p in range(2):
            ys = prs(1, p, j)
            for i in range(4): k(pk("mul", tmp+2*i, [(C1+8*j+2*(i & 1), 0), (AL+4+2*p+(i >> 1), 1)]))
            for i in range(4): k(pk("fma", ys[i], [(ys[i], 0), (AL+2*p+(i >> 1), 1), (tmp+2*i, 0)]))
            gelu_pk(k, ys, c, tmp, OPT.get('nf3', (1, 1, 1, 1)))
            for i in range(4): k(f"v_cvt_pk_bf16_f32 v{tZ(1, 2*p, j)+i}, v{ys[i]}, v{ys[i]+1}")
            k.vmem(f"buffer_store_dwordx4 {vr(tZ(1, 2*p, j))}, v{vL16}, s[{sOr}:{sOr+3}], s{sZ1o[p]} offen offset:{j*1024} sc1", "p1st")
            if j == 0 and p == OPT.get("zf", 0) and OPT.get("zt", 99) > 7: hooks["z2flag"](k, V)
    FILL.flush(k)
    after(k, V)

def var_S(k, name, V, after, hooks):
    lab = f"L_{name}_{V}"; pitch = 3584
    z4 = V == "B43"
    n1 = 4 if z4 else 3; n2 = 5 - n1
    NU = 5
    LATE = OPT.get('late')
    PFA = OPT.get('pfa')
    pf_sp = (lambda: []) if PFA else globals()['pf_sp']
    FR, XA = 256, 256 + 112
    k(f"s_lshl_b32 s{sWl}, s{sW}, 10\ns_mov_b32 s{sSTG}, {STG}")
    if OPT.get("it0"): k(("s_memtime" if K.diag == "c" else "s_memrealtime") + " s[84:85]\ns_waitcnt lgkmcnt(0)")
    k.stamp(0)
    def dma():
        W = []
        for q in range(5):
            so, imm = (sWo[0], 64*q) if q < n1 else (sWo[1], 64*(q - n1))
            g = [f"s_add_u32 m0, s{sB}, {XW + q*4096 - imm}", f"buffer_load_dwordx4 v{vWd}, s[{sWr}:{sWr+3}], s{so} offen offset:{imm} lds"]
            if q in (n1 - 1, 4): g.append(f"s_add_u32 s{so}, s{so}, {64*pitch}")
            W.append(g)
        W[0] = [f"s_add_u32 s{sA}, s{sSt}, s{sXl}", f"s_add_u32 s{sB}, s{sSt}, s{sWl}"] + W[0]
        return W
    def dma_now(both=True):
        for g in dma() + (xdma(2048) if both else []):
            for l in g: k(l)
    dma_now(); k(f"s_add_u32 s{sSt}, s{sSt}, {STG}")
    lane_parts(k)
    vX = [[8, 9], [14, 15]]; vW = [[10, 11, 12, 13], [16, 17, 29, 30]]
    k(f"""
    s_lshl_b32 s{sT}, s{sH}, 6
    v_xor_b32 v{T}, s{sT}, v{T}
    s_lshl_b32 s{sT}, s{sH}, 13
    s_add_u32 s{sT}, s{sT}, 2048
    s_lshl_b32 s{sT+1}, s{sE}, 12
    s_add_u32 s{sT+2}, s{sT}, s{sT+1}
    v_add_u32 v{vX[0][0]}, s{sT+2}, v{T}
    s_sub_u32 s{sT+2}, s{sT}, s{sT+1}
    v_add_u32 v{vX[0][1]}, s{sT+2}, v{T}
    v_xor_b32 v{vX[1][0]}, 64, v{vX[0][0]}
    v_xor_b32 v{vX[1][1]}, 64, v{vX[0][1]}
    s_lshl_b32 s{sT}, s{sH}, 11
    s_add_u32 s{sT}, s{sT}, {XW}
    s_lshl_b32 s{sT+2}, s{sE}, 13
    s_add_u32 s{sT+3}, s{sT}, s{sT+2}            ; + 2e strips
    s_add_u32 s{sT+5}, s{sT}, s{sT+1}            ; + e strips
    s_lshl_b32 s{sT+4}, s{sE}, 5
    v_xor_b32 v{T+1}, s{sT+4}, v{T+2}
    """)
    if z4: k(f"v_add_u32 v{vW[0][0]}, s{sT+3}, v{T+2}\nv_xor_b32 v{vW[0][1]}, 32, v{vW[0][0]}\nv_add_u32 v{vW[0][2]}, s{sT}, v{T+1}\nv_mov_b32 v{vW[0][3]}, v{vW[0][2]}")
    else: k(f"v_add_u32 v{vW[0][0]}, s{sT+5}, v{T+1}\nv_xor_b32 v{T+1}, 32, v{T+1}\nv_add_u32 v{vW[0][1]}, s{sT+3}, v{T+1}\nv_add_u32 v{vW[0][2]}, s{sT+5}, v{T+2}\nv_xor_b32 v{vW[0][3]}, 32, v{vW[0][2]}")
    k(f"""
    s_lshl_b32 s{sT}, s{sH}, 12
    s_sub_u32 s{sT}, 2048, s{sT}
    """)
    for n in range(4): k(f"v_add_u32 v{vW[1][n]}, s{sT}, v{vW[0][n]}")
    bases = [vX[0] + vW[0], vX[1] + vW[1]]
    dma_now(); k(f"s_add_u32 s{sSt}, s{sSt}, {STG}")
    fX = lambda sg, a: FR + sg*56 + a*4
    fW = lambda sg, j: FR + sg*56 + 16 + j*4
    tG = lambda a: XA + a*8; tS = lambda a: XA + a*8 + 4
    tC = lambda j: XA + 16 + j*4
    tZ = lambda a, j: ACC + (j*4 + a)*4
    isz2 = lambda j: j < n1
    J2 = list(range(n1)); J1 = list(range(n1, 5))
    wad = lambda sg, j: (vW[sg][j & 1], (j >> 1)*4096) if j < n1 else (vW[sg][2 + j - n1], n1*4096)
    for r in range(4): k(f"v_mov_b32 v{ONES+r}, 0x3f803f80")
    for r in range(80): k(f"v_mov_b32 v{ACC+r}, 0")
    for r in range(36): k(f"v_accvgpr_write_b32 {vr(XA+r, 1)}, 0")
    dma_now(False); k(f"s_mov_b32 s{sSt}, 0")
    nb = bulk(k, name, lab, False, pitch, 3, 0 if z4 else 320)
    def reads(sg):
        return ([f"ds_read_b128 {vr(fX(sg, a))}, v{vX[sg][a >> 1]} offset:{a*2048}" for a in range(4)]
                + [f"ds_read_b64_tr_b16 {vr(fW(sg, j) + 2*j2, 2)}, v{wad(sg, j)[0]} offset:{wad(sg, j)[1] + j2*256}" for j in range(5) for j2 in range(2)])
    def mfmas(sg):
        L = [mf(tZ(a, j), fX(sg, a), fW(sg, j)) if isz2(j) else mf(tZ(a, j), fW(sg, j), fX(sg, a)) for j in range(5) for a in range(4)]
        for a in range(2): L += [mf(tG(a), fX(sg, a), fX(sg, a)), mf(tS(a), ONES, fX(sg, a))]
        return L + ([mf(tC(j), ONES, fW(sg, j)) for j in range(5)] if sg == 0 else [])
    adv = lambda sg: [f"v_add_u32 v{r}, s{sDelta}, v{r}" for r in bases[sg]]
    k(f"s_mov_b32 s{sI}, 0\ns_waitcnt vmcnt({14 + nb})\ns_barrier")
    k.stamp(1)
    for l in reads(0): k(l)
    RL = {}
    def rl(k2):
        e_, RL["late"] = h3.relayout(k2, sRB, sCQ, 0 if z4 else 1)
        return e_
    k("s_waitcnt lgkmcnt(0)")
    loop1(k, lab, hooks, False, STG, mfmas, reads, adv, lambda: dma() + pf_xw(pitch, 12), lambda: xdma(2048), 11, 5, [], land=False, extra=rl)
    k.stamp(2)
    k("s_barrier")
    k.lg.q = []; k.vm.q = ["E0"]*8 + ["E1"]*8 + ["E2"]*8
    if LATE:
        k.vm.q = ["non"] + ["RL"]*4; post = f2.stage_late(k)
        FILL.q = [RL["late"][0], [], [], RL["late"][1]]
    else: FILL.q, post = f2.stage_groups(k, STG)
    if OPT.get("burst"):
        k.stamp(10); k("s_waitcnt vmcnt(0)"); k.stamp(11); FILL(k, 32); k("s_waitcnt vmcnt(0)"); k.stamp(12)
    coff = lambda j: (j*64 if j < n1 else 512 + (j - n1)*64)
    pre = f"""
    s_lshl_b32 s{sT}, s{sH}, 8
    s_lshl_b32 s{sT+3}, s{sE}, 7
    s_add_u32 s{sT}, s{sT}, s{sT+3}
    s_add_u32 s{sT}, s{sT}, 64
    s_mul_i32 s{sT+1}, s{sE}, {64*n1}
    s_mul_i32 s{sT+4}, s{sE}, {64*n2}
    s_lshl_b32 s{sT+5}, s{sH}, 10
    s_add_u32 s{sT+2}, s{sT+1}, s{sT+5}
    s_add_u32 s{sT+5}, s{sT+4}, s{sT+5}
    v_add_u32 v{T+4}, s{sT}, v{T+3}
    v_add_u32 v{T+5}, s{sT+2}, v{T+3}
    v_add_u32 v{T+6}, s{sT+5}, v{T+3}
    """
    row_tables(k, 2, tG, tS, pre, "\n".join(f"ds_write_b32 v{T+5 if j < n1 else T+6}, {vr(tC(j), 1)} offset:{TC + coff(j)}" for j in range(5)))
    FILL.flush(k); FILL.q = post; k.wait(vm="non")
    nonce_check(k, lab)
    k(f"v_lshlrev_b32 v{T+7}, 4, v1\nv_add_u32 v{T+7}, {TOP}, v{T+7}\ns_waitcnt lgkmcnt(0)\ns_barrier")
    k.lg.q = []
    k.stamp(3)
    vI4, vG16 = T+3, T+7
    c = T; AR, BR = T+8, T+24; C2 = T+40; ST = T+48; tmp = T+80; AL = T+88; ad = T+96
    k(f"""
    s_lshl_b32 s{sT}, s{sH}, 8
    s_add_u32 s{sT}, s{sT}, 64
    s_add_u32 s{sT+2}, s{sT}, s{sT+3}
    s_sub_u32 s{sT+5}, s{sT}, s{sT+3}
    v_add_u32 v{ad}, s{sT+2}, v{vG16}
    v_add_u32 v{ad+1}, s{sT+5}, v{vG16}
    v_add_u32 v{ad+2}, s{sT+2}, v{vI4}
    v_add_u32 v{ad+3}, s{sT+5}, v{vI4}
    v_add_u32 v{ad+4}, s{sT+1}, v{vI4}
    v_add_u32 v{ad+5}, s{sT+4}, v{vG16}
    """)
    for a in range(4):
        k.ds(f"ds_read_b128 {vr(AR + a*4)}, v{ad + (a>>1)} offset:{TA + a*64}", "t")
        k.ds(f"ds_read_b128 {vr(BR + a*4)}, v{ad + (a>>1)} offset:{TB + a*64}", "t")
    for n, j in enumerate(J2):
        for hh in range(2): k.ds(f"ds_read_b32 v{C2 + 2*n + hh}, v{ad+4} offset:{TC + hh*1024 + coff(j)}", "t")
    k(f"v_mov_b32 v{c}, {f2h(GC1)}\nv_mov_b32 v{c+1}, {f2h(GC2)}")
    k.wait(lg="t")
    for a in range(4):
        k.ds(f"ds_read_b32 v{AL + a}, v{ad + 2 + (a>>1)} offset:{TA + a*64}", "u")
        k.ds(f"ds_read_b32 v{AL + 4 + a}, v{ad + 2 + (a>>1)} offset:{TB + a*64}", "u")
    for n in range(n1): k(f"v_add_f32 v{C2+2*n}, v{C2+2*n}, v{C2+2*n+1}")
    prs = lambda p, j: [tZ(2*p + (i >> 1), j) + 2*(i & 1) for i in range(4)]
    NF = OPT.get("nf", (1, 1, 1, 0))
    for n, j in enumerate(J2):
        for p in range(2):
            ys = prs(p, j); ab = [(2*p + (i >> 1))*4 + 2*(i & 1) for i in range(4)]
            for i in range(4): k(pk("mul", tmp+2*i, [(BR+ab[i], 0), (C2+2*n, 1)]))
            for i in range(4): k(pk("fma", ys[i], [(AR+ab[i], 0), (ys[i], 0), (tmp+2*i, 0)]))
            gelu_pk(k, ys, c, tmp, NF)
            for i in range(4):
                s_ = ST + (2*p + (i >> 1))*8 + 2*(i & 1); q_ = s_ + 4
                if n == 0: k(f"v_mov_b32 v{s_}, v{ys[i]}\nv_mov_b32 v{s_+1}, v{ys[i]+1}\n" + pk("mul", q_, [(ys[i], 0), (ys[i], 0)]))
                else: k(pk("add", s_, [(s_, 0), (ys[i], 0)]) + "\n" + pk("fma", q_, [(ys[i], 0), (ys[i], 0), (q_, 0)]))
    k.stamp(4)
    C1 = T+8
    for n, j in enumerate(J1):
        for hh in range(2): k.ds(f"ds_read_b128 {vr(C1 + 8*n + 4*hh)}, v{ad+5} offset:{TC + hh*1024 + coff(j)}", "u")
    for n in range(16): k(f"v_add_f32_dpp v{ST+n}, v{ST+n}, v{ST+n} row_mirror row_mask:0xf bank_mask:0x3")
    for n in range(16): k(f"v_add_f32_dpp v{ST+n}, v{ST+16+n}, v{ST+16+n} row_mirror row_mask:0xf bank_mask:0xc")
    for n in range(8): k(f"v_add_f32_dpp v{ST+n}, v{ST+n}, v{ST+n} row_half_mirror row_mask:0xf bank_mask:0x5")
    for n in range(8): k(f"v_add_f32_dpp v{ST+n}, v{ST+8+n}, v{ST+8+n} row_half_mirror row_mask:0xf bank_mask:0xa")
    for n in range(8): k(f"v_add_f32_dpp v{ST+n}, v{ST+n}, v{ST+n} quad_perm:[1,0,3,2] row_mask:0xf bank_mask:0xf")
    for n in range(8): k(f"v_add_f32_dpp v{ST+n}, v{ST+n}, v{ST+n} quad_perm:[2,3,0,1] row_mask:0xf bank_mask:0xf")
    k(f"""
    v_lshrrev_b32 v{tmp}, 2, v2
    s_lshl_b32 s{sT+6}, s{sE}, 1
    v_xor_b32 v{tmp}, s{sT+6}, v{tmp}
    v_lshl_add_u32 v{tmp}, v{tmp}, 6, v{vG16}
    s_lshl_b32 s{sT+6}, s{sE}, 10
    s_lshl_b32 s{sT+7}, s{sH}, 8
    s_add_u32 s{sT+6}, s{sT+6}, s{sT+7}
    v_add_u32 v{tmp}, s{sT+6}, v{tmp}
    ds_write_b128 v{tmp}, {vr(ST)} offset:{PS}
    ds_write_b128 v{tmp}, {vr(ST+4)} offset:{PS + 512}
    v_and_b32 v{tmp+1}, 31, v0
    s_lshl_b32 s{sT+6}, s{sW}, 7
    s_add_u32 s{sT+6}, s{sT+6}, {TOP}
    v_lshl_add_u32 v{tmp+1}, v{tmp+1}, 2, s{sT+6}
    s_add_u32 s{sXs}, s{sWS}, {XS_OFF}
    s_addc_u32 s{sXs+1}, s{sWS+1}, 0
    s_mov_b32 s{sXs+2}, {XS_SZ}
    s_mov_b32 s{sXs+3}, 0x20000
    s_lshl_b32 s{sT+8}, s{sRB}, 14
    s_lshl_b32 s{sT+6}, s{sCQ}, 12
    s_add_u32 s{sT+6}, s{sT+6}, {0 if z4 else 2048}
    s_add_u32 s{sT+6}, s{sT+6}, s{sT+8}
    s_lshl_b32 s{sT+7}, s{sW}, 9
    s_add_u32 s{sT+6}, s{sT+6}, s{sT+7}
    v_mov_b32 v{ST+10}, s{sNON}
    v_mov_b32 v{ST+11}, s{sNON}
    s_waitcnt lgkmcnt(0)
    s_barrier
    """)
    k.lg.q = []
    for n, o in enumerate((0, 512, 1024, 1536)): k.ds(f"ds_read_b32 v{ST + (8, 9, 12, 13)[n]}, v{tmp+1} offset:{PS + o}", "pr")
    for n in range(n2):
        for i in range(2): k(pk("add", C1+8*n+2*i, [(C1+8*n+2*i, 0), (C1+8*n+4+2*i, 0)]))
    k.wait(lg="pr")
    k(pk("add", ST+8, [(ST+8, 0), (ST+12, 0)]) + "\ns_mov_b64 exec, 0xffffffff")
    k.vmem(f"buffer_store_dwordx4 {vr(ST+8)}, v{vL16}, s[{sXs}:{sXs+3}], s{sT+6} offen sc1", "pub")
    k("s_mov_b64 exec, -1")
    k(f"""
    s_lshl_b32 s{sT+6}, s{sH}, 10
    s_add_u32 s{sT+6}, s{sT+6}, s{sT+8}
    s_add_u32 s{sT+7}, s{sT+6}, 4096
    s_add_u32 s{sT+8}, s{sT+6}, 8192
    s_add_u32 s{sT+9}, s{sT+6}, 12288
    s_lshl_b32 s{sT}, s{sW}, 9
    s_add_u32 s{sT+2}, s{sT}, {TOP}
    v_lshl_add_u32 v{ad+2}, v0, 2, s{sT+2}
    s_add_u32 s{sT+2}, s{sT}, s{sT+3}
    s_sub_u32 s{sT}, s{sT}, s{sT+3}
    v_add_u32 v{ad}, s{sT+2}, v{vG16}
    v_add_u32 v{ad+1}, s{sT}, v{vG16}
    s_mov_b32 s{sPr}, s{sWS}
    s_mov_b32 s{sPr+1}, s{sWS+1}
    s_mov_b32 s{sPr+2}, {Z2F_SZ}
    s_mov_b32 s{sPr+3}, 0x20000
    s_add_u32 s{sOr}, s{sWS}, {Z1L_OFF}
    s_addc_u32 s{sOr+1}, s{sWS+1}, 0
    s_mov_b32 s{sOr+2}, {Z1L_SZ}
    s_mov_b32 s{sOr+3}, 0x20000
    s_lshl_b32 s{sT}, s{sRB}, 1
    s_add_u32 s{sT}, s{sT}, s{sH}
    s_mul_i32 s{sT}, s{sT}, 112
    s_mul_i32 s{sT+2}, s{sCQ}, 14
    s_add_u32 s{sT}, s{sT}, s{sT+2}
    s_mul_i32 s{sT+2}, s{sE}, 56
    s_add_u32 s{sT+5}, s{sT}, s{sT+2}
    s_sub_u32 s{sT+10}, s{sT}, s{sT+2}
    s_add_u32 s{sT+10}, s{sT+10}, 56
    s_lshl_b32 s{sT+5}, s{sT+5}, 10
    s_lshl_b32 s{sT+10}, s{sT+10}, 10
    s_lshl_b32 s{sT+1}, s{sT+1}, 4
    s_lshl_b32 s{sT+4}, s{sT+4}, 4
    s_add_u32 s{sT+1}, s{sT+1}, {0 if z4 else 8192}
    s_add_u32 s{sT+4}, s{sT+4}, {8192 if z4 else 10240}
    s_add_u32 s{sT}, s{sT+5}, s{sT+1}
    s_add_u32 s{sT+2}, s{sT+10}, s{sT+1}
    s_add_u32 s{sT+5}, s{sT+5}, s{sT+4}
    s_add_u32 s{sT+10}, s{sT+10}, s{sT+4}
    s_mov_b32 s{sT+11}, 0
    """)
    sZ2o, sZ1o = [sT, sT+2], [sT+5, sT+10]
    def z1_block(n, p, nf):
        j = J1[n]; ys = prs(p, j)
        for i in range(4): k(pk("mul", tmp+2*i, [(C1+8*n+2*(i & 1), 0), (AL+4+2*p+(i >> 1), 1)]))
        for i in range(4): k(pk("fma", ys[i], [(ys[i], 0), (AL+2*p+(i >> 1), 1), (tmp+2*i, 0)]))
        gelu_pk(k, ys, c, tmp, nf)
        for i in range(4): k(f"v_cvt_pk_bf16_f32 v{tZ(2*p, j)+i}, v{ys[i]}, v{ys[i]+1}")
    blocks = [(n, p) for n in range(n2) for p in range(2)]
    NA, NB = min(OPT.get("za", 2), len(blocks)), OPT.get("zb", 2)
    G = T+40; NR, NM = T+48, T+64
    polls = [f"buffer_load_dwordx4 {vr(G+4*x)}, v{vL16}, s[{sXs}:{sXs+3}], s{sT+6+(x>>1)} offen offset:{(x&1)*2048} sc1" for x in range(8)]
    chk = [f"v_xor_b32 v{G+4*x+3}, s{sNON}, v{G+4*x+2}" for x in range(8)] + [
        f"v_or3_b32 v{G+3}, v{G+3}, v{G+7}, v{G+11}", f"v_or3_b32 v{G+15}, v{G+15}, v{G+19}, v{G+23}",
        f"v_or3_b32 v{G+3}, v{G+3}, v{G+27}, v{G+31}", f"v_or_b32 v{G+3}, v{G+3}, v{G+15}", f"v_cmp_ne_u32 vcc, 0, v{G+3}"]
    for b_ in blocks[:NA]: z1_block(*b_, OPT.get("nfa", (1, 1, 1, 1)))
    FILL(k, OPT.get("zp", 8))
    for l in polls: k.vmem(l, "poll")
    z1st = lambda n, p: k.vmem(f"buffer_store_dwordx4 {vr(tZ(2*p, J1[n]))}, v{vL16}, s[{sOr}:{sOr+3}], s{sZ1o[p]} offen offset:{n*1024} sc1", "p1st")
    done = 0
    if OPT.get("es", 1):
        for b_ in blocks[:NA]: z1st(*b_)
        done = NA
    for b_ in blocks[NA:NA + NB]:
        z1_block(*b_, OPT.get("nfb", (1, 1, 1, 1)))
        if OPT.get("es", 1): z1st(*b_); done += 1
    FILL(k, OPT.get("zq", 8))
    k.stamp(5)
    k.wait(vm="poll")
    k(f"s_branch {lab}_chk\n{lab}_slow:\ns_sleep {OPT.get('sl2', 0)}")
    for l in polls: k(l)
    k(f"s_add_u32 s{sT+11}, s{sT+11}, 1\ns_waitcnt vmcnt(0)\n{lab}_chk:")
    for l in chk: k(l)
    k(f"s_nop 3\ns_cmp_gt_u32 s{sT+11}, 100000\ns_cbranch_scc1 {lab}_got\ns_cbranch_vccnz {lab}_slow\n{lab}_got:")
    for i in range(4): k(pk("add", G+8*i, [(G+8*i, 0), (G+8*i+4, 0)]))
    for i in range(2): k(pk("add", G+16*i, [(G+16*i, 0), (G+16*i+8, 0)]))
    k(pk("add", G, [(G, 0), (G+16, 0)]))
    k(f"v_mul_f32 v{G}, {f2h(1/896)}, v{G}\nv_mul_f32 v{G+1}, {f2h(1/896)}, v{G+1}\nv_fma_f32 v{G+1}, -v{G}, v{G}, v{G+1}\nv_max_f32 v{G+1}, 0, v{G+1}")
    bf16_round(k, G+1, G+1); k(f"v_add_f32 v{G+1}, {f2h(1e-5)}, v{G+1}"); bf16_round(k, G+1, G+1)
    k(f"v_sqrt_f32 v{G+1}, v{G+1}"); bf16_round(k, G, G); bf16_round(k, G+1, G+1)
    k(f"v_rcp_f32 v{G+1}, v{G+1}\nv_mul_f32 v{G}, -v{G}, v{G+1}")
    k.ds(f"ds_write_b32 v{ad+2}, v{G+1} offset:{NT}", "nw"); k.ds(f"ds_write_b32 v{ad+2}, v{G} offset:{NT + 256}", "nw")
    k.wait(lg="nw")
    for a in range(4):
        k.ds(f"ds_read_b128 {vr(NR + a*4)}, v{ad + (a>>1)} offset:{NT + a*64}", f"n{a>>1}")
        k.ds(f"ds_read_b128 {vr(NM + a*4)}, v{ad + (a>>1)} offset:{NT + 256 + a*64}", f"n{a>>1}")
    for p in range(2):
        k.wait(lg=f"n{p}")
        for n, j in enumerate(J2):
            ys = prs(p, j); ab = [(2*p + (i >> 1))*4 + 2*(i & 1) for i in range(4)]
            for i in range(4): k(pk("fma", ys[i], [(ys[i], 0), (NR+ab[i], 0), (NM+ab[i], 0)]))
            for i in range(4): k(f"v_cvt_pk_bf16_f32 v{tZ(2*p, j)+i}, v{ys[i]}, v{ys[i]+1}")
            k.vmem(f"buffer_store_dwordx4 {vr(tZ(2*p, j))}, v{vL16}, s[{sPr}:{sPr+3}], s{sZ2o[p]} offen offset:{n*1024} sc1", "z2st")
    k.stamp(6)
    for b_ in blocks[NA + NB:NA + NB + 2]: z1_block(*b_, OPT.get("nf2", (1, 1, 1, 1)))
    FILL(k, OPT.get("zc", 6))
    if OPT["pf3"] == 4: kk = K("t"); hooks["pf3A"](kk); [k(l.replace(f"s{sT+5}", "s90").replace(f"s{sT+6}", "s91").replace(f"s{sT+7}", "s92").replace(f"s{sT+1}", "s93").replace(f"s{sT}", "s94")) for l in kk.L]; [k.vm.issue("pf3") for _ in range(3)]
    k.stamp(7)
    hooks["z2flag"](k, V)
    k.stamp(8)
    for b_ in blocks[NA + NB + 2:]: z1_block(*b_, (1, 1, 1, 1))
    for b_ in blocks[done:]: z1st(*b_)
    FILL.flush(k)
    if OPT["pf3"] == 3: hooks["pf3A"](k)
    after(k, V)
```

```python
from asmlib import *
from layout import *
from f1 import pk, P, vL16, TOP
from f2 import WREG, sRB2, sCB, sReg, sA3
sWf, sXr3, sOr3 = sR0, sR2, sR4
vRW, vRR, vX = 8, [9, 10], 11
vA = [vL16, 6]
XD = 12; ACC = 32
AO = 256 + 128; WO = 256 + 192; WH = 256; AH = 96
sAo = [3, 10, 100, 78]; sXo = [79, 80]; sWo = 101; sNB = 77
P3O = {}

def relayout(k, sRBp, sCQp, c8odd):
    b, t, u = 75, 76, sR1
    sb, so1, so2, sd = sT + 11, 74, 75, 26
    F = 112; vd, vt = 140, [141, 142]
    k(f"""
    s_lshl_b32 s{sb}, s{sRBp}, 2
    s_add_u32 s{sb}, s{sb}, s{sCQp}
    s_lshl_b32 s{sb}, s{sb}, 3
    s_add_u32 s{sb}, s{sb}, {4*c8odd}
    s_add_u32 s{sb}, s{sb}, s{sW}              ; beta
    s_lshr_b32 s{so1}, s{sb}, 3                ; kappa
    s_lshl_b32 s{sd}, s{sb}, 12
    s_and_b32 s{sb}, s{sb}, 7
    s_lshl_b32 s{sb}, s{sb}, 7
    s_sub_u32 s{so2}, s{so1}, 16
    s_cmp_lt_u32 s{so1}, 16
    s_cselect_b32 s{u}, s{sWO}, s{sWOUT}
    s_cselect_b32 s{u+1}, s{sWO+1}, s{sWOUT+1}
    s_cselect_b32 s{so1}, s{so1}, s{so2}
    s_mov_b32 s{u+2}, {896*1024}
    s_cselect_b32 s{u+2}, {512*1024}, s{u+2}
    s_mov_b32 s{u+3}, 0x20000
    s_lshl_b32 s{so1}, s{so1}, 15
    s_add_u32 s{so1}, s{so1}, s{sb}
    s_add_u32 s{so2}, s{so1}, 16384
    s_lshl_b32 s{sb}, s{sW}, 12
    s_add_u32 s3, s{sb}, {TOP + 8192}
    v_and_b32 v{vt[0]}, 1, v1
    v_lshlrev_b32 v{vt[0]}, 1, v{vt[0]}
    v_and_b32 v{vd}, 3, v0
    v_xor_b32 v{vd}, v{vd}, v{vt[0]}
    v_lshlrev_b32 v{vd}, 4, v{vd}
    v_lshrrev_b32 v{vt[1]}, 2, v0
    v_lshl_add_u32 v{vd}, v{vt[1]}, 10, v{vd}
    v_bfe_u32 v143, v0, 1, 1
    v_xor_b32 v{vt[0]}, v{vt[0]}, v143
    v_lshlrev_b32 v{vt[0]}, 4, v{vt[0]}
    v_lshl_add_u32 v{vt[0]}, v{vt[1]}, 6, v{vt[0]}
    v_and_b32 v143, 1, v0
    v_lshl_add_u32 v{vt[0]}, v143, 3, v{vt[0]}
    v_add_u32 v{vt[0]}, s3, v{vt[0]}
    v_xor_b32 v{vt[1]}, 32, v{vt[0]}
    """)
    early = [[("i", f"s_add_u32 m0, s3, {q*2048 + m2*1024 - 64*q}"), ("i", "s_nop 0"),
              ("v", f"buffer_load_dwordx4 v{vd}, s[{u}:{u+3}], s{(so1, so2)[m2]} offen offset:{64*q} lds", "RL")] for q in range(2) for m2 in range(2)]
    rd = [("w", "RL", None)] + [("d", f"ds_read_b64_tr_b16 {vr(F + j*4 + j2*2, 2)}, v{vt[j&1]} offset:{(j>>1)*2048 + j2*1024}", "RR") for j in range(4) for j2 in range(2)]
    st = [("i", f"s_add_u32 s{u}, s{sWS}, {W3F_OFF}\ns_addc_u32 s{u+1}, s{sWS+1}, 0\ns_mov_b32 s{u+2}, {W3F_SZ}"), ("w", None, "RR")] + \
         [("v", f"buffer_store_dwordx4 {vr(F + j*4)}, v{vL16}, s[{u}:{u+3}], s{sd} offen offset:{j*1024} sc1", "RS") for j in range(4)]
    return early, [rd, st]

def early_setup(k):
    k(f"""
    s_xor_b32 s{sNB}, s{sCB}, {P3O.get('nbx', 0)}
    s_lshl_b32 s{sWo}, s{sW}, 5
    s_add_u32 s{sWo}, s{sWo}, s{sNB}
    s_lshl_b32 s{sWo}, s{sWo}, 12              ; (4w*8 + nb)*4096
    s_mul_i32 s{sAo[0]}, s{sRB2}, 176
    s_lshl_b32 s{sAo[1]}, s{sW}, 2
    s_add_u32 s{sAo[0]}, s{sAo[0]}, s{sAo[1]}
    s_lshl_b32 s{sAo[0]}, s{sAo[0]}, 10
    s_add_u32 s{sAo[1]}, s{sAo[0]}, {44*1024}
    s_add_u32 s{sAo[2]}, s{sAo[0]}, {88*1024}
    s_add_u32 s{sAo[3]}, s{sAo[0]}, {132*1024}
    """)
def gW(s):
    r = WO + 16*s if s < 4 else WH + 16*(s - 4)
    G = [[("v", f"buffer_load_dwordx4 {vr(r + 4*j)}, v{vL16}, s[{sWf}:{sWf+3}], s{sWo} offen offset:{j*1024} sc1", f"W{s}")] for j in range(4)]
    G[-1].append(("i", f"s_add_u32 s{sWo}, s{sWo}, 32768" if s != 3 else f"s_mul_i32 s{sT+5}, s{sW}, {3*32768}\ns_add_u32 s{sWo}, s{sWo}, s{sT+5}\ns_add_u32 s{sWo}, s{sWo}, {13*32768}"))
    return G
def tail(k):
    k(f"s_add_u32 s{sWf}, s{sWS}, {W3F_OFF}\ns_addc_u32 s{sWf+1}, s{sWS+1}, 0\ns_mov_b32 s{sWf+2}, {W3F_SZ}\ns_mov_b32 s{sWf+3}, 0x20000")
    gO = lambda t: [[("v", f"buffer_load_dwordx4 {vr(AO + t*16 + u*4)}, v{vL16}, s[{sA3}:{sA3+3}], s{sAo[u]} offen offset:{t*1024} sc1", f"A{t}")] for u in range(4)]
    return sum([gW(t) + gO(t) for t in range(4)], [])

def gen_p3(k, name, flag, wait_h, st_pol="sc1"):
    def em(gs):
        for g in gs:
            for it in g:
                if it[0] == "i": k(it[1])
                else: k.vmem(it[1], it[2])
    later = sum([gW(s) for s in range(4, 11)], [])
    NE, NS_, FP = P3O.get("ne", 4), P3O.get("ns", 2), P3O.get("fp", 1)
    em(later[:NE]); later = later[NE:]
    mf = lambda s, u, j, W, A: f"v_mfma_f32_16x16x32_bf16 {vr(ACC + (u*4+j)*4)}, {vr(W + j*4)}, {vr(A + u*4)}, {vr(ACC + (u*4+j)*4) if s else '0'}"
    k.wait(vm="A3")
    for s in range(4):
        for j in range(4):
            for u in range(4): k(mf(s, u, j, WO + 16*s, AO + 16*s))
            if j < (NS_ if s <= FP else 4) and later: em([later.pop(0)])
        if s == FP: flag(k)
    em(later)
    k(f"""
    s_lshl_b32 s{sNB}, s{sNB}, 7
    v_mul_u32_u24 v13, 272, v2
    v_lshl_add_u32 v13, v1, 4, v13
    v_add_u32 v{vRW}, s{sReg}, v13
    v_lshrrev_b32 v13, 3, v0
    v_and_b32 v14, 7, v0
    v_mul_u32_u24 v15, 272, v13
    v_lshl_add_u32 v15, v14, 5, v15
    s_mul_i32 s{sT+2}, s{sW}, 4352
    s_add_u32 s{sT+2}, s{sT+2}, 0
    v_add_u32 v{vRR[0]}, s{sT+2}, v15
    v_add_u32 v{vRR[1]}, {2*WREG}, v{vRR[0]}
    v_lshlrev_b32 v14, 4, v14
    v_lshl_add_u32 v{vX}, v13, 10, v14
    s_lshl_b32 s{sT+1}, s{sRB2}, 2
    s_add_u32 s{sT+1}, s{sT+1}, s{sW}
    s_lshl_b32 s{sT+1}, s{sT+1}, 14
    s_add_u32 s{sXo[0]}, s{sT+1}, s{sNB}
    s_add_u32 s{sXo[1]}, s{sXo[0]}, 8192
    s_mul_i32 s{sT+1}, s{sW}, 3
    s_add_u32 s{sT+1}, s{sT+1}, 16
    s_lshl_b32 s{sT+1}, s{sT+1}, 10
    """)
    for u in range(4): k(f"s_add_u32 s{sAo[u]}, s{sAo[u]}, s{sT+1}")
    k.srd(sXr3, sX, 2048*1024)
    for i2 in range(2):
        k.vmem(f"buffer_load_dwordx4 {vr(XD + 4*i2)}, v{vX}, s[{sXr3}:{sXr3+3}], s{sXo[i2]} offen", "x")
    k("s_barrier")
    k.stamp(6)
    wait_h(k)
    for s in range(7):
        for u in range(4):
            k.vmem(f"buffer_load_dwordx4 {vr(AH + s*16 + u*4)}, v{vA[s//4]}, s[{sA3}:{sA3+3}], s{sAo[u]} offen offset:{(s%4)*1024} sc1", f"H{s}_{u}")
    XU = 208
    for i2 in range(2):
        for d in range(4):
            k(f"v_lshlrev_b32 v{XU + i2*8 + 2*d}, 16, v{XD + i2*4 + d}\nv_and_b32 v{XU + i2*8 + 2*d + 1}, 0xffff0000, v{XD + i2*4 + d}")
    wr = lambda u: [f"ds_write_b128 v{vRW}, {vr(ACC + (u*4+j)*4)} offset:{u*4352 + j*64}" for j in range(4)]
    for s in range(7):
        for u in range(4):
            k.wait(vm=f"H{s}_{u}")
            for j in range(4):
                k(mf(1, u, j, WH + 16*s, AH + 16*s))
                if s == 6 and u >= 2: k(wr(u - 2)[j])
    k.stamp(7)
    for l in wr(2) + wr(3): k(l)
    k("s_waitcnt lgkmcnt(0)\ns_barrier"); k.lg.q = []
    R = 96
    for i2 in range(2):
        for src in range(4):
            for hf in range(2):
                k.ds(f"ds_read_b128 {vr(R + i2*32 + src*8 + hf*4)}, v{vRR[src>>1]} offset:{(src&1)*WREG + i2*8*272 + hf*16}", f"r{i2}")
    for i2 in range(2):
        k.wait(lg=f"r{i2}")
        b = R + i2*32
        for e in range(0, 8, 2): k(pk("add", b+e, [(b+e, 0), (b+8+e, 0)]))
        for e in range(0, 8, 2): k(pk("add", b+16+e, [(b+16+e, 0), (b+24+e, 0)]))
        for e in range(0, 8, 2): k(pk("add", b+e, [(b+e, 0), (XU+i2*8+e, 0)]))
        for e in range(0, 8, 2): k(pk("add", b+e, [(b+e, 0), (b+16+e, 0)]))
        for d in range(4): k(f"v_cvt_pk_bf16_f32 v{XD + i2*4 + d}, v{b+2*d}, v{b+2*d+1}")
        k(f"buffer_store_dwordx4 {vr(XD + i2*4)}, v{vX}, s[{sOr3}:{sOr3+3}], s{sXo[i2]} offen {st_pol}")
```

```python
import sys
sys.path.insert(0, "gen")
from build import *
from layout import *
import f1, f2, g1
import h3 as f3
NAME = "parallel_sum__sliding_local_dilated__mixer_gmlp__prompt_kernel"
args = sys.argv[2:]
K.diag = "c" if "c" in args else "h" if "h" in args else ("d" in args)
kv = dict(a.split("=") for a in args if "=" in a)
for o in args:
    if o not in 'dch' and '=' not in o: f1.OPT[o] = 1
K.dbgslot = 0
pol = lambda n, d: kv.get(n, d).replace("_", " ").replace("-", "")
k = K(NAME); n = "F"
real_stamp = K.stamp
PH = {"p": 1}
MAP = {1: {0: 0, 2: 1}, 2: {3: 4}, 3: {6: 6}}
P1D = "p1" in args
if P1D: MAP = {1: {0: 0, 2: 1, 3: 2, 4: 3, 5: 4, 6: 5}}
if "it" in args or "p2t" in args: MAP = {}; P1D = True; PH["direct"] = None
if "p1b" in args: P1D = True; MAP = {1: {2: 0, 4: 1, 5: 2, 6: 3, 7: 4, 8: 5}}
if "burst" in args: P1D = True; MAP = {1: {2: 0, 10: 1, 11: 2, 12: 3, 3: 4, 4: 5}}
P3D = "p3" in args
if P3D: MAP = {2: {3: 0, 4: 1}, 3: {6: 4, 7: 6}}
_rs = real_stamp
def real_stamp(k, i):
    if P3D:
        if i in (5, 8, 9): _rs(k, {5: 2, 8: 3, 9: 5}[i])
        return
    if i > 7: return
    if PH.get("direct", 1) is None: return
    if P1D and PH.get("direct", True):
        if i == 2: _rs(k, 6)
        if i == 3: _rs(k, 7)
    else: _rs(k, i)
def stamp(self, i):
    m = MAP.get(PH["p"], {})
    if i in m: _rs(self, m[i])
K.stamp = stamp
sFl = sR4
def flag_srd(k, s):
    k(f"s_add_u32 s{s}, s{sWS}, {FL_OFF}\ns_addc_u32 s{s+1}, s{sWS+1}, 0\ns_mov_b32 s{s+2}, {FL_SZ}\ns_mov_b32 s{s+3}, 0x20000")
def set_flag(k, lab, soff_code, lanes, vstride_shift, tag=None, so=sT):
    if tag: k.wait(vm=tag)
    else: k("s_waitcnt vmcnt(0)"); k.vm.q = []
    flag_srd(k, sFl)
    k(soff_code)
    k(f"s_lshl_b32 s{so+1}, s{sW}, 6\ns_add_u32 s{so}, s{so}, s{so+1}")
    k(f"v_lshlrev_b32 v28, {vstride_shift}, v0\nv_mov_b32 v29, s{sNON}\ns_mov_b64 exec, {(1 << lanes) - 1}")
    k(f"buffer_store_dword v29, v28, s[{sFl}:{sFl+3}], s{so} offen sc1\ns_mov_b64 exec, -1")
    k.vm.issue("flag")
sFD = 59
def z2flag(k, V):
    code = f"s_lshl_b32 s{sT}, s{f1.sRB}, 2\ns_add_u32 s{sT}, s{sT}, s{f1.sCQ}\ns_lshl_b32 s{sT}, s{sT}, 9\ns_add_u32 s{sT}, s{sT}, {FZ2 + (0 if V == 'B43' else 256)}"
    set_flag(k, f"L_{n}_fz{V}", code, 1, 2, tag="z2st")
f1.OPT["z2flag"] = z2flag
def after1(k, V):
    real_stamp(k, 2)
    PH["V"] = V
    if V == "A":
        k(f"s_lshl_b32 s{sFD}, s{f1.sRB}, 4\ns_add_u32 s{sFD}, s{sFD}, s{f1.sSUB}\ns_lshl_b32 s{sFD}, s{sFD}, 8")
    else:
        k(f"s_lshl_b32 s{sFD}, s{f1.sRB}, 3\ns_add_u32 s{sFD}, s{sFD}, s{f1.sCQ}\ns_lshl_b32 s{sFD}, s{sFD}, 9\ns_add_u32 s{sFD}, s{sFD}, {2048 + (0 if V == 'B43' else 256)}")
    k(f"s_lshl_b32 s{sT}, s{sW}, 6\ns_add_u32 s{sFD}, s{sFD}, s{sT}\ns_add_u32 s{sFD}, s{sFD}, {FD}")
    if V == "B43" or (V == "B34" and f2.NJA == 7): k(f"s_branch L_{n}_p2{'A' if f2.NJA == 7 else 'B'}")
    elif V == "B34": p2(14 - f2.NJA, "B", TWO)
    if V == "A": p2(f2.NJA, "A", False)
def poll(k, lab, loads, nreg):
    flag_srd(k, sFl)
    loads(k, True)
    sl = int(kv.get("slp", 0))
    k(f"s_mov_b32 s{sT+10}, 0\ns_branch {lab}_1st\n{lab}:\ns_sleep {sl}\n{lab}_1st:" if sl else f"s_mov_b32 s{sT+10}, 0\n{lab}:")
    loads(k, False)
    k(f"s_add_u32 s{sT+10}, s{sT+10}, 1\ns_waitcnt vmcnt(0)")
    for r in range(nreg): k(f"v_xor_b32 v{28+r}, s{sNON}, v{28+r}")
    for r in range(1, nreg): k(f"v_or_b32 v28, v28, v{28+r}")
    k(f"v_cmp_ne_u32 vcc, 0, v28\ns_nop 3\ns_cmp_gt_u32 s{sT+10}, 100000\ns_cbranch_scc1 {lab}_go\ns_cbranch_vccnz {lab}\n{lab}_go:\ns_mov_b64 exec, -1")
    k.vm.q = []
def wait_z2(k, nm):
    def loads(k, pre):
        if pre: k(f"s_lshl_b32 s{sT+8}, s{sW}, 13\ns_lshr_b32 s{sT+9}, s{f2.sCB}, 2\ns_lshl_b32 s{sT+9}, s{sT+9}, 10\ns_add_u32 s{sT+8}, s{sT+8}, s{sT+9}\nv_lshlrev_b32 v26, 11, v1\nv_and_b32 v27, 15, v0\nv_lshl_add_u32 v26, v27, 6, v26")
        else: k(f"buffer_load_dword v28, v26, s[{sFl}:{sFl+3}], s{sT+8} offen offset:{FZ2} sc1")
    poll(k, f"L_{nm}_pz", loads, 1)
    real_stamp(k, 3)
def mid_load(k):
    return [("i", f"""s_add_u32 s{sFl}, s{sWS}, {FL_OFF}
    s_addc_u32 s{sFl+1}, s{sWS+1}, 0
    s_mov_b32 s{sFl+2}, {FL_SZ}
    s_mov_b32 s{sFl+3}, 0x20000
    s_lshr_b32 s{sT+9}, s{f2.sRB2}, 1
    s_lshl_b32 s{sT+9}, s{sT+9}, 12
    s_add_u32 s{sT+9}, s{sT+9}, {FD}
    v_lshlrev_b32 v27, 6, v0
    s_mov_b32 s{sT+10}, 0
    v_min_u32 v26, 10, v0
    s_lshl_b32 s{sT+5}, s{sW}, 2
    s_mul_i32 s{sT+6}, s{sW}, 7
    s_add_u32 s{sT+6}, s{sT+6}, 12
    v_add_u32 v24, s{sT+5}, v26
    v_add_u32 v25, s{sT+6}, v26
    v_cmp_gt_u32 vcc, 4, v26
    v_cndmask_b32 v26, v25, v24, vcc
    v_lshl_add_u32 v26, v26, 3, s{f3.sNB}
    v_lshrrev_b32 v24, 5, v26
    v_and_b32 v26, 31, v26
    v_lshlrev_b32 v26, 6, v26
    v_lshl_add_u32 v26, v24, 12, v26
    s_mov_b32 s{sT+5}, {FD + 2048}"""), ("v", f"buffer_load_dword v28, v27, s[{sFl}:{sFl+3}], s{sT+9} offen sc1", "fz1"),
    ("v", f"buffer_load_dword v29, v26, s[{sFl}:{sFl+3}], s{sT+5} offen sc1", "fz1")]
def mid_check(k, nm):
    lab = f"L_{nm}_pd"
    return [("i", f"""s_branch {lab}_chk
    {lab}:
    s_sleep 2
    buffer_load_dword v28, v27, s[{sFl}:{sFl+3}], s{sT+9} offen sc1
    buffer_load_dword v29, v26, s[{sFl}:{sFl+3}], s{sT+5} offen sc1
    s_add_u32 s{sT+10}, s{sT+10}, 1
    s_waitcnt vmcnt(0)
    {lab}_chk:
    v_xor_b32 v28, s{sNON}, v28
    v_xor_b32 v29, s{sNON}, v29
    v_or_b32 v28, v28, v29
    v_cmp_ne_u32 vcc, 0, v28
    s_nop 3
    s_cmp_gt_u32 s{sT+10}, 100000
    s_cbranch_scc1 {lab}_go
    s_cbranch_vccnz {lab}
    {lab}_go:""")]
def done2(k): real_stamp(k, 5)
def flag2(k):
    code = f"s_lshl_b32 s{sT}, s{f2.sRB2}, 11\ns_lshl_b32 s{sT+1}, s{f2.sCB}, 8\ns_add_u32 s{sT}, s{sT}, s{sT+1}\ns_add_u32 s{sT}, s{sT}, {FH}"
    set_flag(k, f"L_{n}_flh", code, 1, 2, tag="hs")
    real_stamp(k, 8)
def wait_h(k):
    def loads(k, pre):
        if pre: k(f"s_lshl_b32 s{sT+8}, s{f2.sRB2}, 11\ns_lshr_b32 s{sT+9}, s{sW}, 1\ns_lshl_b32 s{sT+9}, s{sT+9}, 10\ns_add_u32 s{sT+8}, s{sT+8}, s{sT+9}\ns_add_u32 s{sT+8}, s{sT+8}, {FH}\nv_lshlrev_b32 v27, 6, v0")
        else: k(f"s_mov_b64 exec, 0xffff\nbuffer_load_dword v28, v27, s[{sFl}:{sFl+3}], s{sT+8} offen sc1")
    poll(k, f"L_{n}_ph", loads, 1)
    k.srd(f3.sOr3, sOUT, 2048*1024)
    real_stamp(k, 9)
f1.OPT["bulk"] = (pol("bulk", "-") or 1) if kv.get("bulk") != "0" else 0
def pre2(k):
    f3.early_setup(k)
    if int(kv.get('pf3', 2)) == 1: pf3_setup(k)
def pf3_setup(k):
    k(f"""
    s_lshr_b32 s{sT}, s2, 3
    s_lshl_b32 s{sT}, s{sT}, 2
    s_add_u32 s{sT}, s{sT}, s{sW}
    s_and_b32 s{sT+1}, s2, 1
    s_lshl_b32 s{sT+1}, s{sT+1}, 9
    v_lshrrev_b32 v24, 2, v0
    v_and_b32 v29, 3, v0
    v_lshlrev_b32 v29, 7, v29
    v_lshl_add_u32 v24, v24, 10, v29
    s_mul_i32 s{sT+5}, s{sT}, 7168
    s_add_u32 s{sT+5}, s{sT+5}, s{sT+1}
    s_lshl_b32 s{sT+6}, s{sT}, 12
    s_add_u32 s{sT+6}, s{sT+6}, s{sT+1}
    s_bfe_u32 s{sT+7}, s2, 0x20001
    s_lshl_b32 s{sT+7}, s{sT+7}, 19
    s_add_u32 s{sT+7}, s{sT+7}, s{sT+6}
    """)
def pf3(s):
    if s == 3:
        return [[("i", f"s_add_u32 s{sFl}, s{sWS}, {FL_OFF}\ns_addc_u32 s{sFl+1}, s{sWS+1}, 0\ns_mov_b32 s{sFl+2}, {FL_SZ}\ns_mov_b32 s{sFl+3}, 0x20000\nv_mov_b32 v29, s{sNON}\nv_mov_b32 v30, 0\ns_mov_b64 exec, 1"),
                 ("v", f"buffer_store_dword v29, v30, s[{sFl}:{sFl+3}], s{sFD} offen sc1", "fd"), ("i", "s_mov_b64 exec, -1")]]
    if s > 2 or int(kv.get("pf3", 2)) != 1: return []
    base, sz, so, ex = [(sWO, 512*1024, sT+6, 0xffff), (sWOUT, 896*1024, sT+5, 0xfffffff), (sX, 2048*1024, sT+7, 0xffff)][s]
    return [[("i", f"s_mov_b32 s{sR4}, s{base}\ns_mov_b32 s{sR4+1}, s{base+1}\ns_mov_b32 s{sR4+2}, {sz}\ns_mov_b32 s{sR4+3}, 0x20000\ns_mov_b64 exec, {ex}"),
             ("v", f"buffer_load_dword v25, v24, s[{sR4}:{sR4+3}], s{so} offen", "pf3"), ("i", "s_mov_b64 exec, -1")]]
if "nza" in kv: f1.OPT["nza"] = int(kv["nza"])
f1.prologue(k, n)
f2.REST = int(kv.get('rest', 0))
for o in ('nf', 'nf2', 'nfa', 'nfb', 'nf3'):
    if o in kv: f1.OPT[o] = tuple(int(c) for c in kv[o])
def hk(fn):
    def h(k): f1.FILL.q = fn(k)
    return h
for o in ("ne", "ns", "fp", "wl", "nbx"):
    if o in kv: f3.P3O[o] = int(kv[o])
f1.OPT["pfm"] = 2
for o in ("tp", "tc", "zf", "pfm", "za", "zb", "zc", "es", "pfd", "zt", "nq", "zp", "zq", "sl2"):
    if o in kv: f1.OPT[o] = int(kv[o])
def pf3A(k):
    k(f"""
    s_lshr_b32 s{sT}, s2, 5
    s_lshl_b32 s{sT}, s{sT}, 1
    s_bfe_u32 s{sT+1}, s2, 0x10003
    s_add_u32 s{sT}, s{sT}, s{sT+1}
    s_lshl_b32 s{sT}, s{sT}, 2
    s_add_u32 s{sT}, s{sT}, s{sW}
    s_and_b32 s{sT+1}, s2, 1
    s_lshl_b32 s{sT+1}, s{sT+1}, 9
    v_lshrrev_b32 v146, 2, v0
    v_and_b32 v147, 3, v0
    v_lshlrev_b32 v147, 7, v147
    v_lshl_add_u32 v146, v146, 10, v147
    s_mul_i32 s{sT+5}, s{sT}, 14336
    s_add_u32 s{sT+5}, s{sT+5}, s{sT+1}
    s_lshl_b32 s{sT+6}, s{sT}, 13
    s_add_u32 s{sT+6}, s{sT+6}, s{sT+1}
    s_bfe_u32 s{sT+7}, s2, 0x20001
    s_lshl_b32 s{sT+7}, s{sT+7}, 19
    s_add_u32 s{sT+7}, s{sT+7}, s{sT+6}
    """)
    k.srd(sR4, sWOUT, 896*1024)
    k(f"s_mov_b32 exec_hi, 0xffffff\nbuffer_load_dword v28, v146, s[{sR4}:{sR4+3}], s{sT+5} offen")
    k.srd(sR4, sWO, 512*1024)
    k(f"s_mov_b32 exec_hi, 0\nbuffer_load_dword v28, v146, s[{sR4}:{sR4+3}], s{sT+6} offen")
    k.srd(sR4, sX, 2048*1024)
    k(f"buffer_load_dword v28, v146, s[{sR4}:{sR4+3}], s{sT+7} offen\ns_mov_b64 exec, -1")
    return 3
TWO = bool(f1.OPT.get("two"))
def p2(NJ, t, two):
    k(f"L_{n}_p2{t}:")
    PH["p"] = 2
    k("s_waitcnt lgkmcnt(0)\ns_barrier")
    k.vm.q = ["A4", "A5", "A6", "A7"]; k.lg.q = []
    rest = [f2.gA(sl, m) for sl in range(8 - NREST, 8) for m in range(8)] if two and not NOS else []
    f2.gen_p2(k, f"{n}{t}", NJ, wait_z2, f3.tail, (mid_load, mid_check, pf3), pre2, rest, staged=not (two and NOS))
    done2(k)
    if t == "B": k(f"s_branch L_{n}_p3")
    PH["p"] = 1
NOS = "nos" in args
f2.T14, f2.T15 = int(kv.get("t14", 8)), int(kv.get("t15", 16))
f1.OPT["pf3"] = int(kv.get("pf3", 2)); f1.OPT["s2"] = 1; f1.OPT["pfa"] = 1
f2.NJA = int(kv.get("nja", 6))
NREST = int(kv.get("nrest", 4)); f2.NREST = NREST
g1.gen_p1(k, n, after1, dict(pf3A=pf3A, stageB=hk(f2.nostage_B if NOS else f2.stage_groups_B), stageB2=hk(f2.nostage_B2 if NOS else f2.stage_groups_B2), z2flag=z2flag))
k(f"L_{n}_p3:")
k.vm.q = ["A3", "hs"]; k.lg.q = []
PH["p"] = 3
f3.gen_p3(k, n, flag2, wait_h, st_pol=pol("st3", "sc1"))
K.stamp = (lambda self, i: None) if P1D else _rs
k.stamp_end(0, sWS, sW, 7)
k(f"L_{n}_end:\ns_endpgm")
txt = assemble([(k, 512, 256, f1.LDSF)]).replace(f"; @launch kernel={NAME} grid", "; @launch grid")
open(sys.argv[1], "w").write(txt)
check(sys.argv[1], NAME)
```
